```python
import torch

def _softmax(x, axis=-1):
    return torch.softmax(x, dim=axis)

def _gelu(x):
    return torch.nn.functional.gelu(x, approximate='tanh')

def _silu(x):
    return torch.nn.functional.silu(x)

def _sigmoid(x):
    return torch.sigmoid(x)

def _layernorm(x, axis=-1, eps=1e-05):
    m = x.mean(dim=axis, keepdim=True)
    v = x.var(dim=axis, keepdim=True, unbiased=False)
    return (x - m) / torch.sqrt(v + eps)

def _scatter_add(tgt, idx, src, axis=0):
    return tgt.clone().index_add_(axis, idx, src)

def _segment_sum(src, seg, n):
    out = torch.zeros((n,) + src.shape[1:], dtype=src.dtype)
    return out.index_add_(0, seg, src)

def _pad(x, pw):
    flat = tuple((v for pair in reversed(pw) for v in pair))
    return torch.nn.functional.pad(x, flat)
kernel_name = 'adaLN_cond__mha_block__glu_gated_swiglu__prompt'

def setup_inputs():

    _w = lambda a: (lambda t: t.to(torch.bfloat16) if t.is_floating_point() else t)(torch.as_tensor(a))

    def _A_setup():
        B, S, D, H = (1, 2048, 576, 32)
        return {'x': _w((lambda *s: torch.randn(*s, dtype=torch.bfloat16) * 0.05)(B, S, D)), 'wqkv': _w((lambda *s: torch.randn(*s, dtype=torch.bfloat16) * 0.05)(D, 3 * D)), 'wo': _w((lambda *s: torch.randn(*s, dtype=torch.bfloat16) * 0.05)(D, D))}
    _A_in = _A_setup()

    def _B_setup():
        B, S, D, F = (1, 2048, 576, 4608)
        return {'x': _w((lambda *s: torch.randn(*s, dtype=torch.bfloat16) * 0.05)(B, S, D)), 'w1': _w((lambda *s: torch.randn(*s, dtype=torch.bfloat16) * 0.8)(D, F) * (2.0 / D) ** 0.5), 'w3': _w((lambda *s: torch.randn(*s, dtype=torch.bfloat16) * 0.8)(D, F) * (2.0 / D) ** 0.5), 'w2': _w((lambda *s: torch.randn(*s, dtype=torch.bfloat16) * 0.8)(F, D) * (2.0 / F) ** 0.5)}
    _B_in = _B_setup()
    return {'A_x': _A_in['x'], 'A_wqkv': _A_in['wqkv'], 'A_wo': _A_in['wo'], 'B_x': _B_in['x'], 'B_w1': _B_in['w1'], 'B_w3': _B_in['w3'], 'B_w2': _B_in['w2'], 'c': _w((lambda *s: torch.randn(*s, dtype=torch.bfloat16) * 0.2)(1, 576) * 8.0), 'w_mod': _w((lambda *s: torch.randn(*s, dtype=torch.bfloat16) * 0.2)(576, 6 * 576) * 576 ** (-0.5) * 8.0)}

def reference(A_x, A_wqkv, A_wo, B_x, B_w1, B_w3, B_w2, c, w_mod):

    def _A_ref(x, wqkv, wo):
        B, S, D = x.shape
        H = 32
        Dh = D // H
        qkv = (lambda x, *d: x.permute(*d))((x @ wqkv).reshape(B, S, 3, H, Dh), 2, 0, 3, 1, 4)
        q, k, v = (qkv[0], qkv[1], qkv[2])
        scores = torch.einsum('bhqd,bhkd->bhqk', q, k) * Dh ** (-0.5)
        p = _softmax(scores, axis=-1)
        o = torch.einsum('bhqk,bhkd->bhqd', p, v)
        return (lambda x, *d: x.permute(*d))(o, 0, 2, 1, 3).reshape(B, S, D) @ wo

    def _B_ref(x, w1, w3, w2):
        gate = torch.einsum('bsd,df->bsf', x, w1)
        up = torch.einsum('bsd,df->bsf', x, w3)
        h = _silu(gate) * up
        out = torch.einsum('bsf,fd->bsd', h, w2)
        return out
    x = A_x
    mod = (_silu(c) @ w_mod).reshape(c.shape[0], 6, 1, -1)
    sa, ca, ga, sb, cb, gb = (mod[:, 0].clone(), mod[:, 1].clone(), mod[:, 2].clone(), mod[:, 3].clone(), mod[:, 4].clone(), mod[:, 5].clone())
    h = _layernorm(x, axis=-1) * (1 + ca) + sa
    x = x + ga * _A_ref(h, A_wqkv, A_wo)
    h = _layernorm(x, axis=-1) * (1 + cb) + sb
    x = x + gb * _B_ref(h, B_w1, B_w3, B_w2)
    return x
```

```python
import re

class Asm:
    def __init__(self):
        self.lines = []
        self._lab = 0
    def __call__(self, text):
        for ln in text.split("\n"):
            ln = ln.strip()
            if ln:
                self.lines.append(ln)
    def label(self, name):
        self.lines.append(name + ":")
    def newlabel(self, prefix="L"):
        self._lab += 1
        return f"{prefix}_{self._lab}"
    def text(self):
        return "\n".join(self.lines) + "\n"

_REG = re.compile(r"^(-?\|?)(v|s|a)(\d+)(\|?)$")
_RNG = re.compile(r"^(-?\|?)(v|s|a)\[(\d+):(\d+)\](\|?)$")
def regs_of(op):
    op = op.strip()
    if op.startswith("abs(") or op.startswith("neg("):
        op = op[4:-1]
    m = _REG.match(op)
    if m: return {(m.group(2), int(m.group(3)))}
    m = _RNG.match(op)
    if m: return {(m.group(2), i) for i in range(int(m.group(3)), int(m.group(4)) + 1)}
    if op == "vcc": return {("s", "vcc")}
    if op in ("vcc_lo", "vcc_hi"): return {("s", "vcc")}
    if op == "exec": return {("s", "exec")}
    if op == "m0": return {("s", "m0")}
    return set()

def split_ops(s):
    out = []; depth = 0; cur = ""
    for ch in s:
        if ch in "[(": depth += 1
        if ch in "])": depth -= 1
        if ch == "," and depth == 0:
            out.append(cur.strip()); cur = ""
        else:
            cur += ch
    if cur.strip(): out.append(cur.strip())
    return out

TRANS = ("v_exp_", "v_log_", "v_rcp_", "v_rsq_", "v_sqrt_", "v_sin_", "v_cos_")
class Ins:
    __slots__ = ("text", "op", "kind", "w", "r", "ops", "mods", "passes", "srcA", "srcB", "srcC", "dst", "is_trans",
                 "is_dpp", "is_sdwa_dst", "sgpr_const_r", "store_data", "is_lds_dma", "nop", "target", "uncond", "lane_sel", "wide_store")
def parse(line):
    I = Ins(); I.text = line
    I.w = set(); I.r = set(); I.passes = 0; I.srcA = I.srcB = I.srcC = I.dst = set()
    I.is_trans = I.is_dpp = I.is_sdwa_dst = I.is_lds_dma = I.uncond = I.wide_store = False
    I.sgpr_const_r = set(); I.store_data = set(); I.nop = 0; I.target = None; I.lane_sel = set()
    code = line.split(";")[0].strip()
    if not code:
        I.op = ""; I.kind = "dir"; return I
    if code.endswith(":"):
        I.op = code[:-1]; I.kind = "label"; return I
    if code.startswith("."):
        I.op = code; I.kind = "dir"; return I
    parts = code.split(None, 1)
    op = parts[0]; I.op = op
    rest = parts[1] if len(parts) > 1 else ""
    ops = split_ops(rest)
    mods = ""
    if ops:
        last = ops[-1].split(None, 1)
        if len(last) > 1 and not last[0].endswith("("):
            ops[-1] = last[0]; mods = last[1]
    I.ops = ops; I.mods = mods
    R = [regs_of(o) for o in ops]
    allr = lambda xs: set().union(*xs) if xs else set()
    if op.startswith("v_mfma"):
        I.kind = "mfma"
        I.passes = 8 if "32x32" in op else 4
        I.dst = R[0]; I.srcA = R[1]; I.srcB = R[2]; I.srcC = R[3]
        I.w = R[0]; I.r = R[1] | R[2] | R[3]
    elif op.startswith("v_"):
        I.kind = "valu"
        I.is_trans = op.startswith(TRANS)
        I.is_dpp = ("row_" in mods) or ("quad_perm" in mods) or op.endswith("_dpp")
        I.is_sdwa_dst = ("dst_sel" in mods and "dst_sel:DWORD" not in mods) or ("op_sel:" in mods and not op.startswith("v_pk"))
        if op.startswith("v_cmp"):
            I.w = R[0]; I.r = allr(R[1:])
        elif op.startswith(("v_readfirstlane", "v_readlane")):
            I.w = R[0]; I.r = allr(R[1:])
            if op.startswith("v_readlane"): I.lane_sel = {x for x in R[2] if x[0] == "s"}
        elif op.startswith("v_writelane"):
            I.w = R[0]; I.r = allr(R[1:]) | R[0]
            I.lane_sel = {x for x in R[2] if x[0] == "s"}
        elif op.startswith(("v_permlane32_swap", "v_permlane16_swap", "v_swap")):
            I.w = R[0] | R[1]; I.r = R[0] | R[1]
        elif op.startswith(("v_add_co", "v_sub_co", "v_subrev_co", "v_addc_co", "v_subb_co", "v_div_scale")):
            I.w = R[0] | R[1]; I.r = allr(R[2:])
        elif op.startswith(("v_fmac", "v_dot2c", "v_pk_fmac", "v_mac")):
            I.w = R[0]; I.r = allr(R)
        else:
            I.w = R[0]; I.r = allr(R[1:])
            if I.is_sdwa_dst and "UNUSED_PRESERVE" in mods: I.r |= R[0]
            if I.is_dpp: I.r |= R[0]
        if op.startswith("v_cndmask") and len(ops) == 3: I.r |= {("s", "vcc")}
        I.sgpr_const_r = {x for x in I.r if x[0] == "s"}
    elif op.startswith("buffer_"):
        I.kind = "vmem"
        if op in ("buffer_wbl2", "buffer_inv"):
            pass
        elif "lds" in mods.split():
            I.is_lds_dma = True
            I.r = allr(R) | {("s", "m0")}
        elif op.startswith("buffer_load"):
            I.w = R[0]; I.r = allr(R[1:])
        elif op.startswith("buffer_store"):
            I.r = allr(R); I.store_data = R[0]
            I.wide_store = op.endswith(("x3", "x4"))
        elif op.startswith("buffer_atomic"):
            I.r = allr(R); I.store_data = R[0]
            if "sc0" in mods.split(): I.w = R[0]
        else:
            raise ValueError("vmem? " + line)
    elif op.startswith("ds_"):
        I.kind = "ds"
        if op.startswith(("ds_read", "ds_bpermute", "ds_permute", "ds_swizzle")):
            I.w = R[0]; I.r = allr(R[1:])
            if "d16" in op: I.r |= R[0]
        else:
            I.r = allr(R); I.store_data = allr(R[1:])
    elif op.startswith("s_"):
        I.kind = "salu"
        if op == "s_nop":
            I.nop = int(ops[0], 0) + 1
        elif op.startswith("s_cbranch") or op == "s_branch":
            I.target = ops[0]; I.uncond = (op == "s_branch")
        elif op == "s_endpgm":
            I.uncond = True
        elif op.startswith(("s_cmp", "s_bitcmp", "s_waitcnt", "s_barrier", "s_sleep", "s_setprio")):
            I.r = allr(R)
        elif op.startswith(("s_load", "s_memtime", "s_memrealtime", "s_getreg")):
            I.kind = "smem"; I.w = R[0]; I.r = allr(R[1:])
        else:
            I.w = R[0] if R else set(); I.r = allr(R[1:])
            if "saveexec" in op: I.w |= {("s", "exec")}
    else:
        raise ValueError("unknown instruction: " + line)
    return I

def vg(s): return {x for x in s if x[0] in "va"}
def sg(s): return {x for x in s if x[0] == "s"}

def need(p, c):
    n = 0
    if p.kind == "valu":
        pw = vg(p.w); ps = sg(p.w)
        if c.kind == "mfma" and pw & c.r: n = max(n, 2)
        if c.kind == "valu":
            if p.is_trans and not c.is_trans and pw & c.r: n = max(n, 1)
            if p.is_sdwa_dst and pw & (c.r | c.w): n = max(n, 1)
            if c.is_dpp and pw & vg(c.r): n = max(n, 2)
            if c.op.startswith(("v_readfirstlane", "v_readlane")) and pw & vg(c.r): n = max(n, 1)
            if c.op.startswith(("v_permlane32_swap", "v_permlane16_swap")) and pw & c.r: n = max(n, 2)
            if ps & c.sgpr_const_r: n = max(n, 2)
            if ps & c.lane_sel: n = max(n, 4)
            if c.op.startswith("v_div_fmas") and ("s", "vcc") in ps: n = max(n, 4)
        if c.kind == "vmem" and ps & c.r: n = max(n, 5)
        if c.kind in ("salu", "smem") and ps & c.r and not c.op.startswith("s_waitcnt"): n = max(n, 1)
    if p.kind == "valu" and p.op.startswith("v_dot"):
        pw = vg(p.w)
        if c.op == p.op:
            ab = regs_of(c.ops[1]) | regs_of(c.ops[2])
            if pw & ab: n = max(n, 3)
        elif pw & (c.r | c.w): n = max(n, 3)
    if p.kind == "mfma":
        P = p.passes
        if c.kind == "mfma":
            if p.dst & c.srcC:
                if c.srcC == p.dst and c.passes == P: n = max(n, 0)
                else: n = max(n, P + 2)
            if p.dst & (c.srcA | c.srcB): n = max(n, P + 4)
            if p.dst & c.dst and not (p.dst & c.srcC):
                if c.dst != p.dst or c.passes != P: n = max(n, P + 2)
        elif c.kind == "valu":
            if p.dst & (c.r | c.w): n = max(n, P + 4)
            if vg(p.srcC) & c.w: n = max(n, P - 1)
        elif c.kind in ("vmem", "ds"):
            if p.dst & (c.r | c.w): n = max(n, P + 4)
    if p.kind == "vmem" and p.wide_store:
        if c.kind == "valu" and p.store_data & c.w: n = max(n, 2)
        elif c.kind in ("vmem", "ds", "mfma") and p.store_data & c.w: n = max(n, 1)
    if p.kind == "salu" and ("s", "m0") in p.w and c.kind == "vmem" and c.is_lds_dma: n = max(n, 1)
    return n

MAXD = 14
def fix_hazards(lines, verbose=False):
    total = 0
    for _round in range(2000):
        ins = [parse(l) for l in lines]
        labels = {I.op: i for i, I in enumerate(ins) if I.kind == "label"}
        preds = [[] for _ in ins]
        for i, I in enumerate(ins):
            if i + 1 < len(ins) and not I.uncond: preds[i + 1].append(i)
            if I.target is not None and I.target in labels: preds[labels[I.target]].append(i)
        inserts = {}
        for i, c in enumerate(ins):
            if c.kind in ("label", "dir") or c.op == "s_nop": continue
            worst = 0; stack = [(p, 0) for p in preds[i]]; seen = {}
            while stack:
                j, d = stack.pop()
                if d >= MAXD: continue
                if seen.get(j, 99) <= d: continue
                seen[j] = d
                p = ins[j]
                if p.kind in ("label", "dir"): step = 0
                else:
                    k = need(p, c)
                    if k - d > worst: worst = k - d
                    step = p.nop if p.op == "s_nop" else 1
                for q in preds[j]: stack.append((q, d + step))
            if worst > 0: inserts[i] = worst
        if not inserts: return lines, total
        out = []
        last_fix = -100
        for i, l in enumerate(lines):
            first = i in inserts and i - last_fix > MAXD + 2
            if i in inserts: last_fix = i
            if first:
                n = inserts[i]
                if verbose: print("hazard: +%d before: %s" % (n, l))
                total += n
                while n > 0:
                    k = min(n, 16); out.append("s_nop %d" % (k - 1)); n -= k
            out.append(l)
        lines = out
    raise RuntimeError("hazard fix did not converge")

def kernel(name, asm, vgpr, sgpr=96, lds_note=None, accum=None):
    lines, n = fix_hazards(asm.lines)
    body = "\n".join(lines)
    if accum is None: accum = min(256, (vgpr + 3) // 4 * 4)
    srdregs = set()
    for l in lines:
        I = parse(l)
        if I.kind == "vmem" and I.op not in ("buffer_wbl2", "buffer_inv"):
            quad = [o for o in I.ops if o.startswith("s[")][0]
            srdregs |= regs_of(quad)
    for l in lines:
        I = parse(l)
        if I.w & srdregs and ";srd" not in l:
            raise AssertionError(f"{name}: descriptor register clobbered by: {l}")
    mv = ms = -1
    for l in lines:
        I = parse(l)
        for (k, i) in (I.w | I.r):
            if k == "v": mv = max(mv, i)
            if k == "s" and isinstance(i, int): ms = max(ms, i)
    assert mv < vgpr, f"{name}: uses v{mv} but vgpr={vgpr}"
    assert ms < sgpr, f"{name}: uses s{ms} but sgpr={sgpr}"
    txt = f""".text
.globl {name}
.p2align 8
.type {name},@function
{name}:
{body}
s_endpgm
.section .rodata,"a"
.p2align 6
.amdhsa_kernel {name}
  .amdhsa_next_free_vgpr {vgpr}
  .amdhsa_next_free_sgpr {sgpr}
  .amdhsa_accum_offset {accum}
  .amdhsa_group_segment_fixed_size 0
  .amdhsa_kernarg_size 96
  .amdhsa_user_sgpr_count 2
  .amdhsa_user_sgpr_kernarg_segment_ptr 1
  .amdhsa_system_sgpr_workgroup_id_x 1
  .amdhsa_float_denorm_mode_32 3
.end_amdhsa_kernel
"""
    return txt, dict(name=name, maxv=mv, maxs=ms, nops=n, ninstr=len(lines))
```

```python
from asmgen import *
S=2048; D=576; H=32; DH=18; F=4608
KA_X=0; KA_WQKV=8; KA_WO=16; KA_BX=24; KA_W1=32; KA_W3=40; KA_W2=48; KA_C=56; KA_WMOD=64; KA_OUT=72; KA_DBG=80; KA_WS=88
WS_MOD =0x0000000;  SZ_MOD = 6*576*4
WS_WQKV=0x0010000;  SZ_WQKV= 54*18*2048
WS_WO  =0x0200000;  SZ_WO  = 36*18*1024
WS_W13 =0x0300000;  SZ_W13S= 12*18*6144; SZ_W13=8*SZ_W13S
WS_W2  =0x0E00000;  SZ_W2S = 12*18*3072; SZ_W2 =8*SZ_W2S
WS_QA  =0x1400000;  SZ_QA  = 32*65536
WS_QB  =0x1600000;  SZ_QB  = 32*16384
WS_KV  =0x1700000;  KVH=159744; SZ_KV = 32*KVH
KV_KA=0; KV_KB=65536; KV_V=81920
WS_OM  =0x1C00000;  SZ_OM  = 32*65536
WS_OE  =0x1E00000;  SZ_OE  = 32*2048*4
WS_X1  =0x1F00000;  SZ_X1  = 2048*1152
WS_PART=0x2200000;  SZ_PARTS=2048*1152; SZ_PART=8*SZ_PARTS
SZ_X = 2048*1152

def load_ptr(a, sdst, off):
    a(f"s_load_dwordx2 s[{sdst}:{sdst+1}], s[0:1], {off}")

def srd(a, r, sptr, size, off=0):
    assert r % 4 == 0
    if off:
        a(f"s_add_u32 s{r}, s{sptr}, {off:#x} ;srd")
        a(f"s_addc_u32 s{r+1}, s{sptr+1}, 0 ;srd")
    else:
        a(f"s_mov_b32 s{r}, s{sptr} ;srd")
        a(f"s_mov_b32 s{r+1}, s{sptr+1} ;srd")
    a(f"s_mov_b32 s{r+2}, {size:#x} ;srd")
    a(f"s_mov_b32 s{r+3}, 0x00020000 ;srd")

def wave_id(a, sdst, vtmp):
    a(f"v_lshrrev_b32 v{vtmp}, 6, v0")
    a(f"v_readfirstlane_b32 s{sdst}, v{vtmp}")

def sdiv(a, sq, sn, d, srem=None, stmp=None):
    magic = (1 << 32) // d + 1
    a(f"s_mul_hi_u32 s{sq}, s{sn}, {magic:#x}")
    if srem is not None:
        a(f"s_mul_i32 s{stmp}, s{sq}, {d}")
        a(f"s_sub_u32 s{srem}, s{sn}, s{stmp}")

def bf16_round_f32(a, vdst, vsrc, vtmp=None):
    a(f"v_cvt_pk_bf16_f32 v{vdst}, v{vsrc}, v{vsrc}")
    a(f"v_and_b32 v{vdst}, 0xffff0000, v{vdst}")

def vr(b, n=4): return f"v[{b}:{b+n-1}]"
def sr(b, n=2): return f"s[{b}:{b+n-1}]"

def xsum16_32(a, v, t):
    a(f"v_mov_b32 v{t}, v{v}")
    a(f"v_permlane16_swap_b32 v{v}, v{t}")
    a(f"v_add_f32 v{v}, v{v}, v{t}")
    a(f"v_mov_b32 v{t}, v{v}")
    a(f"v_permlane32_swap_b32 v{v}, v{t}")
    a(f"v_add_f32 v{v}, v{v}, v{t}")
```

```python
from common import *
NWG_MOD=54; NWG_LS=72; NWG_W13=324; NWG_W2=216; NWG_ONES=32
B_LS=NWG_MOD; B_W13=B_LS+NWG_LS; B_W2=B_W13+NWG_W13; B_ONES=B_W2+NWG_W2; K1_NWG=B_ONES+NWG_ONES
K1_LDS=4*9216

LOG2E=0x3fb8aa3b

def gen_mod(a):
    load_ptr(a, 4, KA_WMOD); load_ptr(a, 6, KA_C); load_ptr(a, 20, KA_WS)
    a("v_and_b32 v1, 7, v0            ; cg")
    a("v_lshrrev_b32 v2, 3, v0        ; rg")
    a("s_waitcnt lgkmcnt(0)")
    srd(a, 8, 4, 576*6912); srd(a, 12, 6, 1152); srd(a, 16, 20, SZ_MOD, WS_MOD)
    a("v_lshlrev_b32 v3, 1, v0")
    a("buffer_load_ushort v4, v3, s[12:15], 0 offen")
    a("buffer_load_ushort v5, v3, s[12:15], 0 offen offset:512")
    a("buffer_load_ushort v6, v3, s[12:15], 0 offen offset:1024")
    a("v_mul_u32_u24 v7, 6912, v2")
    a("v_lshl_add_u32 v7, v1, 4, v7")
    a("s_lshl_b32 s22, s2, 7          ; n0*2")
    for i in range(18):
        r = 32 + 4*i
        a(f"buffer_load_dwordx4 {vr(r)}, v7, s[8:11], s22 offen")
        if i < 17: a(f"s_add_u32 s22, s22, {32*6912}")
    a("s_waitcnt vmcnt(18)")
    for j, v in enumerate([4, 5, 6]):
        a(f"v_lshlrev_b32 v{v}, 16, v{v}")
        a(f"v_mul_f32 v8, {LOG2E:#x}, v{v}")
        a(f"v_exp_f32 v8, -v8")
        a(f"v_add_f32 v8, 1.0, v8")
        a(f"v_rcp_f32 v8, v8")
        a(f"v_mul_f32 v8, v8, v{v}")
        bf16_round_f32(a, 8, 8)
        a(f"v_lshlrev_b32 v9, 2, v0")
        a(f"ds_write_b32 v9, v8 offset:{j*1024}")
    a("s_waitcnt lgkmcnt(0)")
    a("s_barrier")
    a("v_lshlrev_b32 v9, 2, v2")
    for i in range(18):
        a(f"ds_read_b32 v{10+i}, v9 offset:{i*128}")
    for j in range(8): a(f"v_mov_b32 v{104+j}, 0")
    a("s_waitcnt lgkmcnt(0)")
    for i in range(18):
        a(f"s_waitcnt vmcnt({17-i})")
        r = 32 + 4*i
        for q in range(4):
            a(f"v_lshlrev_b32 v28, 16, v{r+q}")
            a(f"v_and_b32 v29, 0xffff0000, v{r+q}")
            a(f"v_fmac_f32 v{104+2*q}, v{10+i}, v28")
            a(f"v_fmac_f32 v{105+2*q}, v{10+i}, v29")
    a("v_lshlrev_b32 v9, 8, v2")
    a("v_lshl_add_u32 v9, v1, 5, v9")
    a("ds_write_b128 v9, v[104:107] offset:4096")
    a("ds_write_b128 v9, v[108:111] offset:4112")
    a("s_waitcnt lgkmcnt(0)")
    a("s_barrier")
    a("v_cmp_gt_u32 vcc, 64, v0")
    a("s_and_saveexec_b64 s[24:25], vcc")
    lend = a.newlabel("k1_mod_end")
    a(f"s_cbranch_execz {lend}")
    a("v_lshlrev_b32 v9, 2, v0")
    for i in range(32):
        a(f"ds_read_b32 v{32+i}, v9 offset:{4096+i*256}")
    a("s_waitcnt lgkmcnt(0)")
    for st in [16, 8, 4, 2, 1]:
        for i in range(st):
            a(f"v_add_f32 v{32+i}, v{32+i}, v{32+i+st}")
    bf16_round_f32(a, 32, 32)
    sdiv(a, 22, 2, 9)
    a("s_cmp_eq_u32 s22, 1")
    a("s_cselect_b32 s23, 1, 0")
    a("s_cmp_eq_u32 s22, 4")
    a("s_cselect_b32 s23, 1, s23")
    lskip = a.newlabel("k1_noone")
    a("s_cmp_eq_u32 s23, 0")
    a(f"s_cbranch_scc1 {lskip}")
    a("v_add_f32 v32, 1.0, v32")
    bf16_round_f32(a, 32, 32)
    a.label(lskip)
    a("s_lshl_b32 s22, s2, 8")
    a("v_lshlrev_b32 v9, 2, v0")
    a("buffer_store_dword v32, v9, s[16:19], s22 offen")
    a.label(lend)
    a("s_endpgm")

def gather(a, addr):
    for u in range(9):
        for j in range(8):
            a(f"ds_read_u16 v{72+j}, {addr(u, j)}")
        a("s_waitcnt lgkmcnt(0)")
        for jp in range(4):
            a(f"v_lshl_or_b32 v{32+4*u+jp}, v{72+2*jp+1}, 16, v{72+2*jp}")

def gen_ldsshuf(a):
    load_ptr(a, 4, KA_WQKV); load_ptr(a, 6, KA_WO); load_ptr(a, 20, KA_WS)
    wave_id(a, 22, 1)
    a(f"s_sub_u32 s23, s2, {B_LS}")
    a("s_lshl_b32 s23, s23, 2")
    a("s_add_u32 s23, s23, s22        ; task")
    a("v_and_b32 v1, 63, v0           ; lane")
    a("s_mul_i32 s24, s22, 9216")
    for i in range(9):
        a(f"v_add_u32 v2, {i*64}, v1")
        a(f"v_mul_u32_u24 v{10+i}, 3641, v2")
        a(f"v_lshrrev_b32 v{10+i}, 16, v{10+i}      ; row")
        a(f"v_mul_u32_u24 v3, 18, v{10+i}")
        a(f"v_sub_u32 v{20+i}, v2, v3              ; cc")
    a("v_and_b32 v4, 15, v1           ; m")
    a("v_lshrrev_b32 v5, 4, v1        ; g")
    a("v_lshlrev_b32 v6, 4, v1        ; lane*16")
    a("v_add_u32 v7, s24, v6")
    a("v_mul_u32_u24 v8, 2304, v5     ; g*8*288")
    a("v_add_u32 v8, s24, v8")
    a("s_waitcnt lgkmcnt(0)")
    lwo = a.newlabel("k1_wo")
    a("s_cmp_ge_u32 s23, 216")
    a(f"s_cbranch_scc1 {lwo}")
    srd(a, 8, 4, 576*3456); srd(a, 12, 20, SZ_WQKV, WS_WQKV)
    sdiv(a, 25, 23, 12, 26, 27)
    a("s_lshr_b32 s27, s26, 2         ; sec")
    a("s_and_b32 s28, s26, 3          ; oct")
    a(f"s_mul_i32 s29, s25, {32*3456}")
    a("s_mul_i32 s30, s27, 1152")
    a("s_add_u32 s29, s29, s30")
    a("s_mul_i32 s30, s28, 288")
    a("s_add_u32 s29, s29, s30        ; soffset")
    for i in range(9):
        a(f"v_mul_u32_u24 v2, 3456, v{10+i}")
        a(f"v_lshl_add_u32 v2, v{20+i}, 4, v2")
        a(f"buffer_load_dwordx4 {vr(32+4*i)}, v2, s[8:11], s29 offen")
    for i in range(9):
        a(f"s_waitcnt vmcnt({8-i})")
        a(f"ds_write_b128 v7, {vr(32+4*i)} offset:{i*1024}")
    a("v_lshl_add_u32 v2, v4, 1, v8   ; main: + m*2")
    a("v_lshrrev_b32 v3, 1, v4")
    a("v_mul_u32_u24 v3, 36, v3")
    a("v_and_b32 v9, 1, v4")
    a("v_lshl_add_u32 v3, v9, 1, v3")
    a("v_add_u32 v3, 32, v3")
    a("v_add_u32 v3, v3, v8           ; ext")
    a("s_waitcnt lgkmcnt(0)")
    gather(a, lambda u, j: (f"v2 offset:{j*288 + 36*u}" if u < 8 else f"v3 offset:{j*288}"))
    a("s_lshl_b32 s30, s27, 4")
    a("s_lshl_b32 s31, s28, 2")
    a("s_add_u32 s30, s30, s31")
    a("s_mul_i32 s30, s30, 18")
    a("s_add_u32 s30, s30, s25")
    a("s_lshl_b32 s30, s30, 11        ; (tau*18+t)*2048")
    a("s_lshl_b32 s31, s27, 1")
    a("s_lshr_b32 s33, s28, 1")
    a("s_add_u32 s31, s31, s33")
    a("s_add_u32 s31, s31, 48")
    a("s_mul_i32 s31, s31, 18")
    a("s_add_u32 s31, s31, s25")
    a("s_lshl_b32 s31, s31, 11")
    a("s_and_b32 s33, s28, 1")
    a("s_lshl_b32 s33, s33, 10")
    a("s_add_u32 s31, s31, s33")
    a("s_waitcnt lgkmcnt(0)")
    for u in range(8):
        a(f"s_add_u32 s33, s30, {(u>>1)*18*2048 + (u&1)*1024}")
        a(f"buffer_store_dwordx4 {vr(32+4*u)}, v6, s[12:15], s33 offen")
    a(f"buffer_store_dwordx4 {vr(64)}, v6, s[12:15], s31 offen")
    a("s_endpgm")
    a.label(lwo)
    srd(a, 8, 6, 576*1152); srd(a, 12, 20, SZ_WO, WS_WO)
    a("s_sub_u32 s23, s23, 216")
    a("s_lshr_b32 s25, s23, 2         ; t")
    a("s_and_b32 s28, s23, 3          ; ng")
    a("s_mul_i32 s29, s28, 288")
    lext = a.newlabel("k1_wo_ext"); lj = a.newlabel("k1_wo_j")
    a("s_cmp_ge_u32 s25, 16")
    a(f"s_cbranch_scc1 {lext}")
    for i in range(9):
        a(f"v_lshrrev_b32 v2, 4, v{10+i}")
        a(f"v_mul_u32_u24 v2, 18, v2")
        a(f"v_and_b32 v3, 15, v{10+i}")
        a(f"v_add_u32 v{10+i}, v2, v3")
    a("s_mul_i32 s30, s25, 36         ; 18*2t")
    a(f"s_branch {lj}")
    a.label(lext)
    for i in range(9):
        a(f"v_lshrrev_b32 v2, 1, v{10+i}")
        a(f"v_mul_u32_u24 v2, 18, v2")
        a(f"v_and_b32 v3, 1, v{10+i}")
        a(f"v_add_u32 v{10+i}, v2, v3")
    a("s_sub_u32 s30, s25, 16")
    a("s_mul_i32 s30, s30, 288        ; 18*16e")
    a("s_add_u32 s30, s30, 16")
    a.label(lj)
    a("s_mul_i32 s30, s30, 1152")
    a("s_add_u32 s29, s29, s30")
    for i in range(9):
        a(f"v_mul_u32_u24 v2, 1152, v{10+i}")
        a(f"v_lshl_add_u32 v2, v{20+i}, 4, v2")
        a(f"buffer_load_dwordx4 {vr(32+4*i)}, v2, s[8:11], s29 offen")
    for i in range(9):
        a(f"s_waitcnt vmcnt({8-i})")
        a(f"ds_write_b128 v7, {vr(32+4*i)} offset:{i*1024}")
    a("v_lshl_add_u32 v2, v4, 1, v8")
    a("s_waitcnt lgkmcnt(0)")
    gather(a, lambda u, j: f"v2 offset:{j*288 + 32*u}")
    a("s_mul_i32 s30, s28, 162        ; ng*9*18")
    a("s_add_u32 s30, s30, s25")
    a("s_lshl_b32 s30, s30, 10")
    a("s_waitcnt lgkmcnt(0)")
    for u in range(9):
        a(f"s_add_u32 s33, s30, {u*18*1024}")
        a(f"buffer_store_dwordx4 {vr(32+4*u)}, v6, s[12:15], s33 offen")
    a("s_endpgm")

def perm_consts(a):
    a("s_mov_b32 s40, 0x05040100")
    a("s_mov_b32 s41, 0x07060302")

def w13_task(a, s_id, vb):
    sdiv(a, 25, s_id, 648, 26, 27)
    sdiv(a, 27, 26, 18, 28, 29)
    a(f"s_mul_i32 s29, s28, {32*9216}")
    a("s_lshl_b32 s30, s27, 8")
    a("s_add_u32 s29, s29, s30        ; soffset")
    l3 = a.newlabel("w3"); lj = a.newlabel("w13j")
    vin = vb+4; vout = vb+36
    a("s_cmp_eq_u32 s25, 1")
    a(f"s_cbranch_scc1 {l3}")
    for j in range(8):
        a(f"buffer_load_dwordx4 {vr(vin+4*j)}, v{vb+1}, s[8:11], s29 offen")
        if j < 7: a("s_add_u32 s29, s29, 9216")
    a(f"s_branch {lj}")
    a.label(l3)
    for j in range(8):
        a(f"buffer_load_dwordx4 {vr(vin+4*j)}, v{vb+1}, s[12:15], s29 offen")
        if j < 7: a("s_add_u32 s29, s29, 9216")
    a.label(lj)
    sdiv(a, 30, 27, 3, 31, 33)
    a("s_mul_i32 s30, s30, 110592")
    a("s_mul_i32 s33, s28, 6144")
    a("s_add_u32 s30, s30, s33")
    a("s_lshl_b32 s31, s31, 1")
    a("s_add_u32 s31, s31, s25")
    a("s_lshl_b32 s31, s31, 10")
    a("s_add_u32 s30, s30, s31")
    a("s_waitcnt vmcnt(0)")
    for i in range(8):
        for jp in range(4):
            sel = "s41" if i & 1 else "s40"
            a(f"v_perm_b32 v{vout+4*i+jp}, v{vin+4*(2*jp+1)+(i>>1)}, v{vin+4*(2*jp)+(i>>1)}, {sel}")
        a(f"buffer_store_dwordx4 {vr(vout+4*i)}, v{vb}, s[16:19], s30 offen")
        if i < 7: a(f"s_add_u32 s30, s30, {SZ_W13S}")

def w2_task(a, s_id, vb):
    sdiv(a, 25, s_id, 108, 26, 27)
    sdiv(a, 27, 26, 6, 28, 29)
    a("s_lshl_b32 s29, s27, 8")
    a("s_add_u32 s29, s29, s25")
    a("s_mul_i32 s29, s29, 1152")
    a("s_mul_i32 s30, s28, 192")
    a("s_add_u32 s29, s29, s30")
    vin = vb+4; vout = vb+36
    for v in range(2):
        for j in range(4):
            a(f"s_add_u32 s30, s29, {(128*v+8*j)*1152}")
            a(f"buffer_load_dwordx3 {vr(vin+4*(4*v+j),3)}, v{vb+2}, s[8:11], s30 offen")
    a(f"s_mul_i32 s30, s25, {SZ_W2S}")
    a("s_mul_i32 s31, s28, 110592")
    a("s_add_u32 s30, s30, s31")
    a("s_mul_i32 s31, s27, 3072")
    a("s_add_u32 s30, s30, s31")
    a("s_waitcnt vmcnt(0)")
    for i in range(6):
        for v in range(2):
            for jj in range(2):
                sel = "s41" if i & 1 else "s40"
                a(f"v_perm_b32 v{vout+4*i+2*v+jj}, v{vin+4*(4*v+2*jj+1)+(i>>1)}, v{vin+4*(4*v+2*jj)+(i>>1)}, {sel}")
        a(f"s_add_u32 s31, s30, {(i//3)*55296 + (i%3)*1024}")
        a(f"buffer_store_dwordx4 {vr(vout+4*i)}, v{vb}, s[16:19], s31 offen")

def shuffle_lane_setup(a, vb):
    a(f"v_and_b32 v{vb+3}, 63, v0")
    a(f"v_lshlrev_b32 v{vb}, 4, v{vb+3}          ; lane*16")
    a(f"v_lshrrev_b32 v{vb+1}, 4, v{vb+3}        ; g")
    a(f"v_and_b32 v{vb+3}, 15, v{vb+3}           ; m")
    a(f"v_mul_u32_u24 v{vb+2}, {32*1152}, v{vb+1}")
    a(f"v_mad_u32_u24 v{vb+2}, v{vb+3}, 12, v{vb+2}   ; w2 voffset")
    a(f"v_mul_u32_u24 v{vb+1}, {8*9216}, v{vb+1}")
    a(f"v_lshl_add_u32 v{vb+1}, v{vb+3}, 4, v{vb+1}   ; w13 voffset")

def gen_w13(a):
    load_ptr(a, 4, KA_W1); load_ptr(a, 6, KA_W3); load_ptr(a, 20, KA_WS)
    wave_id(a, 22, 1)
    a(f"s_sub_u32 s23, s2, {B_W13}")
    a("s_lshl_b32 s23, s23, 2")
    a("s_add_u32 s23, s23, s22")
    shuffle_lane_setup(a, 4)
    perm_consts(a)
    a("s_waitcnt lgkmcnt(0)")
    srd(a, 8, 4, 576*9216); srd(a, 12, 6, 576*9216); srd(a, 16, 20, SZ_W13, WS_W13)
    w13_task(a, 23, 4)
    a("s_endpgm")

def gen_w2(a):
    load_ptr(a, 4, KA_W2); load_ptr(a, 20, KA_WS)
    wave_id(a, 22, 1)
    a(f"s_sub_u32 s23, s2, {B_W2}")
    a("s_lshl_b32 s23, s23, 2")
    a("s_add_u32 s23, s23, s22")
    shuffle_lane_setup(a, 4)
    perm_consts(a)
    a("s_waitcnt lgkmcnt(0)")
    srd(a, 8, 4, 4608*1152); srd(a, 16, 20, SZ_W2, WS_W2)
    w2_task(a, 23, 4)
    a("s_endpgm")

def gen_ones(a):
    load_ptr(a, 20, KA_WS)
    a(f"s_sub_u32 s23, s2, {B_ONES}")
    a(f"s_mul_i32 s23, s23, {KVH}")
    a(f"s_add_u32 s23, s23, {KV_V+18*16}")
    a("v_mul_u32_u24 v1, 304, v0")
    for i in range(4): a(f"v_mov_b32 v{4+i}, 0x3f803f80")
    a("s_waitcnt lgkmcnt(0)")
    srd(a, 8, 20, SZ_KV, WS_KV)
    a("buffer_store_dwordx4 v[4:7], v1, s[8:11], s23 offen")
    a("s_endpgm")

def gen_k1():
    a = Asm()
    a(f"s_cmp_lt_u32 s2, {B_LS}\ns_cbranch_scc1 k1_mod")
    a(f"s_cmp_lt_u32 s2, {B_W13}\ns_cbranch_scc1 k1_ls")
    a(f"s_cmp_lt_u32 s2, {B_W2}\ns_cbranch_scc1 k1_w13")
    a(f"s_cmp_lt_u32 s2, {B_ONES}\ns_cbranch_scc1 k1_w2")
    a(f"s_cmp_lt_u32 s2, {K1_NWG}\ns_cbranch_scc1 k1_ones")
    a("s_endpgm")
    a.label("k1_mod"); gen_mod(a)
    a.label("k1_ls"); gen_ldsshuf(a)
    a.label("k1_w13"); gen_w13(a)
    a.label("k1_w2"); gen_w2(a)
    a.label("k1_ones"); gen_ones(a)
    return kernel("k1_prep_kernel", a, vgpr=112, sgpr=64), (K1_NWG, 256, K1_LDS)
```

```python
from common import *
K2_LDS = 73728 + 1024 + 8192
L_STAT = 73728; L_MOD = 74752
QSCALE = 0x3eae1a4e
import struct, math
QSCALE = struct.unpack("<I", struct.pack("<f", math.log2(math.e)/math.sqrt(18.0)))[0]
EPS = struct.unpack("<I", struct.pack("<f", 1e-5))[0]
INV576 = struct.unpack("<I", struct.pack("<f", 1.0/576))[0]

def ln_stats(a, vx, n, vs, vq, sones):
    a(f"v_mov_b32 v{vs}, 0"); a(f"v_mov_b32 v{vq}, 0")
    for i in range(n):
        a(f"v_dot2_f32_bf16 v{vs}, v{vx+i}, s{sones}, v{vs}")
        a(f"v_dot2_f32_bf16 v{vq}, v{vx+i}, v{vx+i}, v{vq}")

def ln_finish(a, vs, vq, vrstd, vshift, t):
    a(f"v_mul_f32 v{vs}, {INV576:#x}, v{vs}           ; mean")
    a(f"v_mul_f32 v{vq}, {INV576:#x}, v{vq}")
    a(f"v_fma_f32 v{vq}, -v{vs}, v{vs}, v{vq}          ; var")
    a(f"v_max_f32 v{vq}, 0, v{vq}")
    a(f"v_add_f32 v{vq}, {EPS:#x}, v{vq}")
    a(f"v_rsq_f32 v{vrstd}, v{vq}")
    a(f"v_mul_f32 v{vshift}, v{vs}, v{vrstd}")
    a(f"v_sub_f32 v{vshift}, 0, v{vshift}")

def ln_apply_chunk(a, vx, vt, vc, vsft, vrstd, vshift, vout):
    for q in range(4):
        a(f"v_lshlrev_b32 v{vt+2*q}, 16, v{vx+q}")
        a(f"v_and_b32 v{vt+2*q+1}, 0xffff0000, v{vx+q}")
    for e in range(8):
        a(f"v_fma_f32 v{vt+e}, v{vt+e}, v{vrstd}, v{vshift}")
    for q in range(4):
        a(f"v_pk_fma_f32 {vr(vt+2*q,2)}, {vr(vt+2*q,2)}, {vr(vc+2*q,2)}, {vr(vsft+2*q,2)}")
    for q in range(4):
        a(f"v_cvt_pk_bf16_f32 v{vout+q}, v{vt+2*q}, v{vt+2*q+1}")

def gen_k2():
    a = Asm()
    a("s_cmp_ge_u32 s2, 256\ns_cbranch_scc1 k2_exit")
    a("s_and_b32 s23, s2, 7\ns_cmp_eq_u32 s23, 7\ns_cbranch_scc1 k2_exit")
    load_ptr(a, 4, KA_X); load_ptr(a, 20, KA_WS)
    wave_id(a, 22, 1)
    VL=1; VTOK=2; VG=3; VL16=4
    a(f"v_and_b32 v{VL}, 63, v0")
    a(f"v_and_b32 v{VTOK}, 15, v{VL}")
    a(f"v_lshrrev_b32 v{VG}, 4, v{VL}")
    a(f"v_lshlrev_b32 v{VL16}, 4, v{VL}")
    a("s_lshr_b32 s24, s2, 3          ; rb")
    a("s_lshl_b32 s25, s23, 3")
    a("s_add_u32 s25, s25, s22        ; tau")
    a("s_lshr_b32 s26, s22, 1         ; tb")
    a("s_and_b32 s27, s22, 1          ; half")
    a("s_waitcnt lgkmcnt(0)")
    srd(a, 8, 4, SZ_X); srd(a, 12, 20, 4608, WS_MOD); srd(a, 16, 20, SZ_WQKV, WS_WQKV)
    VX=16; VW=52; VACC=196; VT=228
    a(f"v_mul_u32_u24 v5, 1152, v{VTOK}")
    a(f"v_lshl_add_u32 v5, v{VG}, 4, v5")
    a(f"s_mul_i32 s28, s24, {64*1152}")
    a(f"s_mul_i32 s29, s26, {16*1152}")
    a("s_add_u32 s28, s28, s29")
    a("s_mul_i32 s29, s27, 576")
    a("s_add_u32 s28, s28, s29")
    for i in range(9):
        a(f"buffer_load_dwordx4 {vr(VX+4*i)}, v5, s[8:11], s28 offen offset:{i*64}")
    a("v_lshlrev_b32 v6, 4, v0")
    a(f"buffer_load_dwordx4 {vr(VT)}, v6, s[12:15], 0 offen")
    a(f"s_mul_i32 s28, s25, {18*2048}")
    for t in range(18):
        a(f"buffer_load_dwordx4 {vr(VW+8*t)}, v{VL16}, s[16:19], s28 offen")
        a(f"buffer_load_dwordx4 {vr(VW+8*t+4)}, v{VL16}, s[16:19], s28 offen offset:1024")
        if t < 17: a("s_add_u32 s28, s28, 2048")
    a("s_mov_b32 s30, 0x3f803f80")
    a("s_waitcnt vmcnt(36)")
    a(f"v_add_u32 v6, {L_MOD}, v6")
    a(f"ds_write_b128 v6, {vr(VT)}")
    VS=VT+4; VQ=VT+5; VTMP=VT+6
    ln_stats(a, VX, 36, VS, VQ, 30)
    xsum16_32(a, VS, VTMP); xsum16_32(a, VQ, VTMP)
    a(f"s_lshl_b32 s28, s27, 6")
    a(f"s_lshl_b32 s29, s26, 4")
    a(f"s_add_u32 s28, s28, s29")
    a(f"v_add_u32 v7, s28, v{VTOK}")
    a(f"v_lshlrev_b32 v7, 3, v7")
    a(f"v_add_u32 v7, {L_STAT}, v7")
    a(f"ds_write_b64 v7, {vr(VS,2)}")
    a("s_waitcnt lgkmcnt(0)")
    a("s_barrier")
    a(f"v_add_u32 v7, s29, v{VTOK}")
    a(f"v_lshlrev_b32 v7, 3, v7")
    a(f"v_add_u32 v7, {L_STAT}, v7")
    a(f"ds_read_b64 {vr(VS,2)}, v7")
    a(f"ds_read_b64 {vr(VS+2,2)}, v7 offset:512")
    a("s_waitcnt lgkmcnt(0)")
    a(f"v_add_f32 v{VS}, v{VS}, v{VS+2}")
    a(f"v_add_f32 v{VQ}, v{VQ}, v{VS+3}")
    VR=VT+8; VSH=VT+9
    ln_finish(a, VS, VQ, VR, VSH, VTMP)
    VC=VACC; VSF=VACC+8; VTT=VACC+16; VO=VACC+24
    a(f"v_lshlrev_b32 v8, 5, v{VG}")
    a(f"s_mul_i32 s28, s27, {9*128}")
    a(f"s_add_u32 s28, s28, {L_MOD}")
    a(f"v_add_u32 v8, s28, v8")
    a(f"s_mul_i32 s28, s27, {9*4096}")
    a(f"s_lshl_b32 s29, s26, 10")
    a(f"s_add_u32 s28, s28, s29")
    a(f"v_add_u32 v9, s28, v{VL16}")
    for i in range(9):
        a(f"ds_read_b128 {vr(VSF)}, v8 offset:{i*128}")
        a(f"ds_read_b128 {vr(VSF+4)}, v8 offset:{i*128 + 16}")
        a(f"ds_read_b128 {vr(VC)}, v8 offset:{2304 + i*128}")
        a(f"ds_read_b128 {vr(VC+4)}, v8 offset:{2304 + i*128 + 16}")
        a("s_waitcnt lgkmcnt(0)")
        ln_apply_chunk(a, VX+4*i, VTT, VC, VSF, VR, VSH, VO)
        a(f"ds_write_b128 v9, {vr(VO)} offset:{i*4096}")
    a("s_waitcnt lgkmcnt(0)")
    a("s_barrier")
    a("s_cmp_ge_u32 s25, 54\ns_cbranch_scc1 k2_exit")
    XB=[VX, VX+16]
    def xreads(t):
        b = XB[t & 1]
        for tb in range(4):
            off = t*4096 + tb*1024
            if off < 65536: a(f"ds_read_b128 {vr(b+4*tb)}, v{VL16} offset:{off}")
            else:           a(f"ds_read_b128 {vr(b+4*tb)}, v10 offset:{off-65536}")
    def gemm(vtype):
        a(f"v_add_u32 v10, 0x10000, v{VL16}")
        xreads(0)
        for t in range(18):
            if t < 17: xreads(t+1)
            a(f"s_waitcnt vmcnt({36-2*(t+1)}) lgkmcnt({4 if t < 17 else 0})")
            b = XB[t & 1]
            for uu in range(2):
                for tb in range(4):
                    acc = VACC + 16*uu + 4*tb
                    c = vr(acc) if t else "0"
                    w = vr(VW+8*t+4*uu); x = vr(b+4*tb)
                    if vtype: a(f"v_mfma_f32_16x16x32_bf16 {vr(acc)}, {x}, {w}, {c}")
                    else:     a(f"v_mfma_f32_16x16x32_bf16 {vr(acc)}, {w}, {x}, {c}")
    a("s_cmp_ge_u32 s25, 52\ns_cbranch_scc1 k2_gv")
    a("s_cmp_ge_u32 s25, 48\ns_cbranch_scc1 k2_gq")
    a("s_cmp_ge_u32 s25, 32\ns_cbranch_scc1 k2_gv")
    a.label("k2_gq")
    gemm(False)
    srd(a, 8, 20, SZ_QA, WS_QA); srd(a, 12, 20, SZ_QB, WS_QB); srd(a, 16, 20, SZ_KV, WS_KV)
    a("s_cmp_ge_u32 s25, 48\ns_cbranch_scc1 k2_ext")
    a(f"v_lshrrev_b32 v5, 1, v{VG}")
    a(f"v_lshlrev_b32 v5, 9, v5")
    a(f"v_lshl_add_u32 v5, v{VTOK}, 4, v5")
    a(f"v_and_b32 v6, 1, v{VG}")
    a(f"v_lshl_add_u32 v5, v6, 3, v5")
    a("s_lshl_b32 s28, s24, 11")
    a("s_cmp_ge_u32 s25, 16\ns_cbranch_scc1 k2_kmain")
    a(f"s_mov_b32 s33, {QSCALE:#x}")
    a("s_lshl_b32 s29, s25, 17")
    a("s_add_u32 s28, s28, s29")
    for uu in range(2):
        for tb in range(4):
            acc = VACC+16*uu+4*tb
            for j in range(4): a(f"v_mul_f32 v{acc+j}, s33, v{acc+j}")
            a(f"v_cvt_pk_bf16_f32 v{VT}, v{acc}, v{acc+1}")
            a(f"v_cvt_pk_bf16_f32 v{VT+1}, v{acc+2}, v{acc+3}")
            a(f"s_add_u32 s29, s28, {uu*65536 + (tb>>1)*1024 + (tb&1)*256}")
            a(f"buffer_store_dwordx2 {vr(VT,2)}, v5, s[8:11], s29 offen")
    a("s_endpgm")
    a.label("k2_kmain")
    a("s_sub_u32 s29, s25, 16")
    a(f"s_mul_i32 s29, s29, {2*KVH}")
    a("s_add_u32 s28, s28, s29")
    for uu in range(2):
        for tb in range(4):
            acc = VACC+16*uu+4*tb
            a(f"v_cvt_pk_bf16_f32 v{VT}, v{acc}, v{acc+1}")
            a(f"v_cvt_pk_bf16_f32 v{VT+1}, v{acc+2}, v{acc+3}")
            a(f"s_add_u32 s29, s28, {uu*KVH + KV_KA + (tb>>1)*1024 + (tb&1)*256}")
            a(f"buffer_store_dwordx2 {vr(VT,2)}, v5, s[16:19], s29 offen")
    a("s_endpgm")
    a.label("k2_ext")
    a("s_cmp_ge_u32 s25, 50\ns_cbranch_scc1 k2_kext")
    a(f"s_mov_b32 s33, {QSCALE:#x}")
    a(f"v_lshlrev_b32 v5, 15, v{VG}               ; 2g heads * 16384")
    a(f"v_lshl_add_u32 v5, v{VTOK}, 3, v5")
    a("s_sub_u32 s29, s25, 48")
    a("s_lshl_b32 s29, s29, 18")
    a("s_lshl_b32 s28, s24, 9         ; rb*64*8")
    a("s_add_u32 s28, s28, s29")
    a(f"v_mov_b32 v{VT+1}, 0")
    a(f"v_mov_b32 v{VT+3}, 0")
    for uu in range(2):
        for tb in range(4):
            acc = VACC+16*uu+4*tb
            for j in range(4): a(f"v_mul_f32 v{acc+j}, s33, v{acc+j}")
            a(f"v_cvt_pk_bf16_f32 v{VT}, v{acc}, v{acc+1}")
            a(f"v_cvt_pk_bf16_f32 v{VT+2}, v{acc+2}, v{acc+3}")
            a(f"s_add_u32 s29, s28, {uu*8*16384 + tb*128}")
            a(f"buffer_store_dwordx2 {vr(VT,2)}, v5, s[12:15], s29 offen")
            a(f"s_add_u32 s29, s29, 16384")
            a(f"buffer_store_dwordx2 {vr(VT+2,2)}, v5, s[12:15], s29 offen")
    a("s_endpgm")
    a.label("k2_kext")
    a(f"v_mul_u32_u24 v5, {2*KVH}, v{VG}")
    a(f"v_lshl_add_u32 v5, v{VTOK}, 3, v5")
    a("s_sub_u32 s29, s25, 50")
    a(f"s_mul_i32 s29, s29, {16*KVH}")
    a("s_lshl_b32 s28, s24, 9")
    a("s_add_u32 s28, s28, s29")
    a(f"v_mov_b32 v{VT+1}, 0x3f80")
    a(f"v_mov_b32 v{VT+3}, 0x3f80")
    for uu in range(2):
        for tb in range(4):
            acc = VACC+16*uu+4*tb
            a(f"v_cvt_pk_bf16_f32 v{VT}, v{acc}, v{acc+1}")
            a(f"v_cvt_pk_bf16_f32 v{VT+2}, v{acc+2}, v{acc+3}")
            a(f"s_add_u32 s29, s28, {uu*8*KVH + KV_KB + tb*128}")
            a(f"buffer_store_dwordx2 {vr(VT,2)}, v5, s[16:19], s29 offen")
            a(f"s_add_u32 s29, s29, {KVH}")
            a(f"buffer_store_dwordx2 {vr(VT+2,2)}, v5, s[16:19], s29 offen")
    a("s_endpgm")
    a.label("k2_gv")
    gemm(True)
    srd(a, 16, 20, SZ_KV, WS_KV)
    a(f"v_and_b32 v6, 1, v{VG}")
    a(f"v_mul_u32_u24 v5, 304, v6")
    a(f"v_lshrrev_b32 v6, 1, v{VG}")
    a(f"v_lshl_add_u32 v5, v6, 3, v5")
    a(f"s_mul_i32 s28, s24, {2*1216}")
    a("s_cmp_ge_u32 s25, 52\ns_cbranch_scc1 k2_vext")
    a(f"v_lshl_add_u32 v5, v{VTOK}, 4, v5          ; d = m")
    a("s_sub_u32 s29, s25, 32")
    a(f"s_mul_i32 s29, s29, {2*KVH}")
    a("s_add_u32 s28, s28, s29")
    a(f"s_mov_b32 s31, {KVH}")
    a("s_branch k2_vstore")
    a.label("k2_vext")
    a(f"v_lshrrev_b32 v6, 1, v{VTOK}")
    a(f"v_mul_u32_u24 v6, {KVH}, v6")
    a(f"v_add_u32 v5, v5, v6")
    a(f"v_and_b32 v6, 1, v{VTOK}")
    a(f"v_lshl_add_u32 v5, v6, 4, v5")
    a(f"v_add_u32 v5, 256, v5                      ; d = 16 + (m&1)")
    a("s_sub_u32 s29, s25, 52")
    a(f"s_mul_i32 s29, s29, {16*KVH}")
    a("s_add_u32 s28, s28, s29")
    a(f"s_mov_b32 s31, {8*KVH}")
    a.label("k2_vstore")
    for uu in range(2):
        for tb in range(4):
            acc = VACC+16*uu+4*tb
            a(f"v_cvt_pk_bf16_f32 v{VT}, v{acc}, v{acc+1}")
            a(f"v_cvt_pk_bf16_f32 v{VT+1}, v{acc+2}, v{acc+3}")
            a(f"s_add_u32 s29, s28, {KV_V + (tb>>1)*1216 + (tb&1)*608}")
            a(f"buffer_store_dwordx2 {vr(VT,2)}, v5, s[16:19], s29 offen")
        if uu == 0: a("s_add_u32 s28, s28, s31")
    a("s_endpgm")
    a.label("k2_exit")
    return kernel("k2_qkv_kernel", a, vgpr=256, sgpr=64), (256, 512, K2_LDS)
```

```python
from common import *
K3_LDS = KVH
ST1 = 16

def gen_k3():
    a = Asm()
    a("s_cmp_ge_u32 s2, 256\ns_cbranch_scc1 k3_exit")
    load_ptr(a, 20, KA_WS)
    wave_id(a, 22, 1)
    VL=1; VL16=2; VQI=3; VHH=4
    a(f"v_and_b32 v{VL}, 63, v0")
    a(f"v_lshlrev_b32 v{VL16}, 4, v{VL}")
    a(f"v_and_b32 v{VQI}, 31, v{VL}")
    a(f"v_lshrrev_b32 v{VHH}, 5, v{VL}")
    a("s_and_b32 s23, s2, 31          ; head")
    a("s_lshr_b32 s24, s2, 5          ; qb")
    a("s_waitcnt lgkmcnt(0)")
    srd(a, 8, 20, SZ_KV, WS_KV); srd(a, 12, 20, SZ_QA, WS_QA); srd(a, 16, 20, SZ_QB, WS_QB)
    VQA=8; VQB=12
    VS=[16, 32]
    VP=48
    VO=56
    VKA=[72, 76]; VKB=[80, 82]; VV=[84, 92]
    AKA=100; AKB=101; AV=102; VT=104
    a("s_lshl_b32 s25, s24, 3")
    a("s_add_u32 s25, s25, s22")
    a("s_lshl_b32 s26, s23, 16")
    a("s_lshl_b32 s27, s25, 10")
    a("s_add_u32 s26, s26, s27")
    a(f"buffer_load_dwordx4 {vr(VQA)}, v{VL16}, s[12:15], s26 offen")
    a("s_lshl_b32 s26, s23, 14")
    a("s_lshl_b32 s27, s25, 8")
    a("s_add_u32 s26, s26, s27")
    a(f"v_lshlrev_b32 v5, 3, v{VQI}")
    a(f"buffer_load_dwordx2 {vr(VQB,2)}, v5, s[16:19], s26 offen")
    a(f"s_mul_i32 s28, s23, {KVH}")
    def dma(off_expr_sgpr):
        a(f"s_mov_b32 m0, s{off_expr_sgpr}")
        a(f"s_add_u32 s30, s28, s{off_expr_sgpr}")
        a(f"buffer_load_dwordx4 v{VL16}, s[8:11], s30 offen lds")
    def chunks(base, first, count):
        n = (count + 7)//8
        for i in range(n):
            a(f"s_add_u32 s29, s22, {8*i}")
            if 8*i + 7 >= count: a(f"s_min_u32 s29, s29, {count-1}")
            a(f"s_lshl_b32 s29, s29, 10")
            a(f"s_add_u32 s29, s29, {base + first*1024}")
            dma(29)
        return n
    n1 = chunks(KV_KA, 0, ST1) + chunks(KV_KB, 0, ST1//4) + chunks(KV_V, 0, ST1*1216//1024)
    n2 = chunks(KV_KA, ST1, 64-ST1) + chunks(KV_KB, ST1//4, (64-ST1)//4) + chunks(KV_V, ST1*1216//1024, (64-ST1)*1216//1024)
    assert (ST1*1216) % 1024 == 0
    a(f"v_mov_b32 v{AKA}, v{VL16}")
    a(f"v_lshlrev_b32 v{AKB}, 3, v{VQI}")
    a(f"v_add_u32 v{AKB}, {KV_KB}, v{AKB}")
    a(f"v_min_u32 v5, 18, v{VQI}")
    a(f"v_cmp_lt_u32 vcc, 19, v{VQI}")
    a(f"v_cndmask_b32 v5, v5, 0, vcc")
    a(f"v_mov_b32 v6, 4")
    a(f"v_cmp_lt_u32 vcc, 27, v{VQI}")
    a(f"v_cndmask_b32 v5, v5, v6, vcc")
    a(f"v_lshlrev_b32 v5, 4, v5")
    a(f"v_mul_u32_u24 v6, 304, v{VHH}")
    a(f"v_add_u32 v5, v5, v6")
    a(f"v_add_u32 v{AV}, {KV_V}, v5")
    a(f"s_waitcnt vmcnt({n1+n2})")
    a(f"v_cmp_eq_u32 vcc, 0, v{VHH}")
    a(f"v_cndmask_b32 v{VQB}, 0, v{VQB}, vcc")
    a(f"v_mov_b32 v{VQB+1}, 0")
    a(f"s_waitcnt vmcnt({n2})")
    a("s_barrier")
    a("s_mov_b32 s34, 0")

    def kread(buf, tile_off):
        a(f"ds_read_b128 {vr(VKA[buf])}, v{AKA} offset:{tile_off*1024}")
        a(f"ds_read_b64 {vr(VKB[buf],2)}, v{AKB} offset:{tile_off*256}")
    def vread(buf, tile_off):
        a(f"ds_read_b128 {vr(VV[buf])}, v{AV} offset:{tile_off*1216}")
        a(f"ds_read_b128 {vr(VV[buf]+4)}, v{AV} offset:{tile_off*1216+608}")
    def qk1(sb, kb): a(f"v_mfma_f32_32x32x16_bf16 {vr(VS[sb],16)}, {vr(VKA[kb])}, {vr(VQA)}, 0")
    def qk2(sb, kb): a(f"v_mfma_f32_32x32x8bf16_1k {vr(VS[sb],16)}, {vr(VKB[kb],2)}, {vr(VQB,2)}, {vr(VS[sb],16)}")
    def setmax(vm):
        a(f"v_mov_b32 v{VT+1}, v{vm}")
        a(f"v_permlane32_swap_b32 v{vm}, v{VT+1}")
        a(f"v_max_f32 v{vm}, v{vm}, v{VT+1}")
        a(f"v_sub_f32 v{vm}, 0, v{vm}")
        a(f"v_cvt_pk_bf16_f32 v{vm}, v{vm}, 0")
        a(f"v_and_b32 v{vm}, 0xffff, v{vm}")
        a(f"v_cmp_eq_u32 vcc, 0, v{VHH}")
        a(f"v_cndmask_b32 v{VQB+1}, 0, v{vm}, vcc")
    def tilemax(sb, vm, first):
        s = VS[sb]
        if first:
            a(f"v_max3_f32 v{vm}, v{s}, v{s+1}, v{s+2}")
            a(f"v_max_f32 v{vm}, v{vm}, v{s+3}")
            rng = range(4, 16, 2)
        else:
            rng = range(0, 16, 2)
        for i in rng: a(f"v_max3_f32 v{vm}, v{s+i}, v{s+i+1}, v{vm}")

    kread(0, 0)
    a("s_waitcnt lgkmcnt(0)")
    qk1(0, 0); qk2(0, 0)
    tilemax(0, VT, True)
    setmax(VT)

    a.label("k3_pass")
    a(f"v_mov_b32 v{AKA}, v{VL16}")
    a(f"v_lshlrev_b32 v{AKB}, 3, v{VQI}")
    a(f"v_add_u32 v{AKB}, {KV_KB}, v{AKB}")
    a(f"v_add_u32 v{AV}, {KV_V}, v5")
    for i in range(16): a(f"v_mov_b32 v{VO+i}, 0")
    kread(0, 0); kread(1, 1); vread(0, 0)
    a("s_waitcnt lgkmcnt(4)")
    qk1(0, 0); qk2(0, 0)
    kread(0, 2)
    def body(j, do_k, do_v, pend_k):
        sb = j & 1; nb = sb ^ 1
        s = VS[sb]
        ex = lambda i: a(f"v_exp_f32 v{s+i}, v{s+i}")
        cv = lambda i: a(f"v_cvt_pk_bf16_f32 v{VP+i}, v{s+2*i}, v{s+2*i+1}")
        if do_v: vread(nb, j+1)
        a(f"s_waitcnt lgkmcnt({(2 if do_v else 0) + (2 if pend_k else 0)})")
        if do_v: qk1(nb, nb)
        ex(0); ex(1); ex(2); ex(3); cv(0)
        if do_v: qk2(nb, nb)
        ex(4); ex(5); cv(1); ex(6); ex(7); cv(2); ex(8); cv(3); ex(9); ex(10)
        a(f"v_mfma_f32_32x32x16_bf16 {vr(VO,16)}, {vr(VV[sb])}, {vr(VP)}, {vr(VO,16)}")
        ex(11); cv(4); ex(12); ex(13); cv(5); ex(14); ex(15); cv(6); cv(7)
        if do_k: kread(nb, j+3)
        a(f"v_mfma_f32_32x32x16_bf16 {vr(VO,16)}, {vr(VV[sb]+4)}, {vr(VP+4)}, {vr(VO,16)}")
    def bump(n):
        a(f"v_add_u32 v{AKA}, {n*1024}, v{AKA}")
        a(f"v_add_u32 v{AKB}, {n*256}, v{AKB}")
        a(f"v_add_u32 v{AV}, {n*1216}, v{AV}")
    UN = 2
    n_a = (ST1-4)//UN
    a(f"s_mov_b32 s33, {n_a}")
    a.label("k3_loop1")
    for j in range(UN): body(j, True, True, True)
    bump(UN)
    a("s_sub_u32 s33, s33, 1\ns_cmp_lg_u32 s33, 0\ns_cbranch_scc1 k3_loop1")
    a("s_cmp_lg_u32 s34, 0\ns_cbranch_scc1 k3_nosync")
    a("s_waitcnt vmcnt(0)")
    a("s_barrier")
    a.label("k3_nosync")
    n_b = (60 - n_a*UN)//UN
    a(f"s_mov_b32 s33, {n_b}")
    a.label("k3_loop2")
    for j in range(UN): body(j, True, True, True)
    bump(UN)
    a("s_sub_u32 s33, s33, 1\ns_cmp_lg_u32 s33, 0\ns_cbranch_scc1 k3_loop2")
    body(0, True, True, True)
    body(1, False, True, True)
    body(2, False, True, False)
    body(3, False, False, False)
    a("s_cmp_lg_u32 s34, 0\ns_cbranch_scc1 k3_final")
    a(f"v_add_f32 v{VT}, |v{VO}|, |v{VO+1}|")
    for i in range(2, 16): a(f"v_add_f32 v{VT}, v{VT}, |v{VO+i}|")
    a(f"v_mov_b32 v{VT+1}, 0x7e800000")
    a(f"v_cmp_nlt_f32 vcc, v{VT}, v{VT+1}")
    a("s_cmp_eq_u64 vcc, 0\ns_cbranch_scc1 k3_final")
    a("s_mov_b32 s34, 1")
    a(f"v_mov_b32 v{VQB+1}, 0")
    a(f"v_mov_b32 v{AKA}, v{VL16}")
    a(f"v_lshlrev_b32 v{AKB}, 3, v{VQI}")
    a(f"v_add_u32 v{AKB}, {KV_KB}, v{AKB}")
    a(f"v_mov_b32 v{VT}, 0xff800000")
    a("s_mov_b32 s33, 64")
    a.label("k3_maxloop")
    kread(0, 0)
    a("s_waitcnt lgkmcnt(0)")
    qk1(0, 0); qk2(0, 0)
    tilemax(0, VT, False)
    a(f"v_add_u32 v{AKA}, 1024, v{AKA}")
    a(f"v_add_u32 v{AKB}, 256, v{AKB}")
    a("s_sub_u32 s33, s33, 1\ns_cmp_lg_u32 s33, 0\ns_cbranch_scc1 k3_maxloop")
    setmax(VT)
    a("s_branch k3_pass")
    a.label("k3_final")
    srd(a, 8, 20, SZ_OM, WS_OM); srd(a, 12, 20, SZ_OE, WS_OE)
    a(f"v_mov_b32 v{VT}, v{VO+10}")
    a(f"v_mov_b32 v{VT+1}, v{VO+10}")
    a(f"v_permlane32_swap_b32 v{VT}, v{VT+1}")
    a(f"v_rcp_f32 v{VT}, v{VT}")
    for i in list(range(8)) + [8, 9]: a(f"v_mul_f32 v{VO+i}, v{VO+i}, v{VT}")
    a(f"v_cvt_pk_bf16_f32 v{VP}, v{VO}, v{VO+1}")
    a(f"v_cvt_pk_bf16_f32 v{VP+1}, v{VO+2}, v{VO+3}")
    a(f"v_cvt_pk_bf16_f32 v{VP+2}, v{VO+4}, v{VO+5}")
    a(f"v_cvt_pk_bf16_f32 v{VP+3}, v{VO+6}, v{VO+7}")
    a(f"v_cvt_pk_bf16_f32 v{VP+4}, v{VO+8}, v{VO+9}")
    a(f"v_permlane32_swap_b32 v{VP}, v{VP+2}")
    a(f"v_permlane32_swap_b32 v{VP+1}, v{VP+3}")
    a("s_lshl_b32 s26, s23, 16")
    a("s_lshl_b32 s27, s25, 10")
    a("s_add_u32 s26, s26, s27")
    a(f"buffer_store_dwordx4 {vr(VP)}, v{VL16}, s[8:11], s26 offen")
    a("s_lshl_b32 s26, s23, 13")
    a("s_lshl_b32 s27, s25, 7")
    a("s_add_u32 s26, s26, s27")
    a(f"v_lshlrev_b32 v5, 2, v{VQI}")
    a(f"v_cmp_eq_u32 vcc, 0, v{VHH}")
    a("s_and_saveexec_b64 s[36:37], vcc")
    a(f"buffer_store_dword v{VP+4}, v5, s[12:15], s26 offen")
    a.label("k3_exit")
    return kernel("k3_attn_kernel", a, vgpr=112, sgpr=64), (256, 512, K3_LDS)
```

```python
from common import *
K4_LDS = 36864
def gen_k4():
    a = Asm()
    a("s_cmp_ge_u32 s2, 256\ns_cbranch_scc1 k4_exit")
    load_ptr(a, 4, KA_X); load_ptr(a, 20, KA_WS)
    wave_id(a, 22, 1)
    VL=1; VTOK=2; VG=3; VL16=4
    a(f"v_and_b32 v{VL}, 63, v0")
    a(f"v_and_b32 v{VTOK}, 15, v{VL}")
    a(f"v_lshrrev_b32 v{VG}, 4, v{VL}")
    a(f"v_lshlrev_b32 v{VL16}, 4, v{VL}")
    a("s_lshr_b32 s24, s2, 2          ; tg")
    a("s_and_b32 s23, s2, 3           ; ng")
    a("s_waitcnt lgkmcnt(0)")
    srd(a, 8, 20, SZ_OM, WS_OM); srd(a, 12, 20, SZ_OE, WS_OE); srd(a, 16, 20, SZ_WO, WS_WO)
    srd(a, 24+4, 4, SZ_X); srd(a, 32, 20, SZ_MOD, WS_MOD); srd(a, 36, 20, SZ_X1, WS_X1)
    VX=8; VW=24; VACC=96; VR=104; VGA=108; VT=112; VB=[116,124]
    a("s_cmp_eq_u32 s22, 8\ns_cbranch_scc1 k4_ext")
    a(f"v_lshrrev_b32 v5, 1, v{VG}")
    a(f"v_lshlrev_b32 v5, 16, v5")
    a(f"v_and_b32 v6, 1, v{VG}")
    a(f"v_lshl_add_u32 v5, v6, 9, v5")
    a(f"v_lshl_add_u32 v5, v{VTOK}, 4, v5")
    a("s_lshl_b32 s25, s22, 18        ; t0 = 2w -> head 4w -> *65536")
    a("s_lshl_b32 s26, s24, 10")
    a("s_add_u32 s25, s25, s26")
    for i in range(4):
        a(f"s_add_u32 s26, s25, {(i>>1)*2*65536 + (i&1)*256}")
        a(f"buffer_load_dwordx4 {vr(VX+4*i)}, v5, s[8:11], s26 offen")
    a("s_branch k4_j")
    a.label("k4_ext")
    a(f"v_lshlrev_b32 v5, 15, v{VG}")
    a(f"v_lshl_add_u32 v5, v{VTOK}, 2, v5")
    a("s_lshl_b32 s25, s24, 7         ; 32 tg * 4")
    for i in range(4):
        for q in range(4):
            a(f"s_add_u32 s26, s25, {(16*(i>>1)+q)*8192 + (i&1)*64}")
            a(f"buffer_load_dword v{VX+4*i+q}, v5, s[12:15], s26 offen")
    a("s_waitcnt vmcnt(0)")
    a.label("k4_j")
    a("s_mul_i32 s25, s23, 9")
    a("s_add_u32 s25, s25, s22        ; unit")
    a(f"s_mul_i32 s26, s25, {18*1024}")
    for t in range(18):
        if t and t % 4 == 0: a("s_add_u32 s26, s26, 4096")
        a(f"buffer_load_dwordx4 {vr(VW+4*t)}, v{VL16}, s[16:19], s26 offen offset:{(t%4)*1024}")
    a(f"v_mul_u32_u24 v6, 1152, v{VTOK}")
    a(f"v_lshl_add_u32 v6, v{VG}, 3, v6            ; tok*1152 + g*8")
    a(f"s_mul_i32 s27, s24, {32*1152}")
    a("s_lshl_b32 s26, s25, 5         ; 16u*2")
    a("s_add_u32 s27, s27, s26")
    a(f"buffer_load_dwordx2 {vr(VR,2)}, v6, s[28:31], s27 offen")
    a(f"s_add_u32 s26, s27, {16*1152}")
    a(f"buffer_load_dwordx2 {vr(VR+2,2)}, v6, s[28:31], s26 offen")
    a(f"v_lshlrev_b32 v7, 4, v{VG}")
    a("s_lshl_b32 s26, s25, 6")
    a(f"s_add_u32 s26, s26, {2*576*4}")
    a(f"buffer_load_dwordx4 {vr(VGA)}, v7, s[32:35], s26 offen")
    a("s_lshl_b32 s26, s22, 12")
    a(f"v_add_u32 v7, s26, v{VL16}")
    a("s_waitcnt vmcnt(21)")
    for i in range(4): a(f"ds_write_b128 v7, {vr(VX+4*i)} offset:{i*1024}")
    a("s_waitcnt lgkmcnt(0)")
    a("s_barrier")
    def xr(t):
        b = VB[t & 1]
        a(f"ds_read_b128 {vr(b)}, v{VL16} offset:{t*2048}")
        a(f"ds_read_b128 {vr(b+4)}, v{VL16} offset:{t*2048+1024}")
    xr(0)
    for t in range(18):
        if t < 17: xr(t+1)
        a(f"s_waitcnt vmcnt({17-t+3}) lgkmcnt({2 if t < 17 else 0})")
        for tb in range(2):
            acc = VACC+4*tb
            a(f"v_mfma_f32_16x16x32_bf16 {vr(acc)}, {vr(VW+4*t)}, {vr(VB[t&1]+4*tb)}, {vr(acc) if t else '0'}")
    a("s_waitcnt vmcnt(0)")
    for tb in range(2):
        acc = VACC+4*tb; r = VR+2*tb
        a(f"v_lshlrev_b32 v{VT}, 16, v{r}")
        a(f"v_and_b32 v{VT+1}, 0xffff0000, v{r}")
        a(f"v_lshlrev_b32 v{VT+2}, 16, v{r+1}")
        a(f"v_and_b32 v{VT+3}, 0xffff0000, v{r+1}")
        for j in range(4): a(f"v_fmac_f32 v{VT+j}, v{VGA+j}, v{acc+j}")
        a(f"v_cvt_pk_bf16_f32 v{r}, v{VT}, v{VT+1}")
        a(f"v_cvt_pk_bf16_f32 v{r+1}, v{VT+2}, v{VT+3}")
        a(f"s_add_u32 s26, s27, {tb*16*1152}")
        a(f"buffer_store_dwordx2 {vr(r,2)}, v6, s[36:39], s26 offen")
    a.label("k4_exit")
    return kernel("k4_oproj_kernel", a, vgpr=136, sgpr=64), (256, 576, K4_LDS)
```

```python
from common import *
from k2 import ln_stats, ln_finish, ln_apply_chunk
L5_X=0; L5_H=73728; L5_STAT=147456; L5_MOD=148992
K5_LDS = L5_MOD + 768*16
NLOG2E=0xbfb8aa3b
def gen_k5():
    a = Asm()
    a("s_cmp_ge_u32 s2, 256\ns_cbranch_scc1 k5_exit")
    load_ptr(a, 20, KA_WS)
    wave_id(a, 22, 1)
    VL=1; VTOK=2; VG=3; VL16=4
    a(f"v_and_b32 v{VL}, 63, v0")
    a(f"v_and_b32 v{VTOK}, 15, v{VL}")
    a(f"v_lshrrev_b32 v{VG}, 4, v{VL}")
    a(f"v_lshlrev_b32 v{VL16}, 4, v{VL}")
    a("s_and_b32 s23, s2, 7           ; slice")
    a("s_lshr_b32 s24, s2, 3          ; rb")
    sdiv(a, 26, 22, 3, 27, 25)
    a("s_waitcnt lgkmcnt(0)")
    WBASE = WS_W13
    srd(a, 8, 20, SZ_X1, WS_X1); srd(a, 12, 20, 4608, WS_MOD+3*2304)
    srd(a, 16, 20, WS_W2 + SZ_W2 - WBASE, WBASE); srd(a, 32, 20, SZ_PART, WS_PART)
    VACC=8
    VW=104
    VX=[128, 144]
    AX=160; AH=161
    XP=VACC
    a(f"v_mul_u32_u24 v5, 1152, v{VTOK}")
    a(f"v_lshl_add_u32 v5, v{VG}, 4, v5")
    a(f"s_mul_i32 s28, s24, {64*1152}")
    a(f"s_mul_i32 s29, s26, {16*1152}")
    a("s_add_u32 s28, s28, s29")
    a("s_mul_i32 s29, s27, 384")
    a("s_add_u32 s28, s28, s29")
    for i in range(6):
        a(f"buffer_load_dwordx4 {vr(XP+4*i)}, v5, s[8:11], s28 offen offset:{i*64}")
    MT=XP+24
    a("v_lshlrev_b32 v6, 4, v0")
    a(f"buffer_load_dwordx4 {vr(MT)}, v6, s[12:15], 0 offen")
    a(f"s_mul_i32 s40, s23, {SZ_W13S}")
    a("s_mul_i32 s29, s22, 110592")
    a("s_add_u32 s40, s40, s29")
    a(f"s_mul_i32 s41, s23, {SZ_W2S}")
    a("s_mul_i32 s29, s22, 55296")
    a("s_add_u32 s41, s41, s29")
    a(f"s_add_u32 s41, s41, {WS_W2-WBASE:#x}")
    a(f"v_add_u32 v7, 4096, v{VL16}")
    def wload(f, s):
        if f < 4: a(f"buffer_load_dwordx4 {vr(VW+4*f)}, v{VL16}, s[16:19], {s} offen offset:{f*1024}")
        else:     a(f"buffer_load_dwordx4 {vr(VW+4*f)}, v7, s[16:19], {s} offen offset:{(f-4)*1024}")
    for f in range(6): wload(f, "s40")
    a("s_add_u32 s40, s40, 6144")
    a("s_mov_b32 s30, 0x3f803f80")
    a(f"v_add_u32 v6, {L5_MOD}, v6")
    a("s_waitcnt vmcnt(6)")
    a(f"ds_write_b128 v6, {vr(MT)}")
    VS=XP+28; VQ=XP+29; VTMP=XP+30
    ln_stats(a, XP, 24, VS, VQ, 30)
    xsum16_32(a, VS, VTMP); xsum16_32(a, VQ, VTMP)
    a("s_lshl_b32 s28, s27, 6")
    a("s_lshl_b32 s29, s26, 4")
    a("s_add_u32 s28, s28, s29")
    a(f"v_add_u32 v5, s28, v{VTOK}")
    a(f"v_lshlrev_b32 v5, 3, v5")
    a(f"v_add_u32 v5, {L5_STAT}, v5")
    a(f"ds_write_b64 v5, {vr(VS,2)}")
    a("s_waitcnt lgkmcnt(0)")
    a("s_barrier")
    a(f"v_add_u32 v5, s29, v{VTOK}")
    a(f"v_lshlrev_b32 v5, 3, v5")
    a(f"v_add_u32 v5, {L5_STAT}, v5")
    a(f"ds_read_b64 {vr(VS,2)}, v5")
    a(f"ds_read_b64 {vr(VS+2,2)}, v5 offset:512")
    a(f"ds_read_b64 {vr(VS+4,2)}, v5 offset:1024")
    a("s_waitcnt lgkmcnt(0)")
    a(f"v_add_f32 v{VS}, v{VS}, v{VS+2}")
    a(f"v_add_f32 v{VQ}, v{VQ}, v{VS+3}")
    a(f"v_add_f32 v{VS}, v{VS}, v{VS+4}")
    a(f"v_add_f32 v{VQ}, v{VQ}, v{VS+5}")
    VR=XP+34; VSH=XP+35
    ln_finish(a, VS, VQ, VR, VSH, VTMP)
    VC=[XP+40, XP+56]; VSF=[XP+48, XP+64]; VTT=XP+72; VO=XP+80
    a(f"v_lshlrev_b32 v5, 5, v{VG}")
    a(f"s_mul_i32 s28, s27, {6*128}")
    a(f"s_add_u32 s28, s28, {L5_MOD}")
    a(f"v_add_u32 v5, s28, v5")
    a(f"s_mul_i32 s28, s27, {6*4096}")
    a(f"s_lshl_b32 s29, s26, 10")
    a(f"s_add_u32 s28, s28, s29")
    a(f"v_add_u32 v6, s28, v{VL16}")
    def modread(i):
        b = i & 1
        a(f"ds_read_b128 {vr(VSF[b])}, v5 offset:{i*128}")
        a(f"ds_read_b128 {vr(VSF[b]+4)}, v5 offset:{i*128 + 16}")
        a(f"ds_read_b128 {vr(VC[b])}, v5 offset:{2304 + i*128}")
        a(f"ds_read_b128 {vr(VC[b]+4)}, v5 offset:{2304 + i*128 + 16}")
    modread(0)
    for i in range(6):
        if i < 5: modread(i+1)
        a(f"s_waitcnt lgkmcnt({4 if i < 5 else 0})")
        ln_apply_chunk(a, XP+4*i, VTT, VC[i&1], VSF[i&1], VR, VSH, VO+4*(i&1))
        a(f"ds_write_b128 v6, {vr(VO+4*(i&1))} offset:{i*4096}")
    a("s_waitcnt lgkmcnt(0)")
    a("s_barrier")
    a(f"v_mov_b32 v{AX}, v{VL16}")
    def xread(buf, off):
        for tb in range(4): a(f"ds_read_b128 {vr(VX[buf]+4*tb)}, v{AX} offset:{off + tb*1024}")
    def step1(buf, first, do_x, xoff, wsrc):
        if do_x: xread(buf ^ 1, xoff)
        for f in range(6):
            if f == 0: a(f"s_waitcnt vmcnt(5) lgkmcnt({4 if do_x else 0})")
            else:      a(f"s_waitcnt vmcnt(5)")
            for tb in range(4):
                acc = VACC + (f*4+tb)*4
                a(f"v_mfma_f32_16x16x32_bf16 {vr(acc)}, {vr(VW+4*f)}, {vr(VX[buf]+4*tb)}, {'0' if first else vr(acc)}")
            wload(f, wsrc)
        a(f"s_add_u32 {wsrc}, {wsrc}, 6144")
    xread(0, 0)
    step1(0, True, True, 4096, "s40")
    a(f"v_add_u32 v{AX}, 8192, v{AX}               ; base -> X(2)")
    a("s_mov_b32 s42, 8")
    a.label("k5_loop1")
    step1(1, False, True, 0, "s40")
    step1(0, False, True, 4096, "s40")
    a(f"v_add_u32 v{AX}, 8192, v{AX}")
    a("s_sub_u32 s42, s42, 1\ns_cmp_lg_u32 s42, 0\ns_cbranch_scc1 k5_loop1")
    step1(1, False, False, 0, "s41")
    T=VX[0]
    a("s_mul_i32 s28, s22, 3")
    for uu in range(3):
        a(f"s_add_u32 s29, s28, {uu}")
        a("s_lshr_b32 s25, s29, 1")
        a("s_lshl_b32 s25, s25, 12")
        a("s_and_b32 s29, s29, 1")
        a("s_lshl_b32 s29, s29, 3")
        a("s_add_u32 s25, s25, s29")
        a(f"s_add_u32 s25, s25, {L5_H}")
        a(f"v_add_u32 v{AH}, s25, v{VL16}")
        for tb in range(4):
            g = VACC + ((2*uu)*4+tb)*4; u = VACC + ((2*uu+1)*4+tb)*4
            for j in range(4): a(f"v_mul_f32 v{T+j}, {NLOG2E:#x}, v{g+j}")
            for j in range(4): a(f"v_exp_f32 v{T+j}, v{T+j}")
            for j in range(4): a(f"v_mul_f32 v{g+j}, v{g+j}, v{u+j}")
            for j in range(4): a(f"v_add_f32 v{T+j}, 1.0, v{T+j}")
            for j in range(4): a(f"v_rcp_f32 v{T+j}, v{T+j}")
            a("s_nop 0")
            for j in range(4): a(f"v_mul_f32 v{g+j}, v{g+j}, v{T+j}")
            o = T+4+2*(tb&1)
            a(f"v_cvt_pk_bf16_f32 v{o}, v{g}, v{g+1}")
            a(f"v_cvt_pk_bf16_f32 v{o+1}, v{g+2}, v{g+3}")
            a(f"ds_write_b64 v{AH}, {vr(o,2)} offset:{tb*1024}")
    a("s_waitcnt lgkmcnt(0)")
    a("s_barrier")
    a(f"v_add_u32 v{AX}, {L5_H}, v{VL16}")
    def w2load(slot, uu):
        a(f"buffer_load_dwordx4 {vr(VW+4*(3*slot+uu))}, v{VL16}, s[16:19], s41 offen offset:{uu*1024}")
    def step2(buf, first, do_x, xoff, reload, vm):
        if do_x: xread(buf ^ 1, xoff)
        for uu in range(3):
            if uu == 0: a(f"s_waitcnt vmcnt({vm[uu]}) lgkmcnt({4 if do_x else 0})")
            else:       a(f"s_waitcnt vmcnt({vm[uu]})")
            for tb in range(4):
                acc = VACC + (uu*4+tb)*4
                a(f"v_mfma_f32_16x16x32_bf16 {vr(acc)}, {vr(VW+4*(3*buf+uu))}, {vr(VX[buf]+4*tb)}, {'0' if first else vr(acc)}")
            if reload: w2load(buf, uu)
        if reload: a("s_add_u32 s41, s41, 3072")
    xread(0, 0)
    step2(0, True, True, 4096, True, [5,5,5])
    a(f"v_add_u32 v{AX}, 8192, v{AX}")
    a("s_mov_b32 s42, 7")
    a.label("k5_loop2")
    step2(1, False, True, 0, True, [5,5,5])
    step2(0, False, True, 4096, True, [5,5,5])
    a(f"v_add_u32 v{AX}, 8192, v{AX}")
    a("s_sub_u32 s42, s42, 1\ns_cmp_lg_u32 s42, 0\ns_cbranch_scc1 k5_loop2")
    step2(1, False, True, 0, True, [5,5,5])
    step2(0, False, True, 4096, False, [5,4,3])
    step2(1, False, False, 0, False, [2,1,0])
    a(f"s_mul_i32 s28, s23, {SZ_PARTS}")
    a("s_mul_i32 s29, s24, 73728")
    a("s_add_u32 s28, s28, s29")
    a("s_mul_i32 s29, s22, 6144")
    a("s_add_u32 s28, s28, s29")
    for q in range(6):
        uu = q >> 1; h = q & 1
        o = VW + 4*q
        for k in range(2):
            acc = VACC + (uu*4 + 2*h + k)*4
            a(f"v_cvt_pk_bf16_f32 v{o+2*k}, v{acc}, v{acc+1}")
            a(f"v_cvt_pk_bf16_f32 v{o+2*k+1}, v{acc+2}, v{acc+3}")
        if q < 4: a(f"buffer_store_dwordx4 {vr(o)}, v{VL16}, s[32:35], s28 offen offset:{q*1024}")
        else:     a(f"buffer_store_dwordx4 {vr(o)}, v7, s[32:35], s28 offen offset:{(q-4)*1024}")
    a.label("k5_exit")
    return kernel("k5_ffn_kernel", a, vgpr=168, sgpr=64), (256, 768, K5_LDS)
```

```python
from common import *
K6_LDS = 32*100*4
K6_NWG = 32*6*2
def gen_k6():
    a = Asm()
    a(f"s_cmp_ge_u32 s2, {K6_NWG}\ns_cbranch_scc1 k6_exit")
    load_ptr(a, 4, KA_OUT); load_ptr(a, 20, KA_WS)
    wave_id(a, 22, 1)
    VL=1; VTOK=2; VG=3; VL16=4
    a(f"v_and_b32 v{VL}, 63, v0")
    a(f"v_and_b32 v{VTOK}, 15, v{VL}")
    a(f"v_lshrrev_b32 v{VG}, 4, v{VL}")
    a(f"v_lshlrev_b32 v{VL16}, 4, v{VL}")
    sdiv(a, 24, 2, 12, 25, 26)
    a("s_lshr_b32 s26, s25, 1         ; sp")
    a("s_and_b32 s27, s25, 1          ; a")
    sdiv(a, 28, 22, 3, 29, 30)
    a("s_waitcnt lgkmcnt(0)")
    srd(a, 8, 20, SZ_PART, WS_PART); srd(a, 12, 20, SZ_X1, WS_X1); srd(a, 16, 20, SZ_MOD, WS_MOD); srd(a, 36, 4, SZ_X)
    a("s_mul_i32 s30, s24, 73728")
    a("s_lshl_b32 s31, s26, 1")
    a("s_add_u32 s31, s31, s28")
    a("s_mul_i32 s31, s31, 6144")
    a("s_add_u32 s30, s30, s31")
    a("s_lshl_b32 s31, s29, 1")
    a("s_add_u32 s31, s31, s27")
    a("s_lshl_b32 s31, s31, 10")
    a("s_add_u32 s30, s30, s31")
    VP=16
    for x in range(8):
        a(f"buffer_load_dwordx4 {vr(VP+4*x)}, v{VL16}, s[8:11], s30 offen")
        if x < 7: a(f"s_add_u32 s30, s30, {SZ_PARTS}")
    a("v_mul_u32_u24 v5, 5462, v0")
    a("v_lshrrev_b32 v5, 16, v5                   ; token 0..31")
    a("v_mul_u32_u24 v6, 12, v5")
    a("v_sub_u32 v6, v0, v6                       ; chunk 0..11")
    a("v_mul_u32_u24 v7, 1152, v5")
    a("v_lshl_add_u32 v7, v6, 4, v7")
    a(f"s_mul_i32 s31, s24, {64*1152}")
    a(f"s_mul_i32 s33, s27, {32*1152}")
    a("s_add_u32 s31, s31, s33")
    a("s_mul_i32 s33, s26, 192")
    a("s_add_u32 s31, s31, s33")
    VR=48; VGB=52
    a(f"buffer_load_dwordx4 {vr(VR)}, v7, s[12:15], s31 offen")
    a("v_lshlrev_b32 v8, 5, v6")
    a("s_mul_i32 s33, s26, 384")
    a(f"s_add_u32 s33, s33, {5*2304}")
    a(f"buffer_load_dwordx4 {vr(VGB)}, v8, s[16:19], s33 offen")
    a(f"buffer_load_dwordx4 {vr(VGB+4)}, v8, s[16:19], s33 offen offset:16")
    VA=60
    for x in range(8):
        a(f"s_waitcnt vmcnt({7-x+3})")
        for q in range(4):
            r = VP+4*x+q
            if x == 0:
                a(f"v_lshlrev_b32 v{VA+2*q}, 16, v{r}")
                a(f"v_and_b32 v{VA+2*q+1}, 0xffff0000, v{r}")
            else:
                a(f"v_lshlrev_b32 v9, 16, v{r}")
                a(f"v_and_b32 v10, 0xffff0000, v{r}")
                a(f"v_add_f32 v{VA+2*q}, v{VA+2*q}, v9")
                a(f"v_add_f32 v{VA+2*q+1}, v{VA+2*q+1}, v10")
    a("s_mul_i32 s33, s28, 3")
    a("s_add_u32 s33, s33, s29")
    a("s_lshl_b32 s33, s33, 2")
    a(f"v_mul_u32_u24 v9, 400, v{VTOK}")
    a(f"v_mul_u32_u24 v10, 96, v{VG}")
    a(f"v_add_u32 v9, v9, v10")
    a("v_add_u32 v9, s33, v9")
    for k in range(2):
        for j in range(4):
            a(f"ds_write_b32 v9, v{VA+4*k+j} offset:{k*16*400 + j*24}")
    a("s_waitcnt lgkmcnt(0)")
    a("s_barrier")
    a("v_mul_u32_u24 v9, 400, v5")
    a("v_lshl_add_u32 v9, v6, 5, v9")
    a(f"ds_read_b128 {vr(VA)}, v9")
    a(f"ds_read_b128 {vr(VA+4)}, v9 offset:16")
    a("s_waitcnt vmcnt(0) lgkmcnt(0)")
    for q in range(4):
        a(f"v_lshlrev_b32 v9, 16, v{VR+q}")
        a(f"v_and_b32 v10, 0xffff0000, v{VR+q}")
        a(f"v_fmac_f32 v9, v{VGB+2*q}, v{VA+2*q}")
        a(f"v_fmac_f32 v10, v{VGB+2*q+1}, v{VA+2*q+1}")
        a(f"v_cvt_pk_bf16_f32 v{VR+q}, v9, v10")
    a(f"buffer_store_dwordx4 {vr(VR)}, v7, s[36:39], s31 offen")
    a.label("k6_exit")
    return kernel("k6_reduce_kernel", a, vgpr=72, sgpr=64), (K6_NWG, 384, K6_LDS)
```

```python
import re

class Asm:
    def __init__(self):
        self.lines = []
        self._lab = 0
    def __call__(self, text):
        for ln in text.split("\n"):
            ln = ln.strip()
            if ln:
                self.lines.append(ln)
    def label(self, name):
        self.lines.append(name + ":")
    def newlabel(self, prefix="L"):
        self._lab += 1
        return f"{prefix}_{self._lab}"
    def stamp(self, i):
        self.lines.append(f";stamp {i}")
    def text(self):
        return "\n".join(self.lines) + "\n"

_REG = re.compile(r"^(-?\|?)(v|s|a)(\d+)(\|?)$")
_RNG = re.compile(r"^(-?\|?)(v|s|a)\[(\d+):(\d+)\](\|?)$")
def regs_of(op):
    op = op.strip()
    if op.startswith("abs(") or op.startswith("neg("):
        op = op[4:-1]
    m = _REG.match(op)
    if m: return {(m.group(2), int(m.group(3)))}
    m = _RNG.match(op)
    if m: return {(m.group(2), i) for i in range(int(m.group(3)), int(m.group(4)) + 1)}
    if op == "vcc": return {("s", "vcc")}
    if op in ("vcc_lo", "vcc_hi"): return {("s", "vcc")}
    if op == "exec": return {("s", "exec")}
    if op == "m0": return {("s", "m0")}
    return set()

def split_ops(s):
    out = []; depth = 0; cur = ""
    for ch in s:
        if ch in "[(": depth += 1
        if ch in "])": depth -= 1
        if ch == "," and depth == 0:
            out.append(cur.strip()); cur = ""
        else:
            cur += ch
    if cur.strip(): out.append(cur.strip())
    return out

TRANS = ("v_exp_", "v_log_", "v_rcp_", "v_rsq_", "v_sqrt_", "v_sin_", "v_cos_")
class Ins:
    __slots__ = ("text", "op", "kind", "w", "r", "ops", "mods", "passes", "srcA", "srcB", "srcC", "dst", "is_trans",
                 "is_dpp", "is_sdwa_dst", "sgpr_const_r", "store_data", "is_lds_dma", "nop", "target", "uncond", "lane_sel", "wide_store")
def parse(line):
    I = Ins(); I.text = line
    I.w = set(); I.r = set(); I.passes = 0; I.srcA = I.srcB = I.srcC = I.dst = set()
    I.is_trans = I.is_dpp = I.is_sdwa_dst = I.is_lds_dma = I.uncond = I.wide_store = False
    I.sgpr_const_r = set(); I.store_data = set(); I.nop = 0; I.target = None; I.lane_sel = set()
    code = line.split(";")[0].strip()
    if not code:
        I.op = ""; I.kind = "dir"; return I
    if code.endswith(":"):
        I.op = code[:-1]; I.kind = "label"; return I
    if code.startswith("."):
        I.op = code; I.kind = "dir"; return I
    parts = code.split(None, 1)
    op = parts[0]; I.op = op
    rest = parts[1] if len(parts) > 1 else ""
    ops = split_ops(rest)
    mods = ""
    if ops:
        last = ops[-1].split(None, 1)
        if len(last) > 1 and not last[0].endswith("("):
            ops[-1] = last[0]; mods = last[1]
    I.ops = ops; I.mods = mods
    R = [regs_of(o) for o in ops]
    allr = lambda xs: set().union(*xs) if xs else set()
    if op.startswith("v_mfma"):
        I.kind = "mfma"
        I.passes = 8 if "32x32" in op else 4
        I.dst = R[0]; I.srcA = R[1]; I.srcB = R[2]; I.srcC = R[3]
        I.w = R[0]; I.r = R[1] | R[2] | R[3]
    elif op.startswith("v_"):
        I.kind = "valu"
        I.is_trans = op.startswith(TRANS)
        I.is_dpp = ("row_" in mods) or ("quad_perm" in mods) or op.endswith("_dpp")
        I.is_sdwa_dst = ("dst_sel" in mods and "dst_sel:DWORD" not in mods) or ("op_sel:" in mods and not op.startswith("v_pk"))
        if op.startswith("v_cmp"):
            I.w = R[0]; I.r = allr(R[1:])
        elif op.startswith(("v_readfirstlane", "v_readlane")):
            I.w = R[0]; I.r = allr(R[1:])
            if op.startswith("v_readlane"): I.lane_sel = {x for x in R[2] if x[0] == "s"}
        elif op.startswith("v_writelane"):
            I.w = R[0]; I.r = allr(R[1:]) | R[0]
            I.lane_sel = {x for x in R[2] if x[0] == "s"}
        elif op.startswith(("v_permlane32_swap", "v_permlane16_swap", "v_swap")):
            I.w = R[0] | R[1]; I.r = R[0] | R[1]
        elif op.startswith(("v_add_co", "v_sub_co", "v_subrev_co", "v_addc_co", "v_subb_co", "v_div_scale")):
            I.w = R[0] | R[1]; I.r = allr(R[2:])
        elif op.startswith(("v_fmac", "v_dot2c", "v_pk_fmac", "v_mac")):
            I.w = R[0]; I.r = allr(R)
        else:
            I.w = R[0]; I.r = allr(R[1:])
            if I.is_sdwa_dst and "UNUSED_PRESERVE" in mods: I.r |= R[0]
            if I.is_dpp: I.r |= R[0]
        if op.startswith("v_cndmask") and len(ops) == 3: I.r |= {("s", "vcc")}
        I.sgpr_const_r = {x for x in I.r if x[0] == "s"}
    elif op.startswith("buffer_"):
        I.kind = "vmem"
        if op in ("buffer_wbl2", "buffer_inv"):
            pass
        elif "lds" in mods.split():
            I.is_lds_dma = True
            I.r = allr(R) | {("s", "m0")}
        elif op.startswith("buffer_load"):
            I.w = R[0]; I.r = allr(R[1:])
        elif op.startswith("buffer_store"):
            I.r = allr(R); I.store_data = R[0]
            I.wide_store = op.endswith(("x3", "x4"))
        elif op.startswith("buffer_atomic"):
            I.r = allr(R); I.store_data = R[0]
            if "sc0" in mods.split(): I.w = R[0]
        else:
            raise ValueError("vmem? " + line)
    elif op.startswith("ds_"):
        I.kind = "ds"
        if op.startswith("ds_add_rtn"):
            I.w = R[0]; I.r = allr(R[1:])
        elif op.startswith(("ds_read", "ds_bpermute", "ds_permute", "ds_swizzle")):
            I.w = R[0]; I.r = allr(R[1:])
            if "d16" in op: I.r |= R[0]
        else:
            I.r = allr(R); I.store_data = allr(R[1:])
    elif op.startswith("s_"):
        I.kind = "salu"
        if op == "s_nop":
            I.nop = int(ops[0], 0) + 1
        elif op.startswith("s_cbranch") or op == "s_branch":
            I.target = ops[0]; I.uncond = (op == "s_branch")
        elif op == "s_endpgm":
            I.uncond = True
        elif op.startswith(("s_cmp", "s_bitcmp", "s_waitcnt", "s_barrier", "s_sleep", "s_setprio")):
            I.r = allr(R)
        elif op.startswith(("s_load", "s_memtime", "s_memrealtime", "s_getreg")):
            I.kind = "smem"; I.w = R[0]; I.r = allr(R[1:])
        else:
            I.w = R[0] if R else set(); I.r = allr(R[1:])
            if "saveexec" in op: I.w |= {("s", "exec")}
    else:
        raise ValueError("unknown instruction: " + line)
    return I

def vg(s): return {x for x in s if x[0] in "va"}
def sg(s): return {x for x in s if x[0] == "s"}

def need(p, c):
    n = 0
    if p.kind == "valu":
        pw = vg(p.w); ps = sg(p.w)
        if c.kind == "mfma" and pw & c.r: n = max(n, 2)
        if c.kind == "valu":
            if p.is_trans and not c.is_trans and pw & c.r: n = max(n, 1)
            if p.is_sdwa_dst and pw & (c.r | c.w): n = max(n, 1)
            if c.is_dpp and pw & vg(c.r): n = max(n, 2)
            if c.op.startswith(("v_readfirstlane", "v_readlane")) and pw & vg(c.r): n = max(n, 1)
            if c.op.startswith(("v_permlane32_swap", "v_permlane16_swap")) and pw & c.r: n = max(n, 2)
            if ps & c.sgpr_const_r: n = max(n, 2)
            if ps & c.lane_sel: n = max(n, 4)
            if c.op.startswith("v_div_fmas") and ("s", "vcc") in ps: n = max(n, 4)
        if c.kind == "vmem" and ps & c.r: n = max(n, 5)
        if c.kind in ("salu", "smem") and ps & c.r and not c.op.startswith("s_waitcnt"): n = max(n, 1)
    if p.kind == "valu" and p.op.startswith("v_dot"):
        pw = vg(p.w)
        if c.op == p.op:
            ab = regs_of(c.ops[1]) | regs_of(c.ops[2])
            if pw & ab: n = max(n, 3)
        elif pw & (c.r | c.w): n = max(n, 3)
    if p.kind == "mfma":
        P = p.passes
        if c.kind == "mfma":
            if p.dst & c.srcC:
                if c.srcC == p.dst and c.passes == P: n = max(n, 0)
                else: n = max(n, P + 2)
            if p.dst & (c.srcA | c.srcB): n = max(n, P + 4)
            if p.dst & c.dst and not (p.dst & c.srcC):
                if c.dst != p.dst or c.passes != P: n = max(n, P + 2)
        elif c.kind == "valu":
            if p.dst & (c.r | c.w): n = max(n, P + 4)
            if vg(p.srcC) & c.w: n = max(n, P - 1)
        elif c.kind in ("vmem", "ds"):
            if p.dst & (c.r | c.w): n = max(n, P + 4)
    if p.kind == "vmem" and p.wide_store:
        if c.kind == "valu" and p.store_data & c.w: n = max(n, 2)
        elif c.kind in ("vmem", "ds", "mfma") and p.store_data & c.w: n = max(n, 1)
    if p.kind == "salu" and ("s", "m0") in p.w and c.kind == "vmem" and c.is_lds_dma: n = max(n, 1)
    return n

MAXD = 14
def fix_hazards(lines, verbose=False):
    total = 0
    for _round in range(2000):
        ins = [parse(l) for l in lines]
        labels = {I.op: i for i, I in enumerate(ins) if I.kind == "label"}
        preds = [[] for _ in ins]
        for i, I in enumerate(ins):
            if i + 1 < len(ins) and not I.uncond: preds[i + 1].append(i)
            if I.target is not None and I.target in labels: preds[labels[I.target]].append(i)
        inserts = {}
        for i, c in enumerate(ins):
            if c.kind in ("label", "dir") or c.op == "s_nop": continue
            worst = 0; stack = [(p, 0) for p in preds[i]]; seen = {}
            while stack:
                j, d = stack.pop()
                if d >= MAXD: continue
                if seen.get(j, 99) <= d: continue
                seen[j] = d
                p = ins[j]
                if p.kind in ("label", "dir"): step = 0
                else:
                    k = need(p, c)
                    if k - d > worst: worst = k - d
                    step = p.nop if p.op == "s_nop" else 1
                for q in preds[j]: stack.append((q, d + step))
            if worst > 0: inserts[i] = worst
        if not inserts: return lines, total
        out = []
        last_fix = -100
        for i, l in enumerate(lines):
            first = i in inserts and i - last_fix > MAXD + 2
            if i in inserts: last_fix = i
            if first:
                n = inserts[i]
                if verbose: print("hazard: +%d before: %s" % (n, l))
                total += n
                while n > 0:
                    k = min(n, 16); out.append("s_nop %d" % (k - 1)); n -= k
            out.append(l)
        lines = out
    raise RuntimeError("hazard fix did not converge")

PROFILE = False
_kidx = [0]
def instrument(name, lines):
    k = _kidx[0]; _kidx[0] += 1
    out = ["s_memrealtime s[88:89]", "s_memtime s[64:65]", "s_mov_b32 s94, s2",
           "v_readfirstlane_b32 s95, v0", "s_waitcnt lgkmcnt(0)"]
    for i in range(1, 7): out += [f"s_mov_b32 s{64+2*i}, s64"]
    for l in lines:
        c = l.split(";")[0].strip()
        if l.startswith(";stamp"):
            i = int(l.split()[1]); out.append(f"s_memtime s[{64+2*i}:{65+2*i}]")
        elif c == "s_endpgm": out.append(f"s_branch {name}_prof")
        else: out.append(l)
    out += [f"{name}_prof:", "s_memtime s[78:79]", "s_waitcnt vmcnt(0) lgkmcnt(0)", "s_memrealtime s[90:91]", "s_memtime s[80:81]",
            "s_load_dwordx2 s[92:93], s[0:1], 88", "s_waitcnt lgkmcnt(0)",
            f"s_add_u32 s84, s92, {0x8000000 + k*0x100000:#x} ;srd", "s_addc_u32 s85, s93, 0 ;srd",
            "s_mov_b32 s86, 0x100000 ;srd", "s_mov_b32 s87, 0x00020000 ;srd",
            "s_lshr_b32 s95, s95, 6", "s_and_b32 s95, s95, 15", "s_lshl_b32 s94, s94, 4", "s_add_u32 s94, s94, s95", "s_mul_i32 s94, s94, 48",
            "s_mov_b64 exec, 1", "v_mov_b32 v1, s94", "v_mov_b32 v2, s88", "v_mov_b32 v3, s90"]
    for i in range(1, 9):
        out += [f"s_sub_u32 s{64+2*i}, s{64+2*i}, s64", f"v_mov_b32 v{3+i}, s{64+2*i}"]
    out += ["buffer_store_dwordx2 v[2:3], v1, s[84:87], 0 offen",
            "buffer_store_dwordx4 v[4:7], v1, s[84:87], 0 offen offset:8",
            "buffer_store_dwordx4 v[8:11], v1, s[84:87], 0 offen offset:24"]
    return out

def kernel(name, asm, vgpr, sgpr=96, lds_note=None, accum=None):
    src = list(asm.lines)
    if PROFILE:
        src = instrument(name, src + ["s_endpgm"]); sgpr = 96
    lines, n = fix_hazards(src)
    body = "\n".join(lines)
    if accum is None: accum = min(256, (vgpr + 3) // 4 * 4)
    srdregs = set()
    for l in lines:
        I = parse(l)
        if I.kind == "vmem" and I.op not in ("buffer_wbl2", "buffer_inv"):
            quad = [o for o in I.ops if o.startswith("s[")][0]
            srdregs |= regs_of(quad)
    for l in lines:
        I = parse(l)
        if I.w & srdregs and ";srd" not in l:
            raise AssertionError(f"{name}: descriptor register clobbered by: {l}")
    mv = ms = -1
    for l in lines:
        I = parse(l)
        for (k, i) in (I.w | I.r):
            if k == "v": mv = max(mv, i)
            if k == "s" and isinstance(i, int): ms = max(ms, i)
    assert mv < vgpr, f"{name}: uses v{mv} but vgpr={vgpr}"
    assert ms < sgpr, f"{name}: uses s{ms} but sgpr={sgpr}"
    txt = f""".text
.globl {name}
.p2align 8
.type {name},@function
{name}:
{body}
s_endpgm
.section .rodata,"a"
.p2align 6
.amdhsa_kernel {name}
  .amdhsa_next_free_vgpr {vgpr}
  .amdhsa_next_free_sgpr {sgpr}
  .amdhsa_accum_offset {accum}
  .amdhsa_group_segment_fixed_size 0
  .amdhsa_kernarg_size 96
  .amdhsa_user_sgpr_count 2
  .amdhsa_user_sgpr_kernarg_segment_ptr 1
  .amdhsa_system_sgpr_workgroup_id_x 1
  .amdhsa_float_denorm_mode_32 3
.end_amdhsa_kernel
"""
    return txt, dict(name=name, maxv=mv, maxs=ms, nops=n, ninstr=len(lines))
```

```python
from asmgen import *
S=2048; D=576; H=32; DH=18; F=4608
KA_X=0; KA_WQKV=8; KA_WO=16; KA_BX=24; KA_W1=32; KA_W3=40; KA_W2=48; KA_C=56; KA_WMOD=64; KA_OUT=72; KA_DBG=80; KA_WS=88
WS_MOD =0x0000000;  SZ_MOD = 6*576*4
WS_WQKV=0x0010000;  SZ_WQKV= 54*18*2048
WS_WO  =0x0200000;  SZ_WO  = 36*18*1024
WS_W13 =0x0300000;  SZ_W13S= 12*18*6144; SZ_W13=8*SZ_W13S
WS_W2  =0x0E00000;  SZ_W2S = 12*18*3072; SZ_W2 =8*SZ_W2S
WS_QA  =0x1400000;  SZ_QA  = 32*65536
WS_QB  =0x1600000;  SZ_QB  = 32*16384
WS_KV  =0x1700000;  KVH=159744; SZ_KV = 32*KVH
KV_KA=0; KV_KB=65536; KV_V=81920
WS_OM  =0x1C00000;  SZ_OM  = 32*65536
WS_OE  =0x1E00000;  SZ_OE  = 32*2048*4
WS_X1  =0x1F00000;  SZ_X1  = 2048*1152
WS_PART=0x2200000;  SZ_PARTS=2048*1152; SZ_PART=8*SZ_PARTS
WS_XN  =0x3400000;  SZ_XN = 2048*1152
WS_X1F =0x3700000;  SZ_X1F = 2048*1152
WS_STP =0x3A00000;  SZ_STP = 2048*32
WS_CNT =0x3B00000;  SZ_CNT = 64*1024
SZ_X = 2048*1152

def load_ptr(a, sdst, off):
    a(f"s_load_dwordx2 s[{sdst}:{sdst+1}], s[0:1], {off}")

def srd(a, r, sptr, size, off=0):
    assert r % 4 == 0
    if off:
        a(f"s_add_u32 s{r}, s{sptr}, {off:#x} ;srd")
        a(f"s_addc_u32 s{r+1}, s{sptr+1}, 0 ;srd")
    else:
        a(f"s_mov_b32 s{r}, s{sptr} ;srd")
        a(f"s_mov_b32 s{r+1}, s{sptr+1} ;srd")
    a(f"s_mov_b32 s{r+2}, {size:#x} ;srd")
    a(f"s_mov_b32 s{r+3}, 0x00020000 ;srd")

def wave_id(a, sdst, vtmp):
    a(f"v_lshrrev_b32 v{vtmp}, 6, v0")
    a(f"v_readfirstlane_b32 s{sdst}, v{vtmp}")

def sdiv(a, sq, sn, d, srem=None, stmp=None):
    magic = (1 << 32) // d + 1
    a(f"s_mul_hi_u32 s{sq}, s{sn}, {magic:#x}")
    if srem is not None:
        a(f"s_mul_i32 s{stmp}, s{sq}, {d}")
        a(f"s_sub_u32 s{srem}, s{sn}, s{stmp}")

def bf16_round_f32(a, vdst, vsrc, vtmp=None):
    a(f"v_cvt_pk_bf16_f32 v{vdst}, v{vsrc}, v{vsrc}")
    a(f"v_and_b32 v{vdst}, 0xffff0000, v{vdst}")

def vr(b, n=4): return f"v[{b}:{b+n-1}]"
def sr(b, n=2): return f"s[{b}:{b+n-1}]"

def xsum16_32(a, v, t):
    a(f"v_mov_b32 v{t}, v{v}")
    a(f"v_permlane16_swap_b32 v{v}, v{t}")
    a(f"v_add_f32 v{v}, v{v}, v{t}")
    a(f"v_mov_b32 v{t}, v{v}")
    a(f"v_permlane32_swap_b32 v{v}, v{t}")
    a(f"v_add_f32 v{v}, v{v}, v{t}")

import struct as _st, math as _m
def f32(x): return _st.unpack("<I", _st.pack("<f", x))[0]
EPS = f32(1e-5); INV576 = f32(1.0/576)

def ln_stats(a, vx, n, vs, vq, sones):
    a(f"v_mov_b32 v{vs}, 0"); a(f"v_mov_b32 v{vq}, 0")
    for i in range(n):
        a(f"v_dot2_f32_bf16 v{vs}, v{vx+i}, s{sones}, v{vs}")
        a(f"v_dot2_f32_bf16 v{vq}, v{vx+i}, v{vx+i}, v{vq}")

def ln_finish(a, vs, vq, vrstd, vshift):
    a(f"v_mul_f32 v{vs}, {INV576:#x}, v{vs}           ; mean")
    a(f"v_mul_f32 v{vq}, {INV576:#x}, v{vq}")
    a(f"v_fma_f32 v{vq}, -v{vs}, v{vs}, v{vq}          ; var")
    a(f"v_max_f32 v{vq}, 0, v{vq}")
    a(f"v_add_f32 v{vq}, {EPS:#x}, v{vq}")
    a(f"v_rsq_f32 v{vrstd}, v{vq}")
    a(f"v_mul_f32 v{vshift}, v{vs}, v{vrstd}")
    a(f"v_sub_f32 v{vshift}, 0, v{vshift}")

def chunk_unpack(a, vx, vt):
    for q in range(4):
        a(f"v_lshlrev_b32 v{vt+2*q}, 16, v{vx+q}")
        a(f"v_and_b32 v{vt+2*q+1}, 0xffff0000, v{vx+q}")
def chunk_norm(a, vt, vrs):
    for q in range(4):
        a(f"v_pk_fma_f32 {vr(vt+2*q,2)}, {vr(vt+2*q,2)}, {vr(vrs,2)}, {vr(vrs+2,2)}")
def chunk_mod(a, vt, vc, vsft):
    for q in range(4):
        a(f"v_pk_fma_f32 {vr(vt+2*q,2)}, {vr(vt+2*q,2)}, {vr(vc+2*q,2)}, {vr(vsft+2*q,2)}")
def chunk_pack(a, vt, vout):
    for q in range(4):
        a(f"v_cvt_pk_bf16_f32 v{vout+q}, v{vt+2*q}, v{vt+2*q+1}")

import os as _os
def ENV(name, default): return _os.environ.get(name, default)
def SC(name, default):
    return "sc0 sc1" if _os.environ.get(name, default) == "1" else ""
```

```python
from common import *
import os
SIDE = os.environ.get('SIDE', 'k2')
NWG_MOD=18 if SIDE == 'k2' else 54; NWG_LS=54 if SIDE == 'k2' else 72; NWG_W13=0; NWG_W2=0; NWG_ONES=32; NWG_XN=64
B_LS=NWG_MOD; B_W13=B_LS+NWG_LS; B_W2=B_W13+NWG_W13; B_ONES=B_W2+NWG_W2; B_XN=B_ONES+NWG_ONES; K1_NWG=B_XN+NWG_XN
K1_LDS=4*9216

LOG2E=0x3fb8aa3b

def gen_mod(a, tag):
    load_ptr(a, 4, KA_WMOD); load_ptr(a, 6, KA_C); load_ptr(a, 20, KA_WS)
    a("v_and_b32 v30, 255, v0")
    a("v_and_b32 v1, 7, v30           ; cg")
    a("v_lshrrev_b32 v2, 3, v30       ; rg")
    a("s_waitcnt lgkmcnt(0)")
    srd(a, 8, 4, 576*6912); srd(a, 12, 6, 1152); srd(a, 16, 20, SZ_MOD, WS_MOD)
    a("v_lshlrev_b32 v3, 1, v30")
    a("buffer_load_ushort v4, v3, s[12:15], 0 offen")
    a("buffer_load_ushort v5, v3, s[12:15], 0 offen offset:512")
    a("buffer_load_ushort v6, v3, s[12:15], 0 offen offset:1024")
    a("v_mul_u32_u24 v7, 6912, v2")
    a("v_lshl_add_u32 v7, v1, 4, v7")
    a("s_lshl_b32 s22, s44, 7         ; n0*2")
    for i in range(18):
        r = 32 + 4*i
        a(f"buffer_load_dwordx4 {vr(r)}, v7, s[8:11], s22 offen")
        if i < 17: a(f"s_add_u32 s22, s22, {32*6912}")
    a("v_lshlrev_b32 v9, 2, v30")
    a("v_add_u32 v9, s45, v9")
    a("s_waitcnt vmcnt(18)")
    for j, v in enumerate([4, 5, 6]):
        a(f"v_lshlrev_b32 v{v}, 16, v{v}")
        a(f"v_mul_f32 v8, {LOG2E:#x}, v{v}")
        a(f"v_exp_f32 v8, -v8")
        a(f"v_add_f32 v8, 1.0, v8")
        a(f"v_rcp_f32 v8, v8")
        a(f"v_mul_f32 v8, v8, v{v}")
        bf16_round_f32(a, 8, 8)
        a(f"ds_write_b32 v9, v8 offset:{j*1024}")
    a("s_waitcnt lgkmcnt(0)")
    a("s_barrier")
    a("v_lshlrev_b32 v9, 2, v2")
    a("v_add_u32 v9, s45, v9")
    for i in range(18):
        a(f"ds_read_b32 v{10+i}, v9 offset:{i*128}")
    for j in range(8): a(f"v_mov_b32 v{104+j}, 0")
    a("s_waitcnt lgkmcnt(0)")
    for i in range(18):
        a(f"s_waitcnt vmcnt({17-i})")
        r = 32 + 4*i
        for q in range(4):
            a(f"v_lshlrev_b32 v28, 16, v{r+q}")
            a(f"v_and_b32 v29, 0xffff0000, v{r+q}")
            a(f"v_fmac_f32 v{104+2*q}, v{10+i}, v28")
            a(f"v_fmac_f32 v{105+2*q}, v{10+i}, v29")
    a("v_lshlrev_b32 v9, 8, v2")
    a("v_lshl_add_u32 v9, v1, 5, v9")
    a("v_add_u32 v9, s45, v9")
    a("ds_write_b128 v9, v[104:107] offset:4096")
    a("ds_write_b128 v9, v[108:111] offset:4112")
    a("s_waitcnt lgkmcnt(0)")
    a("s_barrier")
    a("v_cmp_gt_u32 vcc, 64, v30")
    a("s_and_saveexec_b64 s[24:25], vcc")
    lend = f"{tag}_mod_end"
    a(f"s_cbranch_execz {lend}")
    a("v_lshlrev_b32 v9, 2, v30")
    a("v_add_u32 v3, s45, v9")
    for i in range(32):
        a(f"ds_read_b32 v{32+i}, v3 offset:{4096+i*256}")
    a("s_waitcnt lgkmcnt(0)")
    for st in [16, 8, 4, 2, 1]:
        for i in range(st):
            a(f"v_add_f32 v{32+i}, v{32+i}, v{32+i+st}")
    bf16_round_f32(a, 32, 32)
    sdiv(a, 22, 44, 9)
    a("s_cmp_eq_u32 s22, 1")
    a("s_cselect_b32 s23, 1, 0")
    a("s_cmp_eq_u32 s22, 4")
    a("s_cselect_b32 s23, 1, s23")
    lskip = f"{tag}_noone"
    a("s_cmp_eq_u32 s23, 0")
    a(f"s_cbranch_scc1 {lskip}")
    a("v_add_f32 v32, 1.0, v32")
    bf16_round_f32(a, 32, 32)
    a.label(lskip)
    a("s_lshl_b32 s22, s44, 8")
    a("buffer_store_dword v32, v9, s[16:19], s22 offen")
    a.label(lend)
    a("s_endpgm")

def gather(a, addr):
    for u in range(9):
        for j in range(8):
            a(f"ds_read_u16 v{72+j}, {addr(u, j)}")
        a("s_waitcnt lgkmcnt(0)")
        for jp in range(4):
            a(f"v_lshl_or_b32 v{32+4*u+jp}, v{72+2*jp+1}, 16, v{72+2*jp}")

def gen_ldsshuf(a, tag, do_qkv, do_wo):
    load_ptr(a, 4, KA_WQKV); load_ptr(a, 6, KA_WO); load_ptr(a, 20, KA_WS)
    a("v_and_b32 v1, 63, v0           ; lane")
    a("s_mul_i32 s24, s22, 9216")
    for i in range(9):
        a(f"v_add_u32 v2, {i*64}, v1")
        a(f"v_mul_u32_u24 v{10+i}, 3641, v2")
        a(f"v_lshrrev_b32 v{10+i}, 16, v{10+i}      ; row")
        a(f"v_mul_u32_u24 v3, 18, v{10+i}")
        a(f"v_sub_u32 v{20+i}, v2, v3              ; cc")
    a("v_and_b32 v4, 15, v1           ; m")
    a("v_lshrrev_b32 v5, 4, v1        ; g")
    a("v_lshlrev_b32 v6, 4, v1        ; lane*16")
    a("v_add_u32 v7, s24, v6")
    a("v_mul_u32_u24 v8, 2304, v5     ; g*8*288")
    a("v_add_u32 v8, s24, v8")
    a("s_waitcnt lgkmcnt(0)")
    if do_qkv: shuf_qkv(a)
    if do_wo: shuf_wo(a, tag)

def shuf_qkv(a):
    srd(a, 8, 4, 576*3456); srd(a, 12, 20, SZ_WQKV, WS_WQKV)
    sdiv(a, 25, 23, 12, 26, 27)
    a("s_lshr_b32 s27, s26, 2         ; sec")
    a("s_and_b32 s28, s26, 3          ; oct")
    a(f"s_mul_i32 s29, s25, {32*3456}")
    a("s_mul_i32 s30, s27, 1152")
    a("s_add_u32 s29, s29, s30")
    a("s_mul_i32 s30, s28, 288")
    a("s_add_u32 s29, s29, s30        ; soffset")
    for i in range(9):
        a(f"v_mul_u32_u24 v2, 3456, v{10+i}")
        a(f"v_lshl_add_u32 v2, v{20+i}, 4, v2")
        a(f"buffer_load_dwordx4 {vr(32+4*i)}, v2, s[8:11], s29 offen")
    for i in range(9):
        a(f"s_waitcnt vmcnt({8-i})")
        a(f"ds_write_b128 v7, {vr(32+4*i)} offset:{i*1024}")
    a("v_lshl_add_u32 v2, v4, 1, v8   ; main: + m*2")
    a("v_lshrrev_b32 v3, 1, v4")
    a("v_mul_u32_u24 v3, 36, v3")
    a("v_and_b32 v9, 1, v4")
    a("v_lshl_add_u32 v3, v9, 1, v3")
    a("v_add_u32 v3, 32, v3")
    a("v_add_u32 v3, v3, v8           ; ext")
    a("s_waitcnt lgkmcnt(0)")
    gather(a, lambda u, j: (f"v2 offset:{j*288 + 36*u}" if u < 8 else f"v3 offset:{j*288}"))
    a("s_lshl_b32 s30, s27, 4")
    a("s_lshl_b32 s31, s28, 2")
    a("s_add_u32 s30, s30, s31")
    a("s_mul_i32 s30, s30, 18")
    a("s_add_u32 s30, s30, s25")
    a("s_lshl_b32 s30, s30, 11        ; (tau*18+t)*2048")
    a("s_lshl_b32 s31, s27, 1")
    a("s_lshr_b32 s33, s28, 1")
    a("s_add_u32 s31, s31, s33")
    a("s_add_u32 s31, s31, 48")
    a("s_mul_i32 s31, s31, 18")
    a("s_add_u32 s31, s31, s25")
    a("s_lshl_b32 s31, s31, 11")
    a("s_and_b32 s33, s28, 1")
    a("s_lshl_b32 s33, s33, 10")
    a("s_add_u32 s31, s31, s33")
    a("s_waitcnt lgkmcnt(0)")
    for u in range(8):
        a(f"s_add_u32 s33, s30, {(u>>1)*18*2048 + (u&1)*1024}")
        a(f"buffer_store_dwordx4 {vr(32+4*u)}, v6, s[12:15], s33 offen " + SC("K1SC", "1"))
    a(f"buffer_store_dwordx4 {vr(64)}, v6, s[12:15], s31 offen " + SC("K1SC", "1"))
    a("s_endpgm")

def shuf_wo(a, tag):
    srd(a, 8, 6, 576*1152); srd(a, 12, 20, SZ_WO, WS_WO)
    a("s_lshr_b32 s25, s23, 2         ; t")
    a("s_and_b32 s28, s23, 3          ; ng")
    a("s_mul_i32 s29, s28, 288")
    lext = f"{tag}_wo_ext"; lj = f"{tag}_wo_j"
    a("s_cmp_ge_u32 s25, 16")
    a(f"s_cbranch_scc1 {lext}")
    for i in range(9):
        a(f"v_lshrrev_b32 v2, 4, v{10+i}")
        a(f"v_mul_u32_u24 v2, 18, v2")
        a(f"v_and_b32 v3, 15, v{10+i}")
        a(f"v_add_u32 v{10+i}, v2, v3")
    a("s_mul_i32 s30, s25, 36         ; 18*2t")
    a(f"s_branch {lj}")
    a.label(lext)
    for i in range(9):
        a(f"v_lshrrev_b32 v2, 1, v{10+i}")
        a(f"v_mul_u32_u24 v2, 18, v2")
        a(f"v_and_b32 v3, 1, v{10+i}")
        a(f"v_add_u32 v{10+i}, v2, v3")
    a("s_sub_u32 s30, s25, 16")
    a("s_mul_i32 s30, s30, 288        ; 18*16e")
    a("s_add_u32 s30, s30, 16")
    a.label(lj)
    a("s_mul_i32 s30, s30, 1152")
    a("s_add_u32 s29, s29, s30")
    for i in range(9):
        a(f"v_mul_u32_u24 v2, 1152, v{10+i}")
        a(f"v_lshl_add_u32 v2, v{20+i}, 4, v2")
        a(f"buffer_load_dwordx4 {vr(32+4*i)}, v2, s[8:11], s29 offen")
    for i in range(9):
        a(f"s_waitcnt vmcnt({8-i})")
        a(f"ds_write_b128 v7, {vr(32+4*i)} offset:{i*1024}")
    a("v_lshl_add_u32 v2, v4, 1, v8")
    a("s_waitcnt lgkmcnt(0)")
    gather(a, lambda u, j: f"v2 offset:{j*288 + 32*u}")
    a("s_mul_i32 s30, s28, 162        ; ng*9*18")
    a("s_add_u32 s30, s30, s25")
    a("s_lshl_b32 s30, s30, 10")
    a("s_waitcnt lgkmcnt(0)")
    for u in range(9):
        a(f"s_add_u32 s33, s30, {u*18*1024}")
        a(f"buffer_store_dwordx4 {vr(32+4*u)}, v6, s[12:15], s33 offen " + SC("K1SC", "1"))
    a("s_endpgm")

def perm_consts(a):
    a("s_mov_b32 s40, 0x05040100")
    a("s_mov_b32 s41, 0x07060302")

def w13_task(a, s_id, vb, wt=''):
    sdiv(a, 25, s_id, 648, 26, 27)
    sdiv(a, 27, 26, 18, 28, 29)
    a(f"s_mul_i32 s29, s28, {32*9216}")
    a("s_lshl_b32 s30, s27, 8")
    a("s_add_u32 s29, s29, s30        ; soffset")
    l3 = a.newlabel("w3"); lj = a.newlabel("w13j")
    vin = vb+4; vout = vb+36
    a("s_cmp_eq_u32 s25, 1")
    a(f"s_cbranch_scc1 {l3}")
    for j in range(8):
        a(f"buffer_load_dwordx4 {vr(vin+4*j)}, v{vb+1}, s[8:11], s29 offen")
        if j < 7: a("s_add_u32 s29, s29, 9216")
    a(f"s_branch {lj}")
    a.label(l3)
    for j in range(8):
        a(f"buffer_load_dwordx4 {vr(vin+4*j)}, v{vb+1}, s[12:15], s29 offen")
        if j < 7: a("s_add_u32 s29, s29, 9216")
    a.label(lj)
    sdiv(a, 30, 27, 3, 31, 33)
    a("s_mul_i32 s30, s30, 110592")
    a("s_mul_i32 s33, s28, 6144")
    a("s_add_u32 s30, s30, s33")
    a("s_lshl_b32 s31, s31, 1")
    a("s_add_u32 s31, s31, s25")
    a("s_lshl_b32 s31, s31, 10")
    a("s_add_u32 s30, s30, s31")
    a("s_waitcnt vmcnt(0)")
    for i in range(8):
        for jp in range(4):
            sel = "s41" if i & 1 else "s40"
            a(f"v_perm_b32 v{vout+4*i+jp}, v{vin+4*(2*jp+1)+(i>>1)}, v{vin+4*(2*jp)+(i>>1)}, {sel}")
        a(f"buffer_store_dwordx4 {vr(vout+4*i)}, v{vb}, s[16:19], s30 offen {wt}")
        if i < 7: a(f"s_add_u32 s30, s30, {SZ_W13S}")

def w2_task(a, s_id, vb, wt='', srd_in=8, srd_out=16):
    sdiv(a, 25, s_id, 108, 26, 27)
    sdiv(a, 27, 26, 6, 28, 29)
    a("s_lshl_b32 s29, s27, 8")
    a("s_add_u32 s29, s29, s25")
    a("s_mul_i32 s29, s29, 1152")
    a("s_mul_i32 s30, s28, 192")
    a("s_add_u32 s29, s29, s30")
    vin = vb+4; vout = vb+36
    for v in range(2):
        for j in range(4):
            a(f"s_add_u32 s30, s29, {(128*v+8*j)*1152}")
            a(f"buffer_load_dwordx3 {vr(vin+4*(4*v+j),3)}, v{vb+2}, s[{srd_in}:{srd_in+3}], s30 offen")
    a(f"s_mul_i32 s30, s25, {SZ_W2S}")
    a("s_mul_i32 s31, s28, 110592")
    a("s_add_u32 s30, s30, s31")
    a("s_mul_i32 s31, s27, 3072")
    a("s_add_u32 s30, s30, s31")
    a("s_waitcnt vmcnt(0)")
    for i in range(6):
        for v in range(2):
            for jj in range(2):
                sel = "s41" if i & 1 else "s40"
                a(f"v_perm_b32 v{vout+4*i+2*v+jj}, v{vin+4*(4*v+2*jj+1)+(i>>1)}, v{vin+4*(4*v+2*jj)+(i>>1)}, {sel}")
        a(f"s_add_u32 s31, s30, {(i//3)*55296 + (i%3)*1024}")
        a(f"buffer_store_dwordx4 {vr(vout+4*i)}, v{vb}, s[{srd_out}:{srd_out+3}], s31 offen {wt}")

def shuffle_lane_setup(a, vb):
    a(f"v_and_b32 v{vb+3}, 63, v0")
    a(f"v_lshlrev_b32 v{vb}, 4, v{vb+3}          ; lane*16")
    a(f"v_lshrrev_b32 v{vb+1}, 4, v{vb+3}        ; g")
    a(f"v_and_b32 v{vb+3}, 15, v{vb+3}           ; m")
    a(f"v_mul_u32_u24 v{vb+2}, {32*1152}, v{vb+1}")
    a(f"v_mad_u32_u24 v{vb+2}, v{vb+3}, 12, v{vb+2}   ; w2 voffset")
    a(f"v_mul_u32_u24 v{vb+1}, {8*9216}, v{vb+1}")
    a(f"v_lshl_add_u32 v{vb+1}, v{vb+3}, 4, v{vb+1}   ; w13 voffset")

def gen_w13(a):
    load_ptr(a, 4, KA_W1); load_ptr(a, 6, KA_W3); load_ptr(a, 20, KA_WS)
    wave_id(a, 22, 1)
    a(f"s_sub_u32 s23, s2, {B_W13}")
    a("s_lshl_b32 s23, s23, 2")
    a("s_add_u32 s23, s23, s22")
    shuffle_lane_setup(a, 4)
    perm_consts(a)
    a("s_waitcnt lgkmcnt(0)")
    srd(a, 8, 4, 576*9216); srd(a, 12, 6, 576*9216); srd(a, 16, 20, SZ_W13, WS_W13)
    w13_task(a, 23, 4)
    a("s_endpgm")

def gen_w2(a):
    load_ptr(a, 4, KA_W2); load_ptr(a, 20, KA_WS)
    wave_id(a, 22, 1)
    a(f"s_sub_u32 s23, s2, {B_W2}")
    a("s_lshl_b32 s23, s23, 2")
    a("s_add_u32 s23, s23, s22")
    shuffle_lane_setup(a, 4)
    perm_consts(a)
    a("s_waitcnt lgkmcnt(0)")
    srd(a, 8, 4, 4608*1152); srd(a, 16, 20, SZ_W2, WS_W2)
    w2_task(a, 23, 4)
    a("s_endpgm")

def gen_ones(a):
    load_ptr(a, 20, KA_WS)
    a(f"s_sub_u32 s23, s2, {B_ONES}")
    a(f"s_mul_i32 s23, s23, {KVH}")
    a(f"s_add_u32 s23, s23, {KV_V+18*16}")
    a("v_mul_u32_u24 v1, 304, v0")
    for i in range(4): a(f"v_mov_b32 v{4+i}, 0x3f803f80")
    a("s_waitcnt lgkmcnt(0)")
    srd(a, 8, 20, SZ_KV, WS_KV)
    a("buffer_store_dwordx4 v[4:7], v1, s[8:11], s23 offen")
    a(f"s_cmp_lg_u32 s2, {B_ONES}\ns_cbranch_scc1 k1_ones_end")
    srd(a, 12, 20, SZ_CNT, WS_CNT)
    a("v_lshlrev_b32 v1, 8, v0")
    a("v_mov_b32 v4, 0")
    a("buffer_store_dword v4, v1, s[12:15], 0 offen sc0 sc1")
    a.label("k1_ones_end")
    a("s_endpgm")

def gen_xn(a):
    load_ptr(a, 4, KA_X); load_ptr(a, 20, KA_WS)
    wave_id(a, 22, 1)
    a("v_and_b32 v1, 63, v0")
    a("v_and_b32 v2, 15, v1           ; tok")
    a("v_lshrrev_b32 v3, 4, v1        ; g")
    a("v_lshlrev_b32 v4, 4, v1        ; lane*16")
    a(f"s_sub_u32 s23, s2, {B_XN}")
    a("s_lshr_b32 s26, s22, 1         ; tbl")
    a("s_and_b32 s27, s22, 1          ; half")
    a("v_mul_u32_u24 v5, 1152, v2")
    a("v_lshl_add_u32 v5, v3, 4, v5")
    a(f"s_mul_i32 s28, s23, {32*1152}")
    a(f"s_mul_i32 s29, s26, {16*1152}")
    a("s_add_u32 s28, s28, s29")
    a("s_mul_i32 s29, s27, 576")
    a("s_add_u32 s28, s28, s29")
    a("s_waitcnt lgkmcnt(0)")
    srd(a, 8, 4, SZ_X); srd(a, 12, 20, SZ_XN, WS_XN)
    VX=16; VS=56; VQ=57; VT=58; RS=60; TT=64; VO=72
    for i in range(9):
        a(f"buffer_load_dwordx4 {vr(VX+4*i)}, v5, s[8:11], s28 offen offset:{i*64}")
    a("s_mov_b32 s30, 0x3f803f80")
    a("s_waitcnt vmcnt(0)")
    ln_stats(a, VX, 36, VS, VQ, 30)
    xsum16_32(a, VS, VT); xsum16_32(a, VQ, VT)
    a("s_lshl_b32 s28, s22, 7")
    a("v_lshlrev_b32 v6, 3, v2")
    a("v_add_u32 v7, s28, v6")
    a(f"ds_write_b64 v7, {vr(VS,2)}")
    a("s_waitcnt lgkmcnt(0)")
    a("s_barrier")
    a("s_xor_b32 s28, s22, 1")
    a("s_lshl_b32 s28, s28, 7")
    a("v_add_u32 v7, s28, v6")
    a(f"ds_read_b64 {vr(VT,2)}, v7")
    a("s_waitcnt lgkmcnt(0)")
    a(f"v_add_f32 v{VS}, v{VS}, v{VT}")
    a(f"v_add_f32 v{VQ}, v{VQ}, v{VT+1}")
    ln_finish(a, VS, VQ, RS, RS+2)
    a(f"v_mov_b32 v{RS+1}, v{RS}")
    a(f"v_mov_b32 v{RS+3}, v{RS+2}")
    a("s_lshr_b32 s28, s23, 1")
    a("s_mul_i32 s28, s28, 73728")
    a("s_and_b32 s29, s23, 1")
    a("s_lshl_b32 s29, s29, 1")
    a("s_add_u32 s29, s29, s26")
    a("s_lshl_b32 s29, s29, 10")
    a("s_add_u32 s28, s28, s29")
    a(f"s_mul_i32 s29, s27, {9*4096}")
    a("s_add_u32 s28, s28, s29")
    for i in range(9):
        o = VO + 4*(i & 1)
        chunk_unpack(a, VX+4*i, TT); chunk_norm(a, TT, RS); chunk_pack(a, TT, o)
        a(f"buffer_store_dwordx4 {vr(o)}, v4, s[12:15], s28 offen " + SC("K1SC", "1"))
        if i < 8: a("s_add_u32 s28, s28, 4096")
    a("s_endpgm")

def gen_k1():
    a = Asm()
    a(f"s_cmp_lt_u32 s2, {B_LS}\ns_cbranch_scc1 k1_mod")
    a(f"s_cmp_lt_u32 s2, {B_W13}\ns_cbranch_scc1 k1_ls")
    a(f"s_cmp_lt_u32 s2, {B_XN}\ns_cbranch_scc1 k1_ones")
    a(f"s_cmp_lt_u32 s2, {K1_NWG}\ns_cbranch_scc1 k1_xn")
    a("s_endpgm")
    a.label("k1_mod")
    a("s_mov_b32 s44, s2\ns_mov_b32 s45, 0")
    gen_mod(a, "k1")
    a.label("k1_ls")
    wave_id(a, 22, 1)
    a(f"s_sub_u32 s23, s2, {B_LS}")
    a("s_lshl_b32 s23, s23, 2")
    a("s_add_u32 s23, s23, s22        ; task")
    if SIDE == 'k2':
        gen_ldsshuf(a, "k1", True, False)
    else:
        a("s_cmp_ge_u32 s23, 216\ns_cbranch_scc1 k1_lswo")
        gen_ldsshuf(a, "k1", True, False)
        a.label("k1_lswo")
        a("s_sub_u32 s23, s23, 216")
        gen_ldsshuf(a, "k1b", False, True)
    a.label("k1_ones"); gen_ones(a)
    a.label("k1_xn"); gen_xn(a)
    return kernel("k1_prep_kernel", a, vgpr=112, sgpr=64), (K1_NWG, 256, K1_LDS)
```

```python
from common import *
from k1 import gen_mod, gen_ldsshuf, SIDE
K2_LDS = 73728 + 8*4096
L_MOD = 73728
QSCALE = 0x3eae1a4e
import struct, math
QSCALE = struct.unpack("<I", struct.pack("<f", math.log2(math.e)/math.sqrt(18.0)))[0]
EPS = struct.unpack("<I", struct.pack("<f", 1e-5))[0]
INV576 = struct.unpack("<I", struct.pack("<f", 1.0/576))[0]

def gen_k2():
    a = Asm()
    a("s_cmp_ge_u32 s2, 256\ns_cbranch_scc1 k2_exit")
    a("s_and_b32 s25, s2, 7")
    a("s_lshr_b32 s26, s2, 3")
    a("s_lshr_b32 s24, s25, 1")
    a("s_lshl_b32 s24, s24, 3")
    a("s_and_b32 s27, s26, 7")
    a("s_add_u32 s24, s24, s27        ; rb")
    a("s_and_b32 s23, s25, 1")
    a("s_lshl_b32 s23, s23, 2")
    a("s_lshr_b32 s27, s26, 3")
    a("s_add_u32 s23, s23, s27        ; slice")
    a("s_cmp_eq_u32 s23, 7\ns_cbranch_scc1 " + ("k2_side" if SIDE == 'k2' else "k2_exit"))
    load_ptr(a, 20, KA_WS)
    wave_id(a, 22, 1)
    VL=1; VTOK=2; VG=3; VL16=4
    a(f"v_and_b32 v{VL}, 63, v0")
    a(f"v_and_b32 v{VTOK}, 15, v{VL}")
    a(f"v_lshrrev_b32 v{VG}, 4, v{VL}")
    a(f"v_lshlrev_b32 v{VL16}, 4, v{VL}")
    a("s_lshl_b32 s25, s23, 3")
    a("s_add_u32 s25, s25, s22        ; tau")
    a("s_lshr_b32 s26, s22, 1         ; tb")
    a("s_and_b32 s27, s22, 1          ; half")
    a("s_waitcnt lgkmcnt(0)")
    srd(a, 8, 20, SZ_XN, WS_XN); srd(a, 12, 20, 4608, WS_MOD); srd(a, 16, 20, SZ_WQKV, WS_WQKV)
    RING=6
    VX=16; VW=52; VACC=100; VT=132
    a(f"s_mul_i32 s28, s27, 1152")
    a(f"buffer_load_dwordx4 {vr(VT)}, v{VL16}, s[12:15], s28 offen")
    a(f"buffer_load_dwordx4 {vr(VT+4)}, v{VL16}, s[12:15], s28 offen offset:1024")
    a(f"s_add_u32 s28, s28, 2304")
    a(f"buffer_load_dwordx4 {vr(VT+8)}, v{VL16}, s[12:15], s28 offen")
    a(f"buffer_load_dwordx4 {vr(VT+12)}, v{VL16}, s[12:15], s28 offen offset:1024")
    a("s_mul_i32 s28, s24, 73728")
    a(f"s_mul_i32 s29, s27, {9*4096}")
    a("s_add_u32 s28, s28, s29")
    a("s_lshl_b32 s29, s26, 10")
    a("s_add_u32 s28, s28, s29")
    for i in range(9):
        a(f"buffer_load_dwordx4 {vr(VX+4*i)}, v{VL16}, s[8:11], s28 offen")
        if i < 8: a("s_add_u32 s28, s28, 4096")
    a(f"s_mul_i32 s40, s25, {18*2048}   ; W stream")
    nw = [0]
    def wload():
        k = nw[0]; nw[0] += 1
        t, uu = k >> 1, k & 1
        a(f"buffer_load_dwordx4 {vr(VW+8*(t % RING)+4*uu)}, v{VL16}, s[16:19], s40 offen offset:{uu*1024}")
        if uu: a("s_add_u32 s40, s40, 2048")
    a("s_lshl_b32 s28, s22, 12")
    a(f"s_add_u32 s33, s28, {L_MOD}")
    a(f"v_add_u32 v6, s33, v{VL16}")
    a.stamp(1)
    a("s_waitcnt vmcnt(9)")
    for i in range(4): a(f"ds_write_b128 v6, {vr(VT+4*i)} offset:{i*1024}")
    a("s_waitcnt lgkmcnt(0)")
    a.stamp(2)
    VC=[VACC, VACC+16]; VSF=[VACC+8, VACC+24]; VTT=VT; VO=VT+8
    a(f"v_lshlrev_b32 v8, 5, v{VG}")
    a(f"v_add_u32 v8, s33, v8")
    a(f"s_mul_i32 s28, s27, {9*4096}")
    a(f"s_lshl_b32 s29, s26, 10")
    a(f"s_add_u32 s28, s28, s29")
    a(f"v_add_u32 v9, s28, v{VL16}")
    def modread(i):
        b = i & 1
        a(f"ds_read_b128 {vr(VSF[b])}, v8 offset:{i*128}")
        a(f"ds_read_b128 {vr(VSF[b]+4)}, v8 offset:{i*128 + 16}")
        a(f"ds_read_b128 {vr(VC[b])}, v8 offset:{2048 + i*128}")
        a(f"ds_read_b128 {vr(VC[b]+4)}, v8 offset:{2048 + i*128 + 16}")
    modread(0)
    for i in range(9):
        if i < 8: modread(i+1)
        a(f"s_waitcnt vmcnt({8-i+nw[0]}) lgkmcnt({4 if i < 8 else 0})")
        chunk_unpack(a, VX+4*i, VTT); chunk_mod(a, VTT, VC[i&1], VSF[i&1]); chunk_pack(a, VTT, VO+4*(i&1))
        a(f"ds_write_b128 v9, {vr(VO+4*(i&1))} offset:{i*4096}")
        wload()
    while nw[0] < 2*RING: wload()
    a("s_waitcnt lgkmcnt(0)")
    a("s_barrier")
    a.stamp(4)
    a("s_cmp_ge_u32 s25, 54\ns_cbranch_scc1 k2_exit")
    XB=[VX, VX+16]
    def xreads(t):
        b = XB[t & 1]
        for tb in range(4):
            off = t*4096 + tb*1024
            if off < 65536: a(f"ds_read_b128 {vr(b+4*tb)}, v{VL16} offset:{off}")
            else:           a(f"ds_read_b128 {vr(b+4*tb)}, v10 offset:{off-65536}")
    def gemm(vtype):
        nw[0] = 2*RING
        a("s_mov_b32 s41, s40")
        a(f"v_add_u32 v10, 0x10000, v{VL16}")
        xreads(0)
        for t in range(18):
            if t < 17: xreads(t+1)
            issued = min(18, t + RING)
            a(f"s_waitcnt vmcnt({2*(issued-t-1)}) lgkmcnt({4 if t < 17 else 0})")
            b = XB[t & 1]
            for uu in range(2):
                for tb in range(4):
                    acc = VACC + 16*uu + 4*tb
                    c = vr(acc) if t else "0"
                    w = vr(VW+8*(t % RING)+4*uu); x = vr(b+4*tb)
                    if vtype: a(f"v_mfma_f32_16x16x32_bf16 {vr(acc)}, {x}, {w}, {c}")
                    else:     a(f"v_mfma_f32_16x16x32_bf16 {vr(acc)}, {w}, {x}, {c}")
                if t + RING < 18:
                    a(f"buffer_load_dwordx4 {vr(VW+8*(t % RING)+4*uu)}, v{VL16}, s[16:19], s41 offen offset:{uu*1024}")
            if t + RING < 18: a("s_add_u32 s41, s41, 2048")
    a("s_cmp_ge_u32 s25, 52\ns_cbranch_scc1 k2_gv")
    a("s_cmp_ge_u32 s25, 48\ns_cbranch_scc1 k2_gq")
    a("s_cmp_ge_u32 s25, 32\ns_cbranch_scc1 k2_gv")
    a.label("k2_gq")
    gemm(False)
    a.stamp(5)
    srd(a, 8, 20, SZ_QA, WS_QA); srd(a, 12, 20, SZ_QB, WS_QB); srd(a, 16, 20, SZ_KV, WS_KV)
    a("s_cmp_ge_u32 s25, 48\ns_cbranch_scc1 k2_ext")
    def pack_pair16(acc0, acc1, o):
        a(f"v_cvt_pk_bf16_f32 v{o}, v{acc0}, v{acc0+1}")
        a(f"v_cvt_pk_bf16_f32 v{o+1}, v{acc0+2}, v{acc0+3}")
        a(f"v_cvt_pk_bf16_f32 v{o+2}, v{acc1}, v{acc1+1}")
        a(f"v_cvt_pk_bf16_f32 v{o+3}, v{acc1+2}, v{acc1+3}")
    a("s_lshl_b32 s28, s24, 11")
    a("s_cmp_ge_u32 s25, 16\ns_cbranch_scc1 k2_kmain")
    a(f"s_mov_b32 s33, {QSCALE:#x}")
    a("s_lshl_b32 s29, s25, 17")
    a("s_add_u32 s28, s28, s29")
    for uu in range(2):
        for tl in range(2):
            acc = VACC+16*uu+8*tl; o = VT+4*((2*uu+tl)&3)
            for j in range(8): a(f"v_mul_f32 v{acc+j}, s33, v{acc+j}")
            pack_pair16(acc, acc+4, o)
            a(f"v_permlane16_swap_b32 v{o}, v{o+2}")
            a(f"v_permlane16_swap_b32 v{o+1}, v{o+3}")
            a(f"s_add_u32 s29, s28, {uu*65536 + tl*1024}")
            a(f"buffer_store_dwordx4 {vr(o)}, v{VL16}, s[8:11], s29 offen " + SC("K2SC", "0"))
    a("s_endpgm")
    a.label("k2_kmain")
    a("s_sub_u32 s29, s25, 16")
    a(f"s_mul_i32 s29, s29, {2*KVH}")
    a("s_add_u32 s28, s28, s29")
    for uu in range(2):
        for tl in range(2):
            acc = VACC+16*uu+8*tl; o = VT+4*((2*uu+tl)&3)
            pack_pair16(acc, acc+4, o)
            a(f"v_permlane16_swap_b32 v{o}, v{o+2}")
            a(f"v_permlane16_swap_b32 v{o+1}, v{o+3}")
            a(f"s_add_u32 s29, s28, {uu*KVH + KV_KA + tl*1024}")
            a(f"buffer_store_dwordx4 {vr(o)}, v{VL16}, s[16:19], s29 offen " + SC("K2SC", "0"))
    a("s_endpgm")
    a.label("k2_ext")
    a("s_cmp_ge_u32 s25, 50\ns_cbranch_scc1 k2_kext")
    a(f"s_mov_b32 s33, {QSCALE:#x}")
    a(f"v_lshlrev_b32 v5, 15, v{VG}               ; 2g heads * 16384")
    a(f"v_lshl_add_u32 v5, v{VTOK}, 3, v5")
    a("s_sub_u32 s29, s25, 48")
    a("s_lshl_b32 s29, s29, 18")
    a("s_lshl_b32 s28, s24, 9         ; rb*64*8")
    a("s_add_u32 s28, s28, s29")
    a(f"v_mov_b32 v{VT+1}, 0")
    a(f"v_mov_b32 v{VT+3}, 0")
    for uu in range(2):
        for tb in range(4):
            acc = VACC+16*uu+4*tb
            for j in range(4): a(f"v_mul_f32 v{acc+j}, s33, v{acc+j}")
            a(f"v_cvt_pk_bf16_f32 v{VT}, v{acc}, v{acc+1}")
            a(f"v_cvt_pk_bf16_f32 v{VT+2}, v{acc+2}, v{acc+3}")
            a(f"s_add_u32 s29, s28, {uu*8*16384 + tb*128}")
            a(f"buffer_store_dwordx2 {vr(VT,2)}, v5, s[12:15], s29 offen")
            a(f"s_add_u32 s29, s29, 16384")
            a(f"buffer_store_dwordx2 {vr(VT+2,2)}, v5, s[12:15], s29 offen")
    a("s_endpgm")
    a.label("k2_kext")
    a(f"v_mul_u32_u24 v5, {2*KVH}, v{VG}")
    a(f"v_lshl_add_u32 v5, v{VTOK}, 3, v5")
    a("s_sub_u32 s29, s25, 50")
    a(f"s_mul_i32 s29, s29, {16*KVH}")
    a("s_lshl_b32 s28, s24, 9")
    a("s_add_u32 s28, s28, s29")
    a(f"v_mov_b32 v{VT+1}, 0x3f80")
    a(f"v_mov_b32 v{VT+3}, 0x3f80")
    for uu in range(2):
        for tb in range(4):
            acc = VACC+16*uu+4*tb
            a(f"v_cvt_pk_bf16_f32 v{VT}, v{acc}, v{acc+1}")
            a(f"v_cvt_pk_bf16_f32 v{VT+2}, v{acc+2}, v{acc+3}")
            a(f"s_add_u32 s29, s28, {uu*8*KVH + KV_KB + tb*128}")
            a(f"buffer_store_dwordx2 {vr(VT,2)}, v5, s[16:19], s29 offen")
            a(f"s_add_u32 s29, s29, {KVH}")
            a(f"buffer_store_dwordx2 {vr(VT+2,2)}, v5, s[16:19], s29 offen")
    a("s_endpgm")
    a.label("k2_gv")
    gemm(True)
    srd(a, 16, 20, SZ_KV, WS_KV)
    a(f"v_and_b32 v6, 1, v{VG}")
    a(f"v_mul_u32_u24 v5, 304, v6")
    a(f"v_lshrrev_b32 v6, 1, v{VG}")
    a(f"v_mul_u32_u24 v6, 608, v6")
    a(f"v_add_u32 v5, v5, v6")
    a(f"s_mul_i32 s28, s24, {2*1216}")
    a("s_cmp_ge_u32 s25, 52\ns_cbranch_scc1 k2_vext")
    a(f"v_lshl_add_u32 v5, v{VTOK}, 4, v5          ; d = m")
    a("s_sub_u32 s29, s25, 32")
    a(f"s_mul_i32 s29, s29, {2*KVH}")
    a("s_add_u32 s28, s28, s29")
    a(f"s_mov_b32 s31, {KVH}")
    a("s_branch k2_vstore")
    a.label("k2_vext")
    a(f"v_lshrrev_b32 v6, 1, v{VTOK}")
    a(f"v_mul_u32_u24 v6, {KVH}, v6")
    a(f"v_add_u32 v5, v5, v6")
    a(f"v_and_b32 v6, 1, v{VTOK}")
    a(f"v_lshl_add_u32 v5, v6, 4, v5")
    a(f"v_add_u32 v5, 256, v5                      ; d = 16 + (m&1)")
    a("s_sub_u32 s29, s25, 52")
    a(f"s_mul_i32 s29, s29, {16*KVH}")
    a("s_add_u32 s28, s28, s29")
    a(f"s_mov_b32 s31, {8*KVH}")
    a.label("k2_vstore")
    for uu in range(2):
        for tl in range(2):
            acc = VACC+16*uu+8*tl; o = VT+4*((2*uu+tl)&3)
            pack_pair16(acc, acc+4, o)
            a(f"v_permlane32_swap_b32 v{o}, v{o+2}")
            a(f"v_permlane32_swap_b32 v{o+1}, v{o+3}")
            a(f"s_add_u32 s29, s28, {KV_V + tl*1216}")
            a(f"buffer_store_dwordx4 {vr(o)}, v5, s[16:19], s29 offen " + SC("K2SC", "0"))
        if uu == 0: a("s_add_u32 s28, s28, s31")
    a("s_endpgm")
    a.label("k2_side")
    wave_id(a, 22, 1)
    a("s_cmp_ge_u32 s24, 18\ns_cbranch_scc1 k2_side_wo")
    a("s_lshr_b32 s45, s22, 2")
    a("s_lshl_b32 s44, s24, 1")
    a("s_add_u32 s44, s44, s45")
    a("s_add_u32 s44, s44, 18")
    a("s_mul_i32 s45, s45, 12288")
    gen_mod(a, "k2")
    a.label("k2_side_wo")
    a("s_sub_u32 s23, s24, 18")
    a("s_lshl_b32 s23, s23, 3")
    a("s_add_u32 s23, s23, s22")
    a("s_cmp_ge_u32 s23, 72\ns_cbranch_scc1 k2_exit")
    gen_ldsshuf(a, "k2", False, True)
    a.label("k2_exit")
    return kernel("k2_qkv_kernel", a, vgpr=152, sgpr=64), (256, 512, K2_LDS)
```

```python
from common import *
from k1 import w13_task, w2_task, shuffle_lane_setup, perm_consts
from k4 import oproj
K3_LDS = KVH + 64
L3_CNT = KVH
UN = 4
import os
MERGE4 = os.environ.get('MERGE4', '1') == '1'
OMSC = 'sc0 sc1' if (MERGE4 or os.environ.get('OMSC', '0') == '1') else ''
ST1 = 16

def gen_k3():
    a = Asm()
    a("s_cmp_ge_u32 s2, 256\ns_cbranch_scc1 k3_exit")
    load_ptr(a, 20, KA_WS)
    wave_id(a, 22, 1)
    a("s_cmp_ge_u32 s22, 8\ns_cbranch_scc1 k3_helper")
    VL=1; VL16=2; VQI=3; VHH=4
    a(f"v_and_b32 v{VL}, 63, v0")
    a(f"v_lshlrev_b32 v{VL16}, 4, v{VL}")
    a(f"v_and_b32 v{VQI}, 31, v{VL}")
    a(f"v_lshrrev_b32 v{VHH}, 5, v{VL}")
    a("s_and_b32 s23, s2, 31          ; head")
    a("s_lshr_b32 s24, s2, 5          ; qb")
    a("s_waitcnt lgkmcnt(0)")
    srd(a, 8, 20, SZ_KV, WS_KV); srd(a, 12, 20, SZ_QA, WS_QA); srd(a, 16, 20, SZ_QB, WS_QB)
    VQA=8; VQB=12
    VS=[16, 32]
    VP=48
    VO=56
    VKA=[72, 76]; VKB=[80, 82]; VV=[84, 92]
    AKA=100; AKB=101; AV=102; VT=104
    a("s_lshl_b32 s25, s24, 3")
    a("s_add_u32 s25, s25, s22")
    a("s_lshl_b32 s26, s23, 16")
    a("s_lshl_b32 s27, s25, 10")
    a("s_add_u32 s26, s26, s27")
    a(f"buffer_load_dwordx4 {vr(VQA)}, v{VL16}, s[12:15], s26 offen")
    a("s_lshl_b32 s26, s23, 14")
    a("s_lshl_b32 s27, s25, 8")
    a("s_add_u32 s26, s26, s27")
    a(f"v_lshlrev_b32 v5, 3, v{VQI}")
    a(f"buffer_load_dwordx2 {vr(VQB,2)}, v5, s[16:19], s26 offen")
    a(f"s_mul_i32 s28, s23, {KVH}")
    def dma(off_expr_sgpr, vl=VL16, q=8):
        a(f"s_mov_b32 m0, s{off_expr_sgpr}")
        a(f"s_add_u32 s30, s28, s{off_expr_sgpr}")
        a(f"buffer_load_dwordx4 v{vl}, s[{q}:{q+3}], s30 offen lds")
    def chunks(base, first, count):
        n = (count + 7)//8
        for i in range(n):
            a(f"s_add_u32 s29, s22, {8*i}")
            if 8*i + 7 >= count: a(f"s_min_u32 s29, s29, {count-1}")
            a(f"s_lshl_b32 s29, s29, 10")
            a(f"s_add_u32 s29, s29, {base + first*1024}")
            dma(29)
        return n
    assert (ST1*1216) % 1024 == 0
    n1 = chunks(KV_KA, 0, ST1) + chunks(KV_KB, 0, ST1//4) + chunks(KV_V, 0, ST1*1216//1024)
    nKA2 = 64-ST1; nKB2 = (64-ST1)//4; nV2 = (64-ST1)*1216//1024
    def dma2(sj, vl, q):
        a(f"s_min_u32 s29, s{sj}, {nKA2+nKB2+nV2-1}")
        a(f"s_cmp_ge_u32 s29, {nKA2}")
        a(f"s_cselect_b32 s31, {ST1//4}, 0")
        a(f"s_add_u32 s31, s31, {ST1}")
        a(f"s_cmp_ge_u32 s29, {nKA2+nKB2}")
        a(f"s_cselect_b32 s30, {ST1*1216//1024}, 0")
        a(f"s_add_u32 s29, s29, s31")
        a(f"s_add_u32 s29, s29, s30")
        a(f"s_lshl_b32 s29, s29, 10")
        dma(29, vl, q)
    n2 = 0
    a(f"v_mov_b32 v6, {L3_CNT}")
    a(f"v_mov_b32 v7, 0")
    a(f"ds_write_b32 v6, v7")
    a(f"ds_write_b32 v6, v7 offset:4")
    a(f"v_mov_b32 v{AKA}, v{VL16}")
    a(f"v_lshlrev_b32 v{AKB}, 3, v{VQI}")
    a(f"v_add_u32 v{AKB}, {KV_KB}, v{AKB}")
    a(f"v_min_u32 v5, 18, v{VQI}")
    a(f"v_cmp_lt_u32 vcc, 19, v{VQI}")
    a(f"v_cndmask_b32 v5, v5, 0, vcc")
    a(f"v_mov_b32 v6, 4")
    a(f"v_cmp_lt_u32 vcc, 27, v{VQI}")
    a(f"v_cndmask_b32 v5, v5, v6, vcc")
    a(f"v_lshlrev_b32 v5, 4, v5")
    a(f"v_mul_u32_u24 v6, 304, v{VHH}")
    a(f"v_add_u32 v5, v5, v6")
    a(f"v_add_u32 v{AV}, {KV_V}, v5")
    a(f"s_waitcnt vmcnt({n1+n2})")
    a(f"v_cmp_eq_u32 vcc, 0, v{VHH}")
    a(f"v_cndmask_b32 v{VQB}, 0, v{VQB}, vcc")
    a(f"v_mov_b32 v{VQB+1}, 0")
    a.stamp(1)
    a(f"s_waitcnt vmcnt({n2}) lgkmcnt(0)")
    a("s_barrier")
    a.stamp(2)
    a("s_mov_b32 s34, 0")

    def kread(buf, tile_off):
        a(f"ds_read_b128 {vr(VKA[buf])}, v{AKA} offset:{tile_off*1024}")
        a(f"ds_read_b64 {vr(VKB[buf],2)}, v{AKB} offset:{tile_off*256}")
    def vread(buf, tile_off):
        a(f"ds_read_b128 {vr(VV[buf])}, v{AV} offset:{tile_off*1216}")
        a(f"ds_read_b128 {vr(VV[buf]+4)}, v{AV} offset:{tile_off*1216+608}")
    def qk1(sb, kb): a(f"v_mfma_f32_32x32x16_bf16 {vr(VS[sb],16)}, {vr(VKA[kb])}, {vr(VQA)}, 0")
    def qk2(sb, kb): a(f"v_mfma_f32_32x32x8bf16_1k {vr(VS[sb],16)}, {vr(VKB[kb],2)}, {vr(VQB,2)}, {vr(VS[sb],16)}")
    def setmax(vm):
        a(f"v_mov_b32 v{VT+1}, v{vm}")
        a(f"v_permlane32_swap_b32 v{vm}, v{VT+1}")
        a(f"v_max_f32 v{vm}, v{vm}, v{VT+1}")
        a(f"v_sub_f32 v{vm}, 0, v{vm}")
        a(f"v_cvt_pk_bf16_f32 v{vm}, v{vm}, 0")
        a(f"v_and_b32 v{vm}, 0xffff, v{vm}")
        a(f"v_cmp_eq_u32 vcc, 0, v{VHH}")
        a(f"v_cndmask_b32 v{VQB+1}, 0, v{vm}, vcc")
    def tilemax(sb, vm, first):
        s = VS[sb]
        if first:
            a(f"v_max3_f32 v{vm}, v{s}, v{s+1}, v{s+2}")
            a(f"v_max_f32 v{vm}, v{vm}, v{s+3}")
            rng = range(4, 16, 2)
        else:
            rng = range(0, 16, 2)
        for i in rng: a(f"v_max3_f32 v{vm}, v{s+i}, v{s+i+1}, v{vm}")

    kread(0, 0)
    a("s_waitcnt lgkmcnt(0)")
    qk1(0, 0); qk2(0, 0)
    tilemax(0, VT, True)
    setmax(VT)

    a.label("k3_pass")
    a(f"v_mov_b32 v{AKA}, v{VL16}")
    a(f"v_lshlrev_b32 v{AKB}, 3, v{VQI}")
    a(f"v_add_u32 v{AKB}, {KV_KB}, v{AKB}")
    a(f"v_add_u32 v{AV}, {KV_V}, v5")
    for i in range(16): a(f"v_mov_b32 v{VO+i}, 0")
    for r in list(range(VV[1]+4, VV[1]+8)) + [VP+4, VP+5, VP+6, VS[1]+14, VS[1]+15]: a(f"v_mov_b32 v{r}, 0")
    kread(0, 0); kread(1, 1); vread(0, 0)
    a("s_waitcnt lgkmcnt(4)")
    qk1(0, 0); qk2(0, 0)
    kread(0, 2)
    def body(j, do_k, do_v, pend_k):
        sb = j & 1; nb = sb ^ 1
        s = VS[sb]; sp = VS[nb]
        ex = lambda i: a(f"v_exp_f32 v{s+i}, v{s+i}")
        cv = lambda i: a(f"v_cvt_pk_bf16_f32 v{VP+i}, v{s+2*i}, v{s+2*i+1}")
        a(f"s_waitcnt lgkmcnt({2 if pend_k else 0})")
        ex(0); ex(1)
        a(f"v_cvt_pk_bf16_f32 v{VP+7}, v{sp+14}, v{sp+15}")
        ex(2); ex(3)
        a(f"v_mfma_f32_32x32x16_bf16 {vr(VO,16)}, {vr(VV[nb]+4)}, {vr(VP+4)}, {vr(VO,16)}")
        if do_v: vread(nb, j+1)
        cv(0); ex(4); ex(5); cv(1); ex(6)
        if do_v: qk1(nb, nb)
        ex(7); cv(2); ex(8); ex(9); cv(3); ex(10)
        if do_v: qk2(nb, nb)
        ex(11); cv(4); ex(12); ex(13)
        a(f"v_mfma_f32_32x32x16_bf16 {vr(VO,16)}, {vr(VV[sb])}, {vr(VP)}, {vr(VO,16)}")
        cv(5); ex(14); ex(15); cv(6)
        if do_k: kread(nb, j+3)
    def tail(j):
        sb = j & 1; s = VS[sb]
        a("s_nop 0")
        a(f"v_cvt_pk_bf16_f32 v{VP+7}, v{s+14}, v{s+15}")
        a(f"v_mfma_f32_32x32x16_bf16 {vr(VO,16)}, {vr(VV[sb]+4)}, {vr(VP+4)}, {vr(VO,16)}")
    def bump(n):
        a(f"v_add_u32 v{AKA}, {n*1024}, v{AKA}")
        a(f"v_add_u32 v{AKB}, {n*256}, v{AKB}")
        a(f"v_add_u32 v{AV}, {n*1216}, v{AV}")
    n_a = (ST1-4)//UN
    a(f"s_mov_b32 s33, {n_a}")
    a.label("k3_loop1")
    for j in range(UN): body(j, True, True, True)
    bump(UN)
    a("s_sub_u32 s33, s33, 1\ns_cmp_lg_u32 s33, 0\ns_cbranch_scc1 k3_loop1")
    a.stamp(3)
    a("s_cmp_lg_u32 s34, 0\ns_cbranch_scc1 k3_nosync")
    a(f"v_mov_b32 v6, {L3_CNT}")
    a.label("k3_poll")
    a("ds_read_b32 v7, v6")
    a("s_waitcnt lgkmcnt(0)")
    a("v_readfirstlane_b32 s33, v7")
    a("s_cmp_ge_u32 s33, 4\ns_cbranch_scc0 k3_poll")
    a.label("k3_nosync")
    a.stamp(4)
    n_b = (60 - n_a*UN)//UN
    a(f"s_mov_b32 s33, {n_b}")
    a.label("k3_loop2")
    for j in range(UN): body(j, True, True, True)
    bump(UN)
    a("s_sub_u32 s33, s33, 1\ns_cmp_lg_u32 s33, 0\ns_cbranch_scc1 k3_loop2")
    body(0, True, True, True)
    body(1, False, True, True)
    body(2, False, True, False)
    body(3, False, False, False)
    tail(3)
    a.stamp(5)
    a("s_cmp_lg_u32 s34, 0\ns_cbranch_scc1 k3_final")
    a(f"v_add_f32 v{VT}, |v{VO}|, |v{VO+1}|")
    for i in range(2, 16): a(f"v_add_f32 v{VT}, v{VT}, |v{VO+i}|")
    a(f"v_mov_b32 v{VT+1}, 0x7e800000")
    a(f"v_cmp_nlt_f32 vcc, v{VT}, v{VT+1}")
    a("s_cmp_eq_u64 vcc, 0\ns_cbranch_scc1 k3_final")
    a("s_mov_b32 s34, 1")
    a(f"v_mov_b32 v{VQB+1}, 0")
    a(f"v_mov_b32 v{AKA}, v{VL16}")
    a(f"v_lshlrev_b32 v{AKB}, 3, v{VQI}")
    a(f"v_add_u32 v{AKB}, {KV_KB}, v{AKB}")
    a(f"v_mov_b32 v{VT}, 0xff800000")
    a("s_mov_b32 s33, 64")
    a.label("k3_maxloop")
    kread(0, 0)
    a("s_waitcnt lgkmcnt(0)")
    qk1(0, 0); qk2(0, 0)
    tilemax(0, VT, False)
    a(f"v_add_u32 v{AKA}, 1024, v{AKA}")
    a(f"v_add_u32 v{AKB}, 256, v{AKB}")
    a("s_sub_u32 s33, s33, 1\ns_cmp_lg_u32 s33, 0\ns_cbranch_scc1 k3_maxloop")
    setmax(VT)
    a("s_branch k3_pass")
    a.label("k3_final")
    srd(a, 8, 20, SZ_OM, WS_OM); srd(a, 12, 20, SZ_OE, WS_OE)
    a(f"v_mov_b32 v{VT}, v{VO+10}")
    a(f"v_mov_b32 v{VT+1}, v{VO+10}")
    a(f"v_permlane32_swap_b32 v{VT}, v{VT+1}")
    a(f"v_rcp_f32 v{VT}, v{VT}")
    for i in list(range(8)) + [8, 9]: a(f"v_mul_f32 v{VO+i}, v{VO+i}, v{VT}")
    a(f"v_cvt_pk_bf16_f32 v{VP}, v{VO}, v{VO+1}")
    a(f"v_cvt_pk_bf16_f32 v{VP+1}, v{VO+2}, v{VO+3}")
    a(f"v_cvt_pk_bf16_f32 v{VP+2}, v{VO+4}, v{VO+5}")
    a(f"v_cvt_pk_bf16_f32 v{VP+3}, v{VO+6}, v{VO+7}")
    a(f"v_cvt_pk_bf16_f32 v{VP+4}, v{VO+8}, v{VO+9}")
    a(f"v_permlane32_swap_b32 v{VP}, v{VP+2}")
    a(f"v_permlane32_swap_b32 v{VP+1}, v{VP+3}")
    a("s_lshl_b32 s26, s23, 16")
    a("s_lshl_b32 s27, s25, 10")
    a("s_add_u32 s26, s26, s27")
    a(f"buffer_store_dwordx4 {vr(VP)}, v{VL16}, s[8:11], s26 offen " + OMSC)
    a("s_lshl_b32 s26, s23, 13")
    a("s_lshl_b32 s27, s25, 7")
    a("s_add_u32 s26, s26, s27")
    a(f"v_lshlrev_b32 v5, 2, v{VQI}")
    a(f"v_cmp_eq_u32 vcc, 0, v{VHH}")
    a("s_and_saveexec_b64 s[36:37], vcc")
    a(f"buffer_store_dword v{VP+4}, v5, s[12:15], s26 offen " + (OMSC if MERGE4 else ""))
    if MERGE4:
        a("s_mov_b64 exec, s[36:37]")
        a("s_waitcnt vmcnt(0)")
        srd(a, 52, 20, SZ_CNT, WS_CNT)
        a("s_mov_b32 s58, 0")
        a(f"v_mov_b32 v6, {L3_CNT+4}")
        a("v_mov_b32 v7, 1")
        a("s_mov_b64 exec, 1")
        a("ds_add_rtn_u32 v8, v6, v7")
        a("s_waitcnt lgkmcnt(0)")
        a("v_readfirstlane_b32 s26, v8")
        a("s_cmp_lg_u32 s26, 7\ns_cbranch_scc1 k3_nosig")
        a("s_lshl_b32 s26, s24, 10")
        a("v_mov_b32 v6, s26")
        a("buffer_atomic_add v7, v6, s[52:55], 0 offen sc1")
        a("s_mov_b32 s58, 1")
        a.label("k3_nosig")
        a("s_mov_b64 exec, -1")
        a("s_branch k3_proj")
    else:
        a("s_endpgm")
    a.label("k3_helper")
    load_ptr(a, 4, KA_W1); load_ptr(a, 6, KA_W3); load_ptr(a, 42, KA_W2)
    shuffle_lane_setup(a, 4)
    perm_consts(a)
    a("s_lshl_b32 s23, s2, 2")
    a("s_add_u32 s23, s23, s22")
    a("s_sub_u32 s23, s23, 8")
    a("s_waitcnt lgkmcnt(0)")
    srd(a, 8, 4, 576*9216); srd(a, 12, 6, 576*9216); srd(a, 16, 20, SZ_W13, WS_W13)
    srd(a, 44, 42, 4608*1152); srd(a, 48, 20, SZ_W2, WS_W2); srd(a, 52, 20, SZ_KV, WS_KV)
    VLH = 4
    a("s_barrier")
    a("s_and_b32 s26, s2, 31")
    a(f"s_mul_i32 s28, s26, {KVH}")
    a("s_sub_u32 s35, s22, 8")
    a(f"s_mov_b32 s33, {-(-(nKA2+nKB2+nV2)//4)}")
    a.label("k3_hdma")
    dma2(35, VLH, 52)
    a("s_add_u32 s35, s35, 4")
    a("s_sub_u32 s33, s33, 1\ns_cmp_lg_u32 s33, 0\ns_cbranch_scc1 k3_hdma")
    a("s_waitcnt vmcnt(0)")
    a(f"v_mov_b32 v80, {L3_CNT}")
    a(f"v_mov_b32 v81, 1")
    a("s_mov_b64 exec, 1")
    a("ds_add_u32 v80, v81")
    a("s_mov_b64 exec, -1")
    a.label("k3_hloop")
    a("s_cmp_ge_u32 s23, 1296\ns_cbranch_scc1 k3_hw2")
    w13_task(a, 23, 4, wt="sc0 sc1")
    a("s_add_u32 s23, s23, 1024\ns_branch k3_hloop")
    a.label("k3_hw2")
    a("s_cmp_ge_u32 s23, 2160\ns_cbranch_scc1 k3_hdone")
    a("s_sub_u32 s24, s23, 1296")
    w2_task(a, 24, 4, wt="sc0 sc1", srd_in=44, srd_out=48)
    a("s_add_u32 s23, s23, 1024\ns_branch k3_hloop")
    a.label("k3_hdone")
    if MERGE4:
        a("s_cmp_lg_u32 s22, 8\ns_cbranch_scc1 k3_exit")
        a("s_mov_b32 s58, 0")
        a.label("k3_proj")
        a("s_and_b32 s26, s2, 31")
        a("s_lshr_b32 s56, s2, 5")
        a("s_and_b32 s23, s26, 3          ; ng")
        a("s_lshr_b32 s24, s26, 2")
        a("s_lshl_b32 s27, s56, 3")
        a("s_add_u32 s24, s24, s27        ; tg")
        oproj(a, "k3p", True)
    a.label("k3_exit")
    return kernel("k3_attn_kernel", a, vgpr=144 if MERGE4 else 112, sgpr=64), (256, 768, K3_LDS)
```

```python
from common import *
K4_LDS = 36864
NPRE = 6
SPIN_MAX = 20000

def oproj(a, tag, merged):
    VL=1; VTOK=2; VG=3; VL16=4
    load_ptr(a, 4, KA_X)
    a(f"v_and_b32 v{VL}, 63, v0")
    a(f"v_and_b32 v{VTOK}, 15, v{VL}")
    a(f"v_lshrrev_b32 v{VG}, 4, v{VL}")
    a(f"v_lshlrev_b32 v{VL16}, 4, v{VL}")
    a("s_waitcnt lgkmcnt(0)")
    srd(a, 8, 20, SZ_OM, WS_OM); srd(a, 12, 20, SZ_OE, WS_OE); srd(a, 16, 20, SZ_WO, WS_WO)
    srd(a, 44, 4, SZ_X); srd(a, 48, 20, SZ_MOD, WS_MOD)
    if merged: srd(a, 52, 20, SZ_CNT, WS_CNT)
    VX=12; VW=28; VACC=100; VR=108; VGA=112; VT=116; VB=[128,136]
    OSC = " sc0 sc1" if merged else ""
    a("s_mul_i32 s25, s23, 9")
    a("s_add_u32 s25, s25, s22        ; unit")
    a(f"s_mul_i32 s43, s25, {18*1024}")
    nw = [0]
    def wload():
        t = nw[0]; nw[0] += 1
        if t and t % 4 == 0: a("s_add_u32 s43, s43, 4096")
        a(f"buffer_load_dwordx4 {vr(VW+4*t)}, v{VL16}, s[16:19], s43 offen offset:{(t%4)*1024}")
    def epi_loads():
        a(f"v_mul_u32_u24 v6, 1152, v{VTOK}")
        a(f"v_lshl_add_u32 v6, v{VG}, 3, v6            ; tok*1152 + g*8")
        a(f"s_mul_i32 s27, s24, {32*1152}")
        a("s_lshl_b32 s26, s25, 5         ; 16u*2")
        a("s_add_u32 s27, s27, s26")
        a(f"buffer_load_dwordx2 {vr(VR,2)}, v6, s[44:47], s27 offen")
        a(f"s_add_u32 s26, s27, {16*1152}")
        a(f"buffer_load_dwordx2 {vr(VR+2,2)}, v6, s[44:47], s26 offen")
        a(f"v_lshlrev_b32 v7, 4, v{VG}")
        a("s_lshl_b32 s26, s25, 6")
        a(f"s_add_u32 s26, s26, {2*576*4}")
        a(f"buffer_load_dwordx4 {vr(VGA)}, v7, s[48:51], s26 offen")
    def xloads():
        a(f"s_cmp_eq_u32 s22, 8\ns_cbranch_scc1 {tag}_ext")
        a(f"v_lshrrev_b32 v5, 1, v{VG}")
        a(f"v_lshlrev_b32 v5, 16, v5")
        a(f"v_and_b32 v6, 1, v{VG}")
        a(f"v_lshl_add_u32 v5, v6, 9, v5")
        a(f"v_lshl_add_u32 v5, v{VTOK}, 4, v5")
        a("s_lshl_b32 s40, s22, 18        ; t0 = 2w -> head 4w -> *65536")
        a("s_lshl_b32 s26, s24, 10")
        a("s_add_u32 s40, s40, s26")
        for i in range(4):
            a(f"s_add_u32 s26, s40, {(i>>1)*2*65536 + (i&1)*256}")
            a(f"buffer_load_dwordx4 {vr(VX+4*i)}, v5, s[8:11], s26 offen{OSC}")
        a(f"s_branch {tag}_j")
        a.label(f"{tag}_ext")
        a(f"v_lshlrev_b32 v5, 15, v{VG}")
        a(f"v_lshl_add_u32 v5, v{VTOK}, 2, v5")
        a("s_lshl_b32 s40, s24, 7         ; 32 tg * 4")
        for i in range(4):
            for q in range(4):
                a(f"s_add_u32 s26, s40, {(16*(i>>1)+q)*8192 + (i&1)*64}")
                a(f"buffer_load_dword v{VX+4*i+q}, v5, s[12:15], s26 offen{OSC}")
        a.label(f"{tag}_j")
    if merged:
        for t in range(18): wload()
        epi_loads()
        a(f"s_cmp_eq_u32 s58, 0\ns_cbranch_scc1 {tag}_nopoll")
        a("s_lshl_b32 s26, s56, 10")
        a("v_mov_b32 v5, s26")
        a(f"s_mov_b32 s57, {SPIN_MAX}")
        a.label(f"{tag}_poll")
        a("buffer_load_dword v6, v5, s[52:55], 0 offen sc0 sc1")
        a("s_waitcnt vmcnt(0)")
        a("v_readfirstlane_b32 s26, v6")
        a("s_sub_u32 s57, s57, 1")
        a(f"s_cmp_eq_u32 s57, 0\ns_cbranch_scc1 {tag}_nopoll")
        a(f"s_cmp_ge_u32 s26, 32\ns_cbranch_scc0 {tag}_poll")
        a.label(f"{tag}_nopoll")
        a("s_barrier")
        a.stamp(6)
        xloads()
        a("s_lshl_b32 s26, s22, 12")
        a(f"v_add_u32 v7, s26, v{VL16}")
        a("s_waitcnt vmcnt(0)")
        for i in range(4): a(f"ds_write_b128 v7, {vr(VX+4*i)} offset:{i*1024}")
    else:
        xloads()
        for t in range(NPRE): wload()
        a("s_lshl_b32 s26, s22, 12")
        a(f"v_add_u32 v7, s26, v{VL16}")
        a.stamp(1)
        a(f"s_waitcnt vmcnt({NPRE})")
        for i in range(4): a(f"ds_write_b128 v7, {vr(VX+4*i)} offset:{i*1024}")
        epi_loads()
    a("s_waitcnt lgkmcnt(0)")
    a("s_barrier")
    if not merged: a.stamp(2)
    def xr(t):
        b = VB[t & 1]
        a(f"ds_read_b128 {vr(b)}, v{VL16} offset:{t*2048}")
        a(f"ds_read_b128 {vr(b+4)}, v{VL16} offset:{t*2048+1024}")
    xr(0)
    for t in range(18):
        if t < 17: xr(t+1)
        if merged:
            a(f"s_waitcnt lgkmcnt({2 if t < 17 else 0})")
        else:
            for _ in range(2):
                if nw[0] < 18: wload()
            issued_after = (nw[0] - 1 - t) + (3 if t < NPRE else 0)
            a(f"s_waitcnt vmcnt({issued_after}) lgkmcnt({2 if t < 17 else 0})")
        for tb in range(2):
            acc = VACC+4*tb
            a(f"v_mfma_f32_16x16x32_bf16 {vr(acc)}, {vr(VW+4*t)}, {vr(VB[t&1]+4*tb)}, {vr(acc) if t else '0'}")
    if not merged: a.stamp(3)
    srd(a, 8, 20, SZ_X1F, WS_X1F); srd(a, 12, 20, SZ_STP, WS_STP)
    a(f"v_lshrrev_b32 v8, 1, v{VG}")
    a(f"v_lshlrev_b32 v8, 8, v8")
    a(f"v_lshl_add_u32 v8, v{VTOK}, 4, v8")
    a(f"v_and_b32 v9, 1, v{VG}")
    a(f"v_lshl_add_u32 v8, v9, 10, v8")
    a("s_lshr_b32 s40, s24, 1")
    a("s_mul_i32 s40, s40, 73728      ; rb")
    a("s_and_b32 s41, s24, 1")
    a("s_lshl_b32 s41, s41, 11")
    a("s_add_u32 s40, s40, s41")
    a("s_lshr_b32 s41, s25, 1")
    a("s_lshl_b32 s41, s41, 12        ; t*4096")
    a("s_add_u32 s40, s40, s41")
    a("s_and_b32 s41, s25, 1")
    a("s_lshl_b32 s41, s41, 9")
    a("s_add_u32 s40, s40, s41")
    a("s_mov_b32 s42, 0x3f803f80")
    VS = VT+4
    for tb in range(2):
        acc = VACC+4*tb; r = VR+2*tb
        a(f"v_lshlrev_b32 v{VT}, 16, v{r}")
        a(f"v_and_b32 v{VT+1}, 0xffff0000, v{r}")
        a(f"v_lshlrev_b32 v{VT+2}, 16, v{r+1}")
        a(f"v_and_b32 v{VT+3}, 0xffff0000, v{r+1}")
        for j in range(4): a(f"v_fmac_f32 v{VT+j}, v{VGA+j}, v{acc+j}")
        a(f"v_cvt_pk_bf16_f32 v{r}, v{VT}, v{VT+1}")
        a(f"v_cvt_pk_bf16_f32 v{r+1}, v{VT+2}, v{VT+3}")
        a(f"v_mov_b32 v{VS+2*tb}, 0")
        a(f"v_mov_b32 v{VS+2*tb+1}, 0")
        for q in range(2):
            a(f"v_dot2_f32_bf16 v{VS+2*tb}, v{r+q}, s42, v{VS+2*tb}")
            a(f"v_dot2_f32_bf16 v{VS+2*tb+1}, v{r+q}, v{r+q}, v{VS+2*tb+1}")
    a(f"v_permlane16_swap_b32 v{VR}, v{VR+2}")
    a(f"v_permlane16_swap_b32 v{VR+1}, v{VR+3}")
    a(f"buffer_store_dwordx4 {vr(VR)}, v8, s[8:11], s40 offen " + SC("K4SC", "1"))
    for i in range(4): xsum16_32(a, VS+i, VT)
    a("s_lshl_b32 s26, s22, 8")
    a(f"v_lshlrev_b32 v9, 3, v{VTOK}")
    a(f"v_add_u32 v9, s26, v9")
    a(f"ds_write_b64 v9, {vr(VS,2)} offset:36864")
    a(f"ds_write_b64 v9, {vr(VS+2,2)} offset:{36864+128}")
    a("s_waitcnt lgkmcnt(0)")
    a("s_barrier")
    a(f"s_cmp_lg_u32 s22, 0\ns_cbranch_scc1 {tag}_done")
    a(f"v_and_b32 v9, 31, v{VL}")
    a(f"v_lshlrev_b32 v10, 3, v9")
    for w in range(9): a(f"ds_read_b64 {vr(VW+2*w,2)}, v10 offset:{36864+w*256}")
    a("s_waitcnt lgkmcnt(0)")
    for w in range(1, 9):
        a(f"v_add_f32 v{VW}, v{VW}, v{VW+2*w}")
        a(f"v_add_f32 v{VW+1}, v{VW+1}, v{VW+2*w+1}")
    a(f"v_lshlrev_b32 v9, 5, v9")
    a("s_lshl_b32 s26, s24, 10        ; 32 tokens * 32 B")
    a("s_lshl_b32 s40, s23, 3")
    a("s_add_u32 s26, s26, s40")
    a(f"v_cmp_gt_u32 vcc, 32, v{VL}")
    a("s_and_saveexec_b64 s[40:41], vcc")
    a(f"buffer_store_dwordx2 {vr(VW,2)}, v9, s[12:15], s26 offen")
    a.label(f"{tag}_done")
    a("s_endpgm")

def gen_k4():
    a = Asm()
    a("s_cmp_ge_u32 s2, 256\ns_cbranch_scc1 k4_exit")
    load_ptr(a, 20, KA_WS)
    wave_id(a, 22, 1)
    a("s_and_b32 s25, s2, 7")
    a("s_lshr_b32 s26, s2, 3")
    a("s_lshr_b32 s24, s25, 1")
    a("s_lshl_b32 s24, s24, 4")
    a("s_lshr_b32 s27, s26, 1")
    a("s_add_u32 s24, s24, s27        ; tg")
    a("s_and_b32 s23, s25, 1")
    a("s_lshl_b32 s23, s23, 1")
    a("s_and_b32 s27, s26, 1")
    a("s_add_u32 s23, s23, s27        ; ng")
    oproj(a, "k4", False)
    a.label("k4_exit")
    return kernel("k4_oproj_kernel", a, vgpr=144, sgpr=64), (256, 576, 36864+2304)
```

```python
from common import *
import os
L5_X=0; L5_H=73728
K5_LDS = 147456
NLOG2E=0xbfb8aa3b
K5_A = int(os.environ.get('K5_A', '2'))
WF = ENV('K5WF', '')
def gen_k5():
    a = Asm()
    a("s_cmp_ge_u32 s2, 256\ns_cbranch_scc1 k5_exit")
    load_ptr(a, 20, KA_WS)
    wave_id(a, 22, 1)
    VL=1; VTOK=2; VG=3; VL16=4
    a(f"v_and_b32 v{VL}, 63, v0")
    a(f"v_and_b32 v{VTOK}, 15, v{VL}")
    a(f"v_lshrrev_b32 v{VG}, 4, v{VL}")
    a(f"v_lshlrev_b32 v{VL16}, 4, v{VL}")
    A = K5_A; lgA = {1: 0, 2: 1, 4: 2, 8: 3}[A]
    a("s_and_b32 s25, s2, 7")
    a("s_lshr_b32 s26, s2, 3")
    a(f"s_and_b32 s23, s25, {8//A - 1}")
    a(f"s_lshl_b32 s23, s23, {lgA}")
    a(f"s_and_b32 s27, s26, {A-1}")
    a("s_add_u32 s23, s23, s27        ; slice")
    a(f"s_lshr_b32 s24, s25, {3-lgA}")
    a(f"s_lshl_b32 s24, s24, {5-lgA}")
    a(f"s_lshr_b32 s26, s26, {lgA}")
    a("s_add_u32 s24, s24, s26        ; rb")
    sdiv(a, 26, 22, 3, 27, 25)
    a("s_waitcnt lgkmcnt(0)")
    WBASE = WS_W13
    srd(a, 8, 20, SZ_X1F, WS_X1F); srd(a, 12, 20, 4608, WS_MOD+3*2304)
    srd(a, 16, 20, WS_W2 + SZ_W2 - WBASE, WBASE); srd(a, 32, 20, SZ_PART, WS_PART); srd(a, 36, 20, SZ_STP, WS_STP)
    VACC=8
    VW=104
    VX=152
    AX=5; AH=6
    XP=VACC
    MT=XP+24
    ST=XP+32
    a(f"s_mul_i32 s28, s27, 768")
    a(f"buffer_load_dwordx4 {vr(MT)}, v{VL16}, s[12:15], s28 offen")
    a(f"s_add_u32 s28, s28, 2304")
    a(f"buffer_load_dwordx4 {vr(MT+4)}, v{VL16}, s[12:15], s28 offen")
    a(f"s_lshl_b32 s28, s24, 6")
    a(f"s_lshl_b32 s29, s26, 4")
    a(f"s_add_u32 s28, s28, s29")
    a(f"s_lshl_b32 s28, s28, 5")
    a(f"v_lshlrev_b32 v7, 5, v{VTOK}")
    a(f"buffer_load_dwordx4 {vr(ST)}, v7, s[36:39], s28 offen")
    a(f"buffer_load_dwordx4 {vr(ST+4)}, v7, s[36:39], s28 offen offset:16")
    a("s_mul_i32 s28, s24, 73728")
    a(f"s_mul_i32 s29, s27, {6*4096}")
    a("s_add_u32 s28, s28, s29")
    a("s_lshl_b32 s29, s26, 10")
    a("s_add_u32 s28, s28, s29")
    for i in range(6):
        a(f"buffer_load_dwordx4 {vr(XP+4*i)}, v{VL16}, s[8:11], s28 offen")
        if i < 5: a("s_add_u32 s28, s28, 4096")
    a(f"s_mul_i32 s40, s23, {SZ_W13S}")
    a("s_mul_i32 s29, s22, 110592")
    a("s_add_u32 s40, s40, s29")
    a(f"s_mul_i32 s41, s23, {SZ_W2S}")
    a("s_mul_i32 s29, s22, 55296")
    a("s_add_u32 s41, s41, s29")
    a(f"s_add_u32 s41, s41, {WS_W2-WBASE:#x}")
    a(f"v_add_u32 v7, 4096, v{VL16}")
    def wload(slot, f, s):
        r = VW + 24*slot + 4*f
        if f < 4: a(f"buffer_load_dwordx4 {vr(r)}, v{VL16}, s[16:19], {s} offen offset:{f*1024} " + WF)
        else:     a(f"buffer_load_dwordx4 {vr(r)}, v7, s[16:19], {s} offen offset:{(f-4)*1024} " + WF)
    a("s_lshl_b32 s28, s22, 11")
    a(f"s_add_u32 s28, s28, {L5_H}")
    a(f"v_add_u32 v{AH}, s28, v{VL16}")
    a.stamp(1)
    a("s_waitcnt vmcnt(8)")
    a(f"ds_write_b128 v{AH}, {vr(MT)}")
    a(f"ds_write_b128 v{AH}, {vr(MT+4)} offset:1024")
    a("s_waitcnt vmcnt(6)")
    VS=ST; VQ=ST+1; VR=XP+40; VSH=XP+42
    a(f"v_add_f32 v{VS}, v{ST}, v{ST+2}")
    a(f"v_add_f32 v{VQ}, v{ST+1}, v{ST+3}")
    a(f"v_add_f32 v{ST+4}, v{ST+4}, v{ST+6}")
    a(f"v_add_f32 v{ST+5}, v{ST+5}, v{ST+7}")
    a(f"v_add_f32 v{VS}, v{VS}, v{ST+4}")
    a(f"v_add_f32 v{VQ}, v{VQ}, v{ST+5}")
    ln_finish(a, VS, VQ, VR, VSH)
    a(f"v_mov_b32 v{VR+1}, v{VR}")
    a(f"v_mov_b32 v{VSH+1}, v{VSH}")
    VC=[XP+48, XP+64]; VSF=[XP+56, XP+72]; VTT=XP+80; VO=XP+88
    a(f"v_lshlrev_b32 v{AX}, 5, v{VG}")
    a(f"v_add_u32 v{AX}, s28, v{AX}")
    a(f"s_mul_i32 s28, s27, {6*4096}")
    a(f"s_lshl_b32 s29, s26, 10")
    a(f"s_add_u32 s28, s28, s29")
    a(f"v_add_u32 v{AH}, s28, v{VL16}")
    def modread(i):
        b = i & 1
        a(f"ds_read_b128 {vr(VSF[b])}, v{AX} offset:{i*128}")
        a(f"ds_read_b128 {vr(VSF[b]+4)}, v{AX} offset:{i*128 + 16}")
        a(f"ds_read_b128 {vr(VC[b])}, v{AX} offset:{1024 + i*128}")
        a(f"ds_read_b128 {vr(VC[b]+4)}, v{AX} offset:{1024 + i*128 + 16}")
    a("s_waitcnt lgkmcnt(0)")
    a.stamp(2)
    modread(0)
    nw = 0
    for i in range(6):
        if i < 5: modread(i+1)
        a(f"s_waitcnt vmcnt({5-i+nw}) lgkmcnt({4 if i < 5 else 0})")
        chunk_unpack(a, XP+4*i, VTT); chunk_norm(a, VTT, VR); chunk_mod(a, VTT, VC[i&1], VSF[i&1]); chunk_pack(a, VTT, VO+4*(i&1))
        a(f"ds_write_b128 v{AH}, {vr(VO+4*(i&1))} offset:{i*4096}")
        wload(0, i, "s40"); nw += 1
    a("s_add_u32 s40, s40, 6144")
    for f in range(6): wload(1, f, "s40")
    a("s_add_u32 s40, s40, 6144")
    a("s_waitcnt lgkmcnt(0)")
    a("s_barrier")
    a.stamp(3)
    a(f"v_mov_b32 v{AX}, v{VL16}")
    def xread(tb, off): a(f"ds_read_b128 {vr(VX+4*tb)}, v{AX} offset:{off + tb*1024}")
    def step1(slot, first, do_x, xoff, wsrc, vm):
        for tb in range(4):
            w = f"lgkmcnt({3 if (do_x or True) else 0})"
            if tb == 0: a(f"s_waitcnt vmcnt({vm}) lgkmcnt({do_x_prev[0][tb]})")
            else:       a(f"s_waitcnt lgkmcnt({do_x_prev[0][tb]})")
            for f in range(6):
                acc = VACC + (f*4+tb)*4
                a(f"v_mfma_f32_16x16x32_bf16 {vr(acc)}, {vr(VW+24*slot+4*f)}, {vr(VX+4*tb)}, {'0' if first else vr(acc)}")
                if tb == 3 and wsrc: wload(slot, f, wsrc)
            if do_x: xread(tb, xoff)
        if wsrc: a(f"s_add_u32 {wsrc}, {wsrc}, 6144")
    steady = [3,3,3,3]; drain = [3,2,1,0]
    do_x_prev = [steady]
    for tb in range(4): xread(tb, 0)
    step1(0, True, True, 4096, "s40", 6)
    a(f"v_add_u32 v{AX}, 8192, v{AX}               ; base -> X(2)")
    a("s_mov_b32 s42, 7")
    a.label("k5_loop1")
    step1(1, False, True, 0, "s40", 6)
    step1(0, False, True, 4096, "s40", 6)
    a(f"v_add_u32 v{AX}, 8192, v{AX}")
    a("s_sub_u32 s42, s42, 1\ns_cmp_lg_u32 s42, 0\ns_cbranch_scc1 k5_loop1")
    step1(1, False, True, 0, "s40", 6)
    step1(0, False, True, 4096, "s41", 6)
    do_x_prev[0] = drain
    step1(1, False, False, 0, "s41", 6)
    a.stamp(4)
    T=VX
    a("s_mul_i32 s28, s22, 3")
    for uu in range(3):
        a(f"s_add_u32 s29, s28, {uu}")
        a("s_lshr_b32 s25, s29, 1")
        a("s_lshl_b32 s25, s25, 12")
        a("s_and_b32 s29, s29, 1")
        a("s_lshl_b32 s29, s29, 3")
        a("s_add_u32 s25, s25, s29")
        a(f"s_add_u32 s25, s25, {L5_H}")
        a(f"v_add_u32 v{AH}, s25, v{VL16}")
        for tb in range(4):
            g = VACC + ((2*uu)*4+tb)*4; u = VACC + ((2*uu+1)*4+tb)*4
            for j in range(4): a(f"v_mul_f32 v{T+j}, {NLOG2E:#x}, v{g+j}")
            for j in range(4): a(f"v_exp_f32 v{T+j}, v{T+j}")
            for j in range(4): a(f"v_mul_f32 v{g+j}, v{g+j}, v{u+j}")
            for j in range(4): a(f"v_add_f32 v{T+j}, 1.0, v{T+j}")
            for j in range(4): a(f"v_rcp_f32 v{T+j}, v{T+j}")
            a("s_nop 0")
            for j in range(4): a(f"v_mul_f32 v{g+j}, v{g+j}, v{T+j}")
            o = T+4+2*(tb&1)
            a(f"v_cvt_pk_bf16_f32 v{o}, v{g}, v{g+1}")
            a(f"v_cvt_pk_bf16_f32 v{o+1}, v{g+2}, v{g+3}")
            a(f"ds_write_b64 v{AH}, {vr(o,2)} offset:{tb*1024}")
    a("s_waitcnt lgkmcnt(0)")
    a("s_barrier")
    a.stamp(5)
    a(f"v_add_u32 v{AX}, {L5_H}, v{VL16}")
    def w2load(rs, uu):
        a(f"buffer_load_dwordx4 {vr(VW+12*rs+4*uu)}, v{VL16}, s[16:19], s41 offen offset:{uu*1024} " + WF)
    def step2(rs, first, do_x, xoff, reload, vm, lg):
        for tb in range(4):
            if tb == 0: a(f"s_waitcnt vmcnt({vm}) lgkmcnt({lg[tb]})")
            else:       a(f"s_waitcnt lgkmcnt({lg[tb]})")
            for uu in range(3):
                acc = VACC + (uu*4+tb)*4
                a(f"v_mfma_f32_16x16x32_bf16 {vr(acc)}, {vr(VW+12*rs+4*uu)}, {vr(VX+4*tb)}, {'0' if first else vr(acc)}")
                if tb == 3 and reload: w2load(rs, uu)
            if do_x: xread(tb, xoff)
        if reload: a("s_add_u32 s41, s41, 3072")
    for tb in range(4): xread(tb, 0)
    step2(0, True, True, 4096, True, 9, steady)
    a(f"v_add_u32 v{AX}, 8192, v{AX}")
    step2(1, False, True, 0, True, 9, steady)
    a("s_mov_b32 s42, 3")
    a.label("k5_loop2")
    step2(2, False, True, 4096, True, 9, steady)
    a(f"v_add_u32 v{AX}, 8192, v{AX}")
    step2(3, False, True, 0, True, 9, steady)
    step2(0, False, True, 4096, True, 9, steady)
    a(f"v_add_u32 v{AX}, 8192, v{AX}")
    step2(1, False, True, 0, True, 9, steady)
    a("s_sub_u32 s42, s42, 1\ns_cmp_lg_u32 s42, 0\ns_cbranch_scc1 k5_loop2")
    step2(2, False, True, 4096, False, 9, steady)
    a(f"v_add_u32 v{AX}, 8192, v{AX}")
    step2(3, False, True, 0, False, 6, steady)
    step2(0, False, True, 4096, False, 3, steady)
    step2(1, False, False, 0, False, 0, drain)
    a.stamp(6)
    a(f"s_mul_i32 s28, s23, {SZ_PARTS}")
    a("s_mul_i32 s29, s24, 73728")
    a("s_add_u32 s28, s28, s29")
    a("s_mul_i32 s29, s22, 6144")
    a("s_add_u32 s28, s28, s29")
    for q in range(6):
        uu = q >> 1; h = q & 1
        o = VW + 4*q
        for k in range(2):
            acc = VACC + (uu*4 + 2*h + k)*4
            a(f"v_cvt_pk_bf16_f32 v{o+2*k}, v{acc}, v{acc+1}")
            a(f"v_cvt_pk_bf16_f32 v{o+2*k+1}, v{acc+2}, v{acc+3}")
        if q < 4: a(f"buffer_store_dwordx4 {vr(o)}, v{VL16}, s[32:35], s28 offen offset:{q*1024} " + SC("K5SC", "1"))
        else:     a(f"buffer_store_dwordx4 {vr(o)}, v7, s[32:35], s28 offen offset:{(q-4)*1024} " + SC("K5SC", "1"))
    a.label("k5_exit")
    return kernel("k5_ffn_kernel", a, vgpr=168, sgpr=64), (256, 768, K5_LDS)
```

```python
from common import *
K6_LDS = 32*100*4
K6_NWG = 32*6*2
import os
PERT = os.environ.get('PERT', '')
def gen_k6():
    a = Asm()
    a(f"s_cmp_ge_u32 s2, {K6_NWG}\ns_cbranch_scc1 k6_exit")
    load_ptr(a, 4, KA_OUT); load_ptr(a, 20, KA_WS)
    wave_id(a, 22, 1)
    VL=1; VTOK=2; VG=3; VL16=4
    a(f"v_and_b32 v{VL}, 63, v0")
    a(f"v_and_b32 v{VTOK}, 15, v{VL}")
    a(f"v_lshrrev_b32 v{VG}, 4, v{VL}")
    a(f"v_lshlrev_b32 v{VL16}, 4, v{VL}")
    sdiv(a, 24, 2, 12, 25, 26)
    a("s_lshr_b32 s26, s25, 1         ; sp")
    a("s_and_b32 s27, s25, 1          ; a")
    sdiv(a, 28, 22, 3, 29, 30)
    a("s_waitcnt lgkmcnt(0)")
    srd(a, 8, 20, SZ_PART, WS_PART); srd(a, 12, 20, SZ_X1F, WS_X1F); srd(a, 16, 20, SZ_MOD, WS_MOD); srd(a, 36, 4, SZ_X)
    a("s_mul_i32 s30, s24, 73728")
    a("s_lshl_b32 s31, s26, 1")
    a("s_add_u32 s31, s31, s28")
    a("s_mul_i32 s31, s31, 6144")
    a("s_add_u32 s30, s30, s31")
    a("s_lshl_b32 s31, s29, 1")
    a("s_add_u32 s31, s31, s27")
    a("s_lshl_b32 s31, s31, 10")
    a("s_add_u32 s30, s30, s31")
    VP=16
    for x in range(8):
        a(f"buffer_load_dwordx4 {vr(VP+4*x)}, v{VL16}, s[8:11], s30 offen")
        if x < 7: a(f"s_add_u32 s30, s30, {SZ_PARTS}")
    a("v_mul_u32_u24 v5, 5462, v0")
    a("v_lshrrev_b32 v5, 16, v5                   ; token 0..31")
    a("v_mul_u32_u24 v6, 12, v5")
    a("v_sub_u32 v6, v0, v6                       ; chunk 0..11")
    a("v_mul_u32_u24 v7, 1152, v5")
    a("v_lshl_add_u32 v7, v6, 4, v7")
    a(f"s_mul_i32 s31, s24, {64*1152}")
    a(f"s_mul_i32 s33, s27, {32*1152}")
    a("s_add_u32 s31, s31, s33")
    a("s_mul_i32 s33, s26, 192")
    a("s_add_u32 s31, s31, s33")
    VR=48; VGB=52
    a("s_mul_i32 s33, s26, 12")
    a("v_add_u32 v11, s33, v6")
    a("v_lshrrev_b32 v12, 2, v11")
    a("v_lshlrev_b32 v12, 12, v12")
    a("v_and_b32 v11, 3, v11")
    a("v_lshl_add_u32 v12, v11, 8, v12")
    a("v_lshrrev_b32 v11, 4, v5")
    a("v_lshl_add_u32 v12, v11, 10, v12")
    a("v_and_b32 v11, 15, v5")
    a("v_lshl_add_u32 v12, v11, 4, v12")
    a("s_mul_i32 s33, s24, 73728")
    a("s_lshl_b32 s34, s27, 11")
    a("s_add_u32 s33, s33, s34")
    a(f"buffer_load_dwordx4 {vr(VR)}, v12, s[12:15], s33 offen")
    a("v_lshlrev_b32 v8, 5, v6")
    a("s_mul_i32 s33, s26, 384")
    a(f"s_add_u32 s33, s33, {5*2304}")
    a(f"buffer_load_dwordx4 {vr(VGB)}, v8, s[16:19], s33 offen")
    a(f"buffer_load_dwordx4 {vr(VGB+4)}, v8, s[16:19], s33 offen offset:16")
    VA=60
    for x in range(8):
        a(f"s_waitcnt vmcnt({7-x+3})")
        for q in range(4):
            r = VP+4*x+q
            if x == 0:
                a(f"v_lshlrev_b32 v{VA+2*q}, 16, v{r}")
                a(f"v_and_b32 v{VA+2*q+1}, 0xffff0000, v{r}")
            else:
                a(f"v_lshlrev_b32 v9, 16, v{r}")
                a(f"v_and_b32 v10, 0xffff0000, v{r}")
                a(f"v_add_f32 v{VA+2*q}, v{VA+2*q}, v9")
                a(f"v_add_f32 v{VA+2*q+1}, v{VA+2*q+1}, v10")
    a("s_mul_i32 s33, s28, 3")
    a("s_add_u32 s33, s33, s29")
    a("s_lshl_b32 s33, s33, 2")
    a(f"v_mul_u32_u24 v9, 400, v{VTOK}")
    a(f"v_mul_u32_u24 v10, 96, v{VG}")
    a(f"v_add_u32 v9, v9, v10")
    a("v_add_u32 v9, s33, v9")
    for k in range(2):
        for j in range(4):
            a(f"ds_write_b32 v9, v{VA+4*k+j} offset:{k*16*400 + j*24}")
    a("s_waitcnt lgkmcnt(0)")
    a("s_barrier")
    a("v_mul_u32_u24 v9, 400, v5")
    a("v_lshl_add_u32 v9, v6, 5, v9")
    a(f"ds_read_b128 {vr(VA)}, v9")
    a(f"ds_read_b128 {vr(VA+4)}, v9 offset:16")
    a("s_waitcnt vmcnt(0) lgkmcnt(0)")
    for q in range(4):
        a(f"v_lshlrev_b32 v9, 16, v{VR+q}")
        a(f"v_and_b32 v10, 0xffff0000, v{VR+q}")
        a(f"v_fmac_f32 v9, v{VGB+2*q}, v{VA+2*q}")
        a(f"v_fmac_f32 v10, v{VGB+2*q+1}, v{VA+2*q+1}")
        if PERT:
            kind, val = PERT.split(":")
            if kind == "scale":
                a(f"v_mul_f32 v9, {f32(float(val)):#x}, v9"); a(f"v_mul_f32 v10, {f32(float(val)):#x}, v10")
            if kind == "add1" and q == 0:
                a("v_cmp_eq_u32 vcc, 0, v0"); a("s_cmp_eq_u32 s2, 0"); a("s_cselect_b64 s[40:41], vcc, 0")
                a(f"v_mov_b32 v11, {f32(float(val)):#x}"); a("v_cndmask_b32 v11, 0, v11, s[40:41]"); a("v_add_f32 v9, v9, v11")
            if kind == "addall":
                a(f"v_add_f32 v9, {f32(float(val)):#x}, v9"); a(f"v_add_f32 v10, {f32(float(val)):#x}, v10")
        a(f"v_cvt_pk_bf16_f32 v{VR+q}, v9, v10")
    a(f"buffer_store_dwordx4 {vr(VR)}, v7, s[36:39], s31 offen")
    a.label("k6_exit")
    return kernel("k6_reduce_kernel", a, vgpr=72, sgpr=64), (K6_NWG, 384, K6_LDS)
```

```python
from common import *
from k1 import gen_mod, gen_ldsshuf, SIDE
K2_LDS = 73728 + 8*4096
WLATE = ENV('K2WLATE', '0')
L_MOD = 73728
QSCALE = 0x3eae1a4e
import struct, math
QSCALE = struct.unpack("<I", struct.pack("<f", math.log2(math.e)/math.sqrt(18.0)))[0]
EPS = struct.unpack("<I", struct.pack("<f", 1e-5))[0]
INV576 = struct.unpack("<I", struct.pack("<f", 1.0/576))[0]

def gen_k2():
    a = Asm()
    a("s_cmp_ge_u32 s2, 256\ns_cbranch_scc1 k2_exit")
    a("s_and_b32 s25, s2, 7")
    a("s_lshr_b32 s26, s2, 3")
    a("s_lshr_b32 s24, s25, 1")
    a("s_lshl_b32 s24, s24, 3")
    a("s_and_b32 s27, s26, 7")
    a("s_add_u32 s24, s24, s27        ; rb")
    a("s_and_b32 s23, s25, 1")
    a("s_lshl_b32 s23, s23, 2")
    a("s_lshr_b32 s27, s26, 3")
    a("s_add_u32 s23, s23, s27        ; slice")
    a("s_cmp_eq_u32 s23, 7\ns_cbranch_scc1 " + ("k2_side" if SIDE == 'k2' else "k2_exit"))
    load_ptr(a, 20, KA_WS)
    wave_id(a, 22, 1)
    VL=1; VTOK=2; VG=3; VL16=4
    a(f"v_and_b32 v{VL}, 63, v0")
    a(f"v_and_b32 v{VTOK}, 15, v{VL}")
    a(f"v_lshrrev_b32 v{VG}, 4, v{VL}")
    a(f"v_lshlrev_b32 v{VL16}, 4, v{VL}")
    a("s_lshl_b32 s25, s23, 3")
    a("s_add_u32 s25, s25, s22        ; tau")
    a("s_lshr_b32 s26, s22, 1         ; tb")
    a("s_and_b32 s27, s22, 1          ; half")
    a("s_waitcnt lgkmcnt(0)")
    srd(a, 8, 20, SZ_XN, WS_XN); srd(a, 12, 20, 4608, WS_MOD); srd(a, 16, 20, SZ_WQKV, WS_WQKV)
    RING=6
    VX=16; VW=52; VACC=100; VT=132
    a(f"s_mul_i32 s28, s27, 1152")
    a(f"buffer_load_dwordx4 {vr(VT)}, v{VL16}, s[12:15], s28 offen")
    a(f"buffer_load_dwordx4 {vr(VT+4)}, v{VL16}, s[12:15], s28 offen offset:1024")
    a(f"s_add_u32 s28, s28, 2304")
    a(f"buffer_load_dwordx4 {vr(VT+8)}, v{VL16}, s[12:15], s28 offen")
    a(f"buffer_load_dwordx4 {vr(VT+12)}, v{VL16}, s[12:15], s28 offen offset:1024")
    a("s_mul_i32 s28, s24, 73728")
    a(f"s_mul_i32 s29, s27, {9*4096}")
    a("s_add_u32 s28, s28, s29")
    a("s_lshl_b32 s29, s26, 10")
    a("s_add_u32 s28, s28, s29")
    for i in range(9):
        a(f"buffer_load_dwordx4 {vr(VX+4*i)}, v{VL16}, s[8:11], s28 offen")
        if i < 8: a("s_add_u32 s28, s28, 4096")
    a(f"s_mul_i32 s40, s25, {18*2048}   ; W stream")
    nw = [0]
    def wload():
        k = nw[0]; nw[0] += 1
        t, uu = k >> 1, k & 1
        a(f"buffer_load_dwordx4 {vr(VW+8*(t % RING)+4*uu)}, v{VL16}, s[16:19], s40 offen offset:{uu*1024}")
        if uu: a("s_add_u32 s40, s40, 2048")
    a("s_lshl_b32 s28, s22, 12")
    a(f"s_add_u32 s33, s28, {L_MOD}")
    a(f"v_add_u32 v6, s33, v{VL16}")
    a.stamp(1)
    a("s_waitcnt vmcnt(9)")
    for i in range(4): a(f"ds_write_b128 v6, {vr(VT+4*i)} offset:{i*1024}")
    a("s_waitcnt lgkmcnt(0)")
    a.stamp(2)
    VC=[VACC, VACC+16]; VSF=[VACC+8, VACC+24]; VTT=VT; VO=VT+8
    a(f"v_lshlrev_b32 v8, 5, v{VG}")
    a(f"v_add_u32 v8, s33, v8")
    a(f"s_mul_i32 s28, s27, {9*4096}")
    a(f"s_lshl_b32 s29, s26, 10")
    a(f"s_add_u32 s28, s28, s29")
    a(f"v_add_u32 v9, s28, v{VL16}")
    def modread(i):
        b = i & 1
        a(f"ds_read_b128 {vr(VSF[b])}, v8 offset:{i*128}")
        a(f"ds_read_b128 {vr(VSF[b]+4)}, v8 offset:{i*128 + 16}")
        a(f"ds_read_b128 {vr(VC[b])}, v8 offset:{2048 + i*128}")
        a(f"ds_read_b128 {vr(VC[b]+4)}, v8 offset:{2048 + i*128 + 16}")
    modread(0)
    for i in range(9):
        if i < 8: modread(i+1)
        a(f"s_waitcnt vmcnt({8-i+nw[0]}) lgkmcnt({4 if i < 8 else 0})")
        if i == 0: a.stamp(3)
        chunk_unpack(a, VX+4*i, VTT); chunk_mod(a, VTT, VC[i&1], VSF[i&1]); chunk_pack(a, VTT, VO+4*(i&1))
        a(f"ds_write_b128 v9, {vr(VO+4*(i&1))} offset:{i*4096}")
        if WLATE == "0": wload()
    a.stamp(5)
    while nw[0] < 2*RING: wload()
    a("s_waitcnt lgkmcnt(0)")
    a("s_barrier")
    a.stamp(4)
    a("s_cmp_ge_u32 s25, 54\ns_cbranch_scc1 k2_exit")
    XB=[VX, VX+16]
    def xreads(t):
        b = XB[t & 1]
        for tb in range(4):
            off = t*4096 + tb*1024
            if off < 65536: a(f"ds_read_b128 {vr(b+4*tb)}, v{VL16} offset:{off}")
            else:           a(f"ds_read_b128 {vr(b+4*tb)}, v10 offset:{off-65536}")
    def gemm(vtype):
        nw[0] = 2*RING
        a("s_mov_b32 s41, s40")
        a(f"v_add_u32 v10, 0x10000, v{VL16}")
        xreads(0)
        for t in range(18):
            if t < 17: xreads(t+1)
            issued = min(18, t + RING)
            a(f"s_waitcnt vmcnt({2*(issued-t-1)}) lgkmcnt({4 if t < 17 else 0})")
            b = XB[t & 1]
            for uu in range(2):
                for tb in range(4):
                    acc = VACC + 16*uu + 4*tb
                    c = vr(acc) if t else "0"
                    w = vr(VW+8*(t % RING)+4*uu); x = vr(b+4*tb)
                    if vtype: a(f"v_mfma_f32_16x16x32_bf16 {vr(acc)}, {x}, {w}, {c}")
                    else:     a(f"v_mfma_f32_16x16x32_bf16 {vr(acc)}, {w}, {x}, {c}")
                if t + RING < 18:
                    a(f"buffer_load_dwordx4 {vr(VW+8*(t % RING)+4*uu)}, v{VL16}, s[16:19], s41 offen offset:{uu*1024}")
            if t + RING < 18: a("s_add_u32 s41, s41, 2048")
    a("s_cmp_ge_u32 s25, 52\ns_cbranch_scc1 k2_gv")
    a("s_cmp_ge_u32 s25, 48\ns_cbranch_scc1 k2_gq")
    a("s_cmp_ge_u32 s25, 32\ns_cbranch_scc1 k2_gv")
    a.label("k2_gq")
    gemm(False)
    a.stamp(6)
    srd(a, 8, 20, SZ_QA, WS_QA); srd(a, 12, 20, SZ_QB, WS_QB); srd(a, 16, 20, SZ_KV, WS_KV)
    a("s_cmp_ge_u32 s25, 48\ns_cbranch_scc1 k2_ext")
    def pack_pair16(acc0, acc1, o):
        a(f"v_cvt_pk_bf16_f32 v{o}, v{acc0}, v{acc0+1}")
        a(f"v_cvt_pk_bf16_f32 v{o+1}, v{acc0+2}, v{acc0+3}")
        a(f"v_cvt_pk_bf16_f32 v{o+2}, v{acc1}, v{acc1+1}")
        a(f"v_cvt_pk_bf16_f32 v{o+3}, v{acc1+2}, v{acc1+3}")
    a("s_lshl_b32 s28, s24, 11")
    a("s_cmp_ge_u32 s25, 16\ns_cbranch_scc1 k2_kmain")
    a(f"s_mov_b32 s33, {QSCALE:#x}")
    a("s_lshl_b32 s29, s25, 17")
    a("s_add_u32 s28, s28, s29")
    for uu in range(2):
        for tl in range(2):
            acc = VACC+16*uu+8*tl; o = VT+4*((2*uu+tl)&3)
            for j in range(8): a(f"v_mul_f32 v{acc+j}, s33, v{acc+j}")
            pack_pair16(acc, acc+4, o)
            a(f"v_permlane16_swap_b32 v{o}, v{o+2}")
            a(f"v_permlane16_swap_b32 v{o+1}, v{o+3}")
            a(f"s_add_u32 s29, s28, {uu*65536 + tl*1024}")
            a(f"buffer_store_dwordx4 {vr(o)}, v{VL16}, s[8:11], s29 offen " + SC("K2SC", "0"))
    a("s_endpgm")
    a.label("k2_kmain")
    a("s_sub_u32 s29, s25, 16")
    a(f"s_mul_i32 s29, s29, {2*KVH}")
    a("s_add_u32 s28, s28, s29")
    for uu in range(2):
        for tl in range(2):
            acc = VACC+16*uu+8*tl; o = VT+4*((2*uu+tl)&3)
            pack_pair16(acc, acc+4, o)
            a(f"v_permlane16_swap_b32 v{o}, v{o+2}")
            a(f"v_permlane16_swap_b32 v{o+1}, v{o+3}")
            a(f"s_add_u32 s29, s28, {uu*KVH + KV_KA + tl*1024}")
            a(f"buffer_store_dwordx4 {vr(o)}, v{VL16}, s[16:19], s29 offen " + SC("K2SC", "0"))
    a("s_endpgm")
    a.label("k2_ext")
    a("s_cmp_ge_u32 s25, 50\ns_cbranch_scc1 k2_kext")
    a(f"s_mov_b32 s33, {QSCALE:#x}")
    a(f"v_lshlrev_b32 v5, 15, v{VG}               ; 2g heads * 16384")
    a(f"v_lshl_add_u32 v5, v{VTOK}, 3, v5")
    a("s_sub_u32 s29, s25, 48")
    a("s_lshl_b32 s29, s29, 18")
    a("s_lshl_b32 s28, s24, 9         ; rb*64*8")
    a("s_add_u32 s28, s28, s29")
    a(f"v_mov_b32 v{VT+1}, 0")
    a(f"v_mov_b32 v{VT+3}, 0")
    for uu in range(2):
        for tb in range(4):
            acc = VACC+16*uu+4*tb
            for j in range(4): a(f"v_mul_f32 v{acc+j}, s33, v{acc+j}")
            a(f"v_cvt_pk_bf16_f32 v{VT}, v{acc}, v{acc+1}")
            a(f"v_cvt_pk_bf16_f32 v{VT+2}, v{acc+2}, v{acc+3}")
            a(f"s_add_u32 s29, s28, {uu*8*16384 + tb*128}")
            a(f"buffer_store_dwordx2 {vr(VT,2)}, v5, s[12:15], s29 offen")
            a(f"s_add_u32 s29, s29, 16384")
            a(f"buffer_store_dwordx2 {vr(VT+2,2)}, v5, s[12:15], s29 offen")
    a("s_endpgm")
    a.label("k2_kext")
    a(f"v_mul_u32_u24 v5, {2*KVH}, v{VG}")
    a(f"v_lshl_add_u32 v5, v{VTOK}, 3, v5")
    a("s_sub_u32 s29, s25, 50")
    a(f"s_mul_i32 s29, s29, {16*KVH}")
    a("s_lshl_b32 s28, s24, 9")
    a("s_add_u32 s28, s28, s29")
    a(f"v_mov_b32 v{VT+1}, 0x3f80")
    a(f"v_mov_b32 v{VT+3}, 0x3f80")
    for uu in range(2):
        for tb in range(4):
            acc = VACC+16*uu+4*tb
            a(f"v_cvt_pk_bf16_f32 v{VT}, v{acc}, v{acc+1}")
            a(f"v_cvt_pk_bf16_f32 v{VT+2}, v{acc+2}, v{acc+3}")
            a(f"s_add_u32 s29, s28, {uu*8*KVH + KV_KB + tb*128}")
            a(f"buffer_store_dwordx2 {vr(VT,2)}, v5, s[16:19], s29 offen")
            a(f"s_add_u32 s29, s29, {KVH}")
            a(f"buffer_store_dwordx2 {vr(VT+2,2)}, v5, s[16:19], s29 offen")
    a("s_endpgm")
    a.label("k2_gv")
    gemm(True)
    srd(a, 16, 20, SZ_KV, WS_KV)
    a(f"v_and_b32 v6, 1, v{VG}")
    a(f"v_mul_u32_u24 v5, 304, v6")
    a(f"v_lshrrev_b32 v6, 1, v{VG}")
    a(f"v_mul_u32_u24 v6, 608, v6")
    a(f"v_add_u32 v5, v5, v6")
    a(f"s_mul_i32 s28, s24, {2*1216}")
    a("s_cmp_ge_u32 s25, 52\ns_cbranch_scc1 k2_vext")
    a(f"v_lshl_add_u32 v5, v{VTOK}, 4, v5          ; d = m")
    a("s_sub_u32 s29, s25, 32")
    a(f"s_mul_i32 s29, s29, {2*KVH}")
    a("s_add_u32 s28, s28, s29")
    a(f"s_mov_b32 s31, {KVH}")
    a("s_branch k2_vstore")
    a.label("k2_vext")
    a(f"v_lshrrev_b32 v6, 1, v{VTOK}")
    a(f"v_mul_u32_u24 v6, {KVH}, v6")
    a(f"v_add_u32 v5, v5, v6")
    a(f"v_and_b32 v6, 1, v{VTOK}")
    a(f"v_lshl_add_u32 v5, v6, 4, v5")
    a(f"v_add_u32 v5, 256, v5                      ; d = 16 + (m&1)")
    a("s_sub_u32 s29, s25, 52")
    a(f"s_mul_i32 s29, s29, {16*KVH}")
    a("s_add_u32 s28, s28, s29")
    a(f"s_mov_b32 s31, {8*KVH}")
    a.label("k2_vstore")
    for uu in range(2):
        for tl in range(2):
            acc = VACC+16*uu+8*tl; o = VT+4*((2*uu+tl)&3)
            pack_pair16(acc, acc+4, o)
            a(f"v_permlane32_swap_b32 v{o}, v{o+2}")
            a(f"v_permlane32_swap_b32 v{o+1}, v{o+3}")
            a(f"s_add_u32 s29, s28, {KV_V + tl*1216}")
            a(f"buffer_store_dwordx4 {vr(o)}, v5, s[16:19], s29 offen " + SC("K2SC", "0"))
        if uu == 0: a("s_add_u32 s28, s28, s31")
    a("s_endpgm")
    a.label("k2_side")
    wave_id(a, 22, 1)
    a("s_cmp_ge_u32 s24, 18\ns_cbranch_scc1 k2_side_wo")
    a("s_lshr_b32 s45, s22, 2")
    a("s_lshl_b32 s44, s24, 1")
    a("s_add_u32 s44, s44, s45")
    a("s_add_u32 s44, s44, 18")
    a("s_mul_i32 s45, s45, 12288")
    gen_mod(a, "k2")
    a.label("k2_side_wo")
    a("s_sub_u32 s23, s24, 18")
    a("s_lshl_b32 s23, s23, 3")
    a("s_add_u32 s23, s23, s22")
    a("s_cmp_ge_u32 s23, 72\ns_cbranch_scc1 k2_exit")
    gen_ldsshuf(a, "k2", False, True)
    a.label("k2_exit")
    return kernel("k2_qkv_kernel", a, vgpr=152, sgpr=64), (256, 512, K2_LDS)
```

```python
from common import *
from k6 import reduce_loads, reduce_main
import os
MERGE6 = os.environ.get('MERGE6', '1') == '1'
L5_X=0; L5_H=73728
K5_LDS = 147456 + 64
L5_CNT = 147456
NLOG2E=0xbfb8aa3b
K5_A = int(os.environ.get('K5_A', '2'))
WF = ENV('K5WF', '')
def gen_k5():
    a = Asm()
    a("s_cmp_ge_u32 s2, 256\ns_cbranch_scc1 k5_exit")
    load_ptr(a, 20, KA_WS)
    wave_id(a, 22, 1)
    VL=1; VTOK=2; VG=3; VL16=4
    a(f"v_and_b32 v{VL}, 63, v0")
    a(f"v_and_b32 v{VTOK}, 15, v{VL}")
    a(f"v_lshrrev_b32 v{VG}, 4, v{VL}")
    a(f"v_lshlrev_b32 v{VL16}, 4, v{VL}")
    A = K5_A; lgA = {1: 0, 2: 1, 4: 2, 8: 3}[A]
    a("s_and_b32 s25, s2, 7")
    a("s_lshr_b32 s26, s2, 3")
    a(f"s_and_b32 s23, s25, {8//A - 1}")
    a(f"s_lshl_b32 s23, s23, {lgA}")
    a(f"s_and_b32 s27, s26, {A-1}")
    a("s_add_u32 s23, s23, s27        ; slice")
    a(f"s_lshr_b32 s24, s25, {3-lgA}")
    a(f"s_lshl_b32 s24, s24, {5-lgA}")
    a(f"s_lshr_b32 s26, s26, {lgA}")
    a("s_add_u32 s24, s24, s26        ; rb")
    sdiv(a, 26, 22, 3, 27, 25)
    a("s_waitcnt lgkmcnt(0)")
    WBASE = WS_W13
    srd(a, 8, 20, SZ_X1F, WS_X1F); srd(a, 12, 20, 4608, WS_MOD+3*2304)
    srd(a, 16, 20, WS_W2 + SZ_W2 - WBASE, WBASE); srd(a, 32, 20, SZ_PART, WS_PART); srd(a, 36, 20, SZ_STP, WS_STP)
    VACC=8
    VW=104
    VX=152
    AX=5; AH=6
    XP=VACC
    MT=XP+24
    ST=XP+32
    a(f"s_mul_i32 s28, s27, 768")
    a(f"buffer_load_dwordx4 {vr(MT)}, v{VL16}, s[12:15], s28 offen")
    a(f"s_add_u32 s28, s28, 2304")
    a(f"buffer_load_dwordx4 {vr(MT+4)}, v{VL16}, s[12:15], s28 offen")
    a(f"s_lshl_b32 s28, s24, 6")
    a(f"s_lshl_b32 s29, s26, 4")
    a(f"s_add_u32 s28, s28, s29")
    a(f"s_lshl_b32 s28, s28, 5")
    a(f"v_lshlrev_b32 v7, 5, v{VTOK}")
    a(f"buffer_load_dwordx4 {vr(ST)}, v7, s[36:39], s28 offen")
    a(f"buffer_load_dwordx4 {vr(ST+4)}, v7, s[36:39], s28 offen offset:16")
    a("s_mul_i32 s28, s24, 73728")
    a(f"s_mul_i32 s29, s27, {6*4096}")
    a("s_add_u32 s28, s28, s29")
    a("s_lshl_b32 s29, s26, 10")
    a("s_add_u32 s28, s28, s29")
    for i in range(6):
        a(f"buffer_load_dwordx4 {vr(XP+4*i)}, v{VL16}, s[8:11], s28 offen")
        if i < 5: a("s_add_u32 s28, s28, 4096")
    a(f"s_mul_i32 s40, s23, {SZ_W13S}")
    a("s_mul_i32 s29, s22, 110592")
    a("s_add_u32 s40, s40, s29")
    a(f"s_mul_i32 s41, s23, {SZ_W2S}")
    a("s_mul_i32 s29, s22, 55296")
    a("s_add_u32 s41, s41, s29")
    a(f"s_add_u32 s41, s41, {WS_W2-WBASE:#x}")
    a(f"v_add_u32 v7, 4096, v{VL16}")
    def wload(slot, f, s):
        r = VW + 24*slot + 4*f
        if f < 4: a(f"buffer_load_dwordx4 {vr(r)}, v{VL16}, s[16:19], {s} offen offset:{f*1024} " + WF)
        else:     a(f"buffer_load_dwordx4 {vr(r)}, v7, s[16:19], {s} offen offset:{(f-4)*1024} " + WF)
    a("s_lshl_b32 s28, s22, 11")
    a(f"s_add_u32 s28, s28, {L5_H}")
    a(f"v_add_u32 v{AH}, s28, v{VL16}")
    if MERGE6:
        a(f"v_mov_b32 v{AX}, {L5_CNT}")
        a(f"v_mov_b32 v{VX}, 0")
        a(f"ds_write_b32 v{AX}, v{VX}")
    a("s_waitcnt vmcnt(8)")
    a(f"ds_write_b128 v{AH}, {vr(MT)}")
    a(f"ds_write_b128 v{AH}, {vr(MT+4)} offset:1024")
    a("s_waitcnt vmcnt(6)")
    VS=ST; VQ=ST+1; VR=XP+40; VSH=XP+42
    a(f"v_add_f32 v{VS}, v{ST}, v{ST+2}")
    a(f"v_add_f32 v{VQ}, v{ST+1}, v{ST+3}")
    a(f"v_add_f32 v{ST+4}, v{ST+4}, v{ST+6}")
    a(f"v_add_f32 v{ST+5}, v{ST+5}, v{ST+7}")
    a(f"v_add_f32 v{VS}, v{VS}, v{ST+4}")
    a(f"v_add_f32 v{VQ}, v{VQ}, v{ST+5}")
    ln_finish(a, VS, VQ, VR, VSH)
    a(f"v_mov_b32 v{VR+1}, v{VR}")
    a(f"v_mov_b32 v{VSH+1}, v{VSH}")
    VC=[XP+48, XP+64]; VSF=[XP+56, XP+72]; VTT=XP+80; VO=XP+88
    a(f"v_lshlrev_b32 v{AX}, 5, v{VG}")
    a(f"v_add_u32 v{AX}, s28, v{AX}")
    a(f"s_mul_i32 s28, s27, {6*4096}")
    a(f"s_lshl_b32 s29, s26, 10")
    a(f"s_add_u32 s28, s28, s29")
    a(f"v_add_u32 v{AH}, s28, v{VL16}")
    def modread(i):
        b = i & 1
        a(f"ds_read_b128 {vr(VSF[b])}, v{AX} offset:{i*128}")
        a(f"ds_read_b128 {vr(VSF[b]+4)}, v{AX} offset:{i*128 + 16}")
        a(f"ds_read_b128 {vr(VC[b])}, v{AX} offset:{1024 + i*128}")
        a(f"ds_read_b128 {vr(VC[b]+4)}, v{AX} offset:{1024 + i*128 + 16}")
    a("s_waitcnt lgkmcnt(0)")
    modread(0)
    nw = 0
    for i in range(6):
        if i < 5: modread(i+1)
        a(f"s_waitcnt vmcnt({5-i+nw}) lgkmcnt({4 if i < 5 else 0})")
        chunk_unpack(a, XP+4*i, VTT); chunk_norm(a, VTT, VR); chunk_mod(a, VTT, VC[i&1], VSF[i&1]); chunk_pack(a, VTT, VO+4*(i&1))
        a(f"ds_write_b128 v{AH}, {vr(VO+4*(i&1))} offset:{i*4096}")
        wload(0, i, "s40"); nw += 1
    a("s_add_u32 s40, s40, 6144")
    for f in range(6): wload(1, f, "s40")
    a("s_add_u32 s40, s40, 6144")
    a("s_waitcnt lgkmcnt(0)")
    a("s_barrier")
    a.stamp(3)
    a(f"v_mov_b32 v{AX}, v{VL16}")
    def xread(tb, off): a(f"ds_read_b128 {vr(VX+4*tb)}, v{AX} offset:{off + tb*1024}")
    def step1(slot, first, do_x, xoff, wsrc, vm):
        for tb in range(4):
            w = f"lgkmcnt({3 if (do_x or True) else 0})"
            if tb == 0: a(f"s_waitcnt vmcnt({vm}) lgkmcnt({do_x_prev[0][tb]})")
            else:       a(f"s_waitcnt lgkmcnt({do_x_prev[0][tb]})")
            for f in range(6):
                acc = VACC + (f*4+tb)*4
                a(f"v_mfma_f32_16x16x32_bf16 {vr(acc)}, {vr(VW+24*slot+4*f)}, {vr(VX+4*tb)}, {'0' if first else vr(acc)}")
                if tb == 3 and wsrc: wload(slot, f, wsrc)
            if do_x: xread(tb, xoff)
        if wsrc: a(f"s_add_u32 {wsrc}, {wsrc}, 6144")
    steady = [3,3,3,3]; drain = [3,2,1,0]
    do_x_prev = [steady]
    for tb in range(4): xread(tb, 0)
    step1(0, True, True, 4096, "s40", 6)
    a(f"v_add_u32 v{AX}, 8192, v{AX}               ; base -> X(2)")
    a("s_mov_b32 s42, 7")
    a.label("k5_loop1")
    step1(1, False, True, 0, "s40", 6)
    step1(0, False, True, 4096, "s40", 6)
    a(f"v_add_u32 v{AX}, 8192, v{AX}")
    a("s_sub_u32 s42, s42, 1\ns_cmp_lg_u32 s42, 0\ns_cbranch_scc1 k5_loop1")
    step1(1, False, True, 0, "s40", 6)
    step1(0, False, True, 4096, "s41", 6)
    do_x_prev[0] = drain
    step1(1, False, False, 0, "s41", 6)
    a.stamp(4)
    T=VX
    a("s_mul_i32 s28, s22, 3")
    for uu in range(3):
        a(f"s_add_u32 s29, s28, {uu}")
        a("s_lshr_b32 s25, s29, 1")
        a("s_lshl_b32 s25, s25, 12")
        a("s_and_b32 s29, s29, 1")
        a("s_lshl_b32 s29, s29, 3")
        a("s_add_u32 s25, s25, s29")
        a(f"s_add_u32 s25, s25, {L5_H}")
        a(f"v_add_u32 v{AH}, s25, v{VL16}")
        for tb in range(4):
            g = VACC + ((2*uu)*4+tb)*4; u = VACC + ((2*uu+1)*4+tb)*4
            for j in range(4): a(f"v_mul_f32 v{T+j}, {NLOG2E:#x}, v{g+j}")
            for j in range(4): a(f"v_exp_f32 v{T+j}, v{T+j}")
            for j in range(4): a(f"v_mul_f32 v{g+j}, v{g+j}, v{u+j}")
            for j in range(4): a(f"v_add_f32 v{T+j}, 1.0, v{T+j}")
            for j in range(4): a(f"v_rcp_f32 v{T+j}, v{T+j}")
            a("s_nop 0")
            for j in range(4): a(f"v_mul_f32 v{g+j}, v{g+j}, v{T+j}")
            o = T+4+2*(tb&1)
            a(f"v_cvt_pk_bf16_f32 v{o}, v{g}, v{g+1}")
            a(f"v_cvt_pk_bf16_f32 v{o+1}, v{g+2}, v{g+3}")
            a(f"ds_write_b64 v{AH}, {vr(o,2)} offset:{tb*1024}")
    a("s_waitcnt lgkmcnt(0)")
    a("s_barrier")
    a.stamp(5)
    a(f"v_add_u32 v{AX}, {L5_H}, v{VL16}")
    def w2load(rs, uu):
        a(f"buffer_load_dwordx4 {vr(VW+12*rs+4*uu)}, v{VL16}, s[16:19], s41 offen offset:{uu*1024} " + WF)
    def step2(rs, first, do_x, xoff, reload, vm, lg):
        for tb in range(4):
            if tb == 0: a(f"s_waitcnt vmcnt({vm}) lgkmcnt({lg[tb]})")
            else:       a(f"s_waitcnt lgkmcnt({lg[tb]})")
            for uu in range(3):
                acc = VACC + (uu*4+tb)*4
                a(f"v_mfma_f32_16x16x32_bf16 {vr(acc)}, {vr(VW+12*rs+4*uu)}, {vr(VX+4*tb)}, {'0' if first else vr(acc)}")
                if tb == 3 and reload: w2load(rs, uu)
            if do_x: xread(tb, xoff)
        if reload: a("s_add_u32 s41, s41, 3072")
    for tb in range(4): xread(tb, 0)
    step2(0, True, True, 4096, True, 9, steady)
    a(f"v_add_u32 v{AX}, 8192, v{AX}")
    step2(1, False, True, 0, True, 9, steady)
    a("s_mov_b32 s42, 3")
    a.label("k5_loop2")
    step2(2, False, True, 4096, True, 9, steady)
    a(f"v_add_u32 v{AX}, 8192, v{AX}")
    step2(3, False, True, 0, True, 9, steady)
    step2(0, False, True, 4096, True, 9, steady)
    a(f"v_add_u32 v{AX}, 8192, v{AX}")
    step2(1, False, True, 0, True, 9, steady)
    a("s_sub_u32 s42, s42, 1\ns_cmp_lg_u32 s42, 0\ns_cbranch_scc1 k5_loop2")
    step2(2, False, True, 4096, False, 9, steady)
    a(f"v_add_u32 v{AX}, 8192, v{AX}")
    step2(3, False, True, 0, False, 6, steady)
    step2(0, False, True, 4096, False, 3, steady)
    step2(1, False, False, 0, False, 0, drain)
    a.stamp(6)
    a(f"s_mul_i32 s28, s23, {SZ_PARTS}")
    a("s_mul_i32 s29, s24, 73728")
    a("s_add_u32 s28, s28, s29")
    a("s_mul_i32 s29, s22, 6144")
    a("s_add_u32 s28, s28, s29")
    for q in range(6):
        uu = q >> 1; h = q & 1
        o = VW + 4*q
        for k in range(2):
            acc = VACC + (uu*4 + 2*h + k)*4
            a(f"v_cvt_pk_bf16_f32 v{o+2*k}, v{acc}, v{acc+1}")
            a(f"v_cvt_pk_bf16_f32 v{o+2*k+1}, v{acc+2}, v{acc+3}")
        if q < 4: a(f"buffer_store_dwordx4 {vr(o)}, v{VL16}, s[32:35], s28 offen offset:{q*1024} " + SC("K5SC", "1"))
        else:     a(f"buffer_store_dwordx4 {vr(o)}, v7, s[32:35], s28 offen offset:{(q-4)*1024} " + SC("K5SC", "1"))
    if MERGE6:
        load_ptr(a, 4, KA_OUT)
        a("s_waitcnt vmcnt(0) lgkmcnt(0)")
        a.stamp(1)
        srd(a, 52, 20, SZ_CNT, WS_CNT)
        srd(a, 8, 20, SZ_PART, WS_PART); srd(a, 12, 20, SZ_X1F, WS_X1F); srd(a, 16, 20, 2304, WS_MOD+5*2304); srd(a, 36, 4, SZ_X)
        a(f"v_mov_b32 v6, {L5_CNT}")
        a("v_mov_b32 v7, 1")
        a("s_mov_b64 exec, 1")
        a("ds_add_rtn_u32 v8, v6, v7")
        a("s_waitcnt lgkmcnt(0)")
        a("v_readfirstlane_b32 s26, v8")
        a("s_add_u32 s28, s24, 16")
        a("s_lshl_b32 s28, s28, 10")
        a("v_mov_b32 v6, s28")
        a("s_cmp_lg_u32 s26, 11\ns_cbranch_scc1 k5_nosig")
        a("buffer_atomic_add v7, v6, s[52:55], 0 offen sc1")
        a.label("k5_nosig")
        a("s_mov_b64 exec, -1")
        a("v_mov_b32 v23, s28")
        a("s_cmp_ge_u32 s22, 9\ns_cbranch_scc1 k5_noload")
        reduce_loads(a, True)
        a.label("k5_noload")
        a("s_cmp_lg_u32 s26, 11\ns_cbranch_scc1 k5_nopoll")
        a("s_mov_b32 s29, 20000")
        a.label("k5_poll")
        a("buffer_load_dword v24, v23, s[52:55], 0 offen sc0 sc1")
        a("s_waitcnt vmcnt(0)")
        a("v_readfirstlane_b32 s25, v24")
        a("s_sub_u32 s29, s29, 1")
        a("s_cmp_eq_u32 s29, 0\ns_cbranch_scc1 k5_nopoll")
        a("s_cmp_ge_u32 s25, 8\ns_cbranch_scc0 k5_poll")
        a.label("k5_nopoll")
        a("s_barrier")
        a.stamp(2)
        a("s_cmp_ge_u32 s22, 9\ns_cbranch_scc1 k5_exit")
        reduce_main(a, True)
    a.label("k5_exit")
    return kernel("k5_ffn_kernel", a, vgpr=168, sgpr=64), (256, 768, K5_LDS)
```

```python
from common import *
K6_LDS = 3*32*208
PERT = ENV('PERT', '')
def reduce_loads(a, merged):
    a("v_mul_u32_u24 v5, 5462, v0")
    a("v_lshrrev_b32 v5, 20, v5                   ; hg = t/192")
    a("v_mul_u32_u24 v6, 192, v5")
    a("v_sub_u32 v6, v0, v6                       ; r")
    a("s_mul_i32 s27, s23, 3")
    a("v_add_u32 v7, s27, v5")
    a("v_and_b32 v8, 1, v7                        ; half")
    a("v_lshrrev_b32 v7, 1, v7                    ; gi")
    a("v_and_b32 v9, 1, v7                        ; a")
    a("v_lshrrev_b32 v7, 1, v7                    ; sp")
    a("v_mul_u32_u24 v10, 10923, v6")
    a("v_lshrrev_b32 v10, 16, v10                 ; token 0..31")
    a("v_mul_u32_u24 v11, 6, v10")
    a("v_sub_u32 v11, v6, v11                     ; c")
    a("v_mul_u32_u24 v12, 12, v7")
    a("v_mul_u32_u24 v13, 6, v8")
    a("v_add3_u32 v12, v12, v13, v11")
    a("v_lshl_add_u32 v13, v9, 5, v10")
    a("v_lshrrev_b32 v14, 2, v12")
    a("v_lshlrev_b32 v14, 12, v14")
    a("v_and_b32 v15, 3, v12")
    a("v_lshl_add_u32 v14, v15, 8, v14")
    a("v_lshrrev_b32 v15, 4, v13")
    a("v_lshl_add_u32 v14, v15, 10, v14")
    a("v_and_b32 v15, 15, v13")
    a("v_lshl_add_u32 v14, v15, 4, v14")
    a("s_mul_i32 s27, s24, 73728")
    a(f"buffer_load_dwordx4 {vr(48)}, v14, s[12:15], s27 offen")
    a("v_lshlrev_b32 v15, 5, v12")
    a(f"buffer_load_dwordx4 {vr(52)}, v15, s[16:19], 0 offen")
    a(f"buffer_load_dwordx4 {vr(56)}, v15, s[16:19], 0 offen offset:16")
    a("v_mul_u32_u24 v13, 1152, v13")
    a("v_lshl_add_u32 v13, v12, 4, v13")
    a("v_lshrrev_b32 v15, 5, v6                   ; cw")
    a("v_cmp_le_u32 vcc, 3, v15")
    a("v_cndmask_b32 v16, 0, 1, vcc               ; wl")
    a("v_mul_u32_u24 v17, 3, v16")
    a("v_sub_u32 v17, v15, v17                    ; uu")
    a("v_and_b32 v18, 31, v6                      ; lane32")
    a("v_lshl_add_u32 v19, v7, 1, v16")
    a("v_mul_u32_u24 v19, 6144, v19")
    a("v_lshl_add_u32 v20, v17, 1, v9")
    a("v_lshl_add_u32 v19, v20, 10, v19")
    a("v_lshl_add_u32 v20, v8, 5, v18")
    a("v_lshl_add_u32 v19, v20, 4, v19")
    a("v_mul_u32_u24 v20, 6656, v5")
    a("v_and_b32 v21, 15, v18")
    a("v_mul_u32_u24 v21, 208, v21")
    a("v_add_u32 v20, v20, v21")
    a("v_lshrrev_b32 v21, 4, v18")
    a("v_mul_u32_u24 v21, 96, v21")
    a("v_add_u32 v20, v20, v21")
    a("v_lshl_add_u32 v20, v15, 2, v20")
    a("v_mul_u32_u24 v21, 6656, v5")
    a("v_mul_u32_u24 v22, 208, v10")
    a("v_add_u32 v21, v21, v22")
    a("v_lshl_add_u32 v21, v11, 5, v21")

def reduce_main(a, merged, ldsb=0):
    SCL = (" " + ENV("PLD", "sc1")) if merged else ""
    VP=64; VA=96; VR=48; VGB=52
    a("s_mul_i32 s27, s24, 73728")
    for x in range(8):
        a(f"buffer_load_dwordx4 {vr(VP+4*x)}, v19, s[8:11], s27 offen{SCL}")
        if x < 7: a(f"s_add_u32 s27, s27, {SZ_PARTS}")
    for x in range(8):
        a(f"s_waitcnt vmcnt({7-x})")
        for q in range(4):
            r = VP+4*x+q
            if x == 0:
                a(f"v_lshlrev_b32 v{VA+2*q}, 16, v{r}")
                a(f"v_and_b32 v{VA+2*q+1}, 0xffff0000, v{r}")
            else:
                a(f"v_lshlrev_b32 v9, 16, v{r}")
                a(f"v_and_b32 v10, 0xffff0000, v{r}")
                a(f"v_add_f32 v{VA+2*q}, v{VA+2*q}, v9")
                a(f"v_add_f32 v{VA+2*q+1}, v{VA+2*q+1}, v10")
    for k in range(2):
        for j in range(4):
            a(f"ds_write_b32 v20, v{VA+4*k+j} offset:{ldsb + k*16*208 + j*24}")
    a("s_waitcnt lgkmcnt(0)")
    a("s_barrier")
    a(f"ds_read_b128 {vr(VA)}, v21 offset:{ldsb}")
    a(f"ds_read_b128 {vr(VA+4)}, v21 offset:{ldsb+16}")
    a("s_waitcnt lgkmcnt(0)")
    for q in range(4):
        a(f"v_lshlrev_b32 v9, 16, v{VR+q}")
        a(f"v_and_b32 v10, 0xffff0000, v{VR+q}")
        a(f"v_fmac_f32 v9, v{VGB+2*q}, v{VA+2*q}")
        a(f"v_fmac_f32 v10, v{VGB+2*q+1}, v{VA+2*q+1}")
        if PERT:
            kind, val = PERT.split(":")
            if kind == "scale":
                a(f"v_mul_f32 v9, {f32(float(val)):#x}, v9"); a(f"v_mul_f32 v10, {f32(float(val)):#x}, v10")
        a(f"v_cvt_pk_bf16_f32 v{VR+q}, v9, v10")
    a(f"s_mul_i32 s27, s24, {64*1152}")
    a(f"buffer_store_dwordx4 {vr(VR)}, v13, s[48:51], s27 offen")

def gen_k6():
    a = Asm()
    a(f"s_cmp_ge_u32 s2, 256\ns_cbranch_scc1 k6_exit")
    load_ptr(a, 4, KA_OUT); load_ptr(a, 20, KA_WS)
    a("s_and_b32 s23, s2, 7           ; x")
    a("s_lshr_b32 s24, s2, 3          ; rb")
    a("s_waitcnt lgkmcnt(0)")
    srd(a, 8, 20, SZ_PART, WS_PART); srd(a, 12, 20, SZ_X1F, WS_X1F); srd(a, 16, 20, 2304, WS_MOD+5*2304); srd(a, 48, 4, SZ_X)
    reduce_loads(a, False)
    reduce_main(a, False)
    a.label("k6_exit")
    return kernel("k6_reduce_kernel", a, vgpr=112, sgpr=64), (256, 576, K6_LDS)
```

```python
import re

class Asm:
    def __init__(self):
        self.lines = []
        self._lab = 0
    def __call__(self, text):
        for ln in text.split("\n"):
            ln = ln.strip()
            if ln:
                self.lines.append(ln)
    def label(self, name):
        self.lines.append(name + ":")
    def newlabel(self, prefix="L"):
        self._lab += 1
        return f"{prefix}_{self._lab}"
    def stamp(self, i):
        self.lines.append(f";stamp {i}")
    def text(self):
        return "\n".join(self.lines) + "\n"

_REG = re.compile(r"^(-?\|?)(v|s|a)(\d+)(\|?)$")
_RNG = re.compile(r"^(-?\|?)(v|s|a)\[(\d+):(\d+)\](\|?)$")
def regs_of(op):
    op = op.strip()
    if op.startswith("abs(") or op.startswith("neg("):
        op = op[4:-1]
    m = _REG.match(op)
    if m: return {(m.group(2), int(m.group(3)))}
    m = _RNG.match(op)
    if m: return {(m.group(2), i) for i in range(int(m.group(3)), int(m.group(4)) + 1)}
    if op == "vcc": return {("s", "vcc")}
    if op in ("vcc_lo", "vcc_hi"): return {("s", "vcc")}
    if op == "exec": return {("s", "exec")}
    if op == "m0": return {("s", "m0")}
    return set()

def split_ops(s):
    out = []; depth = 0; cur = ""
    for ch in s:
        if ch in "[(": depth += 1
        if ch in "])": depth -= 1
        if ch == "," and depth == 0:
            out.append(cur.strip()); cur = ""
        else:
            cur += ch
    if cur.strip(): out.append(cur.strip())
    return out

TRANS = ("v_exp_", "v_log_", "v_rcp_", "v_rsq_", "v_sqrt_", "v_sin_", "v_cos_")
class Ins:
    __slots__ = ("text", "op", "kind", "w", "r", "ops", "mods", "passes", "srcA", "srcB", "srcC", "dst", "is_trans",
                 "is_dpp", "is_sdwa_dst", "sgpr_const_r", "store_data", "is_lds_dma", "nop", "target", "uncond", "lane_sel", "wide_store")
def parse(line):
    I = Ins(); I.text = line
    I.w = set(); I.r = set(); I.passes = 0; I.srcA = I.srcB = I.srcC = I.dst = set()
    I.is_trans = I.is_dpp = I.is_sdwa_dst = I.is_lds_dma = I.uncond = I.wide_store = False
    I.sgpr_const_r = set(); I.store_data = set(); I.nop = 0; I.target = None; I.lane_sel = set()
    code = line.split(";")[0].strip()
    if not code:
        I.op = ""; I.kind = "dir"; return I
    if code.endswith(":"):
        I.op = code[:-1]; I.kind = "label"; return I
    if code.startswith("."):
        I.op = code; I.kind = "dir"; return I
    parts = code.split(None, 1)
    op = parts[0]; I.op = op
    rest = parts[1] if len(parts) > 1 else ""
    ops = split_ops(rest)
    mods = ""
    if ops:
        last = ops[-1].split(None, 1)
        if len(last) > 1 and not last[0].endswith("("):
            ops[-1] = last[0]; mods = last[1]
    I.ops = ops; I.mods = mods
    R = [regs_of(o) for o in ops]
    allr = lambda xs: set().union(*xs) if xs else set()
    if op.startswith("v_mfma"):
        I.kind = "mfma"
        I.passes = 8 if "32x32" in op else 4
        I.dst = R[0]; I.srcA = R[1]; I.srcB = R[2]; I.srcC = R[3]
        I.w = R[0]; I.r = R[1] | R[2] | R[3]
    elif op.startswith("v_"):
        I.kind = "valu"
        I.is_trans = op.startswith(TRANS)
        I.is_dpp = ("row_" in mods) or ("quad_perm" in mods) or op.endswith("_dpp")
        I.is_sdwa_dst = ("dst_sel" in mods and "dst_sel:DWORD" not in mods) or ("op_sel:" in mods and not op.startswith("v_pk"))
        if op.startswith("v_cmp"):
            I.w = R[0]; I.r = allr(R[1:])
        elif op.startswith(("v_readfirstlane", "v_readlane")):
            I.w = R[0]; I.r = allr(R[1:])
            if op.startswith("v_readlane"): I.lane_sel = {x for x in R[2] if x[0] == "s"}
        elif op.startswith("v_writelane"):
            I.w = R[0]; I.r = allr(R[1:]) | R[0]
            I.lane_sel = {x for x in R[2] if x[0] == "s"}
        elif op.startswith(("v_permlane32_swap", "v_permlane16_swap", "v_swap")):
            I.w = R[0] | R[1]; I.r = R[0] | R[1]
        elif op.startswith(("v_add_co", "v_sub_co", "v_subrev_co", "v_addc_co", "v_subb_co", "v_div_scale")):
            I.w = R[0] | R[1]; I.r = allr(R[2:])
        elif op.startswith(("v_fmac", "v_dot2c", "v_pk_fmac", "v_mac")):
            I.w = R[0]; I.r = allr(R)
        else:
            I.w = R[0]; I.r = allr(R[1:])
            if I.is_sdwa_dst and "UNUSED_PRESERVE" in mods: I.r |= R[0]
            if I.is_dpp: I.r |= R[0]
        if op.startswith("v_cndmask") and len(ops) == 3: I.r |= {("s", "vcc")}
        I.sgpr_const_r = {x for x in I.r if x[0] == "s"}
    elif op.startswith("buffer_"):
        I.kind = "vmem"
        if op in ("buffer_wbl2", "buffer_inv"):
            pass
        elif "lds" in mods.split():
            I.is_lds_dma = True
            I.r = allr(R) | {("s", "m0")}
        elif op.startswith("buffer_load"):
            I.w = R[0]; I.r = allr(R[1:])
        elif op.startswith("buffer_store"):
            I.r = allr(R); I.store_data = R[0]
            I.wide_store = op.endswith(("x3", "x4"))
        elif op.startswith("buffer_atomic"):
            I.r = allr(R); I.store_data = R[0]
            if "sc0" in mods.split(): I.w = R[0]
        else:
            raise ValueError("vmem? " + line)
    elif op.startswith("ds_"):
        I.kind = "ds"
        if op.startswith("ds_add_rtn"):
            I.w = R[0]; I.r = allr(R[1:])
        elif op.startswith(("ds_read", "ds_bpermute", "ds_permute", "ds_swizzle")):
            I.w = R[0]; I.r = allr(R[1:])
            if "d16" in op: I.r |= R[0]
        else:
            I.r = allr(R); I.store_data = allr(R[1:])
    elif op.startswith("s_"):
        I.kind = "salu"
        if op == "s_nop":
            I.nop = int(ops[0], 0) + 1
        elif op.startswith("s_cbranch") or op == "s_branch":
            I.target = ops[0]; I.uncond = (op == "s_branch")
        elif op == "s_endpgm":
            I.uncond = True
        elif op.startswith(("s_cmp", "s_bitcmp", "s_waitcnt", "s_barrier", "s_sleep", "s_setprio")):
            I.r = allr(R)
        elif op.startswith(("s_load", "s_memtime", "s_memrealtime", "s_getreg")):
            I.kind = "smem"; I.w = R[0]; I.r = allr(R[1:])
        else:
            I.w = R[0] if R else set(); I.r = allr(R[1:])
            if "saveexec" in op: I.w |= {("s", "exec")}
    else:
        raise ValueError("unknown instruction: " + line)
    return I

def vg(s): return {x for x in s if x[0] in "va"}
def sg(s): return {x for x in s if x[0] == "s"}

def need(p, c):
    n = 0
    if p.kind == "valu":
        pw = vg(p.w); ps = sg(p.w)
        if c.kind == "mfma" and pw & c.r: n = max(n, 2)
        if c.kind == "valu":
            if p.is_trans and not c.is_trans and pw & c.r: n = max(n, 1)
            if p.is_sdwa_dst and pw & (c.r | c.w): n = max(n, 1)
            if c.is_dpp and pw & vg(c.r): n = max(n, 2)
            if c.op.startswith(("v_readfirstlane", "v_readlane")) and pw & vg(c.r): n = max(n, 1)
            if c.op.startswith(("v_permlane32_swap", "v_permlane16_swap")) and pw & c.r: n = max(n, 2)
            if ps & c.sgpr_const_r: n = max(n, 2)
            if ps & c.lane_sel: n = max(n, 4)
            if c.op.startswith("v_div_fmas") and ("s", "vcc") in ps: n = max(n, 4)
        if c.kind == "vmem" and ps & c.r: n = max(n, 5)
        if c.kind in ("salu", "smem") and ps & c.r and not c.op.startswith("s_waitcnt"): n = max(n, 1)
    if p.kind == "valu" and p.op.startswith("v_dot"):
        pw = vg(p.w)
        if c.op == p.op:
            ab = regs_of(c.ops[1]) | regs_of(c.ops[2])
            if pw & ab: n = max(n, 3)
        elif pw & (c.r | c.w): n = max(n, 3)
    if p.kind == "mfma":
        P = p.passes
        if c.kind == "mfma":
            if p.dst & c.srcC:
                if c.srcC == p.dst and c.passes == P: n = max(n, 0)
                else: n = max(n, P + 2)
            if p.dst & (c.srcA | c.srcB): n = max(n, P + 4)
            if p.dst & c.dst and not (p.dst & c.srcC):
                if c.dst != p.dst or c.passes != P: n = max(n, P + 2)
        elif c.kind == "valu":
            if p.dst & (c.r | c.w): n = max(n, P + 4)
            if vg(p.srcC) & c.w: n = max(n, P - 1)
        elif c.kind in ("vmem", "ds"):
            if p.dst & (c.r | c.w): n = max(n, P + 4)
    if p.kind == "vmem" and p.wide_store:
        if c.kind == "valu" and p.store_data & c.w: n = max(n, 2)
        elif c.kind in ("vmem", "ds", "mfma") and p.store_data & c.w: n = max(n, 1)
    if p.kind == "salu" and ("s", "m0") in p.w and c.kind == "vmem" and c.is_lds_dma: n = max(n, 1)
    return n

MAXD = 14
def fix_hazards(lines, verbose=False):
    total = 0
    for _round in range(2000):
        ins = [parse(l) for l in lines]
        labels = {I.op: i for i, I in enumerate(ins) if I.kind == "label"}
        preds = [[] for _ in ins]
        for i, I in enumerate(ins):
            if i + 1 < len(ins) and not I.uncond: preds[i + 1].append(i)
            if I.target is not None and I.target in labels: preds[labels[I.target]].append(i)
        inserts = {}
        for i, c in enumerate(ins):
            if c.kind in ("label", "dir") or c.op == "s_nop": continue
            worst = 0; stack = [(p, 0) for p in preds[i]]; seen = {}
            while stack:
                j, d = stack.pop()
                if d >= MAXD: continue
                if seen.get(j, 99) <= d: continue
                seen[j] = d
                p = ins[j]
                if p.kind in ("label", "dir"): step = 0
                else:
                    k = need(p, c)
                    if k - d > worst: worst = k - d
                    step = p.nop if p.op == "s_nop" else 1
                for q in preds[j]: stack.append((q, d + step))
            if worst > 0: inserts[i] = worst
        if not inserts: return lines, total
        out = []
        last_fix = -100
        for i, l in enumerate(lines):
            first = i in inserts and i - last_fix > MAXD + 2
            if i in inserts: last_fix = i
            if first:
                n = inserts[i]
                if verbose: print("hazard: +%d before: %s" % (n, l))
                total += n
                while n > 0:
                    k = min(n, 16); out.append("s_nop %d" % (k - 1)); n -= k
            out.append(l)
        lines = out
    raise RuntimeError("hazard fix did not converge")

PROFILE = False
_kidx = [0]
NST = 14
def instrument(name, lines):
    k = _kidx[0]; _kidx[0] += 1
    out = ["s_memrealtime s[60:61]", "s_memtime s[64:65]", "s_mov_b32 s94, s2",
           "v_readfirstlane_b32 s95, v0", "s_waitcnt lgkmcnt(0)"]
    for i in range(1, NST+1): out += [f"s_mov_b32 s{64+2*i}, s64"]
    for l in lines:
        c = l.split(";")[0].strip()
        if l.startswith(";stamp"):
            i = int(l.split()[1]); assert 1 <= i <= NST-2; out.append(f"s_memtime s[{64+2*i}:{65+2*i}]")
        elif c == "s_endpgm": out.append(f"s_branch {name}_prof")
        else: out.append(l)
    out += [f"{name}_prof:", f"s_memtime s[{64+2*(NST-1)}:{65+2*(NST-1)}]", "s_waitcnt vmcnt(0) lgkmcnt(0)", "s_memrealtime s[62:63]", f"s_memtime s[{64+2*NST}:{65+2*NST}]",
            "s_load_dwordx2 s[4:5], s[0:1], 88", "s_waitcnt lgkmcnt(0)",
            f"s_add_u32 s8, s4, {0x8000000 + k*0x100000:#x} ;srd", "s_addc_u32 s9, s5, 0 ;srd",
            "s_mov_b32 s10, 0x100000 ;srd", "s_mov_b32 s11, 0x00020000 ;srd",
            "s_lshr_b32 s95, s95, 6", "s_and_b32 s95, s95, 15", "s_lshl_b32 s94, s94, 4", "s_add_u32 s94, s94, s95", "s_lshl_b32 s94, s94, 6",
            "s_mov_b64 exec, 1", "v_mov_b32 v1, s94", "v_mov_b32 v2, s60", "v_mov_b32 v3, s62"]
    for i in range(1, NST+1):
        out += [f"s_sub_u32 s{64+2*i}, s{64+2*i}, s64", f"v_mov_b32 v{3+i}, s{64+2*i}"]
    out += ["buffer_store_dwordx2 v[2:3], v1, s[8:11], 0 offen",
            "buffer_store_dwordx4 v[4:7], v1, s[8:11], 0 offen offset:8",
            "buffer_store_dwordx4 v[8:11], v1, s[8:11], 0 offen offset:24",
            "buffer_store_dwordx4 v[12:15], v1, s[8:11], 0 offen offset:40",
            "buffer_store_dwordx2 v[16:17], v1, s[8:11], 0 offen offset:56"]
    return out

def kernel(name, asm, vgpr, sgpr=96, lds_note=None, accum=None):
    src = list(asm.lines)
    if PROFILE:
        src = instrument(name, src + ["s_endpgm"]); sgpr = 96
    lines, n = fix_hazards(src)
    body = "\n".join(lines)
    if accum is None: accum = min(256, (vgpr + 3) // 4 * 4)
    srdregs = set()
    for l in lines:
        I = parse(l)
        if I.kind == "vmem" and I.op not in ("buffer_wbl2", "buffer_inv"):
            quad = [o for o in I.ops if o.startswith("s[")][0]
            srdregs |= regs_of(quad)
    for l in lines:
        I = parse(l)
        if I.w & srdregs and ";srd" not in l:
            raise AssertionError(f"{name}: descriptor register clobbered by: {l}")
    mv = ms = -1
    for l in lines:
        I = parse(l)
        for (k, i) in (I.w | I.r):
            if k == "v": mv = max(mv, i)
            if k == "s" and isinstance(i, int): ms = max(ms, i)
    assert mv < vgpr, f"{name}: uses v{mv} but vgpr={vgpr}"
    assert ms < sgpr, f"{name}: uses s{ms} but sgpr={sgpr}"
    txt = f""".text
.globl {name}
.p2align 8
.type {name},@function
{name}:
{body}
s_endpgm
.section .rodata,"a"
.p2align 6
.amdhsa_kernel {name}
  .amdhsa_next_free_vgpr {vgpr}
  .amdhsa_next_free_sgpr {sgpr}
  .amdhsa_accum_offset {accum}
  .amdhsa_group_segment_fixed_size 0
  .amdhsa_kernarg_size 96
  .amdhsa_user_sgpr_count 2
  .amdhsa_user_sgpr_kernarg_segment_ptr 1
  .amdhsa_system_sgpr_workgroup_id_x 1
  .amdhsa_float_denorm_mode_32 3
.end_amdhsa_kernel
"""
    return txt, dict(name=name, maxv=mv, maxs=ms, nops=n, ninstr=len(lines))
```

```python
from asmgen import *
S=2048; D=576; H=32; DH=18; F=4608
KA_X=0; KA_WQKV=8; KA_WO=16; KA_BX=24; KA_W1=32; KA_W3=40; KA_W2=48; KA_C=56; KA_WMOD=64; KA_OUT=72; KA_DBG=80; KA_WS=88
WS_MOD =0x0000000;  SZ_MOD = 6*576*4
WS_WQKV=0x0010000;  SZ_WQKV= 54*18*2048
WS_WO  =0x0200000;  SZ_WO  = 36*18*1024
WS_W13 =0x0300000;  SZ_W13S= 12*18*6144; SZ_W13=8*SZ_W13S
WS_W2  =0x0E00000;  SZ_W2S = 12*18*3072; SZ_W2 =8*SZ_W2S
WS_QA  =0x1400000;  SZ_QA  = 32*65536
WS_QB  =0x1600000;  SZ_QB  = 32*16384
WS_KV  =0x1700000;  KVH=159744; SZ_KV = 32*KVH
KV_KA=0; KV_KB=65536; KV_V=81920
WS_OM  =0x1C00000;  SZ_OM  = 32*65536
WS_OE  =0x1E00000;  SZ_OE  = 32*2048*4
WS_X1  =0x1F00000;  SZ_X1  = 2048*1152
WS_PART=0x2200000;  SZ_PARTS=2048*1152; SZ_PART=8*SZ_PARTS
WS_XN  =0x3400000;  SZ_XN = 2048*1152
WS_X1F =0x3700000;  SZ_X1F = 2048*1152
WS_STP =0x3A00000;  SZ_STP = 2048*32
WS_CNT =0x3B00000;  SZ_CNT = 128*1024
C_QB=0; C_RED=16; C_X1=64; C_W=128; C_RED3=160
SZ_X = 2048*1152

def load_ptr(a, sdst, off):
    a(f"s_load_dwordx2 s[{sdst}:{sdst+1}], s[0:1], {off}")

def srd(a, r, sptr, size, off=0):
    assert r % 4 == 0
    if off:
        a(f"s_add_u32 s{r}, s{sptr}, {off:#x} ;srd")
        a(f"s_addc_u32 s{r+1}, s{sptr+1}, 0 ;srd")
    else:
        a(f"s_mov_b32 s{r}, s{sptr} ;srd")
        a(f"s_mov_b32 s{r+1}, s{sptr+1} ;srd")
    a(f"s_mov_b32 s{r+2}, {size:#x} ;srd")
    a(f"s_mov_b32 s{r+3}, 0x00020000 ;srd")

def wave_id(a, sdst, vtmp):
    a(f"v_lshrrev_b32 v{vtmp}, 6, v0")
    a(f"v_readfirstlane_b32 s{sdst}, v{vtmp}")

def sdiv(a, sq, sn, d, srem=None, stmp=None):
    magic = (1 << 32) // d + 1
    a(f"s_mul_hi_u32 s{sq}, s{sn}, {magic:#x}")
    if srem is not None:
        a(f"s_mul_i32 s{stmp}, s{sq}, {d}")
        a(f"s_sub_u32 s{srem}, s{sn}, s{stmp}")

def bf16_round_f32(a, vdst, vsrc, vtmp=None):
    a(f"v_cvt_pk_bf16_f32 v{vdst}, v{vsrc}, v{vsrc}")
    a(f"v_and_b32 v{vdst}, 0xffff0000, v{vdst}")

def vr(b, n=4): return f"v[{b}:{b+n-1}]"
def sr(b, n=2): return f"s[{b}:{b+n-1}]"

def xsum16_32(a, v, t):
    a(f"v_mov_b32 v{t}, v{v}")
    a(f"v_permlane16_swap_b32 v{v}, v{t}")
    a(f"v_add_f32 v{v}, v{v}, v{t}")
    a(f"v_mov_b32 v{t}, v{v}")
    a(f"v_permlane32_swap_b32 v{v}, v{t}")
    a(f"v_add_f32 v{v}, v{v}, v{t}")

import struct as _st, math as _m
def f32(x): return _st.unpack("<I", _st.pack("<f", x))[0]
EPS = f32(1e-5); INV576 = f32(1.0/576)

def ln_stats(a, vx, n, vs, vq, sones):
    a(f"v_mov_b32 v{vs}, 0"); a(f"v_mov_b32 v{vq}, 0")
    for i in range(n):
        a(f"v_dot2_f32_bf16 v{vs}, v{vx+i}, s{sones}, v{vs}")
        a(f"v_dot2_f32_bf16 v{vq}, v{vx+i}, v{vx+i}, v{vq}")

def ln_finish(a, vs, vq, vrstd, vshift):
    a(f"v_mul_f32 v{vs}, {INV576:#x}, v{vs}           ; mean")
    a(f"v_mul_f32 v{vq}, {INV576:#x}, v{vq}")
    a(f"v_fma_f32 v{vq}, -v{vs}, v{vs}, v{vq}          ; var")
    a(f"v_max_f32 v{vq}, 0, v{vq}")
    a(f"v_add_f32 v{vq}, {EPS:#x}, v{vq}")
    a(f"v_rsq_f32 v{vrstd}, v{vq}")
    a(f"v_mul_f32 v{vshift}, v{vs}, v{vrstd}")
    a(f"v_sub_f32 v{vshift}, 0, v{vshift}")

def chunk_unpack(a, vx, vt):
    for q in range(4):
        a(f"v_lshlrev_b32 v{vt+2*q}, 16, v{vx+q}")
        a(f"v_and_b32 v{vt+2*q+1}, 0xffff0000, v{vx+q}")
def chunk_norm(a, vt, vrs):
    for q in range(4):
        a(f"v_pk_fma_f32 {vr(vt+2*q,2)}, {vr(vt+2*q,2)}, {vr(vrs,2)}, {vr(vrs+2,2)}")
def chunk_mod(a, vt, vc, vsft):
    for q in range(4):
        a(f"v_pk_fma_f32 {vr(vt+2*q,2)}, {vr(vt+2*q,2)}, {vr(vc+2*q,2)}, {vr(vsft+2*q,2)}")
def chunk_pack(a, vt, vout):
    for q in range(4):
        a(f"v_cvt_pk_bf16_f32 v{vout+q}, v{vt+2*q}, v{vt+2*q+1}")

import os as _os
def ENV(name, default): return _os.environ.get(name, default)
def SC(name, default):
    return "sc0 sc1" if _os.environ.get(name, default) == "1" else ""

TAGS = ENV('TAGS', '1') == '1'
def any_poison(a, regs, vt):
    a(f"v_max3_u32 v{vt}, v{regs[0]}, v{regs[1]}, v{regs[2]}")
    i = 3
    while i + 1 < len(regs):
        a(f"v_max3_u32 v{vt}, v{regs[i]}, v{regs[i+1]}, v{vt}"); i += 2
    if i < len(regs): a(f"v_max_u32 v{vt}, v{regs[i]}, v{vt}")
    a(f"v_cmp_eq_u32 vcc, -1, v{vt}")
XMODE = ENV('XMODE', 'late')
NOSTATS = TAGS and XMODE not in ('stp', 'late')
```

```python
from common import *
import os
SIDE = os.environ.get('SIDE', 'k2')
NWG_MOD=18 if SIDE == 'k2' else 54; NWG_LS=54 if SIDE == 'k2' else 72; NWG_W13=0; NWG_W2=0; NWG_ONES=32; NWG_XN=64; NWG_POIS=73
B_LS=NWG_MOD; B_W13=B_LS+NWG_LS; B_W2=B_W13+NWG_W13; B_ONES=B_W2+NWG_W2; B_XN=B_ONES+NWG_ONES; B_POIS=B_XN+NWG_XN; K1_NWG=B_POIS+NWG_POIS
K1_LDS=4*9216

LOG2E=0x3fb8aa3b

def gen_mod(a, tag):
    load_ptr(a, 4, KA_WMOD); load_ptr(a, 6, KA_C); load_ptr(a, 20, KA_WS)
    a("v_and_b32 v30, 255, v0")
    a("v_and_b32 v1, 7, v30           ; cg")
    a("v_lshrrev_b32 v2, 3, v30       ; rg")
    a("s_waitcnt lgkmcnt(0)")
    srd(a, 8, 4, 576*6912); srd(a, 12, 6, 1152); srd(a, 16, 20, SZ_MOD, WS_MOD)
    a("v_lshlrev_b32 v3, 1, v30")
    a("buffer_load_ushort v4, v3, s[12:15], 0 offen")
    a("buffer_load_ushort v5, v3, s[12:15], 0 offen offset:512")
    a("buffer_load_ushort v6, v3, s[12:15], 0 offen offset:1024")
    a("v_mul_u32_u24 v7, 6912, v2")
    a("v_lshl_add_u32 v7, v1, 4, v7")
    a("s_lshl_b32 s22, s44, 7         ; n0*2")
    for i in range(18):
        r = 32 + 4*i
        a(f"buffer_load_dwordx4 {vr(r)}, v7, s[8:11], s22 offen")
        if i < 17: a(f"s_add_u32 s22, s22, {32*6912}")
    a("v_lshlrev_b32 v9, 2, v30")
    a("v_add_u32 v9, s45, v9")
    a("s_waitcnt vmcnt(18)")
    for j, v in enumerate([4, 5, 6]):
        a(f"v_lshlrev_b32 v{v}, 16, v{v}")
        a(f"v_mul_f32 v8, {LOG2E:#x}, v{v}")
        a(f"v_exp_f32 v8, -v8")
        a(f"v_add_f32 v8, 1.0, v8")
        a(f"v_rcp_f32 v8, v8")
        a(f"v_mul_f32 v8, v8, v{v}")
        bf16_round_f32(a, 8, 8)
        a(f"ds_write_b32 v9, v8 offset:{j*1024}")
    a("s_waitcnt lgkmcnt(0)")
    a("s_barrier")
    a("v_lshlrev_b32 v9, 2, v2")
    a("v_add_u32 v9, s45, v9")
    for i in range(18):
        a(f"ds_read_b32 v{10+i}, v9 offset:{i*128}")
    for j in range(8): a(f"v_mov_b32 v{104+j}, 0")
    a("s_waitcnt lgkmcnt(0)")
    for i in range(18):
        a(f"s_waitcnt vmcnt({17-i})")
        r = 32 + 4*i
        for q in range(4):
            a(f"v_lshlrev_b32 v28, 16, v{r+q}")
            a(f"v_and_b32 v29, 0xffff0000, v{r+q}")
            a(f"v_fmac_f32 v{104+2*q}, v{10+i}, v28")
            a(f"v_fmac_f32 v{105+2*q}, v{10+i}, v29")
    a("v_lshlrev_b32 v9, 8, v2")
    a("v_lshl_add_u32 v9, v1, 5, v9")
    a("v_add_u32 v9, s45, v9")
    a("ds_write_b128 v9, v[104:107] offset:4096")
    a("ds_write_b128 v9, v[108:111] offset:4112")
    a("s_waitcnt lgkmcnt(0)")
    a("s_barrier")
    a("v_cmp_gt_u32 vcc, 64, v30")
    a("s_and_saveexec_b64 s[24:25], vcc")
    lend = f"{tag}_mod_end"
    a(f"s_cbranch_execz {lend}")
    a("v_lshlrev_b32 v9, 2, v30")
    a("v_add_u32 v3, s45, v9")
    for i in range(32):
        a(f"ds_read_b32 v{32+i}, v3 offset:{4096+i*256}")
    a("s_waitcnt lgkmcnt(0)")
    for st in [16, 8, 4, 2, 1]:
        for i in range(st):
            a(f"v_add_f32 v{32+i}, v{32+i}, v{32+i+st}")
    bf16_round_f32(a, 32, 32)
    sdiv(a, 22, 44, 9)
    a("s_cmp_eq_u32 s22, 1")
    a("s_cselect_b32 s23, 1, 0")
    a("s_cmp_eq_u32 s22, 4")
    a("s_cselect_b32 s23, 1, s23")
    lskip = f"{tag}_noone"
    a("s_cmp_eq_u32 s23, 0")
    a(f"s_cbranch_scc1 {lskip}")
    a("v_add_f32 v32, 1.0, v32")
    bf16_round_f32(a, 32, 32)
    a.label(lskip)
    a("s_lshl_b32 s22, s44, 8")
    a("buffer_store_dword v32, v9, s[16:19], s22 offen")
    a.label(lend)
    a("s_endpgm")

def gather(a, addr):
    for u in range(9):
        for j in range(8):
            a(f"ds_read_u16 v{72+j}, {addr(u, j)}")
        a("s_waitcnt lgkmcnt(0)")
        for jp in range(4):
            a(f"v_lshl_or_b32 v{32+4*u+jp}, v{72+2*jp+1}, 16, v{72+2*jp}")

def gen_ldsshuf(a, tag, do_qkv, do_wo):
    load_ptr(a, 4, KA_WQKV); load_ptr(a, 6, KA_WO); load_ptr(a, 20, KA_WS)
    a("v_and_b32 v1, 63, v0           ; lane")
    a("s_mul_i32 s24, s22, 9216")
    for i in range(9):
        a(f"v_add_u32 v2, {i*64}, v1")
        a(f"v_mul_u32_u24 v{10+i}, 3641, v2")
        a(f"v_lshrrev_b32 v{10+i}, 16, v{10+i}      ; row")
        a(f"v_mul_u32_u24 v3, 18, v{10+i}")
        a(f"v_sub_u32 v{20+i}, v2, v3              ; cc")
    a("v_and_b32 v4, 15, v1           ; m")
    a("v_lshrrev_b32 v5, 4, v1        ; g")
    a("v_lshlrev_b32 v6, 4, v1        ; lane*16")
    a("v_add_u32 v7, s24, v6")
    a("v_mul_u32_u24 v8, 2304, v5     ; g*8*288")
    a("v_add_u32 v8, s24, v8")
    a("s_waitcnt lgkmcnt(0)")
    if do_qkv: shuf_qkv(a)
    if do_wo: shuf_wo(a, tag)

def shuf_qkv(a):
    srd(a, 8, 4, 576*3456); srd(a, 12, 20, SZ_WQKV, WS_WQKV)
    sdiv(a, 25, 23, 12, 26, 27)
    a("s_lshr_b32 s27, s26, 2         ; sec")
    a("s_and_b32 s28, s26, 3          ; oct")
    a(f"s_mul_i32 s29, s25, {32*3456}")
    a("s_mul_i32 s30, s27, 1152")
    a("s_add_u32 s29, s29, s30")
    a("s_mul_i32 s30, s28, 288")
    a("s_add_u32 s29, s29, s30        ; soffset")
    for i in range(9):
        a(f"v_mul_u32_u24 v2, 3456, v{10+i}")
        a(f"v_lshl_add_u32 v2, v{20+i}, 4, v2")
        a(f"buffer_load_dwordx4 {vr(32+4*i)}, v2, s[8:11], s29 offen")
    for i in range(9):
        a(f"s_waitcnt vmcnt({8-i})")
        a(f"ds_write_b128 v7, {vr(32+4*i)} offset:{i*1024}")
    a("v_lshl_add_u32 v2, v4, 1, v8   ; main: + m*2")
    a("v_lshrrev_b32 v3, 1, v4")
    a("v_mul_u32_u24 v3, 36, v3")
    a("v_and_b32 v9, 1, v4")
    a("v_lshl_add_u32 v3, v9, 1, v3")
    a("v_add_u32 v3, 32, v3")
    a("v_add_u32 v3, v3, v8           ; ext")
    a("s_waitcnt lgkmcnt(0)")
    gather(a, lambda u, j: (f"v2 offset:{j*288 + 36*u}" if u < 8 else f"v3 offset:{j*288}"))
    a("s_lshl_b32 s30, s27, 4")
    a("s_lshl_b32 s31, s28, 2")
    a("s_add_u32 s30, s30, s31")
    a("s_mul_i32 s30, s30, 18")
    a("s_add_u32 s30, s30, s25")
    a("s_lshl_b32 s30, s30, 11        ; (tau*18+t)*2048")
    a("s_lshl_b32 s31, s27, 1")
    a("s_lshr_b32 s33, s28, 1")
    a("s_add_u32 s31, s31, s33")
    a("s_add_u32 s31, s31, 48")
    a("s_mul_i32 s31, s31, 18")
    a("s_add_u32 s31, s31, s25")
    a("s_lshl_b32 s31, s31, 11")
    a("s_and_b32 s33, s28, 1")
    a("s_lshl_b32 s33, s33, 10")
    a("s_add_u32 s31, s31, s33")
    a("s_waitcnt lgkmcnt(0)")
    for u in range(8):
        a(f"s_add_u32 s33, s30, {(u>>1)*18*2048 + (u&1)*1024}")
        a(f"buffer_store_dwordx4 {vr(32+4*u)}, v6, s[12:15], s33 offen " + SC("K1SC", "1"))
    a(f"buffer_store_dwordx4 {vr(64)}, v6, s[12:15], s31 offen " + SC("K1SC", "1"))
    a("s_endpgm")

def shuf_wo(a, tag):
    srd(a, 8, 6, 576*1152); srd(a, 12, 20, SZ_WO, WS_WO)
    a("s_lshr_b32 s25, s23, 2         ; t")
    a("s_and_b32 s28, s23, 3          ; ng")
    a("s_mul_i32 s29, s28, 288")
    lext = f"{tag}_wo_ext"; lj = f"{tag}_wo_j"
    a("s_cmp_ge_u32 s25, 16")
    a(f"s_cbranch_scc1 {lext}")
    for i in range(9):
        a(f"v_lshrrev_b32 v2, 4, v{10+i}")
        a(f"v_mul_u32_u24 v2, 18, v2")
        a(f"v_and_b32 v3, 15, v{10+i}")
        a(f"v_add_u32 v{10+i}, v2, v3")
    a("s_mul_i32 s30, s25, 36         ; 18*2t")
    a(f"s_branch {lj}")
    a.label(lext)
    for i in range(9):
        a(f"v_lshrrev_b32 v2, 1, v{10+i}")
        a(f"v_mul_u32_u24 v2, 18, v2")
        a(f"v_and_b32 v3, 1, v{10+i}")
        a(f"v_add_u32 v{10+i}, v2, v3")
    a("s_sub_u32 s30, s25, 16")
    a("s_mul_i32 s30, s30, 288        ; 18*16e")
    a("s_add_u32 s30, s30, 16")
    a.label(lj)
    a("s_mul_i32 s30, s30, 1152")
    a("s_add_u32 s29, s29, s30")
    for i in range(9):
        a(f"v_mul_u32_u24 v2, 1152, v{10+i}")
        a(f"v_lshl_add_u32 v2, v{20+i}, 4, v2")
        a(f"buffer_load_dwordx4 {vr(32+4*i)}, v2, s[8:11], s29 offen")
    for i in range(9):
        a(f"s_waitcnt vmcnt({8-i})")
        a(f"ds_write_b128 v7, {vr(32+4*i)} offset:{i*1024}")
    a("v_lshl_add_u32 v2, v4, 1, v8")
    a("s_waitcnt lgkmcnt(0)")
    gather(a, lambda u, j: f"v2 offset:{j*288 + 32*u}")
    a("s_mul_i32 s30, s28, 162        ; ng*9*18")
    a("s_add_u32 s30, s30, s25")
    a("s_lshl_b32 s30, s30, 10")
    a("s_waitcnt lgkmcnt(0)")
    for u in range(9):
        a(f"s_add_u32 s33, s30, {u*18*1024}")
        a(f"buffer_store_dwordx4 {vr(32+4*u)}, v6, s[12:15], s33 offen " + SC("K1SC", "1"))
    a("s_endpgm")

def perm_consts(a):
    a("s_mov_b32 s40, 0x05040100")
    a("s_mov_b32 s41, 0x07060302")

def w13_task(a, s_id, vb, wt=''):
    sdiv(a, 25, s_id, 648, 26, 27)
    sdiv(a, 27, 26, 18, 28, 29)
    a(f"s_mul_i32 s29, s28, {32*9216}")
    a("s_lshl_b32 s30, s27, 8")
    a("s_add_u32 s29, s29, s30        ; soffset")
    l3 = a.newlabel("w3"); lj = a.newlabel("w13j")
    vin = vb+4; vout = vb+36
    a("s_cmp_eq_u32 s25, 1")
    a(f"s_cbranch_scc1 {l3}")
    for j in range(8):
        a(f"buffer_load_dwordx4 {vr(vin+4*j)}, v{vb+1}, s[8:11], s29 offen")
        if j < 7: a("s_add_u32 s29, s29, 9216")
    a(f"s_branch {lj}")
    a.label(l3)
    for j in range(8):
        a(f"buffer_load_dwordx4 {vr(vin+4*j)}, v{vb+1}, s[12:15], s29 offen")
        if j < 7: a("s_add_u32 s29, s29, 9216")
    a.label(lj)
    sdiv(a, 30, 27, 3, 31, 33)
    a("s_mul_i32 s30, s30, 110592")
    a("s_mul_i32 s33, s28, 6144")
    a("s_add_u32 s30, s30, s33")
    a("s_lshl_b32 s31, s31, 1")
    a("s_add_u32 s31, s31, s25")
    a("s_lshl_b32 s31, s31, 10")
    a("s_add_u32 s30, s30, s31")
    a("s_waitcnt vmcnt(0)")
    for i in range(8):
        for jp in range(4):
            sel = "s41" if i & 1 else "s40"
            a(f"v_perm_b32 v{vout+4*i+jp}, v{vin+4*(2*jp+1)+(i>>1)}, v{vin+4*(2*jp)+(i>>1)}, {sel}")
        a(f"buffer_store_dwordx4 {vr(vout+4*i)}, v{vb}, s[16:19], s30 offen {wt}")
        if i < 7: a(f"s_add_u32 s30, s30, {SZ_W13S}")

def w2_task(a, s_id, vb, wt='', srd_in=8, srd_out=16):
    sdiv(a, 25, s_id, 108, 26, 27)
    sdiv(a, 27, 26, 6, 28, 29)
    a("s_lshl_b32 s29, s27, 8")
    a("s_add_u32 s29, s29, s25")
    a("s_mul_i32 s29, s29, 1152")
    a("s_mul_i32 s30, s28, 192")
    a("s_add_u32 s29, s29, s30")
    vin = vb+4; vout = vb+36
    for v in range(2):
        for j in range(4):
            a(f"s_add_u32 s30, s29, {(128*v+8*j)*1152}")
            a(f"buffer_load_dwordx3 {vr(vin+4*(4*v+j),3)}, v{vb+2}, s[{srd_in}:{srd_in+3}], s30 offen")
    a(f"s_mul_i32 s30, s25, {SZ_W2S}")
    a("s_mul_i32 s31, s28, 110592")
    a("s_add_u32 s30, s30, s31")
    a("s_mul_i32 s31, s27, 3072")
    a("s_add_u32 s30, s30, s31")
    a("s_waitcnt vmcnt(0)")
    for i in range(6):
        for v in range(2):
            for jj in range(2):
                sel = "s41" if i & 1 else "s40"
                a(f"v_perm_b32 v{vout+4*i+2*v+jj}, v{vin+4*(4*v+2*jj+1)+(i>>1)}, v{vin+4*(4*v+2*jj)+(i>>1)}, {sel}")
        a(f"s_add_u32 s31, s30, {(i//3)*55296 + (i%3)*1024}")
        a(f"buffer_store_dwordx4 {vr(vout+4*i)}, v{vb}, s[{srd_out}:{srd_out+3}], s31 offen {wt}")

def shuffle_lane_setup(a, vb):
    a(f"v_and_b32 v{vb+3}, 63, v0")
    a(f"v_lshlrev_b32 v{vb}, 4, v{vb+3}          ; lane*16")
    a(f"v_lshrrev_b32 v{vb+1}, 4, v{vb+3}        ; g")
    a(f"v_and_b32 v{vb+3}, 15, v{vb+3}           ; m")
    a(f"v_mul_u32_u24 v{vb+2}, {32*1152}, v{vb+1}")
    a(f"v_mad_u32_u24 v{vb+2}, v{vb+3}, 12, v{vb+2}   ; w2 voffset")
    a(f"v_mul_u32_u24 v{vb+1}, {8*9216}, v{vb+1}")
    a(f"v_lshl_add_u32 v{vb+1}, v{vb+3}, 4, v{vb+1}   ; w13 voffset")

def gen_w13(a):
    load_ptr(a, 4, KA_W1); load_ptr(a, 6, KA_W3); load_ptr(a, 20, KA_WS)
    wave_id(a, 22, 1)
    a(f"s_sub_u32 s23, s2, {B_W13}")
    a("s_lshl_b32 s23, s23, 2")
    a("s_add_u32 s23, s23, s22")
    shuffle_lane_setup(a, 4)
    perm_consts(a)
    a("s_waitcnt lgkmcnt(0)")
    srd(a, 8, 4, 576*9216); srd(a, 12, 6, 576*9216); srd(a, 16, 20, SZ_W13, WS_W13)
    w13_task(a, 23, 4)
    a("s_endpgm")

def gen_w2(a):
    load_ptr(a, 4, KA_W2); load_ptr(a, 20, KA_WS)
    wave_id(a, 22, 1)
    a(f"s_sub_u32 s23, s2, {B_W2}")
    a("s_lshl_b32 s23, s23, 2")
    a("s_add_u32 s23, s23, s22")
    shuffle_lane_setup(a, 4)
    perm_consts(a)
    a("s_waitcnt lgkmcnt(0)")
    srd(a, 8, 4, 4608*1152); srd(a, 16, 20, SZ_W2, WS_W2)
    w2_task(a, 23, 4)
    a("s_endpgm")

def gen_ones(a):
    load_ptr(a, 20, KA_WS)
    a(f"s_sub_u32 s23, s2, {B_ONES}")
    a(f"s_mul_i32 s23, s23, {KVH}")
    a(f"s_add_u32 s23, s23, {KV_V+18*16}")
    a("v_mul_u32_u24 v1, 304, v0")
    for i in range(4): a(f"v_mov_b32 v{4+i}, 0x3f803f80")
    a("s_waitcnt lgkmcnt(0)")
    srd(a, 8, 20, SZ_KV, WS_KV)
    a("buffer_store_dwordx4 v[4:7], v1, s[8:11], s23 offen")
    a(f"s_cmp_lg_u32 s2, {B_ONES}\ns_cbranch_scc1 k1_ones_end")
    srd(a, 12, 20, SZ_CNT, WS_CNT)
    a("v_lshlrev_b32 v1, 9, v0")
    a("v_mov_b32 v4, 0")
    a("buffer_store_dword v4, v1, s[12:15], 0 offen sc0 sc1")
    a.label("k1_ones_end")
    a("s_endpgm")

def gen_xn(a):
    load_ptr(a, 4, KA_X); load_ptr(a, 20, KA_WS)
    wave_id(a, 22, 1)
    a("v_and_b32 v1, 63, v0")
    a("v_and_b32 v2, 15, v1           ; tok")
    a("v_lshrrev_b32 v3, 4, v1        ; g")
    a("v_lshlrev_b32 v4, 4, v1        ; lane*16")
    a(f"s_sub_u32 s23, s2, {B_XN}")
    a("s_lshr_b32 s26, s22, 1         ; tbl")
    a("s_and_b32 s27, s22, 1          ; half")
    a("v_mul_u32_u24 v5, 1152, v2")
    a("v_lshl_add_u32 v5, v3, 4, v5")
    a(f"s_mul_i32 s28, s23, {32*1152}")
    a(f"s_mul_i32 s29, s26, {16*1152}")
    a("s_add_u32 s28, s28, s29")
    a("s_mul_i32 s29, s27, 576")
    a("s_add_u32 s28, s28, s29")
    a("s_waitcnt lgkmcnt(0)")
    srd(a, 8, 4, SZ_X); srd(a, 12, 20, SZ_XN, WS_XN)
    VX=16; VS=56; VQ=57; VT=58; RS=60; TT=64; VO=72
    for i in range(9):
        a(f"buffer_load_dwordx4 {vr(VX+4*i)}, v5, s[8:11], s28 offen offset:{i*64}")
    a("s_mov_b32 s30, 0x3f803f80")
    a("s_waitcnt vmcnt(0)")
    ln_stats(a, VX, 36, VS, VQ, 30)
    xsum16_32(a, VS, VT); xsum16_32(a, VQ, VT)
    a("s_lshl_b32 s28, s22, 7")
    a("v_lshlrev_b32 v6, 3, v2")
    a("v_add_u32 v7, s28, v6")
    a(f"ds_write_b64 v7, {vr(VS,2)}")
    a("s_waitcnt lgkmcnt(0)")
    a("s_barrier")
    a("s_xor_b32 s28, s22, 1")
    a("s_lshl_b32 s28, s28, 7")
    a("v_add_u32 v7, s28, v6")
    a(f"ds_read_b64 {vr(VT,2)}, v7")
    a("s_waitcnt lgkmcnt(0)")
    a(f"v_add_f32 v{VS}, v{VS}, v{VT}")
    a(f"v_add_f32 v{VQ}, v{VQ}, v{VT+1}")
    ln_finish(a, VS, VQ, RS, RS+2)
    a(f"v_mov_b32 v{RS+1}, v{RS}")
    a(f"v_mov_b32 v{RS+3}, v{RS+2}")
    a("s_lshr_b32 s28, s23, 1")
    a("s_mul_i32 s28, s28, 73728")
    a("s_and_b32 s29, s23, 1")
    a("s_lshl_b32 s29, s29, 1")
    a("s_add_u32 s29, s29, s26")
    a("s_lshl_b32 s29, s29, 10")
    a("s_add_u32 s28, s28, s29")
    a(f"s_mul_i32 s29, s27, {9*4096}")
    a("s_add_u32 s28, s28, s29")
    for i in range(9):
        o = VO + 4*(i & 1)
        chunk_unpack(a, VX+4*i, TT); chunk_norm(a, TT, RS); chunk_pack(a, TT, o)
        a(f"buffer_store_dwordx4 {vr(o)}, v4, s[12:15], s28 offen " + SC("K1SC", "1"))
        if i < 8: a("s_add_u32 s28, s28, 4096")
    a("s_endpgm")

def gen_poison(a):
    load_ptr(a, 20, KA_WS)
    a(f"s_sub_u32 s23, s2, {B_POIS}")
    a("v_lshlrev_b32 v1, 4, v0")
    for i in range(4): a(f"v_mov_b32 v{4+i}, -1")
    a("s_waitcnt lgkmcnt(0)")
    srd(a, 8, 20, SZ_OM + SZ_OE, WS_OM); srd(a, 12, 20, SZ_X1F, WS_X1F); srd(a, 16, 20, SZ_STP, WS_STP)
    assert WS_OE == WS_OM + SZ_OM and SZ_OM + SZ_OE == 36*65536 and SZ_X1F == 36*65536 and SZ_STP == 65536
    for tag, q, lo, nxt in [("a", 8, 0, 36), ("b", 12, 36, 72), ("c", 16, 72, 73)]:
        a(f"s_cmp_ge_u32 s23, {nxt}\ns_cbranch_scc1 k1_pois_{tag}")
        a(f"s_sub_u32 s24, s23, {lo}")
        a("s_lshl_b32 s24, s24, 16")
        for i in range(16):
            a(f"buffer_store_dwordx4 v[4:7], v1, s[{q}:{q+3}], s24 offen sc0 sc1")
            if i < 15: a("s_add_u32 s24, s24, 4096")
        a("s_endpgm")
        a.label(f"k1_pois_{tag}")
    a("s_endpgm")

def gen_k1():
    a = Asm()
    a(f"s_cmp_lt_u32 s2, {B_LS}\ns_cbranch_scc1 k1_mod")
    a(f"s_cmp_lt_u32 s2, {B_W13}\ns_cbranch_scc1 k1_ls")
    a(f"s_cmp_lt_u32 s2, {B_XN}\ns_cbranch_scc1 k1_ones")
    a(f"s_cmp_lt_u32 s2, {B_POIS}\ns_cbranch_scc1 k1_xn")
    a(f"s_cmp_lt_u32 s2, {K1_NWG}\ns_cbranch_scc1 k1_pois")
    a("s_endpgm")
    a.label("k1_mod")
    a("s_mov_b32 s44, s2\ns_mov_b32 s45, 0")
    gen_mod(a, "k1")
    a.label("k1_ls")
    wave_id(a, 22, 1)
    a(f"s_sub_u32 s23, s2, {B_LS}")
    a("s_lshl_b32 s23, s23, 2")
    a("s_add_u32 s23, s23, s22        ; task")
    if SIDE == 'k2':
        gen_ldsshuf(a, "k1", True, False)
    else:
        a("s_cmp_ge_u32 s23, 216\ns_cbranch_scc1 k1_lswo")
        gen_ldsshuf(a, "k1", True, False)
        a.label("k1_lswo")
        a("s_sub_u32 s23, s23, 216")
        gen_ldsshuf(a, "k1b", False, True)
    a.label("k1_ones"); gen_ones(a)
    a.label("k1_xn"); gen_xn(a)
    a.label("k1_pois"); gen_poison(a)
    return kernel("k1_prep_kernel", a, vgpr=112, sgpr=64), (K1_NWG, 256, K1_LDS)


def w13_load(a, tag, s_id, vb, vin, sdst):
    sdiv(a, 25, s_id, 648, 26, 27)
    sdiv(a, 27, 26, 18, 28, 29)
    a(f"s_mul_i32 s29, s28, {32*9216}")
    a("s_lshl_b32 s30, s27, 8")
    a("s_add_u32 s29, s29, s30        ; soffset")
    a(f"s_cmp_eq_u32 s25, 1\ns_cbranch_scc1 {tag}_w3")
    for j in range(8):
        a(f"buffer_load_dwordx4 {vr(vin+4*j)}, v{vb+1}, s[8:11], s29 offen")
        if j < 7: a("s_add_u32 s29, s29, 9216")
    a(f"s_branch {tag}_j")
    a.label(f"{tag}_w3")
    for j in range(8):
        a(f"buffer_load_dwordx4 {vr(vin+4*j)}, v{vb+1}, s[12:15], s29 offen")
        if j < 7: a("s_add_u32 s29, s29, 9216")
    a.label(f"{tag}_j")
    sdiv(a, 30, 27, 3, 31, 33)
    a("s_mul_i32 s30, s30, 110592")
    a("s_mul_i32 s33, s28, 6144")
    a("s_add_u32 s30, s30, s33")
    a("s_lshl_b32 s31, s31, 1")
    a("s_add_u32 s31, s31, s25")
    a("s_lshl_b32 s31, s31, 10")
    a(f"s_add_u32 s{sdst}, s30, s31")
def w13_finish(a, vb, vin, vout, sdst):
    for i in range(8):
        for jp in range(4):
            sel = "s41" if i & 1 else "s40"
            a(f"v_perm_b32 v{vout+4*i+jp}, v{vin+4*(2*jp+1)+(i>>1)}, v{vin+4*(2*jp)+(i>>1)}, {sel}")
        a(f"buffer_store_dwordx4 {vr(vout+4*i)}, v{vb}, s[16:19], s{sdst} offen sc0 sc1")
        if i < 7: a(f"s_add_u32 s{sdst}, s{sdst}, {SZ_W13S}")
def w2_load(a, s_id, vb, vin, sdst):
    sdiv(a, 25, s_id, 108, 26, 27)
    sdiv(a, 27, 26, 6, 28, 29)
    a("s_lshl_b32 s29, s27, 8")
    a("s_add_u32 s29, s29, s25")
    a("s_mul_i32 s29, s29, 1152")
    a("s_mul_i32 s30, s28, 192")
    a("s_add_u32 s29, s29, s30")
    for v in range(2):
        for j in range(4):
            a(f"s_add_u32 s30, s29, {(128*v+8*j)*1152}")
            a(f"buffer_load_dwordx3 {vr(vin+4*(4*v+j),3)}, v{vb+2}, s[44:47], s30 offen")
    a(f"s_mul_i32 s30, s25, {SZ_W2S}")
    a("s_mul_i32 s31, s28, 110592")
    a("s_add_u32 s30, s30, s31")
    a("s_mul_i32 s31, s27, 3072")
    a(f"s_add_u32 s{sdst}, s30, s31")
def w2_finish(a, vb, vin, vout, sdst):
    for i in range(6):
        for v in range(2):
            for jj in range(2):
                sel = "s41" if i & 1 else "s40"
                a(f"v_perm_b32 v{vout+4*i+2*v+jj}, v{vin+4*(4*v+2*jj+1)+(i>>1)}, v{vin+4*(4*v+2*jj)+(i>>1)}, {sel}")
        a(f"s_add_u32 s31, s{sdst}, {(i//3)*55296 + (i%3)*1024}")
        a(f"buffer_store_dwordx4 {vr(vout+4*i)}, v{vb}, s[48:51], s31 offen sc0 sc1")
```

```python
from common import *
from k1 import w13_load, w13_finish, w2_load, w2_finish, shuffle_lane_setup, perm_consts
from k4 import oproj
import k5 as _k5
K3_LDS = KVH + 64
L3_CNT = KVH
UN = 4
import os
MERGE4 = os.environ.get('MERGE4', '1') == '1'
MERGE5 = MERGE4 and os.environ.get('MERGE5', '1') == '1'
OMSC = 'sc0 sc1' if (MERGE4 or os.environ.get('OMSC', '0') == '1') else ''
ST1 = 16

def gen_k3():
    a = Asm()
    a("s_cmp_ge_u32 s2, 256\ns_cbranch_scc1 k3_exit")
    load_ptr(a, 20, KA_WS)
    wave_id(a, 22, 1)
    a("s_cmp_ge_u32 s22, 8\ns_cbranch_scc1 k3_helper")
    VL=1; VL16=2; VQI=3; VHH=4
    a(f"v_and_b32 v{VL}, 63, v0")
    a(f"v_lshlrev_b32 v{VL16}, 4, v{VL}")
    a(f"v_and_b32 v{VQI}, 31, v{VL}")
    a(f"v_lshrrev_b32 v{VHH}, 5, v{VL}")
    a("s_and_b32 s23, s2, 31          ; head")
    a("s_lshr_b32 s24, s2, 5          ; qb")
    a("s_waitcnt lgkmcnt(0)")
    srd(a, 8, 20, SZ_KV, WS_KV); srd(a, 12, 20, SZ_QA, WS_QA); srd(a, 16, 20, SZ_QB, WS_QB)
    VQA=8; VQB=12
    VS=[16, 32]
    VP=48
    VO=56
    VKA=[72, 76]; VKB=[80, 82]; VV=[84, 92]
    AKA=100; AKB=101; AV=102; VT=104
    a("s_lshl_b32 s25, s24, 3")
    a("s_add_u32 s25, s25, s22")
    a("s_lshl_b32 s26, s23, 16")
    a("s_lshl_b32 s27, s25, 10")
    a("s_add_u32 s26, s26, s27")
    a(f"buffer_load_dwordx4 {vr(VQA)}, v{VL16}, s[12:15], s26 offen")
    a("s_lshl_b32 s26, s23, 14")
    a("s_lshl_b32 s27, s25, 8")
    a("s_add_u32 s26, s26, s27")
    a(f"v_lshlrev_b32 v5, 3, v{VQI}")
    a(f"buffer_load_dwordx2 {vr(VQB,2)}, v5, s[16:19], s26 offen")
    a(f"s_mul_i32 s28, s23, {KVH}")
    def dma(off_expr_sgpr, vl=VL16, q=8):
        a(f"s_mov_b32 m0, s{off_expr_sgpr}")
        a(f"s_add_u32 s30, s28, s{off_expr_sgpr}")
        a(f"buffer_load_dwordx4 v{vl}, s[{q}:{q+3}], s30 offen lds")
    def chunks(base, first, count):
        n = (count + 7)//8
        for i in range(n):
            a(f"s_add_u32 s29, s22, {8*i}")
            if 8*i + 7 >= count: a(f"s_min_u32 s29, s29, {count-1}")
            a(f"s_lshl_b32 s29, s29, 10")
            a(f"s_add_u32 s29, s29, {base + first*1024}")
            dma(29)
        return n
    assert (ST1*1216) % 1024 == 0
    n1 = chunks(KV_KA, 0, ST1) + chunks(KV_KB, 0, ST1//4) + chunks(KV_V, 0, ST1*1216//1024)
    nKA2 = 64-ST1; nKB2 = (64-ST1)//4; nV2 = (64-ST1)*1216//1024
    def dma2(sj, vl, q):
        a(f"s_min_u32 s29, s{sj}, {nKA2+nKB2+nV2-1}")
        a(f"s_cmp_ge_u32 s29, {nKA2}")
        a(f"s_cselect_b32 s31, {ST1//4}, 0")
        a(f"s_add_u32 s31, s31, {ST1}")
        a(f"s_cmp_ge_u32 s29, {nKA2+nKB2}")
        a(f"s_cselect_b32 s30, {ST1*1216//1024}, 0")
        a(f"s_add_u32 s29, s29, s31")
        a(f"s_add_u32 s29, s29, s30")
        a(f"s_lshl_b32 s29, s29, 10")
        dma(29, vl, q)
    n2 = 0
    a(f"v_mov_b32 v6, {L3_CNT}")
    a(f"v_mov_b32 v7, 0")
    a(f"ds_write_b32 v6, v7")
    a(f"ds_write_b32 v6, v7 offset:4")
    a(f"ds_write_b32 v6, v7 offset:8")
    a(f"ds_write_b32 v6, v7 offset:12")
    a(f"v_mov_b32 v{AKA}, v{VL16}")
    a(f"v_lshlrev_b32 v{AKB}, 3, v{VQI}")
    a(f"v_add_u32 v{AKB}, {KV_KB}, v{AKB}")
    a(f"v_min_u32 v5, 18, v{VQI}")
    a(f"v_cmp_lt_u32 vcc, 19, v{VQI}")
    a(f"v_cndmask_b32 v5, v5, 0, vcc")
    a(f"v_mov_b32 v6, 4")
    a(f"v_cmp_lt_u32 vcc, 27, v{VQI}")
    a(f"v_cndmask_b32 v5, v5, v6, vcc")
    a(f"v_lshlrev_b32 v5, 4, v5")
    a(f"v_mul_u32_u24 v6, 304, v{VHH}")
    a(f"v_add_u32 v5, v5, v6")
    a(f"v_add_u32 v{AV}, {KV_V}, v5")
    a(f"s_waitcnt vmcnt({n1+n2})")
    a(f"v_cmp_eq_u32 vcc, 0, v{VHH}")
    a(f"v_cndmask_b32 v{VQB}, 0, v{VQB}, vcc")
    a(f"v_mov_b32 v{VQB+1}, 0")
    a(f"s_waitcnt vmcnt({n2}) lgkmcnt(0)")
    a("s_barrier")
    a.stamp(1)
    a("s_mov_b32 s34, 0")

    def kread(buf, tile_off):
        a(f"ds_read_b128 {vr(VKA[buf])}, v{AKA} offset:{tile_off*1024}")
        a(f"ds_read_b64 {vr(VKB[buf],2)}, v{AKB} offset:{tile_off*256}")
    def vread(buf, tile_off):
        a(f"ds_read_b128 {vr(VV[buf])}, v{AV} offset:{tile_off*1216}")
        a(f"ds_read_b128 {vr(VV[buf]+4)}, v{AV} offset:{tile_off*1216+608}")
    def qk1(sb, kb): a(f"v_mfma_f32_32x32x16_bf16 {vr(VS[sb],16)}, {vr(VKA[kb])}, {vr(VQA)}, 0")
    def qk2(sb, kb): a(f"v_mfma_f32_32x32x8bf16_1k {vr(VS[sb],16)}, {vr(VKB[kb],2)}, {vr(VQB,2)}, {vr(VS[sb],16)}")
    def setmax(vm):
        a(f"v_mov_b32 v{VT+1}, v{vm}")
        a(f"v_permlane32_swap_b32 v{vm}, v{VT+1}")
        a(f"v_max_f32 v{vm}, v{vm}, v{VT+1}")
        a(f"v_sub_f32 v{vm}, 0, v{vm}")
        a(f"v_cvt_pk_bf16_f32 v{vm}, v{vm}, 0")
        a(f"v_and_b32 v{vm}, 0xffff, v{vm}")
        a(f"v_cmp_eq_u32 vcc, 0, v{VHH}")
        a(f"v_cndmask_b32 v{VQB+1}, 0, v{vm}, vcc")
    def tilemax(sb, vm, first):
        s = VS[sb]
        if first:
            a(f"v_max3_f32 v{vm}, v{s}, v{s+1}, v{s+2}")
            a(f"v_max_f32 v{vm}, v{vm}, v{s+3}")
            rng = range(4, 16, 2)
        else:
            rng = range(0, 16, 2)
        for i in rng: a(f"v_max3_f32 v{vm}, v{s+i}, v{s+i+1}, v{vm}")

    kread(0, 0)
    a("s_waitcnt lgkmcnt(0)")
    qk1(0, 0); qk2(0, 0)
    tilemax(0, VT, True)
    setmax(VT)

    a.label("k3_pass")
    a(f"v_mov_b32 v{AKA}, v{VL16}")
    a(f"v_lshlrev_b32 v{AKB}, 3, v{VQI}")
    a(f"v_add_u32 v{AKB}, {KV_KB}, v{AKB}")
    a(f"v_add_u32 v{AV}, {KV_V}, v5")
    for i in range(16): a(f"v_mov_b32 v{VO+i}, 0")
    for r in list(range(VV[1]+4, VV[1]+8)) + [VP+4, VP+5, VP+6, VS[1]+14, VS[1]+15]: a(f"v_mov_b32 v{r}, 0")
    kread(0, 0); kread(1, 1); vread(0, 0)
    a("s_waitcnt lgkmcnt(4)")
    qk1(0, 0); qk2(0, 0)
    kread(0, 2)
    def body(j, do_k, do_v, pend_k):
        sb = j & 1; nb = sb ^ 1
        s = VS[sb]; sp = VS[nb]
        ex = lambda i: a(f"v_exp_f32 v{s+i}, v{s+i}")
        cv = lambda i: a(f"v_cvt_pk_bf16_f32 v{VP+i}, v{s+2*i}, v{s+2*i+1}")
        a(f"s_waitcnt lgkmcnt({2 if pend_k else 0})")
        ex(0); ex(1)
        a(f"v_cvt_pk_bf16_f32 v{VP+7}, v{sp+14}, v{sp+15}")
        ex(2); ex(3)
        a(f"v_mfma_f32_32x32x16_bf16 {vr(VO,16)}, {vr(VV[nb]+4)}, {vr(VP+4)}, {vr(VO,16)}")
        if do_v: vread(nb, j+1)
        cv(0); ex(4); ex(5); cv(1); ex(6)
        if do_v: qk1(nb, nb)
        ex(7); cv(2); ex(8); ex(9); cv(3); ex(10)
        if do_v: qk2(nb, nb)
        ex(11); cv(4); ex(12); ex(13)
        a(f"v_mfma_f32_32x32x16_bf16 {vr(VO,16)}, {vr(VV[sb])}, {vr(VP)}, {vr(VO,16)}")
        cv(5); ex(14); ex(15); cv(6)
        if do_k: kread(nb, j+3)
    def tail(j):
        sb = j & 1; s = VS[sb]
        a("s_nop 0")
        a(f"v_cvt_pk_bf16_f32 v{VP+7}, v{s+14}, v{s+15}")
        a(f"v_mfma_f32_32x32x16_bf16 {vr(VO,16)}, {vr(VV[sb]+4)}, {vr(VP+4)}, {vr(VO,16)}")
    def bump(n):
        a(f"v_add_u32 v{AKA}, {n*1024}, v{AKA}")
        a(f"v_add_u32 v{AKB}, {n*256}, v{AKB}")
        a(f"v_add_u32 v{AV}, {n*1216}, v{AV}")
    n_a = (ST1-4)//UN
    a(f"s_mov_b32 s33, {n_a}")
    a.label("k3_loop1")
    for j in range(UN): body(j, True, True, True)
    bump(UN)
    a("s_sub_u32 s33, s33, 1\ns_cmp_lg_u32 s33, 0\ns_cbranch_scc1 k3_loop1")
    a("s_cmp_lg_u32 s34, 0\ns_cbranch_scc1 k3_nosync")
    a(f"v_mov_b32 v6, {L3_CNT}")
    a.label("k3_poll")
    a("ds_read_b32 v7, v6")
    a("s_waitcnt lgkmcnt(0)")
    a("v_readfirstlane_b32 s33, v7")
    a("s_cmp_ge_u32 s33, 4\ns_cbranch_scc0 k3_poll")
    a.label("k3_nosync")
    n_b = (60 - n_a*UN)//UN
    a(f"s_mov_b32 s33, {n_b}")
    a.label("k3_loop2")
    for j in range(UN): body(j, True, True, True)
    bump(UN)
    a("s_sub_u32 s33, s33, 1\ns_cmp_lg_u32 s33, 0\ns_cbranch_scc1 k3_loop2")
    body(0, True, True, True)
    body(1, False, True, True)
    body(2, False, True, False)
    body(3, False, False, False)
    tail(3)
    a.stamp(2)
    a("s_cmp_lg_u32 s34, 0\ns_cbranch_scc1 k3_final")
    a(f"v_add_f32 v{VT}, |v{VO}|, |v{VO+1}|")
    for i in range(2, 16): a(f"v_add_f32 v{VT}, v{VT}, |v{VO+i}|")
    a(f"v_mov_b32 v{VT+1}, 0x7e800000")
    a(f"v_cmp_nlt_f32 vcc, v{VT}, v{VT+1}")
    a("s_cmp_eq_u64 vcc, 0\ns_cbranch_scc1 k3_final")
    a("s_mov_b32 s34, 1")
    a(f"v_mov_b32 v{VQB+1}, 0")
    a(f"v_mov_b32 v{AKA}, v{VL16}")
    a(f"v_lshlrev_b32 v{AKB}, 3, v{VQI}")
    a(f"v_add_u32 v{AKB}, {KV_KB}, v{AKB}")
    a(f"v_mov_b32 v{VT}, 0xff800000")
    a("s_mov_b32 s33, 64")
    a.label("k3_maxloop")
    kread(0, 0)
    a("s_waitcnt lgkmcnt(0)")
    qk1(0, 0); qk2(0, 0)
    tilemax(0, VT, False)
    a(f"v_add_u32 v{AKA}, 1024, v{AKA}")
    a(f"v_add_u32 v{AKB}, 256, v{AKB}")
    a("s_sub_u32 s33, s33, 1\ns_cmp_lg_u32 s33, 0\ns_cbranch_scc1 k3_maxloop")
    setmax(VT)
    a("s_branch k3_pass")
    a.label("k3_final")
    srd(a, 8, 20, SZ_OM, WS_OM); srd(a, 12, 20, SZ_OE, WS_OE)
    a(f"v_mov_b32 v{VT}, v{VO+10}")
    a(f"v_mov_b32 v{VT+1}, v{VO+10}")
    a(f"v_permlane32_swap_b32 v{VT}, v{VT+1}")
    a(f"v_rcp_f32 v{VT}, v{VT}")
    for i in list(range(8)) + [8, 9]: a(f"v_mul_f32 v{VO+i}, v{VO+i}, v{VT}")
    a(f"v_cvt_pk_bf16_f32 v{VP}, v{VO}, v{VO+1}")
    a(f"v_cvt_pk_bf16_f32 v{VP+1}, v{VO+2}, v{VO+3}")
    a(f"v_cvt_pk_bf16_f32 v{VP+2}, v{VO+4}, v{VO+5}")
    a(f"v_cvt_pk_bf16_f32 v{VP+3}, v{VO+6}, v{VO+7}")
    a(f"v_cvt_pk_bf16_f32 v{VP+4}, v{VO+8}, v{VO+9}")
    a(f"v_permlane32_swap_b32 v{VP}, v{VP+2}")
    a(f"v_permlane32_swap_b32 v{VP+1}, v{VP+3}")
    a("s_lshl_b32 s26, s23, 16")
    a("s_lshl_b32 s27, s25, 10")
    a("s_add_u32 s26, s26, s27")
    a(f"buffer_store_dwordx4 {vr(VP)}, v{VL16}, s[8:11], s26 offen " + OMSC)
    a("s_lshl_b32 s26, s23, 13")
    a("s_lshl_b32 s27, s25, 7")
    a("s_add_u32 s26, s26, s27")
    a(f"v_lshlrev_b32 v5, 2, v{VQI}")
    a(f"v_cmp_eq_u32 vcc, 0, v{VHH}")
    a("s_and_saveexec_b64 s[36:37], vcc")
    a(f"buffer_store_dword v{VP+4}, v5, s[12:15], s26 offen " + (OMSC if MERGE4 else ""))
    if MERGE5 and TAGS:
        a("s_mov_b64 exec, s[36:37]")
        a("s_branch k3_proj")
    elif MERGE4:
        a("s_mov_b64 exec, s[36:37]")
        a("s_waitcnt vmcnt(0)")
        srd(a, 52, 20, SZ_CNT, WS_CNT)
        a("s_mov_b32 s58, 0")
        a(f"v_mov_b32 v6, {L3_CNT+4}")
        a("v_mov_b32 v7, 1")
        a("s_mov_b64 exec, 1")
        a("ds_add_rtn_u32 v8, v6, v7")
        a("s_waitcnt lgkmcnt(0)")
        a("v_readfirstlane_b32 s26, v8")
        a("s_cmp_lg_u32 s26, 7\ns_cbranch_scc1 k3_nosig")
        a("s_lshl_b32 s26, s24, 9")
        a("v_mov_b32 v6, s26")
        a("buffer_atomic_add v7, v6, s[52:55], 0 offen sc1")
        a("s_mov_b32 s58, 1")
        a.label("k3_nosig")
        a("s_mov_b64 exec, -1")
        a("s_branch k3_proj")
    else:
        a("s_endpgm")
    a.label("k3_helper")
    if ENV("HPRIO", "1") == "1": a("s_setprio 2")
    load_ptr(a, 4, KA_W1); load_ptr(a, 6, KA_W3); load_ptr(a, 42, KA_W2)
    shuffle_lane_setup(a, 4)
    perm_consts(a)
    a("s_lshl_b32 s23, s2, 2")
    a("s_add_u32 s23, s23, s22")
    a("s_sub_u32 s23, s23, 8")
    a("s_waitcnt lgkmcnt(0)")
    srd(a, 8, 4, 576*9216); srd(a, 12, 6, 576*9216); srd(a, 16, 20, SZ_W13, WS_W13)
    srd(a, 44, 42, 4608*1152); srd(a, 48, 20, SZ_W2, WS_W2); srd(a, 52, 20, SZ_KV, WS_KV)
    VLH = 4
    a("s_barrier")
    a("s_and_b32 s26, s2, 31")
    a(f"s_mul_i32 s28, s26, {KVH}")
    a("s_sub_u32 s35, s22, 8")
    a(f"s_mov_b32 s33, {-(-(nKA2+nKB2+nV2)//4)}")
    a.label("k3_hdma")
    dma2(35, VLH, 52)
    a("s_add_u32 s35, s35, 4")
    a("s_sub_u32 s33, s33, 1\ns_cmp_lg_u32 s33, 0\ns_cbranch_scc1 k3_hdma")
    VI=[8, 40]; VOUT=72; SD=[34, 35]
    w13_load(a, "k3h0", 23, 4, VI[0], SD[0])
    a("s_waitcnt vmcnt(8)")
    a(f"v_mov_b32 v110, {L3_CNT}")
    a(f"v_mov_b32 v111, 1")
    a("s_mov_b64 exec, 1")
    a("ds_add_u32 v110, v111")
    a("s_mov_b64 exec, -1")
    a("s_cmp_ge_u32 s23, 272\ns_cbranch_scc1 k3_hb")
    a("s_add_u32 s24, s23, 1024")
    w13_load(a, "k3h1", 24, 4, VI[1], SD[1])
    a("s_waitcnt vmcnt(8)")
    w13_finish(a, 4, VI[0], VOUT, SD[0])
    a("s_waitcnt vmcnt(8)")
    w13_finish(a, 4, VI[1], VOUT, SD[1])
    a("s_branch k3_hdone")
    a.label("k3_hb")
    a("s_sub_u32 s24, s23, 272")
    w2_load(a, 24, 4, VI[1], SD[1])
    a("s_waitcnt vmcnt(8)")
    w13_finish(a, 4, VI[0], VOUT, SD[0])
    a("s_cmp_ge_u32 s23, 384\ns_cbranch_scc1 k3_hc")
    a("s_add_u32 s24, s23, 480        ; 752 + gw - 272")
    w2_load(a, 24, 4, VI[0], SD[0])
    a("s_waitcnt vmcnt(16)")
    w2_finish(a, 4, VI[1], VOUT, SD[1])
    a("s_waitcnt vmcnt(6)")
    w2_finish(a, 4, VI[0], VOUT, SD[0])
    a("s_branch k3_hdone")
    a.label("k3_hc")
    a("s_waitcnt vmcnt(8)")
    w2_finish(a, 4, VI[1], VOUT, SD[1])
    a.label("k3_hdone")
    if ENV("HPRIO", "1") == "1": a("s_setprio 0")
    if MERGE5:
        a("s_waitcnt vmcnt(0)")
        srd(a, 52, 20, SZ_CNT, WS_CNT)
        a(f"v_mov_b32 v6, {L3_CNT+8}")
        a("v_mov_b32 v7, 1")
        a("s_mov_b64 exec, 1")
        a("ds_add_rtn_u32 v8, v6, v7")
        a("s_waitcnt lgkmcnt(0)")
        a("v_readfirstlane_b32 s26, v8")
        a("s_cmp_lg_u32 s26, 3\ns_cbranch_scc1 k3_hnosig")
        a("s_and_b32 s26, s2, 7")
        a(f"s_add_u32 s26, s26, {C_W}")
        a("s_lshl_b32 s26, s26, 9")
        a("v_mov_b32 v6, s26")
        a("buffer_atomic_add v7, v6, s[52:55], 0 offen sc1")
        a.label("k3_hnosig")
        a("s_mov_b64 exec, -1")
        a("s_mov_b32 s58, 0")
        a("s_cmp_eq_u32 s22, 8\ns_cbranch_scc1 k3_proj")
        a("s_barrier\ns_barrier" + ("" if NOSTATS else "\ns_barrier") + "          ; the barriers of the projection phase")
        a("s_branch k3_ffn")
    if MERGE4:
        a("s_cmp_lg_u32 s22, 8\ns_cbranch_scc1 k3_exit")
        a("s_mov_b32 s58, 0")
        a.label("k3_proj")
        a("s_and_b32 s26, s2, 31")
        a("s_lshr_b32 s56, s2, 5")
        a("s_lshr_b32 s23, s26, 3")
        a("s_and_b32 s24, s26, 7")
        a("s_lshl_b32 s27, s56, 3")
        a("s_add_u32 s24, s24, s27        ; tg")
        oproj(a, "k3p", True, chain=(L3_CNT+12 if MERGE5 else None))
    if MERGE5:
        a.label("k3_ffn")
        _k5.ffn(a, True)
    a.label("k3_exit")
    return kernel("k3_attn_kernel", a, vgpr=168 if MERGE5 else (144 if MERGE4 else 112), sgpr=64), (256, 768, K3_LDS)
```

```python
from common import *
K4_LDS = 36864
NPRE = 6
SPIN_MAX = 20000

def oproj(a, tag, merged, chain=None):
    VL=1; VTOK=2; VG=3; VL16=4
    NOSTAT = bool(merged and chain and NOSTATS)
    load_ptr(a, 4, KA_X)
    a(f"v_and_b32 v{VL}, 63, v0")
    a(f"v_and_b32 v{VTOK}, 15, v{VL}")
    a(f"v_lshrrev_b32 v{VG}, 4, v{VL}")
    a(f"v_lshlrev_b32 v{VL16}, 4, v{VL}")
    a("s_waitcnt lgkmcnt(0)")
    srd(a, 8, 20, SZ_OM, WS_OM); srd(a, 12, 20, SZ_OE, WS_OE); srd(a, 16, 20, SZ_WO, WS_WO)
    srd(a, 44, 4, SZ_X); srd(a, 48, 20, SZ_MOD, WS_MOD)
    if merged: srd(a, 52, 20, SZ_CNT, WS_CNT)
    VX=12; VW=28; VACC=100; VR=108; VGA=112; VT=116; VB=[128,136]
    OSC = (" " + ENV("OLD", "sc1")) if merged else ""
    a("s_mul_i32 s25, s23, 9")
    a("s_add_u32 s25, s25, s22        ; unit")
    a(f"s_mul_i32 s43, s25, {18*1024}")
    nw = [0]
    def wload():
        t = nw[0]; nw[0] += 1
        if t and t % 4 == 0: a("s_add_u32 s43, s43, 4096")
        a(f"buffer_load_dwordx4 {vr(VW+4*t)}, v{VL16}, s[16:19], s43 offen offset:{(t%4)*1024}")
    def epi_loads():
        a(f"v_mul_u32_u24 v6, 1152, v{VTOK}")
        a(f"v_lshl_add_u32 v6, v{VG}, 3, v6            ; tok*1152 + g*8")
        a(f"s_mul_i32 s27, s24, {32*1152}")
        a("s_lshl_b32 s26, s25, 5         ; 16u*2")
        a("s_add_u32 s27, s27, s26")
        a(f"buffer_load_dwordx2 {vr(VR,2)}, v6, s[44:47], s27 offen")
        a(f"s_add_u32 s26, s27, {16*1152}")
        a(f"buffer_load_dwordx2 {vr(VR+2,2)}, v6, s[44:47], s26 offen")
        a(f"v_lshlrev_b32 v7, 4, v{VG}")
        a("s_lshl_b32 s26, s25, 6")
        a(f"s_add_u32 s26, s26, {2*576*4}")
        a(f"buffer_load_dwordx4 {vr(VGA)}, v7, s[48:51], s26 offen")
    def xloads():
        a(f"s_cmp_eq_u32 s22, 8\ns_cbranch_scc1 {tag}_ext")
        a(f"v_lshrrev_b32 v5, 1, v{VG}")
        a(f"v_lshlrev_b32 v5, 16, v5")
        a(f"v_and_b32 v6, 1, v{VG}")
        a(f"v_lshl_add_u32 v5, v6, 9, v5")
        a(f"v_lshl_add_u32 v5, v{VTOK}, 4, v5")
        a("s_lshl_b32 s40, s22, 18        ; t0 = 2w -> head 4w -> *65536")
        a("s_lshl_b32 s26, s24, 10")
        a("s_add_u32 s40, s40, s26")
        for i in range(4):
            a(f"s_add_u32 s26, s40, {(i>>1)*2*65536 + (i&1)*256}")
            a(f"buffer_load_dwordx4 {vr(VX+4*i)}, v5, s[8:11], s26 offen{OSC}")
        a(f"s_branch {tag}_j")
        a.label(f"{tag}_ext")
        a(f"v_lshlrev_b32 v5, 15, v{VG}")
        a(f"v_lshl_add_u32 v5, v{VTOK}, 2, v5")
        a("s_lshl_b32 s40, s24, 7         ; 32 tg * 4")
        for i in range(4):
            for q in range(4):
                a(f"s_add_u32 s26, s40, {(16*(i>>1)+q)*8192 + (i&1)*64}")
                a(f"buffer_load_dword v{VX+4*i+q}, v5, s[12:15], s26 offen{OSC}")
        a.label(f"{tag}_j")
    if merged and TAGS and chain:
        for t in range(18): wload()
        epi_loads()
        a("s_barrier")
        a.stamp(3)
        a(f"s_mov_b32 s57, {SPIN_MAX}")
        a(f"v_and_b32 v9, 7, v{VL}")
        a(f"v_add_u32 v9, {C_W}, v9")
        a(f"v_lshlrev_b32 v9, 9, v9")
        a(f"v_mov_b32 v10, 32")
        a.label(f"{tag}_retry")
        a(f"s_cmp_lg_u32 s22, 1\ns_cbranch_scc1 {tag}_nocw")
        a("buffer_load_dword v10, v9, s[52:55], 0 offen sc0 sc1")
        a.label(f"{tag}_nocw")
        xloads()
        a("s_waitcnt vmcnt(0)")
        any_poison(a, list(range(VX, VX+16)), 8)
        a("s_mov_b64 s[40:41], vcc")
        a("v_cmp_gt_u32 vcc, 32, v10")
        a("s_or_b64 vcc, vcc, s[40:41]")
        a("s_sub_u32 s57, s57, 1")
        a(f"s_cmp_eq_u32 s57, 0\ns_cbranch_scc1 {tag}_got")
        a(f"s_cmp_lg_u64 vcc, 0\ns_cbranch_scc1 {tag}_retry")
        a.label(f"{tag}_got")
        a("s_lshl_b32 s26, s22, 12")
        a(f"v_add_u32 v7, s26, v{VL16}")
        for i in range(4): a(f"ds_write_b128 v7, {vr(VX+4*i)} offset:{i*1024}")
    elif merged:
        for t in range(18): wload()
        epi_loads()
        a(f"s_cmp_eq_u32 s58, 0\ns_cbranch_scc1 {tag}_nopoll")
        a(f"v_min_u32 v5, 8, v{VL}")
        a(f"v_add_u32 v6, {C_W}, v5")
        a(f"v_mov_b32 v7, s56")
        a(f"v_cmp_gt_u32 vcc, {8 if chain else 0}, v5")
        a(f"v_cndmask_b32 v5, v7, v6, vcc")
        a(f"v_lshlrev_b32 v5, 9, v5")
        a(f"s_mov_b32 s57, {SPIN_MAX}")
        a.label(f"{tag}_poll")
        a("buffer_load_dword v6, v5, s[52:55], 0 offen sc0 sc1")
        a("s_waitcnt vmcnt(0)")
        a("v_cmp_gt_u32 vcc, 32, v6")
        a("s_sub_u32 s57, s57, 1")
        a(f"s_cmp_eq_u32 s57, 0\ns_cbranch_scc1 {tag}_nopoll")
        a(f"s_cmp_lg_u64 vcc, 0\ns_cbranch_scc1 {tag}_poll")
        a.label(f"{tag}_nopoll")
        a("s_barrier")
        a.stamp(3)
        xloads()
        a("s_lshl_b32 s26, s22, 12")
        a(f"v_add_u32 v7, s26, v{VL16}")
        a("s_waitcnt vmcnt(0)")
        for i in range(4): a(f"ds_write_b128 v7, {vr(VX+4*i)} offset:{i*1024}")
    else:
        xloads()
        for t in range(NPRE): wload()
        a("s_lshl_b32 s26, s22, 12")
        a(f"v_add_u32 v7, s26, v{VL16}")
        a(f"s_waitcnt vmcnt({NPRE})")
        for i in range(4): a(f"ds_write_b128 v7, {vr(VX+4*i)} offset:{i*1024}")
        epi_loads()
    a("s_waitcnt lgkmcnt(0)")
    a("s_barrier")
    a.stamp(4)
    def xr(t):
        b = VB[t & 1]
        a(f"ds_read_b128 {vr(b)}, v{VL16} offset:{t*2048}")
        a(f"ds_read_b128 {vr(b+4)}, v{VL16} offset:{t*2048+1024}")
    xr(0)
    for t in range(18):
        if t < 17: xr(t+1)
        if merged:
            a(f"s_waitcnt lgkmcnt({2 if t < 17 else 0})")
        else:
            for _ in range(2):
                if nw[0] < 18: wload()
            issued_after = (nw[0] - 1 - t) + (3 if t < NPRE else 0)
            a(f"s_waitcnt vmcnt({issued_after}) lgkmcnt({2 if t < 17 else 0})")
        for tb in range(2):
            acc = VACC+4*tb
            a(f"v_mfma_f32_16x16x32_bf16 {vr(acc)}, {vr(VW+4*t)}, {vr(VB[t&1]+4*tb)}, {vr(acc) if t else '0'}")
    a.stamp(5)
    srd(a, 8, 20, SZ_X1F, WS_X1F); srd(a, 12, 20, SZ_STP, WS_STP)
    a(f"v_lshrrev_b32 v8, 1, v{VG}")
    a(f"v_lshlrev_b32 v8, 8, v8")
    a(f"v_lshl_add_u32 v8, v{VTOK}, 4, v8")
    a(f"v_and_b32 v9, 1, v{VG}")
    a(f"v_lshl_add_u32 v8, v9, 10, v8")
    a("s_lshr_b32 s40, s24, 1")
    a("s_mul_i32 s40, s40, 73728      ; rb")
    a("s_and_b32 s41, s24, 1")
    a("s_lshl_b32 s41, s41, 11")
    a("s_add_u32 s40, s40, s41")
    a("s_lshr_b32 s41, s25, 1")
    a("s_lshl_b32 s41, s41, 12        ; t*4096")
    a("s_add_u32 s40, s40, s41")
    a("s_and_b32 s41, s25, 1")
    a("s_lshl_b32 s41, s41, 9")
    a("s_add_u32 s40, s40, s41")
    a("s_mov_b32 s42, 0x3f803f80")
    VS = VT+4
    for tb in range(2):
        acc = VACC+4*tb; r = VR+2*tb
        a(f"v_lshlrev_b32 v{VT}, 16, v{r}")
        a(f"v_and_b32 v{VT+1}, 0xffff0000, v{r}")
        a(f"v_lshlrev_b32 v{VT+2}, 16, v{r+1}")
        a(f"v_and_b32 v{VT+3}, 0xffff0000, v{r+1}")
        for j in range(4): a(f"v_fmac_f32 v{VT+j}, v{VGA+j}, v{acc+j}")
        a(f"v_cvt_pk_bf16_f32 v{r}, v{VT}, v{VT+1}")
        a(f"v_cvt_pk_bf16_f32 v{r+1}, v{VT+2}, v{VT+3}")
        if NOSTAT: continue
        a(f"v_mov_b32 v{VS+2*tb}, 0")
        a(f"v_mov_b32 v{VS+2*tb+1}, 0")
        for q in range(2):
            a(f"v_dot2_f32_bf16 v{VS+2*tb}, v{r+q}, s42, v{VS+2*tb}")
            a(f"v_dot2_f32_bf16 v{VS+2*tb+1}, v{r+q}, v{r+q}, v{VS+2*tb+1}")
    a(f"v_permlane16_swap_b32 v{VR}, v{VR+2}")
    a(f"v_permlane16_swap_b32 v{VR+1}, v{VR+3}")
    a(f"buffer_store_dwordx4 {vr(VR)}, v8, s[8:11], s40 offen " + SC("K4SC", "1"))
    if NOSTAT: return
    for i in range(4): xsum16_32(a, VS+i, VT)
    a("s_lshl_b32 s26, s22, 8")
    a(f"v_lshlrev_b32 v9, 3, v{VTOK}")
    a(f"v_add_u32 v9, s26, v9")
    a(f"ds_write_b64 v9, {vr(VS,2)} offset:36864")
    a(f"ds_write_b64 v9, {vr(VS+2,2)} offset:{36864+128}")
    a("s_waitcnt lgkmcnt(0)")
    a("s_barrier")
    a(f"s_cmp_lg_u32 s22, 0\ns_cbranch_scc1 {tag}_done")
    a(f"v_and_b32 v9, 31, v{VL}")
    a(f"v_lshlrev_b32 v10, 3, v9")
    for w in range(9): a(f"ds_read_b64 {vr(VW+2*w,2)}, v10 offset:{36864+w*256}")
    a("s_waitcnt lgkmcnt(0)")
    for w in range(1, 9):
        a(f"v_add_f32 v{VW}, v{VW}, v{VW+2*w}")
        a(f"v_add_f32 v{VW+1}, v{VW+1}, v{VW+2*w+1}")
    a(f"v_lshlrev_b32 v9, 5, v9")
    a("s_lshl_b32 s26, s24, 10        ; 32 tokens * 32 B")
    a("s_lshl_b32 s40, s23, 3")
    a("s_add_u32 s26, s26, s40")
    a(f"v_cmp_gt_u32 vcc, 32, v{VL}")
    a("s_and_saveexec_b64 s[40:41], vcc")
    a(f"buffer_store_dwordx2 {vr(VW,2)}, v9, s[12:15], s26 offen" + (" sc0 sc1" if chain else ""))
    if chain: a("s_mov_b64 exec, s[40:41]")
    a.label(f"{tag}_done")
    if not chain:
        a("s_endpgm")
        return
    if TAGS: return
    a("s_waitcnt vmcnt(0)")
    a(f"v_mov_b32 v6, {chain}")
    a("v_mov_b32 v7, 1")
    a("s_mov_b64 exec, 1")
    a("ds_add_rtn_u32 v8, v6, v7")
    a("s_waitcnt lgkmcnt(0)")
    a("v_readfirstlane_b32 s26, v8")
    a("s_mov_b32 s58, 0")
    a(f"s_cmp_lg_u32 s26, 8\ns_cbranch_scc1 {tag}_nosig")
    a("s_lshr_b32 s26, s24, 1")
    a(f"s_add_u32 s26, s26, {C_X1}")
    a("s_lshl_b32 s26, s26, 9")
    a("v_mov_b32 v6, s26")
    a("buffer_atomic_add v7, v6, s[52:55], 0 offen sc1")
    a("s_mov_b32 s58, 1")
    a.label(f"{tag}_nosig")
    a("s_mov_b64 exec, -1")

def gen_k4():
    a = Asm()
    a("s_cmp_ge_u32 s2, 256\ns_cbranch_scc1 k4_exit")
    load_ptr(a, 20, KA_WS)
    wave_id(a, 22, 1)
    a("s_and_b32 s25, s2, 7")
    a("s_lshr_b32 s26, s2, 3")
    a("s_lshr_b32 s24, s25, 1")
    a("s_lshl_b32 s24, s24, 4")
    a("s_lshr_b32 s27, s26, 1")
    a("s_add_u32 s24, s24, s27        ; tg")
    a("s_and_b32 s23, s25, 1")
    a("s_lshl_b32 s23, s23, 1")
    a("s_and_b32 s27, s26, 1")
    a("s_add_u32 s23, s23, s27        ; ng")
    oproj(a, "k4", False)
    a.label("k4_exit")
    return kernel("k4_oproj_kernel", a, vgpr=144, sgpr=64), (256, 576, 36864+2304)
```

```python
from common import *
from k6 import reduce_loads, reduce_main
import os
MERGE6 = os.environ.get('MERGE6', '1') == '1'
L5_X=0; L5_H=73728
K5_LDS = 147456 + 64 + 1536
L5_CNT = 147456
L5_STAT = 147456 + 64
NLOG2E=0xbfb8aa3b
K5_A = int(os.environ.get('K5_A', '2'))
def gen_k5():
    a = Asm()
    a("s_cmp_ge_u32 s2, 256\ns_cbranch_scc1 k5_exit")
    load_ptr(a, 20, KA_WS)
    wave_id(a, 22, 1)
    ffn(a, False)
    return kernel("k5_ffn_kernel", a, vgpr=168, sgpr=64), (256, 768, K5_LDS)

def ffn(a, chained):
    XF = (" " + ENV("XLD", "sc1")) if chained else ""
    WF = "sc1" if chained else ENV('K5WF', '')
    VL=1; VTOK=2; VG=3; VL16=4
    a(f"v_and_b32 v{VL}, 63, v0")
    a(f"v_and_b32 v{VTOK}, 15, v{VL}")
    a(f"v_lshrrev_b32 v{VG}, 4, v{VL}")
    a(f"v_lshlrev_b32 v{VL16}, 4, v{VL}")
    A = K5_A; lgA = {1: 0, 2: 1, 4: 2, 8: 3}[A]
    a("s_and_b32 s25, s2, 7")
    a("s_lshr_b32 s26, s2, 3")
    a(f"s_and_b32 s23, s25, {8//A - 1}")
    a(f"s_lshl_b32 s23, s23, {lgA}")
    a(f"s_and_b32 s27, s26, {A-1}")
    a("s_add_u32 s23, s23, s27        ; slice")
    a(f"s_lshr_b32 s24, s25, {3-lgA}")
    a(f"s_lshl_b32 s24, s24, {5-lgA}")
    a(f"s_lshr_b32 s26, s26, {lgA}")
    a("s_add_u32 s24, s24, s26        ; rb")
    sdiv(a, 26, 22, 3, 27, 25)
    a("s_waitcnt lgkmcnt(0)")
    WBASE = WS_W13
    srd(a, 8, 20, SZ_X1F, WS_X1F); srd(a, 12, 20, 4608, WS_MOD+3*2304)
    srd(a, 16, 20, WS_W2 + SZ_W2 - WBASE, WBASE); srd(a, 44, 20, SZ_PART, WS_PART); srd(a, 48, 20, SZ_STP, WS_STP)
    VACC=8
    VW=104
    VX=152
    AX=5; AH=6
    XP=VACC
    MT=XP+24
    ST=XP+32
    a(f"s_mul_i32 s28, s27, 768")
    a(f"buffer_load_dwordx4 {vr(MT)}, v{VL16}, s[12:15], s28 offen")
    a(f"s_add_u32 s28, s28, 2304")
    a(f"buffer_load_dwordx4 {vr(MT+4)}, v{VL16}, s[12:15], s28 offen")
    a(f"s_mul_i32 s40, s23, {SZ_W13S}")
    a("s_mul_i32 s29, s22, 110592")
    a("s_add_u32 s40, s40, s29")
    a(f"s_mul_i32 s41, s23, {SZ_W2S}")
    a("s_mul_i32 s29, s22, 55296")
    a("s_add_u32 s41, s41, s29")
    a(f"s_add_u32 s41, s41, {WS_W2-WBASE:#x}")
    a(f"v_add_u32 v7, 4096, v{VL16}")
    def wload(slot, f, s):
        r = VW + 24*slot + 4*f
        if f < 4: a(f"buffer_load_dwordx4 {vr(r)}, v{VL16}, s[16:19], {s} offen offset:{f*1024} " + WF)
        else:     a(f"buffer_load_dwordx4 {vr(r)}, v7, s[16:19], {s} offen offset:{(f-4)*1024} " + WF)
    def stloads():
        a(f"s_lshl_b32 s28, s24, 6")
        a(f"s_lshl_b32 s29, s26, 4")
        a(f"s_add_u32 s28, s28, s29")
        a(f"s_lshl_b32 s28, s28, 5")
        a(f"v_lshlrev_b32 v{AX}, 5, v{VTOK}")
        a(f"buffer_load_dwordx4 {vr(ST)}, v{AX}, s[48:51], s28 offen" + XF)
        a(f"buffer_load_dwordx4 {vr(ST+4)}, v{AX}, s[48:51], s28 offen offset:16" + XF)
    def frloads():
        a("s_mul_i32 s28, s24, 73728")
        a(f"s_mul_i32 s29, s27, {6*4096}")
        a("s_add_u32 s28, s28, s29")
        a("s_lshl_b32 s29, s26, 10")
        a("s_add_u32 s28, s28, s29")
        for i in range(6):
            a(f"buffer_load_dwordx4 {vr(XP+4*i)}, v{VL16}, s[8:11], s28 offen" + XF)
            if i < 5: a("s_add_u32 s28, s28, 4096")
    def xloads():
        stloads(); frloads()
    def modstage():
        a("s_lshl_b32 s30, s22, 11")
        a(f"s_add_u32 s30, s30, {L5_H}")
        a(f"v_add_u32 v{AH}, s30, v{VL16}")
        if MERGE6:
            a(f"v_mov_b32 v{AX}, {L5_CNT}")
            a(f"v_mov_b32 v{VX}, 0")
            a(f"ds_write_b32 v{AX}, v{VX}")
    EARLYW = chained
    if EARLYW and TAGS and XMODE == "stp":
        for f in range(6): wload(0, f, "s40")
        a("s_add_u32 s40, s40, 6144")
        for f in range(6): wload(1, f, "s40")
        a("s_add_u32 s40, s40, 6144")
        modstage()
        a("s_waitcnt vmcnt(12)")
        a(f"ds_write_b128 v{AH}, {vr(MT)}")
        a(f"ds_write_b128 v{AH}, {vr(MT+4)} offset:1024")
        a("s_barrier")
        a.stamp(6)
        a("s_mov_b32 s57, 20000")
        a.label("k5_in_retry")
        xloads()
        a("s_waitcnt vmcnt(0)")
        any_poison(a, list(range(XP, XP+24)) + list(range(ST, ST+8)), VX)
        a("s_sub_u32 s57, s57, 1")
        a("s_cmp_eq_u32 s57, 0\ns_cbranch_scc1 k5_in_got")
        a("s_cmp_lg_u64 vcc, 0\ns_cbranch_scc1 k5_in_retry")
        a.label("k5_in_got")
    elif EARLYW and TAGS:
        for f in range(6): wload(0, f, "s40")
        a("s_add_u32 s40, s40, 6144")
        frloads()
        for f in range(6): wload(1, f, "s40")
        a("s_add_u32 s40, s40, 6144")
        modstage()
        a("s_waitcnt vmcnt(6)")
        any_poison(a, list(range(XP, XP+24)), VX)
        a("s_cmp_eq_u64 vcc, 0\ns_cbranch_scc1 k5_in_got")
        a("s_mov_b32 s57, 20000")
        a.label("k5_in_retry")
        frloads()
        a("s_waitcnt vmcnt(0)")
        any_poison(a, list(range(XP, XP+24)), VX)
        a("s_sub_u32 s57, s57, 1")
        a("s_cmp_eq_u32 s57, 0\ns_cbranch_scc1 k5_in_got")
        a("s_cmp_lg_u64 vcc, 0\ns_cbranch_scc1 k5_in_retry")
        a.label("k5_in_got")
        a(f"ds_write_b128 v{AH}, {vr(MT)}")
        a(f"ds_write_b128 v{AH}, {vr(MT+4)} offset:1024")
        a("s_mov_b32 s29, 0x3f803f80")
        ln_stats(a, XP, 24, ST, ST+1, 29)
        xsum16_32(a, ST, ST+2); xsum16_32(a, ST+1, ST+2)
        a("s_lshl_b32 s28, s27, 6")
        a("s_lshl_b32 s29, s26, 4")
        a("s_add_u32 s28, s28, s29")
        a(f"v_add_u32 v{AX}, s28, v{VTOK}")
        a(f"v_lshlrev_b32 v{AX}, 3, v{AX}")
        a(f"v_add_u32 v{AX}, {L5_STAT}, v{AX}")
        a(f"ds_write_b64 v{AX}, {vr(ST,2)}")
        a("s_waitcnt lgkmcnt(0)")
        a("s_barrier")
        a.stamp(6)
        a(f"v_add_u32 v{AX}, s29, v{VTOK}")
        a(f"v_lshlrev_b32 v{AX}, 3, v{AX}")
        a(f"v_add_u32 v{AX}, {L5_STAT}, v{AX}")
        a(f"ds_read_b64 {vr(ST,2)}, v{AX}")
        a(f"ds_read_b64 {vr(ST+2,2)}, v{AX} offset:512")
        a(f"ds_read_b64 {vr(ST+4,2)}, v{AX} offset:1024")
        a(f"v_mov_b32 v{ST+6}, 0")
        a(f"v_mov_b32 v{ST+7}, 0")
        a("s_waitcnt lgkmcnt(0)")
    elif EARLYW:
        for f in range(6): wload(0, f, "s40")
        a("s_add_u32 s40, s40, 6144")
        for f in range(6): wload(1, f, "s40")
        a("s_add_u32 s40, s40, 6144")
        modstage()
        a("s_waitcnt vmcnt(12)")
        a(f"ds_write_b128 v{AH}, {vr(MT)}")
        a(f"ds_write_b128 v{AH}, {vr(MT+4)} offset:1024")
        srd(a, 52, 20, SZ_CNT, WS_CNT)
        a("s_cmp_eq_u32 s58, 0\ns_cbranch_scc1 k5_in_nopoll")
        a(f"s_add_u32 s28, s24, {C_X1}")
        a(f"s_lshl_b32 s28, s28, 9")
        a(f"v_mov_b32 v8, s28")
        a("s_mov_b32 s29, 20000")
        a.label("k5_in_poll")
        a("buffer_load_dword v9, v8, s[52:55], 0 offen sc0 sc1")
        a("s_waitcnt vmcnt(0)")
        a("v_readfirstlane_b32 s28, v9")
        a("s_sub_u32 s29, s29, 1")
        a("s_cmp_eq_u32 s29, 0\ns_cbranch_scc1 k5_in_nopoll")
        a("s_cmp_ge_u32 s28, 8\ns_cbranch_scc0 k5_in_poll")
        a.label("k5_in_nopoll")
        a("s_barrier")
        a.stamp(6)
        xloads()
        a("s_waitcnt vmcnt(6)")
    else:
        xloads()
        modstage()
        a("s_waitcnt vmcnt(8)")
        a(f"ds_write_b128 v{AH}, {vr(MT)}")
        a(f"ds_write_b128 v{AH}, {vr(MT+4)} offset:1024")
        a("s_waitcnt vmcnt(6)")
    VS=ST; VQ=ST+1; VR=XP+40; VSH=XP+42
    a(f"v_add_f32 v{VS}, v{ST}, v{ST+2}")
    a(f"v_add_f32 v{VQ}, v{ST+1}, v{ST+3}")
    a(f"v_add_f32 v{ST+4}, v{ST+4}, v{ST+6}")
    a(f"v_add_f32 v{ST+5}, v{ST+5}, v{ST+7}")
    a(f"v_add_f32 v{VS}, v{VS}, v{ST+4}")
    a(f"v_add_f32 v{VQ}, v{VQ}, v{ST+5}")
    ln_finish(a, VS, VQ, VR, VSH)
    a(f"v_mov_b32 v{VR+1}, v{VR}")
    a(f"v_mov_b32 v{VSH+1}, v{VSH}")
    VC=[XP+48, XP+64]; VSF=[XP+56, XP+72]; VTT=XP+80; VO=XP+88
    a(f"v_lshlrev_b32 v{AX}, 5, v{VG}")
    a(f"v_add_u32 v{AX}, s30, v{AX}")
    a(f"s_mul_i32 s28, s27, {6*4096}")
    a(f"s_lshl_b32 s29, s26, 10")
    a(f"s_add_u32 s28, s28, s29")
    a(f"v_add_u32 v{AH}, s28, v{VL16}")
    def modread(i):
        b = i & 1
        a(f"ds_read_b128 {vr(VSF[b])}, v{AX} offset:{i*128}")
        a(f"ds_read_b128 {vr(VSF[b]+4)}, v{AX} offset:{i*128 + 16}")
        a(f"ds_read_b128 {vr(VC[b])}, v{AX} offset:{1024 + i*128}")
        a(f"ds_read_b128 {vr(VC[b]+4)}, v{AX} offset:{1024 + i*128 + 16}")
    a("s_waitcnt lgkmcnt(0)")
    modread(0)
    nw = 0
    for i in range(6):
        if i < 5: modread(i+1)
        a(f"s_waitcnt vmcnt({5-i+nw}) lgkmcnt({4 if i < 5 else 0})")
        chunk_unpack(a, XP+4*i, VTT); chunk_norm(a, VTT, VR); chunk_mod(a, VTT, VC[i&1], VSF[i&1]); chunk_pack(a, VTT, VO+4*(i&1))
        a(f"ds_write_b128 v{AH}, {vr(VO+4*(i&1))} offset:{i*4096}")
        if not EARLYW:
            wload(0, i, "s40"); nw += 1
    if not EARLYW:
        a("s_add_u32 s40, s40, 6144")
        for f in range(6): wload(1, f, "s40")
        a("s_add_u32 s40, s40, 6144")
    a("s_waitcnt lgkmcnt(0)")
    a("s_barrier")
    a.stamp(7)
    a(f"v_mov_b32 v{AX}, v{VL16}")
    def xread(tb, off): a(f"ds_read_b128 {vr(VX+4*tb)}, v{AX} offset:{off + tb*1024}")
    def step1(slot, first, do_x, xoff, wsrc, vm):
        for tb in range(4):
            w = f"lgkmcnt({3 if (do_x or True) else 0})"
            if tb == 0: a(f"s_waitcnt vmcnt({vm}) lgkmcnt({do_x_prev[0][tb]})")
            else:       a(f"s_waitcnt lgkmcnt({do_x_prev[0][tb]})")
            for f in range(6):
                acc = VACC + (f*4+tb)*4
                a(f"v_mfma_f32_16x16x32_bf16 {vr(acc)}, {vr(VW+24*slot+4*f)}, {vr(VX+4*tb)}, {'0' if first else vr(acc)}")
                if tb == 3 and wsrc: wload(slot, f, wsrc)
            if do_x: xread(tb, xoff)
        if wsrc: a(f"s_add_u32 {wsrc}, {wsrc}, 6144")
    steady = [3,3,3,3]; drain = [3,2,1,0]
    do_x_prev = [steady]
    for tb in range(4): xread(tb, 0)
    step1(0, True, True, 4096, "s40", 6)
    a(f"v_add_u32 v{AX}, 8192, v{AX}               ; base -> X(2)")
    a("s_mov_b32 s42, 7")
    a.label("k5_loop1")
    step1(1, False, True, 0, "s40", 6)
    step1(0, False, True, 4096, "s40", 6)
    a(f"v_add_u32 v{AX}, 8192, v{AX}")
    a("s_sub_u32 s42, s42, 1\ns_cmp_lg_u32 s42, 0\ns_cbranch_scc1 k5_loop1")
    step1(1, False, True, 0, "s40", 6)
    step1(0, False, True, 4096, "s41", 6)
    do_x_prev[0] = drain
    step1(1, False, False, 0, "s41", 6)
    a.stamp(8)
    T=VX
    a("s_mul_i32 s28, s22, 3")
    for uu in range(3):
        a(f"s_add_u32 s29, s28, {uu}")
        a("s_lshr_b32 s25, s29, 1")
        a("s_lshl_b32 s25, s25, 12")
        a("s_and_b32 s29, s29, 1")
        a("s_lshl_b32 s29, s29, 3")
        a("s_add_u32 s25, s25, s29")
        a(f"s_add_u32 s25, s25, {L5_H}")
        a(f"v_add_u32 v{AH}, s25, v{VL16}")
        for tb in range(4):
            g = VACC + ((2*uu)*4+tb)*4; u = VACC + ((2*uu+1)*4+tb)*4
            for j in range(4): a(f"v_mul_f32 v{T+j}, {NLOG2E:#x}, v{g+j}")
            for j in range(4): a(f"v_exp_f32 v{T+j}, v{T+j}")
            for j in range(4): a(f"v_mul_f32 v{g+j}, v{g+j}, v{u+j}")
            for j in range(4): a(f"v_add_f32 v{T+j}, 1.0, v{T+j}")
            for j in range(4): a(f"v_rcp_f32 v{T+j}, v{T+j}")
            a("s_nop 0")
            for j in range(4): a(f"v_mul_f32 v{g+j}, v{g+j}, v{T+j}")
            o = T+4+2*(tb&1)
            a(f"v_cvt_pk_bf16_f32 v{o}, v{g}, v{g+1}")
            a(f"v_cvt_pk_bf16_f32 v{o+1}, v{g+2}, v{g+3}")
            a(f"ds_write_b64 v{AH}, {vr(o,2)} offset:{tb*1024}")
    a("s_waitcnt lgkmcnt(0)")
    a("s_barrier")
    a.stamp(9)
    a(f"v_add_u32 v{AX}, {L5_H}, v{VL16}")
    def w2load(rs, uu):
        a(f"buffer_load_dwordx4 {vr(VW+12*rs+4*uu)}, v{VL16}, s[16:19], s41 offen offset:{uu*1024} " + WF)
    def step2(rs, first, do_x, xoff, reload, vm, lg):
        for tb in range(4):
            if tb == 0: a(f"s_waitcnt vmcnt({vm}) lgkmcnt({lg[tb]})")
            else:       a(f"s_waitcnt lgkmcnt({lg[tb]})")
            for uu in range(3):
                acc = VACC + (uu*4+tb)*4
                a(f"v_mfma_f32_16x16x32_bf16 {vr(acc)}, {vr(VW+12*rs+4*uu)}, {vr(VX+4*tb)}, {'0' if first else vr(acc)}")
                if tb == 3 and reload: w2load(rs, uu)
            if do_x: xread(tb, xoff)
        if reload: a("s_add_u32 s41, s41, 3072")
    for tb in range(4): xread(tb, 0)
    step2(0, True, True, 4096, True, 9, steady)
    a(f"v_add_u32 v{AX}, 8192, v{AX}")
    step2(1, False, True, 0, True, 9, steady)
    a("s_mov_b32 s42, 3")
    a.label("k5_loop2")
    step2(2, False, True, 4096, True, 9, steady)
    a(f"v_add_u32 v{AX}, 8192, v{AX}")
    step2(3, False, True, 0, True, 9, steady)
    step2(0, False, True, 4096, True, 9, steady)
    a(f"v_add_u32 v{AX}, 8192, v{AX}")
    step2(1, False, True, 0, True, 9, steady)
    a("s_sub_u32 s42, s42, 1\ns_cmp_lg_u32 s42, 0\ns_cbranch_scc1 k5_loop2")
    step2(2, False, True, 4096, False, 9, steady)
    a(f"v_add_u32 v{AX}, 8192, v{AX}")
    step2(3, False, True, 0, False, 6, steady)
    step2(0, False, True, 4096, False, 3, steady)
    step2(1, False, False, 0, False, 0, drain)
    a.stamp(10)
    a(f"s_mul_i32 s28, s23, {SZ_PARTS}")
    a("s_mul_i32 s29, s24, 73728")
    a("s_add_u32 s28, s28, s29")
    a("s_mul_i32 s29, s22, 6144")
    a("s_add_u32 s28, s28, s29")
    for q in range(6):
        uu = q >> 1; h = q & 1
        o = VW + 4*q
        for k in range(2):
            acc = VACC + (uu*4 + 2*h + k)*4
            a(f"v_cvt_pk_bf16_f32 v{o+2*k}, v{acc}, v{acc+1}")
            a(f"v_cvt_pk_bf16_f32 v{o+2*k+1}, v{acc+2}, v{acc+3}")
        if q < 4: a(f"buffer_store_dwordx4 {vr(o)}, v{VL16}, s[44:47], s28 offen offset:{q*1024} " + SC("K5SC", "1"))
        else:     a(f"buffer_store_dwordx4 {vr(o)}, v7, s[44:47], s28 offen offset:{(q-4)*1024} " + SC("K5SC", "1"))
    if MERGE6:
        load_ptr(a, 4, KA_OUT)
        a("s_waitcnt vmcnt(0) lgkmcnt(0)")
        if ENV("ST2", "0") != "1": a.stamp(11)
        srd(a, 52, 20, SZ_CNT, WS_CNT)
        srd(a, 8, 20, SZ_PART, WS_PART); srd(a, 12, 20, SZ_X1F, WS_X1F); srd(a, 16, 20, 2304, WS_MOD+5*2304); srd(a, 48, 4, SZ_X)
        a(f"v_mov_b32 v6, {L5_CNT}")
        a("v_mov_b32 v7, 1")
        a("s_mov_b64 exec, 1")
        a("ds_add_rtn_u32 v8, v6, v7")
        a("s_waitcnt lgkmcnt(0)")
        a("v_readfirstlane_b32 s26, v8")
        a(f"s_add_u32 s28, s24, {C_RED}")
        a("s_lshl_b32 s28, s28, 9")
        a("v_mov_b32 v6, s28")
        a("s_cmp_lg_u32 s26, 11\ns_cbranch_scc1 k5_nosig")
        a("buffer_atomic_add v7, v6, s[52:55], 0 offen sc1")
        a.label("k5_nosig")
        a("s_mov_b64 exec, -1")
        a("v_mov_b32 v23, s28")
        a("s_cmp_ge_u32 s22, 9\ns_cbranch_scc1 k5_noload")
        reduce_loads(a, True)
        a.label("k5_noload")
        a("s_cmp_lg_u32 s26, 11\ns_cbranch_scc1 k5_nopoll")
        a("s_mov_b32 s29, 20000")
        a.label("k5_poll")
        a("buffer_load_dword v24, v23, s[52:55], 0 offen sc0 sc1")
        a("s_waitcnt vmcnt(0)")
        a("v_readfirstlane_b32 s25, v24")
        a("s_sub_u32 s29, s29, 1")
        a("s_cmp_eq_u32 s29, 0\ns_cbranch_scc1 k5_nopoll")
        a("s_cmp_ge_u32 s25, 8\ns_cbranch_scc0 k5_poll")
        a.label("k5_nopoll")
        a("s_barrier")
        if ENV("ST2", "0") != "1": a.stamp(12)
        a("s_cmp_ge_u32 s22, 9\ns_cbranch_scc1 k5_exit")
        reduce_main(a, True)
    a.label("k5_exit")
```

```python
import re

class Asm:
    def __init__(self):
        self.lines = []
        self._lab = 0
    def __call__(self, text):
        for ln in text.split("\n"):
            ln = ln.strip()
            if ln:
                self.lines.append(ln)
    def label(self, name):
        self.lines.append(name + ":")
    def newlabel(self, prefix="L"):
        self._lab += 1
        return f"{prefix}_{self._lab}"
    def stamp(self, i):
        self.lines.append(f";stamp {i}")
    def text(self):
        return "\n".join(self.lines) + "\n"

_REG = re.compile(r"^(-?\|?)(v|s|a)(\d+)(\|?)$")
_RNG = re.compile(r"^(-?\|?)(v|s|a)\[(\d+):(\d+)\](\|?)$")
def regs_of(op):
    op = op.strip()
    if op.startswith("abs(") or op.startswith("neg("):
        op = op[4:-1]
    m = _REG.match(op)
    if m: return {(m.group(2), int(m.group(3)))}
    m = _RNG.match(op)
    if m: return {(m.group(2), i) for i in range(int(m.group(3)), int(m.group(4)) + 1)}
    if op == "vcc": return {("s", "vcc")}
    if op in ("vcc_lo", "vcc_hi"): return {("s", "vcc")}
    if op == "exec": return {("s", "exec")}
    if op == "m0": return {("s", "m0")}
    return set()

def split_ops(s):
    out = []; depth = 0; cur = ""
    for ch in s:
        if ch in "[(": depth += 1
        if ch in "])": depth -= 1
        if ch == "," and depth == 0:
            out.append(cur.strip()); cur = ""
        else:
            cur += ch
    if cur.strip(): out.append(cur.strip())
    return out

TRANS = ("v_exp_", "v_log_", "v_rcp_", "v_rsq_", "v_sqrt_", "v_sin_", "v_cos_")
class Ins:
    __slots__ = ("text", "op", "kind", "w", "r", "ops", "mods", "passes", "srcA", "srcB", "srcC", "dst", "is_trans",
                 "is_dpp", "is_sdwa_dst", "sgpr_const_r", "store_data", "is_lds_dma", "nop", "target", "uncond", "lane_sel", "wide_store")
def parse(line):
    I = Ins(); I.text = line
    I.w = set(); I.r = set(); I.passes = 0; I.srcA = I.srcB = I.srcC = I.dst = set()
    I.is_trans = I.is_dpp = I.is_sdwa_dst = I.is_lds_dma = I.uncond = I.wide_store = False
    I.sgpr_const_r = set(); I.store_data = set(); I.nop = 0; I.target = None; I.lane_sel = set()
    code = line.split(";")[0].strip()
    if not code:
        I.op = ""; I.kind = "dir"; return I
    if code.endswith(":"):
        I.op = code[:-1]; I.kind = "label"; return I
    if code.startswith("."):
        I.op = code; I.kind = "dir"; return I
    parts = code.split(None, 1)
    op = parts[0]; I.op = op
    rest = parts[1] if len(parts) > 1 else ""
    ops = split_ops(rest)
    mods = ""
    if ops:
        last = ops[-1].split(None, 1)
        if len(last) > 1 and not last[0].endswith("("):
            ops[-1] = last[0]; mods = last[1]
    I.ops = ops; I.mods = mods
    R = [regs_of(o) for o in ops]
    allr = lambda xs: set().union(*xs) if xs else set()
    if op.startswith("v_mfma"):
        I.kind = "mfma"
        I.passes = 8 if "32x32" in op else 4
        I.dst = R[0]; I.srcA = R[1]; I.srcB = R[2]; I.srcC = R[3]
        I.w = R[0]; I.r = R[1] | R[2] | R[3]
    elif op.startswith("v_"):
        I.kind = "valu"
        I.is_trans = op.startswith(TRANS)
        I.is_dpp = ("row_" in mods) or ("quad_perm" in mods) or op.endswith("_dpp")
        I.is_sdwa_dst = ("dst_sel" in mods and "dst_sel:DWORD" not in mods) or ("op_sel:" in mods and not op.startswith("v_pk"))
        if op.startswith("v_cmp"):
            I.w = R[0]; I.r = allr(R[1:])
        elif op.startswith(("v_readfirstlane", "v_readlane")):
            I.w = R[0]; I.r = allr(R[1:])
            if op.startswith("v_readlane"): I.lane_sel = {x for x in R[2] if x[0] == "s"}
        elif op.startswith("v_writelane"):
            I.w = R[0]; I.r = allr(R[1:]) | R[0]
            I.lane_sel = {x for x in R[2] if x[0] == "s"}
        elif op.startswith(("v_permlane32_swap", "v_permlane16_swap", "v_swap")):
            I.w = R[0] | R[1]; I.r = R[0] | R[1]
        elif op.startswith(("v_add_co", "v_sub_co", "v_subrev_co", "v_addc_co", "v_subb_co", "v_div_scale")):
            I.w = R[0] | R[1]; I.r = allr(R[2:])
        elif op.startswith(("v_fmac", "v_dot2c", "v_pk_fmac", "v_mac")):
            I.w = R[0]; I.r = allr(R)
        else:
            I.w = R[0]; I.r = allr(R[1:])
            if I.is_sdwa_dst and "UNUSED_PRESERVE" in mods: I.r |= R[0]
            if I.is_dpp: I.r |= R[0]
        if op.startswith("v_cndmask") and len(ops) == 3: I.r |= {("s", "vcc")}
        I.sgpr_const_r = {x for x in I.r if x[0] == "s"}
    elif op.startswith("buffer_"):
        I.kind = "vmem"
        if op in ("buffer_wbl2", "buffer_inv"):
            pass
        elif "lds" in mods.split():
            I.is_lds_dma = True
            I.r = allr(R) | {("s", "m0")}
        elif op.startswith("buffer_load"):
            I.w = R[0]; I.r = allr(R[1:])
        elif op.startswith("buffer_store"):
            I.r = allr(R); I.store_data = R[0]
            I.wide_store = op.endswith(("x3", "x4"))
        elif op.startswith("buffer_atomic"):
            I.r = allr(R); I.store_data = R[0]
            if "sc0" in mods.split(): I.w = R[0]
        else:
            raise ValueError("vmem? " + line)
    elif op.startswith("ds_"):
        I.kind = "ds"
        if op.startswith("ds_add_rtn"):
            I.w = R[0]; I.r = allr(R[1:])
        elif op.startswith(("ds_read", "ds_bpermute", "ds_permute", "ds_swizzle")):
            I.w = R[0]; I.r = allr(R[1:])
            if "d16" in op: I.r |= R[0]
        else:
            I.r = allr(R); I.store_data = allr(R[1:])
    elif op.startswith("s_"):
        I.kind = "salu"
        if op == "s_nop":
            I.nop = int(ops[0], 0) + 1
        elif op.startswith("s_cbranch") or op == "s_branch":
            I.target = ops[0]; I.uncond = (op == "s_branch")
        elif op == "s_endpgm":
            I.uncond = True
        elif op.startswith(("s_cmp", "s_bitcmp", "s_waitcnt", "s_barrier", "s_sleep", "s_setprio")):
            I.r = allr(R)
        elif op.startswith(("s_load", "s_memtime", "s_memrealtime", "s_getreg")):
            I.kind = "smem"; I.w = R[0]; I.r = allr(R[1:])
        else:
            I.w = R[0] if R else set(); I.r = allr(R[1:])
            if "saveexec" in op: I.w |= {("s", "exec")}
    else:
        raise ValueError("unknown instruction: " + line)
    return I

def vg(s): return {x for x in s if x[0] in "va"}
def sg(s): return {x for x in s if x[0] == "s"}

def need(p, c):
    n = 0
    if p.kind == "valu":
        pw = vg(p.w); ps = sg(p.w)
        if c.kind == "mfma" and pw & c.r: n = max(n, 2)
        if c.kind == "valu":
            if p.is_trans and not c.is_trans and pw & c.r: n = max(n, 1)
            if p.is_sdwa_dst and pw & (c.r | c.w): n = max(n, 1)
            if c.is_dpp and pw & vg(c.r): n = max(n, 2)
            if c.op.startswith(("v_readfirstlane", "v_readlane")) and pw & vg(c.r): n = max(n, 1)
            if c.op.startswith(("v_permlane32_swap", "v_permlane16_swap")) and pw & c.r: n = max(n, 2)
            if ps & c.sgpr_const_r: n = max(n, 2)
            if ps & c.lane_sel: n = max(n, 4)
            if c.op.startswith("v_div_fmas") and ("s", "vcc") in ps: n = max(n, 4)
        if c.kind == "vmem" and ps & c.r: n = max(n, 5)
        if c.kind in ("salu", "smem") and ps & c.r and not c.op.startswith("s_waitcnt"): n = max(n, 1)
    if p.kind == "valu" and p.op.startswith("v_dot"):
        pw = vg(p.w)
        if c.op == p.op:
            ab = regs_of(c.ops[1]) | regs_of(c.ops[2])
            if pw & ab: n = max(n, 3)
        elif pw & (c.r | c.w): n = max(n, 3)
    if p.kind == "mfma":
        P = p.passes
        if c.kind == "mfma":
            if p.dst & c.srcC:
                if c.srcC == p.dst and c.passes == P: n = max(n, 0)
                else: n = max(n, P + 2)
            if p.dst & (c.srcA | c.srcB): n = max(n, P + 4)
            if p.dst & c.dst and not (p.dst & c.srcC):
                if c.dst != p.dst or c.passes != P: n = max(n, P + 2)
        elif c.kind == "valu":
            if p.dst & (c.r | c.w): n = max(n, P + 4)
            if vg(p.srcC) & c.w: n = max(n, P - 1)
        elif c.kind in ("vmem", "ds"):
            if p.dst & (c.r | c.w): n = max(n, P + 4)
    if p.kind == "vmem" and p.wide_store:
        if c.kind == "valu" and p.store_data & c.w: n = max(n, 2)
        elif c.kind in ("vmem", "ds", "mfma") and p.store_data & c.w: n = max(n, 1)
    if p.kind == "salu" and ("s", "m0") in p.w and c.kind == "vmem" and c.is_lds_dma: n = max(n, 1)
    return n

MAXD = 14
def fix_hazards(lines, verbose=False):
    total = 0
    for _round in range(2000):
        ins = [parse(l) for l in lines]
        labels = {I.op: i for i, I in enumerate(ins) if I.kind == "label"}
        preds = [[] for _ in ins]
        for i, I in enumerate(ins):
            if i + 1 < len(ins) and not I.uncond: preds[i + 1].append(i)
            if I.target is not None and I.target in labels: preds[labels[I.target]].append(i)
        inserts = {}
        for i, c in enumerate(ins):
            if c.kind in ("label", "dir") or c.op == "s_nop": continue
            worst = 0; stack = [(p, 0) for p in preds[i]]; seen = {}
            while stack:
                j, d = stack.pop()
                if d >= MAXD: continue
                if seen.get(j, 99) <= d: continue
                seen[j] = d
                p = ins[j]
                if p.kind in ("label", "dir"): step = 0
                else:
                    k = need(p, c)
                    if k - d > worst: worst = k - d
                    step = p.nop if p.op == "s_nop" else 1
                for q in preds[j]: stack.append((q, d + step))
            if worst > 0: inserts[i] = worst
        if not inserts: return lines, total
        out = []
        last_fix = -100
        for i, l in enumerate(lines):
            first = i in inserts and i - last_fix > MAXD + 2
            if i in inserts: last_fix = i
            if first:
                n = inserts[i]
                if verbose: print("hazard: +%d before: %s" % (n, l))
                total += n
                while n > 0:
                    k = min(n, 16); out.append("s_nop %d" % (k - 1)); n -= k
            out.append(l)
        lines = out
    raise RuntimeError("hazard fix did not converge")

PROFILE = False
_kidx = [0]
NST = 14
def instrument(name, lines):
    k = _kidx[0]; _kidx[0] += 1
    out = ["s_memrealtime s[60:61]", "s_memtime s[64:65]", "s_mov_b32 s94, s2",
           "v_readfirstlane_b32 s95, v0", "s_waitcnt lgkmcnt(0)"]
    for i in range(1, NST+1): out += [f"s_mov_b32 s{64+2*i}, s64"]
    for l in lines:
        c = l.split(";")[0].strip()
        if l.startswith(";stamp"):
            i = int(l.split()[1]); assert 1 <= i <= NST-2; out.append(f"s_memtime s[{64+2*i}:{65+2*i}]")
        elif c == "s_endpgm": out.append(f"s_branch {name}_prof")
        else: out.append(l)
    out += [f"{name}_prof:", f"s_memtime s[{64+2*(NST-1)}:{65+2*(NST-1)}]", "s_waitcnt vmcnt(0) lgkmcnt(0)", "s_memrealtime s[62:63]", f"s_memtime s[{64+2*NST}:{65+2*NST}]",
            "s_load_dwordx2 s[4:5], s[0:1], 88", "s_waitcnt lgkmcnt(0)",
            f"s_add_u32 s8, s4, {0x8000000 + k*0x100000:#x} ;srd", "s_addc_u32 s9, s5, 0 ;srd",
            "s_mov_b32 s10, 0x100000 ;srd", "s_mov_b32 s11, 0x00020000 ;srd",
            "s_lshr_b32 s95, s95, 6", "s_and_b32 s95, s95, 15", "s_lshl_b32 s94, s94, 4", "s_add_u32 s94, s94, s95", "s_lshl_b32 s94, s94, 6",
            "s_mov_b64 exec, 1", "v_mov_b32 v1, s94", "v_mov_b32 v2, s60", "v_mov_b32 v3, s62"]
    for i in range(1, NST+1):
        out += [f"s_sub_u32 s{64+2*i}, s{64+2*i}, s64", f"v_mov_b32 v{3+i}, s{64+2*i}"]
    out += ["buffer_store_dwordx2 v[2:3], v1, s[8:11], 0 offen",
            "buffer_store_dwordx4 v[4:7], v1, s[8:11], 0 offen offset:8",
            "buffer_store_dwordx4 v[8:11], v1, s[8:11], 0 offen offset:24",
            "buffer_store_dwordx4 v[12:15], v1, s[8:11], 0 offen offset:40",
            "buffer_store_dwordx2 v[16:17], v1, s[8:11], 0 offen offset:56"]
    return out

DBGSTAMP = False
_didx = [0]
def dbgstamp(name, lines):
    k = _didx[0]; _didx[0] += 1
    out = ["s_memrealtime s[60:61]"]
    for l in lines:
        c = l.split(";")[0].strip()
        if c == "s_endpgm": out.append(f"s_branch {name}_dbg")
        else: out.append(l)
    out += [f"{name}_dbg:", "s_waitcnt vmcnt(0) lgkmcnt(0)", "s_memrealtime s[62:63]",
            "s_and_b32 s59, s2, 31", "s_cmp_lg_u32 s59, 0", f"s_cbranch_scc1 {name}_dbgx",
            "s_load_dwordx2 s[4:5], s[0:1], 80", "s_waitcnt lgkmcnt(0)",
            f"s_sub_u32 s8, s4, {512*k} ;srd", "s_subb_u32 s9, s5, 0 ;srd",
            "s_mov_b32 s10, 0x40 ;srd", "s_mov_b32 s11, 0x00020000 ;srd",
            "s_not_b32 s60, s60", "s_mov_b64 exec, 1", f"v_mov_b32 v1, {8*k}", "v_mov_b32 v2, s60", "v_mov_b32 v3, s62",
            "buffer_atomic_umax v2, v1, s[8:11], 0 offen", "buffer_atomic_umax v3, v1, s[8:11], 0 offen offset:4", f"{name}_dbgx:"]
    return out

def kernel(name, asm, vgpr, sgpr=96, lds_note=None, accum=None):
    src = list(asm.lines)
    if DBGSTAMP:
        src = dbgstamp(name, src + ["s_endpgm"]); sgpr = 96
    if PROFILE:
        src = instrument(name, src + ["s_endpgm"]); sgpr = 96
    lines, n = fix_hazards(src)
    body = "\n".join(lines)
    if accum is None: accum = min(256, (vgpr + 3) // 4 * 4)
    srdregs = set()
    for l in lines:
        I = parse(l)
        if I.kind == "vmem" and I.op not in ("buffer_wbl2", "buffer_inv"):
            quad = [o for o in I.ops if o.startswith("s[")][0]
            srdregs |= regs_of(quad)
    for l in lines:
        I = parse(l)
        if I.w & srdregs and ";srd" not in l:
            raise AssertionError(f"{name}: descriptor register clobbered by: {l}")
    mv = ms = -1
    for l in lines:
        I = parse(l)
        for (k, i) in (I.w | I.r):
            if k == "v": mv = max(mv, i)
            if k == "s" and isinstance(i, int): ms = max(ms, i)
    assert mv < vgpr, f"{name}: uses v{mv} but vgpr={vgpr}"
    assert ms < sgpr, f"{name}: uses s{ms} but sgpr={sgpr}"
    txt = f""".text
.globl {name}
.p2align 8
.type {name},@function
{name}:
{body}
s_endpgm
.section .rodata,"a"
.p2align 6
.amdhsa_kernel {name}
  .amdhsa_next_free_vgpr {vgpr}
  .amdhsa_next_free_sgpr {sgpr}
  .amdhsa_accum_offset {accum}
  .amdhsa_group_segment_fixed_size 0
  .amdhsa_kernarg_size 96
  .amdhsa_user_sgpr_count 2
  .amdhsa_user_sgpr_kernarg_segment_ptr 1
  .amdhsa_system_sgpr_workgroup_id_x 1
  .amdhsa_float_denorm_mode_32 3
.end_amdhsa_kernel
"""
    return txt, dict(name=name, maxv=mv, maxs=ms, nops=n, ninstr=len(lines))
```

```python
from common import *
import os
SIDE = os.environ.get('SIDE', 'k2')
MODNC = int(os.environ.get('MODNC', '32'))
NWG_MOD=(1152//MODNC) if SIDE == 'k2' else 54; NWG_LS=54 if SIDE == 'k2' else 72; NWG_W13=0; NWG_W2=0; NWG_ONES=32; NWG_XN=64; NWG_POIS=36
B_LS=NWG_MOD; B_W13=B_LS+NWG_LS; B_W2=B_W13+NWG_W13; B_ONES=B_W2+NWG_W2; B_XN=B_ONES+NWG_ONES; B_POIS=B_XN+NWG_XN; K1_NWG=B_POIS+NWG_POIS
K1_LDS=4*9216

LOG2E=0x3fb8aa3b

def gen_mod(a, tag, NC=64):
    LG = {64: 3, 32: 2}[NC]
    NRG = 256 >> LG
    NR = 576 // NRG
    load_ptr(a, 4, KA_WMOD); load_ptr(a, 6, KA_C); load_ptr(a, 20, KA_WS)
    a("v_and_b32 v30, 255, v0")
    a(f"v_and_b32 v1, {(1 << LG) - 1}, v30           ; cg")
    a(f"v_lshrrev_b32 v2, {LG}, v30       ; rg")
    a("s_waitcnt lgkmcnt(0)")
    srd(a, 8, 4, 576*6912); srd(a, 12, 6, 1152); srd(a, 16, 20, SZ_MOD, WS_MOD)
    a("v_lshlrev_b32 v3, 1, v30")
    a("buffer_load_ushort v4, v3, s[12:15], 0 offen")
    a("buffer_load_ushort v5, v3, s[12:15], 0 offen offset:512")
    a("buffer_load_ushort v6, v3, s[12:15], 0 offen offset:1024")
    a("v_mul_u32_u24 v7, 6912, v2")
    a("v_lshl_add_u32 v7, v1, 4, v7")
    a(f"s_mul_i32 s22, s44, {NC*2}         ; n0*2")
    for i in range(NR):
        r = 32 + 4*i
        a(f"buffer_load_dwordx4 {vr(r)}, v7, s[8:11], s22 offen")
        if i < NR-1: a(f"s_add_u32 s22, s22, {NRG*6912}")
    a("v_lshlrev_b32 v9, 2, v30")
    a("v_add_u32 v9, s45, v9")
    a(f"s_waitcnt vmcnt({NR})")
    for j, v in enumerate([4, 5, 6]):
        a(f"v_lshlrev_b32 v{v}, 16, v{v}")
        a(f"v_mul_f32 v8, {LOG2E:#x}, v{v}")
        a(f"v_exp_f32 v8, -v8")
        a(f"v_add_f32 v8, 1.0, v8")
        a(f"v_rcp_f32 v8, v8")
        a(f"v_mul_f32 v8, v8, v{v}")
        bf16_round_f32(a, 8, 8)
        a(f"ds_write_b32 v9, v8 offset:{j*1024}")
    a("s_waitcnt lgkmcnt(0)")
    a("s_barrier")
    a("v_lshlrev_b32 v9, 2, v2")
    a("v_add_u32 v9, s45, v9")
    for i in range(NR):
        a(f"ds_read_b32 v{10+i}, v9 offset:{i*NRG*4}")
    for j in range(8): a(f"v_mov_b32 v{104+j}, 0")
    a("s_waitcnt lgkmcnt(0)")
    for i in range(NR):
        a(f"s_waitcnt vmcnt({NR-1-i})")
        r = 32 + 4*i
        for q in range(4):
            a(f"v_lshlrev_b32 v28, 16, v{r+q}")
            a(f"v_and_b32 v29, 0xffff0000, v{r+q}")
            a(f"v_fmac_f32 v{104+2*q}, v{10+i}, v28")
            a(f"v_fmac_f32 v{105+2*q}, v{10+i}, v29")
    a(f"v_mul_u32_u24 v9, {NC*4}, v2")
    a("v_lshl_add_u32 v9, v1, 5, v9")
    a("v_add_u32 v9, s45, v9")
    a("ds_write_b128 v9, v[104:107] offset:4096")
    a("ds_write_b128 v9, v[108:111] offset:4112")
    a("s_waitcnt lgkmcnt(0)")
    a("s_barrier")
    a("v_cmp_gt_u32 vcc, 64, v30")
    a("s_and_saveexec_b64 s[24:25], vcc")
    lend = f"{tag}_mod_end"
    a(f"s_cbranch_execz {lend}")
    a(f"v_and_b32 v10, {NC-1}, v30                 ; column")
    a("v_lshlrev_b32 v9, 2, v10")
    a("v_add_u32 v3, s45, v9")
    if NC == 32:
        a(f"v_lshrrev_b32 v11, 5, v30")
        a(f"v_mul_u32_u24 v11, {32*NC*4}, v11")
        a("v_add_u32 v3, v3, v11")
    for i in range(32):
        a(f"ds_read_b32 v{32+i}, v3 offset:{4096+i*NC*4}")
    a("s_waitcnt lgkmcnt(0)")
    for st in [16, 8, 4, 2, 1]:
        for i in range(st):
            a(f"v_add_f32 v{32+i}, v{32+i}, v{32+i+st}")
    if NC == 32:
        a("v_mov_b32 v33, v32")
        a("v_permlane32_swap_b32 v32, v33")
        a("v_add_f32 v32, v32, v33")
    bf16_round_f32(a, 32, 32)
    sdiv(a, 22, 44, 576 // NC)
    a("s_cmp_eq_u32 s22, 1")
    a("s_cselect_b32 s23, 1, 0")
    a("s_cmp_eq_u32 s22, 4")
    a("s_cselect_b32 s23, 1, s23")
    lskip = f"{tag}_noone"
    a("s_cmp_eq_u32 s23, 0")
    a(f"s_cbranch_scc1 {lskip}")
    a("v_add_f32 v32, 1.0, v32")
    bf16_round_f32(a, 32, 32)
    a.label(lskip)
    a(f"s_mul_i32 s22, s44, {NC*4}")
    a("buffer_store_dword v32, v9, s[16:19], s22 offen")
    a.label(lend)
    a("s_endpgm")

def gather(a, addr):
    for u in range(9):
        for j in range(8):
            a(f"ds_read_u16 v{72+j}, {addr(u, j)}")
        a("s_waitcnt lgkmcnt(0)")
        for jp in range(4):
            a(f"v_lshl_or_b32 v{32+4*u+jp}, v{72+2*jp+1}, 16, v{72+2*jp}")

def gen_ldsshuf(a, tag, do_qkv, do_wo):
    load_ptr(a, 4, KA_WQKV); load_ptr(a, 6, KA_WO); load_ptr(a, 20, KA_WS)
    a("v_and_b32 v1, 63, v0           ; lane")
    a("s_mul_i32 s24, s22, 9216")
    for i in range(9):
        a(f"v_add_u32 v2, {i*64}, v1")
        a(f"v_mul_u32_u24 v{10+i}, 3641, v2")
        a(f"v_lshrrev_b32 v{10+i}, 16, v{10+i}      ; row")
        a(f"v_mul_u32_u24 v3, 18, v{10+i}")
        a(f"v_sub_u32 v{20+i}, v2, v3              ; cc")
    a("v_and_b32 v4, 15, v1           ; m")
    a("v_lshrrev_b32 v5, 4, v1        ; g")
    a("v_lshlrev_b32 v6, 4, v1        ; lane*16")
    a("v_add_u32 v7, s24, v6")
    a("v_mul_u32_u24 v8, 2304, v5     ; g*8*288")
    a("v_add_u32 v8, s24, v8")
    a("s_waitcnt lgkmcnt(0)")
    if do_qkv: shuf_qkv(a)
    if do_wo: shuf_wo(a, tag)

def shuf_qkv(a):
    srd(a, 8, 4, 576*3456); srd(a, 12, 20, SZ_WQKV, WS_WQKV)
    sdiv(a, 25, 23, 12, 26, 27)
    a("s_lshr_b32 s27, s26, 2         ; sec")
    a("s_and_b32 s28, s26, 3          ; oct")
    a(f"s_mul_i32 s29, s25, {32*3456}")
    a("s_mul_i32 s30, s27, 1152")
    a("s_add_u32 s29, s29, s30")
    a("s_mul_i32 s30, s28, 288")
    a("s_add_u32 s29, s29, s30        ; soffset")
    for i in range(9):
        a(f"v_mul_u32_u24 v2, 3456, v{10+i}")
        a(f"v_lshl_add_u32 v2, v{20+i}, 4, v2")
        a(f"buffer_load_dwordx4 {vr(32+4*i)}, v2, s[8:11], s29 offen")
    for i in range(9):
        a(f"s_waitcnt vmcnt({8-i})")
        a(f"ds_write_b128 v7, {vr(32+4*i)} offset:{i*1024}")
    a("v_lshl_add_u32 v2, v4, 1, v8   ; main: + m*2")
    a("v_lshrrev_b32 v3, 1, v4")
    a("v_mul_u32_u24 v3, 36, v3")
    a("v_and_b32 v9, 1, v4")
    a("v_lshl_add_u32 v3, v9, 1, v3")
    a("v_add_u32 v3, 32, v3")
    a("v_add_u32 v3, v3, v8           ; ext")
    a("s_waitcnt lgkmcnt(0)")
    gather(a, lambda u, j: (f"v2 offset:{j*288 + 36*u}" if u < 8 else f"v3 offset:{j*288}"))
    a("s_lshl_b32 s30, s27, 4")
    a("s_lshl_b32 s31, s28, 2")
    a("s_add_u32 s30, s30, s31")
    a("s_mul_i32 s30, s30, 18")
    a("s_add_u32 s30, s30, s25")
    a("s_lshl_b32 s30, s30, 11        ; (tau*18+t)*2048")
    a("s_lshl_b32 s31, s27, 1")
    a("s_lshr_b32 s33, s28, 1")
    a("s_add_u32 s31, s31, s33")
    a("s_add_u32 s31, s31, 48")
    a("s_mul_i32 s31, s31, 18")
    a("s_add_u32 s31, s31, s25")
    a("s_lshl_b32 s31, s31, 11")
    a("s_and_b32 s33, s28, 1")
    a("s_lshl_b32 s33, s33, 10")
    a("s_add_u32 s31, s31, s33")
    a("s_waitcnt lgkmcnt(0)")
    for u in range(8):
        a(f"s_add_u32 s33, s30, {(u>>1)*18*2048 + (u&1)*1024}")
        a(f"buffer_store_dwordx4 {vr(32+4*u)}, v6, s[12:15], s33 offen " + SC("K1SC", "1"))
    a(f"buffer_store_dwordx4 {vr(64)}, v6, s[12:15], s31 offen " + SC("K1SC", "1"))
    a("s_endpgm")

def shuf_wo(a, tag):
    srd(a, 8, 6, 576*1152); srd(a, 12, 20, SZ_WO, WS_WO)
    a("s_lshr_b32 s25, s23, 2         ; t")
    a("s_and_b32 s28, s23, 3          ; ng")
    a("s_mul_i32 s29, s28, 288")
    lext = f"{tag}_wo_ext"; lj = f"{tag}_wo_j"
    a("s_cmp_ge_u32 s25, 16")
    a(f"s_cbranch_scc1 {lext}")
    for i in range(9):
        a(f"v_lshrrev_b32 v2, 4, v{10+i}")
        a(f"v_mul_u32_u24 v2, 18, v2")
        a(f"v_and_b32 v3, 15, v{10+i}")
        a(f"v_add_u32 v{10+i}, v2, v3")
    a("s_mul_i32 s30, s25, 36         ; 18*2t")
    a(f"s_branch {lj}")
    a.label(lext)
    for i in range(9):
        a(f"v_lshrrev_b32 v2, 1, v{10+i}")
        a(f"v_mul_u32_u24 v2, 18, v2")
        a(f"v_and_b32 v3, 1, v{10+i}")
        a(f"v_add_u32 v{10+i}, v2, v3")
    a("s_sub_u32 s30, s25, 16")
    a("s_mul_i32 s30, s30, 288        ; 18*16e")
    a("s_add_u32 s30, s30, 16")
    a.label(lj)
    a("s_mul_i32 s30, s30, 1152")
    a("s_add_u32 s29, s29, s30")
    for i in range(9):
        a(f"v_mul_u32_u24 v2, 1152, v{10+i}")
        a(f"v_lshl_add_u32 v2, v{20+i}, 4, v2")
        a(f"buffer_load_dwordx4 {vr(32+4*i)}, v2, s[8:11], s29 offen")
    for i in range(9):
        a(f"s_waitcnt vmcnt({8-i})")
        a(f"ds_write_b128 v7, {vr(32+4*i)} offset:{i*1024}")
    a("v_lshl_add_u32 v2, v4, 1, v8")
    a("s_waitcnt lgkmcnt(0)")
    gather(a, lambda u, j: f"v2 offset:{j*288 + 32*u}")
    a("s_mul_i32 s30, s28, 162        ; ng*9*18")
    a("s_add_u32 s30, s30, s25")
    a("s_lshl_b32 s30, s30, 10")
    a("s_waitcnt lgkmcnt(0)")
    for u in range(9):
        a(f"s_add_u32 s33, s30, {u*18*1024}")
        a(f"buffer_store_dwordx4 {vr(32+4*u)}, v6, s[12:15], s33 offen " + SC("K1SC", "1"))
    a("s_endpgm")

def perm_consts(a):
    a("s_mov_b32 s40, 0x05040100")
    a("s_mov_b32 s41, 0x07060302")

def w13_task(a, s_id, vb, wt=''):
    sdiv(a, 25, s_id, 648, 26, 27)
    sdiv(a, 27, 26, 18, 28, 29)
    a(f"s_mul_i32 s29, s28, {32*9216}")
    a("s_lshl_b32 s30, s27, 8")
    a("s_add_u32 s29, s29, s30        ; soffset")
    l3 = a.newlabel("w3"); lj = a.newlabel("w13j")
    vin = vb+4; vout = vb+36
    a("s_cmp_eq_u32 s25, 1")
    a(f"s_cbranch_scc1 {l3}")
    for j in range(8):
        a(f"buffer_load_dwordx4 {vr(vin+4*j)}, v{vb+1}, s[8:11], s29 offen")
        if j < 7: a("s_add_u32 s29, s29, 9216")
    a(f"s_branch {lj}")
    a.label(l3)
    for j in range(8):
        a(f"buffer_load_dwordx4 {vr(vin+4*j)}, v{vb+1}, s[12:15], s29 offen")
        if j < 7: a("s_add_u32 s29, s29, 9216")
    a.label(lj)
    sdiv(a, 30, 27, 3, 31, 33)
    a("s_mul_i32 s30, s30, 110592")
    a("s_mul_i32 s33, s28, 6144")
    a("s_add_u32 s30, s30, s33")
    a("s_lshl_b32 s31, s31, 1")
    a("s_add_u32 s31, s31, s25")
    a("s_lshl_b32 s31, s31, 10")
    a("s_add_u32 s30, s30, s31")
    a("s_waitcnt vmcnt(0)")
    for i in range(8):
        for jp in range(4):
            sel = "s41" if i & 1 else "s40"
            a(f"v_perm_b32 v{vout+4*i+jp}, v{vin+4*(2*jp+1)+(i>>1)}, v{vin+4*(2*jp)+(i>>1)}, {sel}")
        a(f"buffer_store_dwordx4 {vr(vout+4*i)}, v{vb}, s[16:19], s30 offen {wt}")
        if i < 7: a(f"s_add_u32 s30, s30, {SZ_W13S}")

def w2_task(a, s_id, vb, wt='', srd_in=8, srd_out=16):
    sdiv(a, 25, s_id, 108, 26, 27)
    sdiv(a, 27, 26, 6, 28, 29)
    a("s_lshl_b32 s29, s27, 8")
    a("s_add_u32 s29, s29, s25")
    a("s_mul_i32 s29, s29, 1152")
    a("s_mul_i32 s30, s28, 192")
    a("s_add_u32 s29, s29, s30")
    vin = vb+4; vout = vb+36
    for v in range(2):
        for j in range(4):
            a(f"s_add_u32 s30, s29, {(128*v+8*j)*1152}")
            a(f"buffer_load_dwordx3 {vr(vin+4*(4*v+j),3)}, v{vb+2}, s[{srd_in}:{srd_in+3}], s30 offen")
    a(f"s_mul_i32 s30, s25, {SZ_W2S}")
    a("s_mul_i32 s31, s28, 110592")
    a("s_add_u32 s30, s30, s31")
    a("s_mul_i32 s31, s27, 3072")
    a("s_add_u32 s30, s30, s31")
    a("s_waitcnt vmcnt(0)")
    for i in range(6):
        for v in range(2):
            for jj in range(2):
                sel = "s41" if i & 1 else "s40"
                a(f"v_perm_b32 v{vout+4*i+2*v+jj}, v{vin+4*(4*v+2*jj+1)+(i>>1)}, v{vin+4*(4*v+2*jj)+(i>>1)}, {sel}")
        a(f"s_add_u32 s31, s30, {(i//3)*55296 + (i%3)*1024}")
        a(f"buffer_store_dwordx4 {vr(vout+4*i)}, v{vb}, s[{srd_out}:{srd_out+3}], s31 offen {wt}")

def shuffle_lane_setup(a, vb):
    a(f"v_and_b32 v{vb+3}, 63, v0")
    a(f"v_lshlrev_b32 v{vb}, 4, v{vb+3}          ; lane*16")
    a(f"v_lshrrev_b32 v{vb+1}, 4, v{vb+3}        ; g")
    a(f"v_and_b32 v{vb+3}, 15, v{vb+3}           ; m")
    a(f"v_mul_u32_u24 v{vb+2}, {32*1152}, v{vb+1}")
    a(f"v_mad_u32_u24 v{vb+2}, v{vb+3}, 12, v{vb+2}   ; w2 voffset")
    a(f"v_mul_u32_u24 v{vb+1}, {8*9216}, v{vb+1}")
    a(f"v_lshl_add_u32 v{vb+1}, v{vb+3}, 4, v{vb+1}   ; w13 voffset")

def gen_w13(a):
    load_ptr(a, 4, KA_W1); load_ptr(a, 6, KA_W3); load_ptr(a, 20, KA_WS)
    wave_id(a, 22, 1)
    a(f"s_sub_u32 s23, s2, {B_W13}")
    a("s_lshl_b32 s23, s23, 2")
    a("s_add_u32 s23, s23, s22")
    shuffle_lane_setup(a, 4)
    perm_consts(a)
    a("s_waitcnt lgkmcnt(0)")
    srd(a, 8, 4, 576*9216); srd(a, 12, 6, 576*9216); srd(a, 16, 20, SZ_W13, WS_W13)
    w13_task(a, 23, 4)
    a("s_endpgm")

def gen_w2(a):
    load_ptr(a, 4, KA_W2); load_ptr(a, 20, KA_WS)
    wave_id(a, 22, 1)
    a(f"s_sub_u32 s23, s2, {B_W2}")
    a("s_lshl_b32 s23, s23, 2")
    a("s_add_u32 s23, s23, s22")
    shuffle_lane_setup(a, 4)
    perm_consts(a)
    a("s_waitcnt lgkmcnt(0)")
    srd(a, 8, 4, 4608*1152); srd(a, 16, 20, SZ_W2, WS_W2)
    w2_task(a, 23, 4)
    a("s_endpgm")

def gen_ones(a):
    load_ptr(a, 20, KA_WS)
    a(f"s_sub_u32 s23, s2, {B_ONES}")
    a(f"s_mul_i32 s23, s23, {KVH}")
    a(f"s_add_u32 s23, s23, {KV_V+18*16}")
    a("v_mul_u32_u24 v1, 304, v0")
    for i in range(4): a(f"v_mov_b32 v{4+i}, 0x3f803f80")
    a("s_waitcnt lgkmcnt(0)")
    srd(a, 8, 20, SZ_KV, WS_KV)
    a("buffer_store_dwordx4 v[4:7], v1, s[8:11], s23 offen")
    a(f"s_cmp_lg_u32 s2, {B_ONES}\ns_cbranch_scc1 k1_ones_end")
    srd(a, 12, 20, SZ_CNT, WS_CNT)
    a("v_lshlrev_b32 v1, 9, v0")
    a("v_mov_b32 v4, 0")
    a("buffer_store_dword v4, v1, s[12:15], 0 offen sc0 sc1")
    a.label("k1_ones_end")
    a("s_endpgm")

def gen_xn(a):
    load_ptr(a, 4, KA_X); load_ptr(a, 20, KA_WS)
    wave_id(a, 22, 1)
    a("v_and_b32 v1, 63, v0")
    a("v_and_b32 v2, 15, v1           ; tok")
    a("v_lshrrev_b32 v3, 4, v1        ; g")
    a("v_lshlrev_b32 v4, 4, v1        ; lane*16")
    a(f"s_sub_u32 s23, s2, {B_XN}")
    a("s_lshr_b32 s26, s22, 1         ; tbl")
    a("s_and_b32 s27, s22, 1          ; half")
    a("v_mul_u32_u24 v5, 1152, v2")
    a("v_lshl_add_u32 v5, v3, 4, v5")
    a(f"s_mul_i32 s28, s23, {32*1152}")
    a(f"s_mul_i32 s29, s26, {16*1152}")
    a("s_add_u32 s28, s28, s29")
    a("s_mul_i32 s29, s27, 576")
    a("s_add_u32 s28, s28, s29")
    a("s_waitcnt lgkmcnt(0)")
    srd(a, 8, 4, SZ_X); srd(a, 12, 20, SZ_XN, WS_XN)
    VX=16; VS=56; VQ=57; VT=58; RS=60; TT=64; VO=72
    for i in range(9):
        a(f"buffer_load_dwordx4 {vr(VX+4*i)}, v5, s[8:11], s28 offen offset:{i*64}")
    a("s_mov_b32 s30, 0x3f803f80")
    a("s_waitcnt vmcnt(0)")
    ln_stats(a, VX, 36, VS, VQ, 30)
    xsum16_32(a, VS, VT); xsum16_32(a, VQ, VT)
    a("s_lshl_b32 s28, s22, 7")
    a("v_lshlrev_b32 v6, 3, v2")
    a("v_add_u32 v7, s28, v6")
    a(f"ds_write_b64 v7, {vr(VS,2)}")
    a("s_waitcnt lgkmcnt(0)")
    a("s_barrier")
    a("s_xor_b32 s28, s22, 1")
    a("s_lshl_b32 s28, s28, 7")
    a("v_add_u32 v7, s28, v6")
    a(f"ds_read_b64 {vr(VT,2)}, v7")
    a("s_waitcnt lgkmcnt(0)")
    a(f"v_add_f32 v{VS}, v{VS}, v{VT}")
    a(f"v_add_f32 v{VQ}, v{VQ}, v{VT+1}")
    ln_finish(a, VS, VQ, RS, RS+2)
    a(f"v_mov_b32 v{RS+1}, v{RS}")
    a(f"v_mov_b32 v{RS+3}, v{RS+2}")
    a("s_lshr_b32 s28, s23, 1")
    a("s_mul_i32 s28, s28, 73728")
    a("s_and_b32 s29, s23, 1")
    a("s_lshl_b32 s29, s29, 1")
    a("s_add_u32 s29, s29, s26")
    a("s_lshl_b32 s29, s29, 10")
    a("s_add_u32 s28, s28, s29")
    a(f"s_mul_i32 s29, s27, {9*4096}")
    a("s_add_u32 s28, s28, s29")
    for i in range(9):
        o = VO + 4*(i & 1)
        chunk_unpack(a, VX+4*i, TT); chunk_norm(a, TT, RS); chunk_pack(a, TT, o)
        a(f"buffer_store_dwordx4 {vr(o)}, v4, s[12:15], s28 offen " + SC("K1SC", "1"))
        if i < 8: a("s_add_u32 s28, s28, 4096")
    a("s_endpgm")

def gen_poison(a):
    load_ptr(a, 20, KA_WS)
    a(f"s_sub_u32 s23, s2, {B_POIS}")
    a("v_lshlrev_b32 v1, 4, v0")
    for i in range(4): a(f"v_mov_b32 v{4+i}, -1")
    a("s_waitcnt lgkmcnt(0)")
    srd(a, 8, 20, SZ_OM + SZ_OE, WS_OM)
    assert WS_OE == WS_OM + SZ_OM and SZ_OM + SZ_OE == 36*65536 and SZ_X1F == 36*65536 and SZ_STP == 65536
    for tag, q, lo, nxt in [("a", 8, 0, 36)]:
        a(f"s_cmp_ge_u32 s23, {nxt}\ns_cbranch_scc1 k1_pois_{tag}")
        a(f"s_sub_u32 s24, s23, {lo}")
        a("s_lshl_b32 s24, s24, 16")
        for i in range(16):
            a(f"buffer_store_dwordx4 v[4:7], v1, s[{q}:{q+3}], s24 offen sc0 sc1")
            if i < 15: a("s_add_u32 s24, s24, 4096")
        a("s_endpgm")
        a.label(f"k1_pois_{tag}")
    a("s_endpgm")

def gen_k1():
    a = Asm()
    a(f"s_cmp_lt_u32 s2, {B_LS}\ns_cbranch_scc1 k1_mod")
    a(f"s_cmp_lt_u32 s2, {B_W13}\ns_cbranch_scc1 k1_ls")
    a(f"s_cmp_lt_u32 s2, {B_XN}\ns_cbranch_scc1 k1_ones")
    a(f"s_cmp_lt_u32 s2, {B_POIS}\ns_cbranch_scc1 k1_xn")
    a(f"s_cmp_lt_u32 s2, {K1_NWG}\ns_cbranch_scc1 k1_pois")
    a("s_endpgm")
    a.label("k1_mod")
    a("s_mov_b32 s44, s2\ns_mov_b32 s45, 0")
    gen_mod(a, "k1", MODNC if SIDE == 'k2' else 64)
    a.label("k1_ls")
    wave_id(a, 22, 1)
    a(f"s_sub_u32 s23, s2, {B_LS}")
    a("s_lshl_b32 s23, s23, 2")
    a("s_add_u32 s23, s23, s22        ; task")
    if SIDE == 'k2':
        gen_ldsshuf(a, "k1", True, False)
    else:
        a("s_cmp_ge_u32 s23, 216\ns_cbranch_scc1 k1_lswo")
        gen_ldsshuf(a, "k1", True, False)
        a.label("k1_lswo")
        a("s_sub_u32 s23, s23, 216")
        gen_ldsshuf(a, "k1b", False, True)
    a.label("k1_ones"); gen_ones(a)
    a.label("k1_xn"); gen_xn(a)
    a.label("k1_pois"); gen_poison(a)
    return kernel("k1_prep_kernel", a, vgpr=112, sgpr=64), (K1_NWG, 256, K1_LDS)


def w13_load(a, tag, s_id, vb, vin, sdst):
    sdiv(a, 25, s_id, 648, 26, 27)
    sdiv(a, 27, 26, 18, 28, 29)
    a(f"s_mul_i32 s29, s28, {32*9216}")
    a("s_lshl_b32 s30, s27, 8")
    a("s_add_u32 s29, s29, s30        ; soffset")
    a(f"s_cmp_eq_u32 s25, 1\ns_cbranch_scc1 {tag}_w3")
    for j in range(8):
        a(f"buffer_load_dwordx4 {vr(vin+4*j)}, v{vb+1}, s[8:11], s29 offen")
        if j < 7: a("s_add_u32 s29, s29, 9216")
    a(f"s_branch {tag}_j")
    a.label(f"{tag}_w3")
    for j in range(8):
        a(f"buffer_load_dwordx4 {vr(vin+4*j)}, v{vb+1}, s[12:15], s29 offen")
        if j < 7: a("s_add_u32 s29, s29, 9216")
    a.label(f"{tag}_j")
    sdiv(a, 30, 27, 3, 31, 33)
    a("s_mul_i32 s30, s30, 110592")
    a("s_mul_i32 s33, s28, 6144")
    a("s_add_u32 s30, s30, s33")
    a("s_lshl_b32 s31, s31, 1")
    a("s_add_u32 s31, s31, s25")
    a("s_lshl_b32 s31, s31, 10")
    a(f"s_add_u32 s{sdst}, s30, s31")
def w13_finish(a, vb, vin, vout, sdst):
    for i in range(8):
        for jp in range(4):
            sel = "s41" if i & 1 else "s40"
            a(f"v_perm_b32 v{vout+4*i+jp}, v{vin+4*(2*jp+1)+(i>>1)}, v{vin+4*(2*jp)+(i>>1)}, {sel}")
        a(f"buffer_store_dwordx4 {vr(vout+4*i)}, v{vb}, s[16:19], s{sdst} offen sc0 sc1")
        if i < 7: a(f"s_add_u32 s{sdst}, s{sdst}, {SZ_W13S}")
def w2_load(a, s_id, vb, vin, sdst):
    sdiv(a, 25, s_id, 108, 26, 27)
    sdiv(a, 27, 26, 6, 28, 29)
    a("s_lshl_b32 s29, s27, 8")
    a("s_add_u32 s29, s29, s25")
    a("s_mul_i32 s29, s29, 1152")
    a("s_mul_i32 s30, s28, 192")
    a("s_add_u32 s29, s29, s30")
    for v in range(2):
        for j in range(4):
            a(f"s_add_u32 s30, s29, {(128*v+8*j)*1152}")
            a(f"buffer_load_dwordx3 {vr(vin+4*(4*v+j),3)}, v{vb+2}, s[44:47], s30 offen")
    a(f"s_mul_i32 s30, s25, {SZ_W2S}")
    a("s_mul_i32 s31, s28, 110592")
    a("s_add_u32 s30, s30, s31")
    a("s_mul_i32 s31, s27, 3072")
    a(f"s_add_u32 s{sdst}, s30, s31")
def w2_finish(a, vb, vin, vout, sdst):
    for i in range(6):
        for v in range(2):
            for jj in range(2):
                sel = "s41" if i & 1 else "s40"
                a(f"v_perm_b32 v{vout+4*i+2*v+jj}, v{vin+4*(4*v+2*jj+1)+(i>>1)}, v{vin+4*(4*v+2*jj)+(i>>1)}, {sel}")
        a(f"s_add_u32 s31, s{sdst}, {(i//3)*55296 + (i%3)*1024}")
        a(f"buffer_store_dwordx4 {vr(vout+4*i)}, v{vb}, s[48:51], s31 offen sc0 sc1")
```

```python
from common import *
from k1 import w13_load, w13_finish, w2_load, w2_finish, shuffle_lane_setup, perm_consts
from k4 import oproj
import k5 as _k5
K3_LDS = KVH + 64
L3_CNT = KVH
UN = 4
import os
MERGE4 = os.environ.get('MERGE4', '1') == '1'
MERGE5 = MERGE4 and os.environ.get('MERGE5', '1') == '1'
OMSC = 'sc0 sc1' if (MERGE4 or os.environ.get('OMSC', '0') == '1') else ''
ST1 = 16

def gen_k3():
    a = Asm()
    a("s_cmp_ge_u32 s2, 256\ns_cbranch_scc1 k3_exit")
    load_ptr(a, 20, KA_WS)
    wave_id(a, 22, 1)
    a("s_cmp_ge_u32 s22, 8\ns_cbranch_scc1 k3_helper")
    VL=1; VL16=2; VQI=3; VHH=4
    a(f"v_and_b32 v{VL}, 63, v0")
    a(f"v_lshlrev_b32 v{VL16}, 4, v{VL}")
    a(f"v_and_b32 v{VQI}, 31, v{VL}")
    a(f"v_lshrrev_b32 v{VHH}, 5, v{VL}")
    a("s_and_b32 s23, s2, 31          ; head")
    a("s_lshr_b32 s24, s2, 5          ; qb")
    a("s_waitcnt lgkmcnt(0)")
    srd(a, 8, 20, SZ_KV, WS_KV); srd(a, 12, 20, SZ_QA, WS_QA); srd(a, 16, 20, SZ_QB, WS_QB)
    VQA=8; VQB=12
    VS=[16, 32]
    VP=48
    VO=56
    VKA=[72, 76]; VKB=[80, 82]; VV=[84, 92]
    AKA=100; AKB=101; AV=102; VT=104
    a("s_lshl_b32 s25, s24, 3")
    a("s_add_u32 s25, s25, s22")
    a("s_lshl_b32 s26, s23, 16")
    a("s_lshl_b32 s27, s25, 10")
    a("s_add_u32 s26, s26, s27")
    a(f"buffer_load_dwordx4 {vr(VQA)}, v{VL16}, s[12:15], s26 offen")
    a("s_lshl_b32 s26, s23, 14")
    a("s_lshl_b32 s27, s25, 8")
    a("s_add_u32 s26, s26, s27")
    a(f"v_lshlrev_b32 v5, 3, v{VQI}")
    a(f"buffer_load_dwordx2 {vr(VQB,2)}, v5, s[16:19], s26 offen")
    a(f"s_mul_i32 s28, s23, {KVH}")
    def dma(off_expr_sgpr, vl=VL16, q=8):
        a(f"s_mov_b32 m0, s{off_expr_sgpr}")
        a(f"s_add_u32 s30, s28, s{off_expr_sgpr}")
        a(f"buffer_load_dwordx4 v{vl}, s[{q}:{q+3}], s30 offen lds")
    def chunks(base, first, count):
        n = (count + 7)//8
        for i in range(n):
            a(f"s_add_u32 s29, s22, {8*i}")
            if 8*i + 7 >= count: a(f"s_min_u32 s29, s29, {count-1}")
            a(f"s_lshl_b32 s29, s29, 10")
            a(f"s_add_u32 s29, s29, {base + first*1024}")
            dma(29)
        return n
    assert (ST1*1216) % 1024 == 0
    n1 = chunks(KV_KA, 0, ST1) + chunks(KV_KB, 0, ST1//4) + chunks(KV_V, 0, ST1*1216//1024)
    nKA2 = 64-ST1; nKB2 = (64-ST1)//4; nV2 = (64-ST1)*1216//1024
    def dma2(sj, vl, q):
        a(f"s_min_u32 s29, s{sj}, {nKA2+nKB2+nV2-1}")
        a(f"s_cmp_ge_u32 s29, {nKA2}")
        a(f"s_cselect_b32 s31, {ST1//4}, 0")
        a(f"s_add_u32 s31, s31, {ST1}")
        a(f"s_cmp_ge_u32 s29, {nKA2+nKB2}")
        a(f"s_cselect_b32 s30, {ST1*1216//1024}, 0")
        a(f"s_add_u32 s29, s29, s31")
        a(f"s_add_u32 s29, s29, s30")
        a(f"s_lshl_b32 s29, s29, 10")
        dma(29, vl, q)
    n2 = 0
    a(f"v_mov_b32 v6, {L3_CNT}")
    a(f"v_mov_b32 v7, 0")
    a(f"ds_write_b32 v6, v7")
    a(f"ds_write_b32 v6, v7 offset:4")
    a(f"ds_write_b32 v6, v7 offset:8")
    a(f"ds_write_b32 v6, v7 offset:12")
    a(f"v_mov_b32 v{AKA}, v{VL16}")
    a(f"v_lshlrev_b32 v{AKB}, 3, v{VQI}")
    a(f"v_add_u32 v{AKB}, {KV_KB}, v{AKB}")
    a(f"v_min_u32 v5, 18, v{VQI}")
    a(f"v_cmp_lt_u32 vcc, 19, v{VQI}")
    a(f"v_cndmask_b32 v5, v5, 0, vcc")
    a(f"v_mov_b32 v6, 4")
    a(f"v_cmp_lt_u32 vcc, 27, v{VQI}")
    a(f"v_cndmask_b32 v5, v5, v6, vcc")
    a(f"v_lshlrev_b32 v5, 4, v5")
    a(f"v_mul_u32_u24 v6, 304, v{VHH}")
    a(f"v_add_u32 v5, v5, v6")
    a(f"v_add_u32 v{AV}, {KV_V}, v5")
    a(f"s_waitcnt vmcnt({n1+n2})")
    a(f"v_cmp_eq_u32 vcc, 0, v{VHH}")
    a(f"v_cndmask_b32 v{VQB}, 0, v{VQB}, vcc")
    a(f"v_mov_b32 v{VQB+1}, 0")
    a(f"s_waitcnt vmcnt({n2}) lgkmcnt(0)")
    a("s_barrier")
    a.stamp(1)
    a("s_mov_b32 s34, 0")

    def kread(buf, tile_off):
        a(f"ds_read_b128 {vr(VKA[buf])}, v{AKA} offset:{tile_off*1024}")
        a(f"ds_read_b64 {vr(VKB[buf],2)}, v{AKB} offset:{tile_off*256}")
    def vread(buf, tile_off):
        a(f"ds_read_b128 {vr(VV[buf])}, v{AV} offset:{tile_off*1216}")
        a(f"ds_read_b128 {vr(VV[buf]+4)}, v{AV} offset:{tile_off*1216+608}")
    def qk1(sb, kb): a(f"v_mfma_f32_32x32x16_bf16 {vr(VS[sb],16)}, {vr(VKA[kb])}, {vr(VQA)}, 0")
    def qk2(sb, kb): a(f"v_mfma_f32_32x32x8bf16_1k {vr(VS[sb],16)}, {vr(VKB[kb],2)}, {vr(VQB,2)}, {vr(VS[sb],16)}")
    def setmax(vm):
        a(f"v_mov_b32 v{VT+1}, v{vm}")
        a(f"v_permlane32_swap_b32 v{vm}, v{VT+1}")
        a(f"v_max_f32 v{vm}, v{vm}, v{VT+1}")
        a(f"v_sub_f32 v{vm}, 0, v{vm}")
        a(f"v_cvt_pk_bf16_f32 v{vm}, v{vm}, 0")
        a(f"v_and_b32 v{vm}, 0xffff, v{vm}")
        a(f"v_cmp_eq_u32 vcc, 0, v{VHH}")
        a(f"v_cndmask_b32 v{VQB+1}, 0, v{vm}, vcc")
    def tilemax(sb, vm, first):
        s = VS[sb]
        if first:
            a(f"v_max3_f32 v{vm}, v{s}, v{s+1}, v{s+2}")
            a(f"v_max_f32 v{vm}, v{vm}, v{s+3}")
            rng = range(4, 16, 2)
        else:
            rng = range(0, 16, 2)
        for i in rng: a(f"v_max3_f32 v{vm}, v{s+i}, v{s+i+1}, v{vm}")

    kread(0, 0)
    a("s_waitcnt lgkmcnt(0)")
    qk1(0, 0); qk2(0, 0)
    tilemax(0, VT, True)
    setmax(VT)

    a.label("k3_pass")
    a(f"v_mov_b32 v{AKA}, v{VL16}")
    a(f"v_lshlrev_b32 v{AKB}, 3, v{VQI}")
    a(f"v_add_u32 v{AKB}, {KV_KB}, v{AKB}")
    a(f"v_add_u32 v{AV}, {KV_V}, v5")
    for i in range(16): a(f"v_mov_b32 v{VO+i}, 0")
    for r in list(range(VV[1]+4, VV[1]+8)) + [VP+4, VP+5, VP+6, VS[1]+14, VS[1]+15]: a(f"v_mov_b32 v{r}, 0")
    kread(0, 0); kread(1, 1); vread(0, 0)
    a("s_waitcnt lgkmcnt(4)")
    qk1(0, 0); qk2(0, 0)
    kread(0, 2)
    def body(j, do_k, do_v, pend_k):
        sb = j & 1; nb = sb ^ 1
        s = VS[sb]; sp = VS[nb]
        ex = lambda i: a(f"v_exp_f32 v{s+i}, v{s+i}")
        cv = lambda i: a(f"v_cvt_pk_bf16_f32 v{VP+i}, v{s+2*i}, v{s+2*i+1}")
        a(f"s_waitcnt lgkmcnt({2 if pend_k else 0})")
        ex(0); ex(1)
        a(f"v_cvt_pk_bf16_f32 v{VP+7}, v{sp+14}, v{sp+15}")
        ex(2); ex(3)
        a(f"v_mfma_f32_32x32x16_bf16 {vr(VO,16)}, {vr(VV[nb]+4)}, {vr(VP+4)}, {vr(VO,16)}")
        if do_v: vread(nb, j+1)
        cv(0); ex(4); ex(5); cv(1); ex(6)
        if do_v: qk1(nb, nb)
        ex(7); cv(2); ex(8); ex(9); cv(3); ex(10)
        if do_v: qk2(nb, nb)
        ex(11); cv(4); ex(12); ex(13)
        a(f"v_mfma_f32_32x32x16_bf16 {vr(VO,16)}, {vr(VV[sb])}, {vr(VP)}, {vr(VO,16)}")
        cv(5); ex(14); ex(15); cv(6)
        if do_k: kread(nb, j+3)
    def tail(j):
        sb = j & 1; s = VS[sb]
        a("s_nop 0")
        a(f"v_cvt_pk_bf16_f32 v{VP+7}, v{s+14}, v{s+15}")
        a(f"v_mfma_f32_32x32x16_bf16 {vr(VO,16)}, {vr(VV[sb]+4)}, {vr(VP+4)}, {vr(VO,16)}")
    def bump(n):
        a(f"v_add_u32 v{AKA}, {n*1024}, v{AKA}")
        a(f"v_add_u32 v{AKB}, {n*256}, v{AKB}")
        a(f"v_add_u32 v{AV}, {n*1216}, v{AV}")
    n_a = (ST1-4)//UN
    a(f"s_mov_b32 s33, {n_a}")
    a.label("k3_loop1")
    for j in range(UN): body(j, True, True, True)
    bump(UN)
    a("s_sub_u32 s33, s33, 1\ns_cmp_lg_u32 s33, 0\ns_cbranch_scc1 k3_loop1")
    a("s_cmp_lg_u32 s34, 0\ns_cbranch_scc1 k3_nosync")
    a(f"v_mov_b32 v6, {L3_CNT}")
    a.label("k3_poll")
    a("ds_read_b32 v7, v6")
    a("s_waitcnt lgkmcnt(0)")
    a("v_readfirstlane_b32 s33, v7")
    a("s_cmp_ge_u32 s33, 4\ns_cbranch_scc0 k3_poll")
    a.label("k3_nosync")
    n_b = (60 - n_a*UN)//UN
    a(f"s_mov_b32 s33, {n_b}")
    a.label("k3_loop2")
    for j in range(UN): body(j, True, True, True)
    bump(UN)
    a("s_sub_u32 s33, s33, 1\ns_cmp_lg_u32 s33, 0\ns_cbranch_scc1 k3_loop2")
    body(0, True, True, True)
    body(1, False, True, True)
    body(2, False, True, False)
    body(3, False, False, False)
    tail(3)
    a.stamp(2)
    a("s_cmp_lg_u32 s34, 0\ns_cbranch_scc1 k3_final")
    a(f"v_add_f32 v{VT}, |v{VO}|, |v{VO+1}|")
    for i in range(2, 16): a(f"v_add_f32 v{VT}, v{VT}, |v{VO+i}|")
    a(f"v_mov_b32 v{VT+1}, 0x7e800000")
    a(f"v_cmp_nlt_f32 vcc, v{VT}, v{VT+1}")
    a("s_cmp_eq_u64 vcc, 0\ns_cbranch_scc1 k3_final")
    a("s_mov_b32 s34, 1")
    a(f"v_mov_b32 v{VQB+1}, 0")
    a(f"v_mov_b32 v{AKA}, v{VL16}")
    a(f"v_lshlrev_b32 v{AKB}, 3, v{VQI}")
    a(f"v_add_u32 v{AKB}, {KV_KB}, v{AKB}")
    a(f"v_mov_b32 v{VT}, 0xff800000")
    a("s_mov_b32 s33, 64")
    a.label("k3_maxloop")
    kread(0, 0)
    a("s_waitcnt lgkmcnt(0)")
    qk1(0, 0); qk2(0, 0)
    tilemax(0, VT, False)
    a(f"v_add_u32 v{AKA}, 1024, v{AKA}")
    a(f"v_add_u32 v{AKB}, 256, v{AKB}")
    a("s_sub_u32 s33, s33, 1\ns_cmp_lg_u32 s33, 0\ns_cbranch_scc1 k3_maxloop")
    setmax(VT)
    a("s_branch k3_pass")
    a.label("k3_final")
    srd(a, 8, 20, SZ_OM, WS_OM); srd(a, 12, 20, SZ_OE, WS_OE)
    a(f"v_mov_b32 v{VT}, v{VO+10}")
    a(f"v_mov_b32 v{VT+1}, v{VO+10}")
    a(f"v_permlane32_swap_b32 v{VT}, v{VT+1}")
    a(f"v_rcp_f32 v{VT}, v{VT}")
    for i in list(range(8)) + [8, 9]: a(f"v_mul_f32 v{VO+i}, v{VO+i}, v{VT}")
    a(f"v_cvt_pk_bf16_f32 v{VP}, v{VO}, v{VO+1}")
    a(f"v_cvt_pk_bf16_f32 v{VP+1}, v{VO+2}, v{VO+3}")
    a(f"v_cvt_pk_bf16_f32 v{VP+2}, v{VO+4}, v{VO+5}")
    a(f"v_cvt_pk_bf16_f32 v{VP+3}, v{VO+6}, v{VO+7}")
    a(f"v_cvt_pk_bf16_f32 v{VP+4}, v{VO+8}, v{VO+9}")
    a(f"v_permlane32_swap_b32 v{VP}, v{VP+2}")
    a(f"v_permlane32_swap_b32 v{VP+1}, v{VP+3}")
    a("s_lshl_b32 s26, s23, 16")
    a("s_lshl_b32 s27, s25, 10")
    a("s_add_u32 s26, s26, s27")
    a(f"buffer_store_dwordx4 {vr(VP)}, v{VL16}, s[8:11], s26 offen " + OMSC)
    a("s_lshl_b32 s26, s23, 13")
    a("s_lshl_b32 s27, s25, 7")
    a("s_add_u32 s26, s26, s27")
    a(f"v_lshlrev_b32 v5, 2, v{VQI}")
    a(f"v_cmp_eq_u32 vcc, 0, v{VHH}")
    a("s_and_saveexec_b64 s[36:37], vcc")
    a(f"buffer_store_dword v{VP+4}, v5, s[12:15], s26 offen " + (OMSC if MERGE4 else ""))
    if MERGE5 and TAGS:
        a("s_mov_b64 exec, s[36:37]")
        a("s_branch k3_proj")
    elif MERGE4:
        a("s_mov_b64 exec, s[36:37]")
        a("s_waitcnt vmcnt(0)")
        srd(a, 52, 20, SZ_CNT, WS_CNT)
        a("s_mov_b32 s58, 0")
        a(f"v_mov_b32 v6, {L3_CNT+4}")
        a("v_mov_b32 v7, 1")
        a("s_mov_b64 exec, 1")
        a("ds_add_rtn_u32 v8, v6, v7")
        a("s_waitcnt lgkmcnt(0)")
        a("v_readfirstlane_b32 s26, v8")
        a("s_cmp_lg_u32 s26, 7\ns_cbranch_scc1 k3_nosig")
        a("s_lshl_b32 s26, s24, 9")
        a("v_mov_b32 v6, s26")
        a("buffer_atomic_add v7, v6, s[52:55], 0 offen sc1")
        a("s_mov_b32 s58, 1")
        a.label("k3_nosig")
        a("s_mov_b64 exec, -1")
        a("s_branch k3_proj")
    else:
        a("s_endpgm")
    a.label("k3_helper")
    if ENV("HPRIO", "1") == "1": a("s_setprio 2")
    load_ptr(a, 4, KA_W1); load_ptr(a, 6, KA_W3); load_ptr(a, 42, KA_W2)
    shuffle_lane_setup(a, 4)
    perm_consts(a)
    a("s_lshl_b32 s23, s2, 2")
    a("s_add_u32 s23, s23, s22")
    a("s_sub_u32 s23, s23, 8")
    a("s_waitcnt lgkmcnt(0)")
    srd(a, 8, 4, 576*9216); srd(a, 12, 6, 576*9216); srd(a, 16, 20, SZ_W13, WS_W13)
    srd(a, 44, 42, 4608*1152); srd(a, 48, 20, SZ_W2, WS_W2); srd(a, 52, 20, SZ_KV, WS_KV)
    VLH = 4
    a("s_barrier")
    a("s_and_b32 s26, s2, 31")
    a(f"s_mul_i32 s28, s26, {KVH}")
    a("s_sub_u32 s35, s22, 8")
    a(f"s_mov_b32 s33, {-(-(nKA2+nKB2+nV2)//4)}")
    a.label("k3_hdma")
    dma2(35, VLH, 52)
    a("s_add_u32 s35, s35, 4")
    a("s_sub_u32 s33, s33, 1\ns_cmp_lg_u32 s33, 0\ns_cbranch_scc1 k3_hdma")
    VI=[8, 40]; VOUT=72; SD=[34, 35]
    w13_load(a, "k3h0", 23, 4, VI[0], SD[0])
    a("s_waitcnt vmcnt(8)")
    a(f"v_mov_b32 v110, {L3_CNT}")
    a(f"v_mov_b32 v111, 1")
    a("s_mov_b64 exec, 1")
    a("ds_add_u32 v110, v111")
    a("s_mov_b64 exec, -1")
    if MERGE5 and TAGS:
        assert SZ_X1F == 1024*2304 and SZ_STP == 1024*64
        srd(a, 52, 20, WS_STP + SZ_STP - WS_X1F, WS_X1F)
        for i in range(4): a(f"v_mov_b32 v{112+i}, -1")
        a("s_mul_i32 s26, s23, 2304")
        a("buffer_store_dwordx4 v[112:115], v4, s[52:55], s26 offen sc0 sc1")
        a("buffer_store_dwordx4 v[112:115], v4, s[52:55], s26 offen offset:1024 sc0 sc1")
        a("s_mov_b64 exec, 0xffff")
        a("buffer_store_dwordx4 v[112:115], v4, s[52:55], s26 offen offset:2048 sc0 sc1")
        a("s_lshl_b32 s26, s23, 6")
        a(f"s_add_u32 s26, s26, {WS_STP - WS_X1F:#x}")
        a("s_mov_b64 exec, 0xf")
        a("buffer_store_dwordx4 v[112:115], v4, s[52:55], s26 offen sc0 sc1")
        a("s_mov_b64 exec, -1")
    NP = 4 if (MERGE5 and TAGS) else 0
    a("s_cmp_ge_u32 s23, 272\ns_cbranch_scc1 k3_hb")
    a("s_add_u32 s24, s23, 1024")
    w13_load(a, "k3h1", 24, 4, VI[1], SD[1])
    a(f"s_waitcnt vmcnt({8+NP})")
    w13_finish(a, 4, VI[0], VOUT, SD[0])
    a("s_waitcnt vmcnt(8)")
    w13_finish(a, 4, VI[1], VOUT, SD[1])
    a("s_branch k3_hdone")
    a.label("k3_hb")
    a("s_sub_u32 s24, s23, 272")
    w2_load(a, 24, 4, VI[1], SD[1])
    a(f"s_waitcnt vmcnt({8+NP})")
    w13_finish(a, 4, VI[0], VOUT, SD[0])
    a("s_cmp_ge_u32 s23, 384\ns_cbranch_scc1 k3_hc")
    a("s_add_u32 s24, s23, 480        ; 752 + gw - 272")
    w2_load(a, 24, 4, VI[0], SD[0])
    a("s_waitcnt vmcnt(16)")
    w2_finish(a, 4, VI[1], VOUT, SD[1])
    a("s_waitcnt vmcnt(6)")
    w2_finish(a, 4, VI[0], VOUT, SD[0])
    a("s_branch k3_hdone")
    a.label("k3_hc")
    a("s_waitcnt vmcnt(8)")
    w2_finish(a, 4, VI[1], VOUT, SD[1])
    a.label("k3_hdone")
    if ENV("HPRIO", "1") == "1": a("s_setprio 0")
    if MERGE5:
        a("s_waitcnt vmcnt(0)")
        srd(a, 52, 20, SZ_CNT, WS_CNT)
        a(f"v_mov_b32 v6, {L3_CNT+8}")
        a("v_mov_b32 v7, 1")
        a("s_mov_b64 exec, 1")
        a("ds_add_rtn_u32 v8, v6, v7")
        a("s_waitcnt lgkmcnt(0)")
        a("v_readfirstlane_b32 s26, v8")
        a("s_cmp_lg_u32 s26, 3\ns_cbranch_scc1 k3_hnosig")
        a("s_and_b32 s26, s2, 7")
        a(f"s_add_u32 s26, s26, {C_W}")
        a("s_lshl_b32 s26, s26, 9")
        a("v_mov_b32 v6, s26")
        a("buffer_atomic_add v7, v6, s[52:55], 0 offen sc1")
        a.label("k3_hnosig")
        a("s_mov_b64 exec, -1")
        a("s_mov_b32 s58, 0")
        a("s_cmp_eq_u32 s22, 8\ns_cbranch_scc1 k3_proj")
        a("s_barrier\ns_barrier" + ("" if NOSTATS else "\ns_barrier") + "          ; the barriers of the projection phase")
        a("s_branch k3_ffn")
    if MERGE4:
        a("s_cmp_lg_u32 s22, 8\ns_cbranch_scc1 k3_exit")
        a("s_mov_b32 s58, 0")
        a.label("k3_proj")
        a("s_and_b32 s26, s2, 31")
        a("s_lshr_b32 s56, s2, 5")
        a("s_lshr_b32 s23, s26, 3")
        a("s_and_b32 s24, s26, 7")
        a("s_lshl_b32 s27, s56, 3")
        a("s_add_u32 s24, s24, s27        ; tg")
        oproj(a, "k3p", True, chain=(L3_CNT+12 if MERGE5 else None))
    if MERGE5:
        a.label("k3_ffn")
        _k5.ffn(a, True)
    a.label("k3_exit")
    return kernel("k3_attn_kernel", a, vgpr=168 if MERGE5 else (144 if MERGE4 else 112), sgpr=64), (256, 768, K3_LDS)
```

```python
from common import *
from k6 import reduce_loads, reduce_main
import os
MERGE6 = os.environ.get('MERGE6', '1') == '1'
L5_X=0; L5_H=73728
K5_LDS = 147456 + 64 + 1536
L5_CNT = 147456
L5_STAT = 147456 + 64
NLOG2E=0xbfb8aa3b
K5_A = int(os.environ.get('K5_A', '2'))
def gen_k5():
    a = Asm()
    a("s_cmp_ge_u32 s2, 256\ns_cbranch_scc1 k5_exit")
    load_ptr(a, 20, KA_WS)
    wave_id(a, 22, 1)
    ffn(a, False)
    return kernel("k5_ffn_kernel", a, vgpr=168, sgpr=64), (256, 768, K5_LDS)

def ffn(a, chained):
    XF = (" " + ENV("XLD", "sc1")) if chained else ""
    WF = "sc1" if chained else ENV('K5WF', '')
    VL=1; VTOK=2; VG=3; VL16=4
    a(f"v_and_b32 v{VL}, 63, v0")
    a(f"v_and_b32 v{VTOK}, 15, v{VL}")
    a(f"v_lshrrev_b32 v{VG}, 4, v{VL}")
    a(f"v_lshlrev_b32 v{VL16}, 4, v{VL}")
    A = K5_A; lgA = {1: 0, 2: 1, 4: 2, 8: 3}[A]
    a("s_and_b32 s25, s2, 7")
    a("s_lshr_b32 s26, s2, 3")
    a(f"s_and_b32 s23, s25, {8//A - 1}")
    a(f"s_lshl_b32 s23, s23, {lgA}")
    a(f"s_and_b32 s27, s26, {A-1}")
    a("s_add_u32 s23, s23, s27        ; slice")
    a(f"s_lshr_b32 s24, s25, {3-lgA}")
    a(f"s_lshl_b32 s24, s24, {5-lgA}")
    a(f"s_lshr_b32 s26, s26, {lgA}")
    a("s_add_u32 s24, s24, s26        ; rb")
    sdiv(a, 26, 22, 3, 27, 25)
    a("s_waitcnt lgkmcnt(0)")
    WBASE = WS_W13
    srd(a, 8, 20, SZ_X1F, WS_X1F); srd(a, 12, 20, 4608, WS_MOD+3*2304)
    srd(a, 16, 20, WS_W2 + SZ_W2 - WBASE, WBASE); srd(a, 44, 20, SZ_PART, WS_PART); srd(a, 48, 20, SZ_STP, WS_STP)
    VACC=8
    VW=104
    VX=152
    AX=5; AH=6
    XP=VACC
    MT=XP+24
    ST=XP+32
    a(f"s_mul_i32 s28, s27, 768")
    a(f"buffer_load_dwordx4 {vr(MT)}, v{VL16}, s[12:15], s28 offen")
    a(f"s_add_u32 s28, s28, 2304")
    a(f"buffer_load_dwordx4 {vr(MT+4)}, v{VL16}, s[12:15], s28 offen")
    a(f"s_mul_i32 s40, s23, {SZ_W13S}")
    a("s_mul_i32 s29, s22, 110592")
    a("s_add_u32 s40, s40, s29")
    a(f"s_mul_i32 s41, s23, {SZ_W2S}")
    a("s_mul_i32 s29, s22, 55296")
    a("s_add_u32 s41, s41, s29")
    a(f"s_add_u32 s41, s41, {WS_W2-WBASE:#x}")
    a(f"v_add_u32 v7, 4096, v{VL16}")
    def wload(slot, f, s):
        r = VW + 24*slot + 4*f
        if f < 4: a(f"buffer_load_dwordx4 {vr(r)}, v{VL16}, s[16:19], {s} offen offset:{f*1024} " + WF)
        else:     a(f"buffer_load_dwordx4 {vr(r)}, v7, s[16:19], {s} offen offset:{(f-4)*1024} " + WF)
    def stloads():
        a(f"s_lshl_b32 s28, s24, 6")
        a(f"s_lshl_b32 s29, s26, 4")
        a(f"s_add_u32 s28, s28, s29")
        a(f"s_lshl_b32 s28, s28, 5")
        a(f"v_lshlrev_b32 v{AX}, 5, v{VTOK}")
        a(f"buffer_load_dwordx4 {vr(ST)}, v{AX}, s[48:51], s28 offen" + XF)
        a(f"buffer_load_dwordx4 {vr(ST+4)}, v{AX}, s[48:51], s28 offen offset:16" + XF)
    def frloads():
        a("s_mul_i32 s28, s24, 73728")
        a(f"s_mul_i32 s29, s27, {6*4096}")
        a("s_add_u32 s28, s28, s29")
        a("s_lshl_b32 s29, s26, 10")
        a("s_add_u32 s28, s28, s29")
        for i in range(6):
            a(f"buffer_load_dwordx4 {vr(XP+4*i)}, v{VL16}, s[8:11], s28 offen" + XF)
            if i < 5: a("s_add_u32 s28, s28, 4096")
    def xloads():
        stloads(); frloads()
    def modstage():
        a("s_lshl_b32 s30, s22, 11")
        a(f"s_add_u32 s30, s30, {L5_H}")
        a(f"v_add_u32 v{AH}, s30, v{VL16}")
        if MERGE6:
            a(f"v_mov_b32 v{AX}, {L5_CNT}")
            a(f"v_mov_b32 v{VX}, 0")
            a(f"ds_write_b32 v{AX}, v{VX}")
    EARLYW = chained
    if EARLYW and TAGS and XMODE in ("stp", "late"):
        def w01():
            for f in range(6): wload(0, f, "s40")
            a("s_add_u32 s40, s40, 6144")
            for f in range(6): wload(1, f, "s40")
            a("s_add_u32 s40, s40, 6144")
        if XMODE == "stp": w01()
        modstage()
        a("s_waitcnt vmcnt(%d)" % (12 if XMODE == "stp" else 0))
        a(f"ds_write_b128 v{AH}, {vr(MT)}")
        a(f"ds_write_b128 v{AH}, {vr(MT+4)} offset:1024")
        a("s_barrier")
        a.stamp(6)
        a("s_mov_b32 s57, 20000")
        a.label("k5_in_retry")
        xloads()
        a("s_waitcnt vmcnt(0)")
        any_poison(a, list(range(XP, XP+24)) + list(range(ST, ST+8)), VX)
        a("s_sub_u32 s57, s57, 1")
        a("s_cmp_eq_u32 s57, 0\ns_cbranch_scc1 k5_in_got")
        a("s_cmp_lg_u64 vcc, 0\ns_cbranch_scc1 k5_in_retry")
        a.label("k5_in_got")
    elif EARLYW and TAGS:
        for f in range(6): wload(0, f, "s40")
        a("s_add_u32 s40, s40, 6144")
        frloads()
        for f in range(6): wload(1, f, "s40")
        a("s_add_u32 s40, s40, 6144")
        modstage()
        a("s_waitcnt vmcnt(6)")
        any_poison(a, list(range(XP, XP+24)), VX)
        a("s_cmp_eq_u64 vcc, 0\ns_cbranch_scc1 k5_in_got")
        a("s_mov_b32 s57, 20000")
        a.label("k5_in_retry")
        frloads()
        a("s_waitcnt vmcnt(0)")
        any_poison(a, list(range(XP, XP+24)), VX)
        a("s_sub_u32 s57, s57, 1")
        a("s_cmp_eq_u32 s57, 0\ns_cbranch_scc1 k5_in_got")
        a("s_cmp_lg_u64 vcc, 0\ns_cbranch_scc1 k5_in_retry")
        a.label("k5_in_got")
        a(f"ds_write_b128 v{AH}, {vr(MT)}")
        a(f"ds_write_b128 v{AH}, {vr(MT+4)} offset:1024")
        a("s_mov_b32 s29, 0x3f803f80")
        ln_stats(a, XP, 24, ST, ST+1, 29)
        xsum16_32(a, ST, ST+2); xsum16_32(a, ST+1, ST+2)
        a("s_lshl_b32 s28, s27, 6")
        a("s_lshl_b32 s29, s26, 4")
        a("s_add_u32 s28, s28, s29")
        a(f"v_add_u32 v{AX}, s28, v{VTOK}")
        a(f"v_lshlrev_b32 v{AX}, 3, v{AX}")
        a(f"v_add_u32 v{AX}, {L5_STAT}, v{AX}")
        a(f"ds_write_b64 v{AX}, {vr(ST,2)}")
        a("s_waitcnt lgkmcnt(0)")
        a("s_barrier")
        a.stamp(6)
        a(f"v_add_u32 v{AX}, s29, v{VTOK}")
        a(f"v_lshlrev_b32 v{AX}, 3, v{AX}")
        a(f"v_add_u32 v{AX}, {L5_STAT}, v{AX}")
        a(f"ds_read_b64 {vr(ST,2)}, v{AX}")
        a(f"ds_read_b64 {vr(ST+2,2)}, v{AX} offset:512")
        a(f"ds_read_b64 {vr(ST+4,2)}, v{AX} offset:1024")
        a(f"v_mov_b32 v{ST+6}, 0")
        a(f"v_mov_b32 v{ST+7}, 0")
        a("s_waitcnt lgkmcnt(0)")
    elif EARLYW:
        for f in range(6): wload(0, f, "s40")
        a("s_add_u32 s40, s40, 6144")
        for f in range(6): wload(1, f, "s40")
        a("s_add_u32 s40, s40, 6144")
        modstage()
        a("s_waitcnt vmcnt(12)")
        a(f"ds_write_b128 v{AH}, {vr(MT)}")
        a(f"ds_write_b128 v{AH}, {vr(MT+4)} offset:1024")
        srd(a, 52, 20, SZ_CNT, WS_CNT)
        a("s_cmp_eq_u32 s58, 0\ns_cbranch_scc1 k5_in_nopoll")
        a(f"s_add_u32 s28, s24, {C_X1}")
        a(f"s_lshl_b32 s28, s28, 9")
        a(f"v_mov_b32 v8, s28")
        a("s_mov_b32 s29, 20000")
        a.label("k5_in_poll")
        a("buffer_load_dword v9, v8, s[52:55], 0 offen sc0 sc1")
        a("s_waitcnt vmcnt(0)")
        a("v_readfirstlane_b32 s28, v9")
        a("s_sub_u32 s29, s29, 1")
        a("s_cmp_eq_u32 s29, 0\ns_cbranch_scc1 k5_in_nopoll")
        a("s_cmp_ge_u32 s28, 8\ns_cbranch_scc0 k5_in_poll")
        a.label("k5_in_nopoll")
        a("s_barrier")
        a.stamp(6)
        xloads()
        a("s_waitcnt vmcnt(6)")
    else:
        xloads()
        modstage()
        a("s_waitcnt vmcnt(8)")
        a(f"ds_write_b128 v{AH}, {vr(MT)}")
        a(f"ds_write_b128 v{AH}, {vr(MT+4)} offset:1024")
        a("s_waitcnt vmcnt(6)")
    VS=ST; VQ=ST+1; VR=XP+40; VSH=XP+42
    a(f"v_add_f32 v{VS}, v{ST}, v{ST+2}")
    a(f"v_add_f32 v{VQ}, v{ST+1}, v{ST+3}")
    a(f"v_add_f32 v{ST+4}, v{ST+4}, v{ST+6}")
    a(f"v_add_f32 v{ST+5}, v{ST+5}, v{ST+7}")
    a(f"v_add_f32 v{VS}, v{VS}, v{ST+4}")
    a(f"v_add_f32 v{VQ}, v{VQ}, v{ST+5}")
    ln_finish(a, VS, VQ, VR, VSH)
    a(f"v_mov_b32 v{VR+1}, v{VR}")
    a(f"v_mov_b32 v{VSH+1}, v{VSH}")
    VC=[XP+48, XP+64]; VSF=[XP+56, XP+72]; VTT=XP+80; VO=XP+88
    a(f"v_lshlrev_b32 v{AX}, 5, v{VG}")
    a(f"v_add_u32 v{AX}, s30, v{AX}")
    a(f"s_mul_i32 s28, s27, {6*4096}")
    a(f"s_lshl_b32 s29, s26, 10")
    a(f"s_add_u32 s28, s28, s29")
    a(f"v_add_u32 v{AH}, s28, v{VL16}")
    def modread(i):
        b = i & 1
        a(f"ds_read_b128 {vr(VSF[b])}, v{AX} offset:{i*128}")
        a(f"ds_read_b128 {vr(VSF[b]+4)}, v{AX} offset:{i*128 + 16}")
        a(f"ds_read_b128 {vr(VC[b])}, v{AX} offset:{1024 + i*128}")
        a(f"ds_read_b128 {vr(VC[b]+4)}, v{AX} offset:{1024 + i*128 + 16}")
    a("s_waitcnt lgkmcnt(0)")
    modread(0)
    nw = 0
    for i in range(6):
        if i < 5: modread(i+1)
        if chained and TAGS: a(f"s_waitcnt lgkmcnt({4 if i < 5 else 0})")
        else: a(f"s_waitcnt vmcnt({5-i+nw}) lgkmcnt({4 if i < 5 else 0})")
        chunk_unpack(a, XP+4*i, VTT); chunk_norm(a, VTT, VR); chunk_mod(a, VTT, VC[i&1], VSF[i&1]); chunk_pack(a, VTT, VO+4*(i&1))
        a(f"ds_write_b128 v{AH}, {vr(VO+4*(i&1))} offset:{i*4096}")
        if not EARLYW:
            wload(0, i, "s40"); nw += 1
        elif TAGS and XMODE == "late":
            for f in (2*i, 2*i+1):
                wload(f // 6, f % 6, "s40")
                if f == 5: a("s_add_u32 s40, s40, 6144")
            if i == 5: a("s_add_u32 s40, s40, 6144")
    if not EARLYW:
        a("s_add_u32 s40, s40, 6144")
        for f in range(6): wload(1, f, "s40")
        a("s_add_u32 s40, s40, 6144")
    a("s_waitcnt lgkmcnt(0)")
    a("s_barrier")
    a.stamp(7)
    a(f"v_mov_b32 v{AX}, v{VL16}")
    def xread(tb, off): a(f"ds_read_b128 {vr(VX+4*tb)}, v{AX} offset:{off + tb*1024}")
    def step1(slot, first, do_x, xoff, wsrc, vm):
        for tb in range(4):
            w = f"lgkmcnt({3 if (do_x or True) else 0})"
            if tb == 0: a(f"s_waitcnt vmcnt({vm}) lgkmcnt({do_x_prev[0][tb]})")
            else:       a(f"s_waitcnt lgkmcnt({do_x_prev[0][tb]})")
            for f in range(6):
                acc = VACC + (f*4+tb)*4
                a(f"v_mfma_f32_16x16x32_bf16 {vr(acc)}, {vr(VW+24*slot+4*f)}, {vr(VX+4*tb)}, {'0' if first else vr(acc)}")
                if tb == 3 and wsrc: wload(slot, f, wsrc)
            if do_x: xread(tb, xoff)
        if wsrc: a(f"s_add_u32 {wsrc}, {wsrc}, 6144")
    steady = [3,3,3,3]; drain = [3,2,1,0]
    do_x_prev = [steady]
    for tb in range(4): xread(tb, 0)
    step1(0, True, True, 4096, "s40", 6)
    a(f"v_add_u32 v{AX}, 8192, v{AX}               ; base -> X(2)")
    a("s_mov_b32 s42, 7")
    a.label("k5_loop1")
    step1(1, False, True, 0, "s40", 6)
    step1(0, False, True, 4096, "s40", 6)
    a(f"v_add_u32 v{AX}, 8192, v{AX}")
    a("s_sub_u32 s42, s42, 1\ns_cmp_lg_u32 s42, 0\ns_cbranch_scc1 k5_loop1")
    step1(1, False, True, 0, "s40", 6)
    step1(0, False, True, 4096, "s41", 6)
    do_x_prev[0] = drain
    step1(1, False, False, 0, "s41", 6)
    a.stamp(8)
    T=VX
    a("s_mul_i32 s28, s22, 3")
    for uu in range(3):
        a(f"s_add_u32 s29, s28, {uu}")
        a("s_lshr_b32 s25, s29, 1")
        a("s_lshl_b32 s25, s25, 12")
        a("s_and_b32 s29, s29, 1")
        a("s_lshl_b32 s29, s29, 3")
        a("s_add_u32 s25, s25, s29")
        a(f"s_add_u32 s25, s25, {L5_H}")
        a(f"v_add_u32 v{AH}, s25, v{VL16}")
        for tb in range(4):
            g = VACC + ((2*uu)*4+tb)*4; u = VACC + ((2*uu+1)*4+tb)*4
            for j in range(4): a(f"v_mul_f32 v{T+j}, {NLOG2E:#x}, v{g+j}")
            for j in range(4): a(f"v_exp_f32 v{T+j}, v{T+j}")
            for j in range(4): a(f"v_mul_f32 v{g+j}, v{g+j}, v{u+j}")
            for j in range(4): a(f"v_add_f32 v{T+j}, 1.0, v{T+j}")
            for j in range(4): a(f"v_rcp_f32 v{T+j}, v{T+j}")
            a("s_nop 0")
            for j in range(4): a(f"v_mul_f32 v{g+j}, v{g+j}, v{T+j}")
            o = T+4+2*(tb&1)
            a(f"v_cvt_pk_bf16_f32 v{o}, v{g}, v{g+1}")
            a(f"v_cvt_pk_bf16_f32 v{o+1}, v{g+2}, v{g+3}")
            a(f"ds_write_b64 v{AH}, {vr(o,2)} offset:{tb*1024}")
    a("s_waitcnt lgkmcnt(0)")
    a("s_barrier")
    a.stamp(9)
    a(f"v_add_u32 v{AX}, {L5_H}, v{VL16}")
    def w2load(rs, uu):
        a(f"buffer_load_dwordx4 {vr(VW+12*rs+4*uu)}, v{VL16}, s[16:19], s41 offen offset:{uu*1024} " + WF)
    def step2(rs, first, do_x, xoff, reload, vm, lg):
        for tb in range(4):
            if tb == 0: a(f"s_waitcnt vmcnt({vm}) lgkmcnt({lg[tb]})")
            else:       a(f"s_waitcnt lgkmcnt({lg[tb]})")
            for uu in range(3):
                acc = VACC + (uu*4+tb)*4
                a(f"v_mfma_f32_16x16x32_bf16 {vr(acc)}, {vr(VW+12*rs+4*uu)}, {vr(VX+4*tb)}, {'0' if first else vr(acc)}")
                if tb == 3 and reload: w2load(rs, uu)
            if do_x: xread(tb, xoff)
        if reload: a("s_add_u32 s41, s41, 3072")
    for tb in range(4): xread(tb, 0)
    step2(0, True, True, 4096, True, 9, steady)
    a(f"v_add_u32 v{AX}, 8192, v{AX}")
    step2(1, False, True, 0, True, 9, steady)
    a("s_mov_b32 s42, 3")
    a.label("k5_loop2")
    step2(2, False, True, 4096, True, 9, steady)
    a(f"v_add_u32 v{AX}, 8192, v{AX}")
    step2(3, False, True, 0, True, 9, steady)
    step2(0, False, True, 4096, True, 9, steady)
    a(f"v_add_u32 v{AX}, 8192, v{AX}")
    step2(1, False, True, 0, True, 9, steady)
    a("s_sub_u32 s42, s42, 1\ns_cmp_lg_u32 s42, 0\ns_cbranch_scc1 k5_loop2")
    step2(2, False, True, 4096, False, 9, steady)
    a(f"v_add_u32 v{AX}, 8192, v{AX}")
    step2(3, False, True, 0, False, 6, steady)
    step2(0, False, True, 4096, False, 3, steady)
    step2(1, False, False, 0, False, 0, drain)
    a.stamp(10)
    a(f"s_mul_i32 s28, s23, {SZ_PARTS}")
    a("s_mul_i32 s29, s24, 73728")
    a("s_add_u32 s28, s28, s29")
    a("s_mul_i32 s29, s22, 6144")
    a("s_add_u32 s28, s28, s29")
    for q in range(6):
        uu = q >> 1; h = q & 1
        o = VW + 4*q
        for k in range(2):
            acc = VACC + (uu*4 + 2*h + k)*4
            a(f"v_cvt_pk_bf16_f32 v{o+2*k}, v{acc}, v{acc+1}")
            a(f"v_cvt_pk_bf16_f32 v{o+2*k+1}, v{acc+2}, v{acc+3}")
        if q < 4: a(f"buffer_store_dwordx4 {vr(o)}, v{VL16}, s[44:47], s28 offen offset:{q*1024} " + SC("K5SC", "1"))
        else:     a(f"buffer_store_dwordx4 {vr(o)}, v7, s[44:47], s28 offen offset:{(q-4)*1024} " + SC("K5SC", "1"))
    if MERGE6:
        load_ptr(a, 4, KA_OUT)
        a("s_waitcnt vmcnt(0) lgkmcnt(0)")
        if ENV("ST2", "0") != "1": a.stamp(11)
        srd(a, 52, 20, SZ_CNT, WS_CNT)
        srd(a, 8, 20, SZ_PART, WS_PART); srd(a, 12, 20, SZ_X1F, WS_X1F); srd(a, 16, 20, 2304, WS_MOD+5*2304); srd(a, 48, 4, SZ_X)
        a(f"v_mov_b32 v6, {L5_CNT}")
        a("v_mov_b32 v7, 1")
        a("s_mov_b64 exec, 1")
        a("ds_add_rtn_u32 v8, v6, v7")
        a("s_waitcnt lgkmcnt(0)")
        a("v_readfirstlane_b32 s26, v8")
        a(f"s_add_u32 s28, s24, {C_RED}")
        a("s_lshl_b32 s28, s28, 9")
        a("v_mov_b32 v6, s28")
        a("s_cmp_lg_u32 s26, 11\ns_cbranch_scc1 k5_nosig")
        a("buffer_atomic_add v7, v6, s[52:55], 0 offen sc1")
        a.label("k5_nosig")
        a("s_mov_b64 exec, -1")
        a("v_mov_b32 v23, s28")
        a("s_cmp_ge_u32 s22, 9\ns_cbranch_scc1 k5_noload")
        reduce_loads(a, True)
        a.label("k5_noload")
        a("s_cmp_lg_u32 s26, 11\ns_cbranch_scc1 k5_nopoll")
        a("s_mov_b32 s29, 20000")
        a.label("k5_poll")
        a("buffer_load_dword v24, v23, s[52:55], 0 offen sc0 sc1")
        a("s_waitcnt vmcnt(0)")
        a("v_readfirstlane_b32 s25, v24")
        a("s_sub_u32 s29, s29, 1")
        a("s_cmp_eq_u32 s29, 0\ns_cbranch_scc1 k5_nopoll")
        a("s_cmp_ge_u32 s25, 8\ns_cbranch_scc0 k5_poll")
        a.label("k5_nopoll")
        a("s_barrier")
        if ENV("ST2", "0") != "1": a.stamp(12)
        a("s_cmp_ge_u32 s22, 9\ns_cbranch_scc1 k5_exit")
        reduce_main(a, True)
    a.label("k5_exit")
```

```python
import re

class Asm:
    def __init__(self):
        self.lines = []
        self._lab = 0
    def __call__(self, text):
        for ln in text.split("\n"):
            ln = ln.strip()
            if ln:
                self.lines.append(ln)
    def label(self, name):
        self.lines.append(name + ":")
    def newlabel(self, prefix="L"):
        self._lab += 1
        return f"{prefix}_{self._lab}"
    def stamp(self, i):
        self.lines.append(f";stamp {i}")
    def text(self):
        return "\n".join(self.lines) + "\n"

_REG = re.compile(r"^(-?\|?)(v|s|a)(\d+)(\|?)$")
_RNG = re.compile(r"^(-?\|?)(v|s|a)\[(\d+):(\d+)\](\|?)$")
def regs_of(op):
    op = op.strip()
    if op.startswith("abs(") or op.startswith("neg("):
        op = op[4:-1]
    m = _REG.match(op)
    if m: return {(m.group(2), int(m.group(3)))}
    m = _RNG.match(op)
    if m: return {(m.group(2), i) for i in range(int(m.group(3)), int(m.group(4)) + 1)}
    if op == "vcc": return {("s", "vcc")}
    if op in ("vcc_lo", "vcc_hi"): return {("s", "vcc")}
    if op == "exec": return {("s", "exec")}
    if op == "m0": return {("s", "m0")}
    return set()

def split_ops(s):
    out = []; depth = 0; cur = ""
    for ch in s:
        if ch in "[(": depth += 1
        if ch in "])": depth -= 1
        if ch == "," and depth == 0:
            out.append(cur.strip()); cur = ""
        else:
            cur += ch
    if cur.strip(): out.append(cur.strip())
    return out

TRANS = ("v_exp_", "v_log_", "v_rcp_", "v_rsq_", "v_sqrt_", "v_sin_", "v_cos_")
class Ins:
    __slots__ = ("text", "op", "kind", "w", "r", "ops", "mods", "passes", "srcA", "srcB", "srcC", "dst", "is_trans",
                 "is_dpp", "is_sdwa_dst", "sgpr_const_r", "store_data", "is_lds_dma", "nop", "target", "uncond", "lane_sel", "wide_store")
def parse(line):
    I = Ins(); I.text = line
    I.w = set(); I.r = set(); I.passes = 0; I.srcA = I.srcB = I.srcC = I.dst = set()
    I.is_trans = I.is_dpp = I.is_sdwa_dst = I.is_lds_dma = I.uncond = I.wide_store = False
    I.sgpr_const_r = set(); I.store_data = set(); I.nop = 0; I.target = None; I.lane_sel = set()
    code = line.split(";")[0].strip()
    if not code:
        I.op = ""; I.kind = "dir"; return I
    if code.endswith(":"):
        I.op = code[:-1]; I.kind = "label"; return I
    if code.startswith("."):
        I.op = code; I.kind = "dir"; return I
    parts = code.split(None, 1)
    op = parts[0]; I.op = op
    rest = parts[1] if len(parts) > 1 else ""
    ops = split_ops(rest)
    mods = ""
    if ops:
        last = ops[-1].split(None, 1)
        if len(last) > 1 and not last[0].endswith("("):
            ops[-1] = last[0]; mods = last[1]
    I.ops = ops; I.mods = mods
    R = [regs_of(o) for o in ops]
    allr = lambda xs: set().union(*xs) if xs else set()
    if op.startswith("v_mfma"):
        I.kind = "mfma"
        I.passes = 8 if "32x32" in op else 4
        I.dst = R[0]; I.srcA = R[1]; I.srcB = R[2]; I.srcC = R[3]
        I.w = R[0]; I.r = R[1] | R[2] | R[3]
    elif op.startswith("v_"):
        I.kind = "valu"
        I.is_trans = op.startswith(TRANS)
        I.is_dpp = ("row_" in mods) or ("quad_perm" in mods) or op.endswith("_dpp")
        I.is_sdwa_dst = ("dst_sel" in mods and "dst_sel:DWORD" not in mods) or ("op_sel:" in mods and not op.startswith("v_pk"))
        if op.startswith("v_cmp"):
            I.w = R[0]; I.r = allr(R[1:])
        elif op.startswith(("v_readfirstlane", "v_readlane")):
            I.w = R[0]; I.r = allr(R[1:])
            if op.startswith("v_readlane"): I.lane_sel = {x for x in R[2] if x[0] == "s"}
        elif op.startswith("v_writelane"):
            I.w = R[0]; I.r = allr(R[1:]) | R[0]
            I.lane_sel = {x for x in R[2] if x[0] == "s"}
        elif op.startswith(("v_permlane32_swap", "v_permlane16_swap", "v_swap")):
            I.w = R[0] | R[1]; I.r = R[0] | R[1]
        elif op.startswith(("v_add_co", "v_sub_co", "v_subrev_co", "v_addc_co", "v_subb_co", "v_div_scale")):
            I.w = R[0] | R[1]; I.r = allr(R[2:])
        elif op.startswith(("v_fmac", "v_dot2c", "v_pk_fmac", "v_mac")):
            I.w = R[0]; I.r = allr(R)
        else:
            I.w = R[0]; I.r = allr(R[1:])
            if I.is_sdwa_dst and "UNUSED_PRESERVE" in mods: I.r |= R[0]
            if I.is_dpp: I.r |= R[0]
        if op.startswith("v_cndmask") and len(ops) == 3: I.r |= {("s", "vcc")}
        I.sgpr_const_r = {x for x in I.r if x[0] == "s"}
    elif op.startswith("buffer_"):
        I.kind = "vmem"
        if op in ("buffer_wbl2", "buffer_inv"):
            pass
        elif "lds" in mods.split():
            I.is_lds_dma = True
            I.r = allr(R) | {("s", "m0")}
        elif op.startswith("buffer_load"):
            I.w = R[0]; I.r = allr(R[1:])
        elif op.startswith("buffer_store"):
            I.r = allr(R); I.store_data = R[0]
            I.wide_store = op.endswith(("x3", "x4"))
        elif op.startswith("buffer_atomic"):
            I.r = allr(R); I.store_data = R[0]
            if "sc0" in mods.split(): I.w = R[0]
        else:
            raise ValueError("vmem? " + line)
    elif op.startswith("ds_"):
        I.kind = "ds"
        if op.startswith("ds_add_rtn"):
            I.w = R[0]; I.r = allr(R[1:])
        elif op.startswith(("ds_read", "ds_bpermute", "ds_permute", "ds_swizzle")):
            I.w = R[0]; I.r = allr(R[1:])
            if "d16" in op: I.r |= R[0]
        else:
            I.r = allr(R); I.store_data = allr(R[1:])
    elif op.startswith("s_"):
        I.kind = "salu"
        if op == "s_nop":
            I.nop = int(ops[0], 0) + 1
        elif op.startswith("s_cbranch") or op == "s_branch":
            I.target = ops[0]; I.uncond = (op == "s_branch")
        elif op == "s_endpgm":
            I.uncond = True
        elif op.startswith(("s_cmp", "s_bitcmp", "s_waitcnt", "s_barrier", "s_sleep", "s_setprio")):
            I.r = allr(R)
        elif op.startswith(("s_load", "s_memtime", "s_memrealtime", "s_getreg")):
            I.kind = "smem"; I.w = R[0]; I.r = allr(R[1:])
        else:
            I.w = R[0] if R else set(); I.r = allr(R[1:])
            if "saveexec" in op: I.w |= {("s", "exec")}
    else:
        raise ValueError("unknown instruction: " + line)
    return I

def vg(s): return {x for x in s if x[0] in "va"}
def sg(s): return {x for x in s if x[0] == "s"}

def need(p, c):
    n = 0
    if p.kind == "valu":
        pw = vg(p.w); ps = sg(p.w)
        if c.kind == "mfma" and pw & c.r: n = max(n, 2)
        if c.kind == "valu":
            if p.is_trans and not c.is_trans and pw & c.r: n = max(n, 1)
            if p.is_sdwa_dst and pw & (c.r | c.w): n = max(n, 1)
            if c.is_dpp and pw & vg(c.r): n = max(n, 2)
            if c.op.startswith(("v_readfirstlane", "v_readlane")) and pw & vg(c.r): n = max(n, 1)
            if c.op.startswith(("v_permlane32_swap", "v_permlane16_swap")) and pw & c.r: n = max(n, 2)
            if ps & c.sgpr_const_r: n = max(n, 2)
            if ps & c.lane_sel: n = max(n, 4)
            if c.op.startswith("v_div_fmas") and ("s", "vcc") in ps: n = max(n, 4)
        if c.kind == "vmem" and ps & c.r: n = max(n, 5)
        if c.kind in ("salu", "smem") and ps & c.r and not c.op.startswith("s_waitcnt"): n = max(n, 1)
    if p.kind == "valu" and p.op.startswith("v_dot"):
        pw = vg(p.w)
        if c.op == p.op:
            ab = regs_of(c.ops[1]) | regs_of(c.ops[2])
            if pw & ab: n = max(n, 3)
        elif pw & (c.r | c.w): n = max(n, 3)
    if p.kind == "mfma":
        P = p.passes
        if c.kind == "mfma":
            if p.dst & c.srcC:
                if c.srcC == p.dst and c.passes == P: n = max(n, 0)
                else: n = max(n, P + 2)
            if p.dst & (c.srcA | c.srcB): n = max(n, P + 4)
            if p.dst & c.dst and not (p.dst & c.srcC):
                if c.dst != p.dst or c.passes != P: n = max(n, P + 2)
        elif c.kind == "valu":
            if p.dst & (c.r | c.w): n = max(n, P + 4)
            if vg(p.srcC) & c.w: n = max(n, P - 1)
        elif c.kind in ("vmem", "ds"):
            if p.dst & (c.r | c.w): n = max(n, P + 4)
    if p.kind == "vmem" and p.wide_store:
        if c.kind == "valu" and p.store_data & c.w: n = max(n, 2)
        elif c.kind in ("vmem", "ds", "mfma") and p.store_data & c.w: n = max(n, 1)
    if p.kind == "salu" and ("s", "m0") in p.w and c.kind == "vmem" and c.is_lds_dma: n = max(n, 1)
    return n

MAXD = 14
def fix_hazards(lines, verbose=False):
    total = 0
    for _round in range(2000):
        ins = [parse(l) for l in lines]
        labels = {I.op: i for i, I in enumerate(ins) if I.kind == "label"}
        preds = [[] for _ in ins]
        for i, I in enumerate(ins):
            if i + 1 < len(ins) and not I.uncond: preds[i + 1].append(i)
            if I.target is not None and I.target in labels: preds[labels[I.target]].append(i)
        inserts = {}
        for i, c in enumerate(ins):
            if c.kind in ("label", "dir") or c.op == "s_nop": continue
            worst = 0; stack = [(p, 0) for p in preds[i]]; seen = {}
            while stack:
                j, d = stack.pop()
                if d >= MAXD: continue
                if seen.get(j, 99) <= d: continue
                seen[j] = d
                p = ins[j]
                if p.kind in ("label", "dir"): step = 0
                else:
                    k = need(p, c)
                    if k - d > worst: worst = k - d
                    step = p.nop if p.op == "s_nop" else 1
                for q in preds[j]: stack.append((q, d + step))
            if worst > 0: inserts[i] = worst
        if not inserts: return lines, total
        out = []
        last_fix = -100
        for i, l in enumerate(lines):
            first = i in inserts and i - last_fix > MAXD + 2
            if i in inserts: last_fix = i
            if first:
                n = inserts[i]
                if verbose: print("hazard: +%d before: %s" % (n, l))
                total += n
                while n > 0:
                    k = min(n, 16); out.append("s_nop %d" % (k - 1)); n -= k
            out.append(l)
        lines = out
    raise RuntimeError("hazard fix did not converge")

PROFILE = False
_kidx = [0]
NST = 14
def instrument(name, lines):
    k = _kidx[0]; _kidx[0] += 1
    out = ["s_memrealtime s[60:61]", "s_memtime s[64:65]", "s_mov_b32 s94, s2",
           "v_readfirstlane_b32 s95, v0", "s_waitcnt lgkmcnt(0)"]
    for i in range(1, NST+1): out += [f"s_mov_b32 s{64+2*i}, s64"]
    for l in lines:
        c = l.split(";")[0].strip()
        if l.startswith(";stamp"):
            i = int(l.split()[1]); assert 1 <= i <= NST-2; out.append(f"s_memtime s[{64+2*i}:{65+2*i}]")
        elif c == "s_endpgm": out.append(f"s_branch {name}_prof")
        else: out.append(l)
    out += [f"{name}_prof:", f"s_memtime s[{64+2*(NST-1)}:{65+2*(NST-1)}]", "s_waitcnt vmcnt(0) lgkmcnt(0)", "s_memrealtime s[62:63]", f"s_memtime s[{64+2*NST}:{65+2*NST}]",
            "s_load_dwordx2 s[4:5], s[0:1], 88", "s_waitcnt lgkmcnt(0)",
            f"s_add_u32 s8, s4, {0x8000000 + k*0x100000:#x} ;srd", "s_addc_u32 s9, s5, 0 ;srd",
            "s_mov_b32 s10, 0x100000 ;srd", "s_mov_b32 s11, 0x00020000 ;srd",
            "s_lshr_b32 s95, s95, 6", "s_and_b32 s95, s95, 15", "s_lshl_b32 s94, s94, 4", "s_add_u32 s94, s94, s95", "s_lshl_b32 s94, s94, 6",
            "s_mov_b64 exec, 1", "v_mov_b32 v1, s94", "v_mov_b32 v2, s60", "v_mov_b32 v3, s62"]
    for i in range(1, NST+1):
        out += [f"s_sub_u32 s{64+2*i}, s{64+2*i}, s64", f"v_mov_b32 v{3+i}, s{64+2*i}"]
    out += ["buffer_store_dwordx2 v[2:3], v1, s[8:11], 0 offen",
            "buffer_store_dwordx4 v[4:7], v1, s[8:11], 0 offen offset:8",
            "buffer_store_dwordx4 v[8:11], v1, s[8:11], 0 offen offset:24",
            "buffer_store_dwordx4 v[12:15], v1, s[8:11], 0 offen offset:40",
            "buffer_store_dwordx2 v[16:17], v1, s[8:11], 0 offen offset:56"]
    return out

DBGSTAMP = False
_didx = [0]
def dbgstamp(name, lines):
    k = _didx[0]; _didx[0] += 1
    out = ["s_memrealtime s[60:61]"]
    for l in lines:
        c = l.split(";")[0].strip()
        if c == "s_endpgm": out.append(f"s_branch {name}_dbg")
        else: out.append(l)
    out += [f"{name}_dbg:", "s_waitcnt vmcnt(0) lgkmcnt(0)", "s_memrealtime s[62:63]",
            "s_and_b32 s59, s2, 31", "s_cmp_lg_u32 s59, 0", f"s_cbranch_scc1 {name}_dbgx",
            "s_load_dwordx2 s[4:5], s[0:1], 80", "s_waitcnt lgkmcnt(0)",
            f"s_sub_u32 s8, s4, {512*k} ;srd", "s_subb_u32 s9, s5, 0 ;srd",
            "s_mov_b32 s10, 0x500 ;srd", "s_mov_b32 s11, 0x00020000 ;srd",
            "s_not_b32 s60, s60", "s_mov_b64 exec, 1", f"v_mov_b32 v1, {8*k}", "v_mov_b32 v2, s60", "v_mov_b32 v3, s62",
            "buffer_atomic_umax v2, v1, s[8:11], 0 offen", "buffer_atomic_umax v3, v1, s[8:11], 0 offen offset:4",
            "buffer_atomic_umax v2, v1, s[8:11], 0 offen offset:512", "buffer_atomic_umax v3, v1, s[8:11], 0 offen offset:516",
            "buffer_atomic_umax v2, v1, s[8:11], 0 offen offset:1024", "buffer_atomic_umax v3, v1, s[8:11], 0 offen offset:1028", f"{name}_dbgx:"]
    return out

def kernel(name, asm, vgpr, sgpr=96, lds_note=None, accum=None):
    src = list(asm.lines)
    if DBGSTAMP:
        src = dbgstamp(name, src + ["s_endpgm"]); sgpr = 96
    if PROFILE:
        src = instrument(name, src + ["s_endpgm"]); sgpr = 96
    lines, n = fix_hazards(src)
    body = "\n".join(lines)
    if accum is None: accum = min(256, (vgpr + 3) // 4 * 4)
    srdregs = set()
    for l in lines:
        I = parse(l)
        if I.kind == "vmem" and I.op not in ("buffer_wbl2", "buffer_inv"):
            quad = [o for o in I.ops if o.startswith("s[")][0]
            srdregs |= regs_of(quad)
    for l in lines:
        I = parse(l)
        if I.w & srdregs and ";srd" not in l:
            raise AssertionError(f"{name}: descriptor register clobbered by: {l}")
    mv = ms = -1
    for l in lines:
        I = parse(l)
        for (k, i) in (I.w | I.r):
            if k == "v": mv = max(mv, i)
            if k == "s" and isinstance(i, int): ms = max(ms, i)
    assert mv < vgpr, f"{name}: uses v{mv} but vgpr={vgpr}"
    assert ms < sgpr, f"{name}: uses s{ms} but sgpr={sgpr}"
    txt = f""".text
.globl {name}
.p2align 8
.type {name},@function
{name}:
{body}
s_endpgm
.section .rodata,"a"
.p2align 6
.amdhsa_kernel {name}
  .amdhsa_next_free_vgpr {vgpr}
  .amdhsa_next_free_sgpr {sgpr}
  .amdhsa_accum_offset {accum}
  .amdhsa_group_segment_fixed_size 0
  .amdhsa_kernarg_size 96
  .amdhsa_user_sgpr_count 2
  .amdhsa_user_sgpr_kernarg_segment_ptr 1
  .amdhsa_system_sgpr_workgroup_id_x 1
  .amdhsa_float_denorm_mode_32 3
.end_amdhsa_kernel
"""
    return txt, dict(name=name, maxv=mv, maxs=ms, nops=n, ninstr=len(lines))
```

```python
from common import *
import os
SIDE = os.environ.get('SIDE', 'k2')
MODNC = int(os.environ.get('MODNC', '32'))
NWG_MOD=(1152//MODNC) if SIDE == 'k2' else 54; NWG_LS=54 if SIDE == 'k2' else 72; NWG_W13=0; NWG_W2=0; NWG_ONES=32; NWG_XN=64; NWG_POIS=36
B_LS=NWG_MOD; B_W13=B_LS+NWG_LS; B_W2=B_W13+NWG_W13; B_ONES=B_W2+NWG_W2; B_XN=B_ONES+NWG_ONES; B_POIS=B_XN+NWG_XN; K1_NWG=B_POIS+NWG_POIS
K1_LDS=4*9216

LOG2E=0x3fb8aa3b
END = [None]
def endtask(a):
    if END[0] is None: a("s_endpgm")
    else: a("s_mov_b64 exec, -1\ns_branch " + END[0])
def MSC(): return "sc0 sc1" if END[0] else ""

def gen_mod(a, tag, NC=64):
    LG = {64: 3, 32: 2}[NC]
    NRG = 256 >> LG
    NR = 576 // NRG
    load_ptr(a, 4, KA_WMOD); load_ptr(a, 6, KA_C); load_ptr(a, 20, KA_WS)
    a("v_and_b32 v30, 255, v0")
    a(f"v_and_b32 v1, {(1 << LG) - 1}, v30           ; cg")
    a(f"v_lshrrev_b32 v2, {LG}, v30       ; rg")
    a("s_waitcnt lgkmcnt(0)")
    srd(a, 8, 4, 576*6912); srd(a, 12, 6, 1152); srd(a, 16, 20, SZ_MOD, WS_MOD)
    a("v_lshlrev_b32 v3, 1, v30")
    a("buffer_load_ushort v4, v3, s[12:15], 0 offen")
    a("buffer_load_ushort v5, v3, s[12:15], 0 offen offset:512")
    a("buffer_load_ushort v6, v3, s[12:15], 0 offen offset:1024")
    a("v_mul_u32_u24 v7, 6912, v2")
    a("v_lshl_add_u32 v7, v1, 4, v7")
    a(f"s_mul_i32 s22, s44, {NC*2}         ; n0*2")
    for i in range(NR):
        r = 32 + 4*i
        a(f"buffer_load_dwordx4 {vr(r)}, v7, s[8:11], s22 offen")
        if i < NR-1: a(f"s_add_u32 s22, s22, {NRG*6912}")
    a("v_lshlrev_b32 v9, 2, v30")
    a("v_add_u32 v9, s45, v9")
    a(f"s_waitcnt vmcnt({NR})")
    for j, v in enumerate([4, 5, 6]):
        a(f"v_lshlrev_b32 v{v}, 16, v{v}")
        a(f"v_mul_f32 v8, {LOG2E:#x}, v{v}")
        a(f"v_exp_f32 v8, -v8")
        a(f"v_add_f32 v8, 1.0, v8")
        a(f"v_rcp_f32 v8, v8")
        a(f"v_mul_f32 v8, v8, v{v}")
        bf16_round_f32(a, 8, 8)
        a(f"ds_write_b32 v9, v8 offset:{j*1024}")
    a("s_waitcnt lgkmcnt(0)")
    a("s_barrier")
    a("v_lshlrev_b32 v9, 2, v2")
    a("v_add_u32 v9, s45, v9")
    for i in range(NR):
        a(f"ds_read_b32 v{10+i}, v9 offset:{i*NRG*4}")
    for j in range(8): a(f"v_mov_b32 v{104+j}, 0")
    a("s_waitcnt lgkmcnt(0)")
    for i in range(NR):
        a(f"s_waitcnt vmcnt({NR-1-i})")
        r = 32 + 4*i
        for q in range(4):
            a(f"v_lshlrev_b32 v28, 16, v{r+q}")
            a(f"v_and_b32 v29, 0xffff0000, v{r+q}")
            a(f"v_fmac_f32 v{104+2*q}, v{10+i}, v28")
            a(f"v_fmac_f32 v{105+2*q}, v{10+i}, v29")
    a(f"v_mul_u32_u24 v9, {NC*4}, v2")
    a("v_lshl_add_u32 v9, v1, 5, v9")
    a("v_add_u32 v9, s45, v9")
    a("ds_write_b128 v9, v[104:107] offset:4096")
    a("ds_write_b128 v9, v[108:111] offset:4112")
    a("s_waitcnt lgkmcnt(0)")
    a("s_barrier")
    a("v_cmp_gt_u32 vcc, 64, v30")
    a("s_and_saveexec_b64 s[24:25], vcc")
    lend = f"{tag}_mod_end"
    a(f"s_cbranch_execz {lend}")
    a(f"v_and_b32 v10, {NC-1}, v30                 ; column")
    a("v_lshlrev_b32 v9, 2, v10")
    a("v_add_u32 v3, s45, v9")
    if NC == 32:
        a(f"v_lshrrev_b32 v11, 5, v30")
        a(f"v_mul_u32_u24 v11, {32*NC*4}, v11")
        a("v_add_u32 v3, v3, v11")
    for i in range(32):
        a(f"ds_read_b32 v{32+i}, v3 offset:{4096+i*NC*4}")
    a("s_waitcnt lgkmcnt(0)")
    for st in [16, 8, 4, 2, 1]:
        for i in range(st):
            a(f"v_add_f32 v{32+i}, v{32+i}, v{32+i+st}")
    if NC == 32:
        a("v_mov_b32 v33, v32")
        a("v_permlane32_swap_b32 v32, v33")
        a("v_add_f32 v32, v32, v33")
    bf16_round_f32(a, 32, 32)
    sdiv(a, 22, 44, 576 // NC)
    a("s_cmp_eq_u32 s22, 1")
    a("s_cselect_b32 s23, 1, 0")
    a("s_cmp_eq_u32 s22, 4")
    a("s_cselect_b32 s23, 1, s23")
    lskip = f"{tag}_noone"
    a("s_cmp_eq_u32 s23, 0")
    a(f"s_cbranch_scc1 {lskip}")
    a("v_add_f32 v32, 1.0, v32")
    bf16_round_f32(a, 32, 32)
    a.label(lskip)
    a(f"s_mul_i32 s22, s44, {NC*4}")
    a("buffer_store_dword v32, v9, s[16:19], s22 offen " + MSC())
    a.label(lend)
    endtask(a)

def gather(a, addr):
    for u in range(9):
        for j in range(8):
            a(f"ds_read_u16 v{72+j}, {addr(u, j)}")
        a("s_waitcnt lgkmcnt(0)")
        for jp in range(4):
            a(f"v_lshl_or_b32 v{32+4*u+jp}, v{72+2*jp+1}, 16, v{72+2*jp}")

def gen_ldsshuf(a, tag, do_qkv, do_wo):
    load_ptr(a, 4, KA_WQKV); load_ptr(a, 6, KA_WO); load_ptr(a, 20, KA_WS)
    a("v_and_b32 v1, 63, v0           ; lane")
    a("s_mul_i32 s24, s22, 9216")
    for i in range(9):
        a(f"v_add_u32 v2, {i*64}, v1")
        a(f"v_mul_u32_u24 v{10+i}, 3641, v2")
        a(f"v_lshrrev_b32 v{10+i}, 16, v{10+i}      ; row")
        a(f"v_mul_u32_u24 v3, 18, v{10+i}")
        a(f"v_sub_u32 v{20+i}, v2, v3              ; cc")
    a("v_and_b32 v4, 15, v1           ; m")
    a("v_lshrrev_b32 v5, 4, v1        ; g")
    a("v_lshlrev_b32 v6, 4, v1        ; lane*16")
    a("v_add_u32 v7, s24, v6")
    a("v_mul_u32_u24 v8, 2304, v5     ; g*8*288")
    a("v_add_u32 v8, s24, v8")
    a("s_waitcnt lgkmcnt(0)")
    if do_qkv: shuf_qkv(a)
    if do_wo: shuf_wo(a, tag)

def shuf_qkv(a):
    srd(a, 8, 4, 576*3456); srd(a, 12, 20, SZ_WQKV, WS_WQKV)
    sdiv(a, 25, 23, 12, 26, 27)
    a("s_lshr_b32 s27, s26, 2         ; sec")
    a("s_and_b32 s28, s26, 3          ; oct")
    a(f"s_mul_i32 s29, s25, {32*3456}")
    a("s_mul_i32 s30, s27, 1152")
    a("s_add_u32 s29, s29, s30")
    a("s_mul_i32 s30, s28, 288")
    a("s_add_u32 s29, s29, s30        ; soffset")
    for i in range(9):
        a(f"v_mul_u32_u24 v2, 3456, v{10+i}")
        a(f"v_lshl_add_u32 v2, v{20+i}, 4, v2")
        a(f"buffer_load_dwordx4 {vr(32+4*i)}, v2, s[8:11], s29 offen")
    for i in range(9):
        a(f"s_waitcnt vmcnt({8-i})")
        a(f"ds_write_b128 v7, {vr(32+4*i)} offset:{i*1024}")
    a("v_lshl_add_u32 v2, v4, 1, v8   ; main: + m*2")
    a("v_lshrrev_b32 v3, 1, v4")
    a("v_mul_u32_u24 v3, 36, v3")
    a("v_and_b32 v9, 1, v4")
    a("v_lshl_add_u32 v3, v9, 1, v3")
    a("v_add_u32 v3, 32, v3")
    a("v_add_u32 v3, v3, v8           ; ext")
    a("s_waitcnt lgkmcnt(0)")
    gather(a, lambda u, j: (f"v2 offset:{j*288 + 36*u}" if u < 8 else f"v3 offset:{j*288}"))
    a("s_lshl_b32 s30, s27, 4")
    a("s_lshl_b32 s31, s28, 2")
    a("s_add_u32 s30, s30, s31")
    a("s_mul_i32 s30, s30, 18")
    a("s_add_u32 s30, s30, s25")
    a("s_lshl_b32 s30, s30, 11        ; (tau*18+t)*2048")
    a("s_lshl_b32 s31, s27, 1")
    a("s_lshr_b32 s33, s28, 1")
    a("s_add_u32 s31, s31, s33")
    a("s_add_u32 s31, s31, 48")
    a("s_mul_i32 s31, s31, 18")
    a("s_add_u32 s31, s31, s25")
    a("s_lshl_b32 s31, s31, 11")
    a("s_and_b32 s33, s28, 1")
    a("s_lshl_b32 s33, s33, 10")
    a("s_add_u32 s31, s31, s33")
    a("s_waitcnt lgkmcnt(0)")
    for u in range(8):
        a(f"s_add_u32 s33, s30, {(u>>1)*18*2048 + (u&1)*1024}")
        a(f"buffer_store_dwordx4 {vr(32+4*u)}, v6, s[12:15], s33 offen " + SC("K1SC", "1"))
    a(f"buffer_store_dwordx4 {vr(64)}, v6, s[12:15], s31 offen " + SC("K1SC", "1"))
    endtask(a)

def shuf_wo(a, tag):
    srd(a, 8, 6, 576*1152); srd(a, 12, 20, SZ_WO, WS_WO)
    a("s_lshr_b32 s25, s23, 2         ; t")
    a("s_and_b32 s28, s23, 3          ; ng")
    a("s_mul_i32 s29, s28, 288")
    lext = f"{tag}_wo_ext"; lj = f"{tag}_wo_j"
    a("s_cmp_ge_u32 s25, 16")
    a(f"s_cbranch_scc1 {lext}")
    for i in range(9):
        a(f"v_lshrrev_b32 v2, 4, v{10+i}")
        a(f"v_mul_u32_u24 v2, 18, v2")
        a(f"v_and_b32 v3, 15, v{10+i}")
        a(f"v_add_u32 v{10+i}, v2, v3")
    a("s_mul_i32 s30, s25, 36         ; 18*2t")
    a(f"s_branch {lj}")
    a.label(lext)
    for i in range(9):
        a(f"v_lshrrev_b32 v2, 1, v{10+i}")
        a(f"v_mul_u32_u24 v2, 18, v2")
        a(f"v_and_b32 v3, 1, v{10+i}")
        a(f"v_add_u32 v{10+i}, v2, v3")
    a("s_sub_u32 s30, s25, 16")
    a("s_mul_i32 s30, s30, 288        ; 18*16e")
    a("s_add_u32 s30, s30, 16")
    a.label(lj)
    a("s_mul_i32 s30, s30, 1152")
    a("s_add_u32 s29, s29, s30")
    for i in range(9):
        a(f"v_mul_u32_u24 v2, 1152, v{10+i}")
        a(f"v_lshl_add_u32 v2, v{20+i}, 4, v2")
        a(f"buffer_load_dwordx4 {vr(32+4*i)}, v2, s[8:11], s29 offen")
    for i in range(9):
        a(f"s_waitcnt vmcnt({8-i})")
        a(f"ds_write_b128 v7, {vr(32+4*i)} offset:{i*1024}")
    a("v_lshl_add_u32 v2, v4, 1, v8")
    a("s_waitcnt lgkmcnt(0)")
    gather(a, lambda u, j: f"v2 offset:{j*288 + 32*u}")
    a("s_mul_i32 s30, s28, 162        ; ng*9*18")
    a("s_add_u32 s30, s30, s25")
    a("s_lshl_b32 s30, s30, 10")
    a("s_waitcnt lgkmcnt(0)")
    for u in range(9):
        a(f"s_add_u32 s33, s30, {u*18*1024}")
        a(f"buffer_store_dwordx4 {vr(32+4*u)}, v6, s[12:15], s33 offen " + SC("K1SC", "1"))
    endtask(a)

def perm_consts(a):
    a("s_mov_b32 s40, 0x05040100")
    a("s_mov_b32 s41, 0x07060302")

def w13_task(a, s_id, vb, wt=''):
    sdiv(a, 25, s_id, 648, 26, 27)
    sdiv(a, 27, 26, 18, 28, 29)
    a(f"s_mul_i32 s29, s28, {32*9216}")
    a("s_lshl_b32 s30, s27, 8")
    a("s_add_u32 s29, s29, s30        ; soffset")
    l3 = a.newlabel("w3"); lj = a.newlabel("w13j")
    vin = vb+4; vout = vb+36
    a("s_cmp_eq_u32 s25, 1")
    a(f"s_cbranch_scc1 {l3}")
    for j in range(8):
        a(f"buffer_load_dwordx4 {vr(vin+4*j)}, v{vb+1}, s[8:11], s29 offen")
        if j < 7: a("s_add_u32 s29, s29, 9216")
    a(f"s_branch {lj}")
    a.label(l3)
    for j in range(8):
        a(f"buffer_load_dwordx4 {vr(vin+4*j)}, v{vb+1}, s[12:15], s29 offen")
        if j < 7: a("s_add_u32 s29, s29, 9216")
    a.label(lj)
    sdiv(a, 30, 27, 3, 31, 33)
    a("s_mul_i32 s30, s30, 110592")
    a("s_mul_i32 s33, s28, 6144")
    a("s_add_u32 s30, s30, s33")
    a("s_lshl_b32 s31, s31, 1")
    a("s_add_u32 s31, s31, s25")
    a("s_lshl_b32 s31, s31, 10")
    a("s_add_u32 s30, s30, s31")
    a("s_waitcnt vmcnt(0)")
    for i in range(8):
        for jp in range(4):
            sel = "s41" if i & 1 else "s40"
            a(f"v_perm_b32 v{vout+4*i+jp}, v{vin+4*(2*jp+1)+(i>>1)}, v{vin+4*(2*jp)+(i>>1)}, {sel}")
        a(f"buffer_store_dwordx4 {vr(vout+4*i)}, v{vb}, s[16:19], s30 offen {wt}")
        if i < 7: a(f"s_add_u32 s30, s30, {SZ_W13S}")

def w2_task(a, s_id, vb, wt='', srd_in=8, srd_out=16):
    sdiv(a, 25, s_id, 108, 26, 27)
    sdiv(a, 27, 26, 6, 28, 29)
    a("s_lshl_b32 s29, s27, 8")
    a("s_add_u32 s29, s29, s25")
    a("s_mul_i32 s29, s29, 1152")
    a("s_mul_i32 s30, s28, 192")
    a("s_add_u32 s29, s29, s30")
    vin = vb+4; vout = vb+36
    for v in range(2):
        for j in range(4):
            a(f"s_add_u32 s30, s29, {(128*v+8*j)*1152}")
            a(f"buffer_load_dwordx3 {vr(vin+4*(4*v+j),3)}, v{vb+2}, s[{srd_in}:{srd_in+3}], s30 offen")
    a(f"s_mul_i32 s30, s25, {SZ_W2S}")
    a("s_mul_i32 s31, s28, 110592")
    a("s_add_u32 s30, s30, s31")
    a("s_mul_i32 s31, s27, 3072")
    a("s_add_u32 s30, s30, s31")
    a("s_waitcnt vmcnt(0)")
    for i in range(6):
        for v in range(2):
            for jj in range(2):
                sel = "s41" if i & 1 else "s40"
                a(f"v_perm_b32 v{vout+4*i+2*v+jj}, v{vin+4*(4*v+2*jj+1)+(i>>1)}, v{vin+4*(4*v+2*jj)+(i>>1)}, {sel}")
        a(f"s_add_u32 s31, s30, {(i//3)*55296 + (i%3)*1024}")
        a(f"buffer_store_dwordx4 {vr(vout+4*i)}, v{vb}, s[{srd_out}:{srd_out+3}], s31 offen {wt}")

def shuffle_lane_setup(a, vb):
    a(f"v_and_b32 v{vb+3}, 63, v0")
    a(f"v_lshlrev_b32 v{vb}, 4, v{vb+3}          ; lane*16")
    a(f"v_lshrrev_b32 v{vb+1}, 4, v{vb+3}        ; g")
    a(f"v_and_b32 v{vb+3}, 15, v{vb+3}           ; m")
    a(f"v_mul_u32_u24 v{vb+2}, {32*1152}, v{vb+1}")
    a(f"v_mad_u32_u24 v{vb+2}, v{vb+3}, 12, v{vb+2}   ; w2 voffset")
    a(f"v_mul_u32_u24 v{vb+1}, {8*9216}, v{vb+1}")
    a(f"v_lshl_add_u32 v{vb+1}, v{vb+3}, 4, v{vb+1}   ; w13 voffset")

def gen_w13(a):
    load_ptr(a, 4, KA_W1); load_ptr(a, 6, KA_W3); load_ptr(a, 20, KA_WS)
    wave_id(a, 22, 1)
    a(f"s_sub_u32 s23, s2, {B_W13}")
    a("s_lshl_b32 s23, s23, 2")
    a("s_add_u32 s23, s23, s22")
    shuffle_lane_setup(a, 4)
    perm_consts(a)
    a("s_waitcnt lgkmcnt(0)")
    srd(a, 8, 4, 576*9216); srd(a, 12, 6, 576*9216); srd(a, 16, 20, SZ_W13, WS_W13)
    w13_task(a, 23, 4)
    a("s_endpgm")

def gen_w2(a):
    load_ptr(a, 4, KA_W2); load_ptr(a, 20, KA_WS)
    wave_id(a, 22, 1)
    a(f"s_sub_u32 s23, s2, {B_W2}")
    a("s_lshl_b32 s23, s23, 2")
    a("s_add_u32 s23, s23, s22")
    shuffle_lane_setup(a, 4)
    perm_consts(a)
    a("s_waitcnt lgkmcnt(0)")
    srd(a, 8, 4, 4608*1152); srd(a, 16, 20, SZ_W2, WS_W2)
    w2_task(a, 23, 4)
    a("s_endpgm")

def gen_ones(a, fused=False):
    load_ptr(a, 20, KA_WS)
    if not fused: a(f"s_sub_u32 s23, s2, {B_ONES}")
    a("s_cmp_eq_u32 s23, 0\ns_cselect_b32 s25, 1, 0")
    a(f"s_mul_i32 s23, s23, {KVH}")
    a(f"s_add_u32 s23, s23, {KV_V+18*16}")
    a("v_and_b32 v2, 255, v0")
    a("v_mul_u32_u24 v1, 304, v2")
    for i in range(4): a(f"v_mov_b32 v{4+i}, 0x3f803f80")
    a("s_waitcnt lgkmcnt(0)")
    srd(a, 8, 20, SZ_KV, WS_KV)
    a("buffer_store_dwordx4 v[4:7], v1, s[8:11], s23 offen")
    a(f"s_cmp_eq_u32 s25, 0\ns_cbranch_scc1 k1_ones_end")
    srd(a, 12, 20, SZ_CNT, WS_CNT)
    a("v_lshlrev_b32 v1, 9, v2")
    a("v_mov_b32 v8, 0")
    a("buffer_store_dword v8, v1, s[12:15], 0 offen sc0 sc1")
    a.label("k1_ones_end")
    endtask(a)

def gen_xn(a, fused=False):
    load_ptr(a, 4, KA_X); load_ptr(a, 20, KA_WS)
    if not fused: wave_id(a, 22, 1)
    a("v_and_b32 v1, 63, v0")
    a("v_and_b32 v2, 15, v1           ; tok")
    a("v_lshrrev_b32 v3, 4, v1        ; g")
    a("v_lshlrev_b32 v4, 4, v1        ; lane*16")
    if not fused: a(f"s_sub_u32 s23, s2, {B_XN}")
    a("s_lshr_b32 s26, s22, 1")
    a("s_and_b32 s26, s26, 1          ; tbl")
    a("s_and_b32 s27, s22, 1          ; half")
    a("v_mul_u32_u24 v5, 1152, v2")
    a("v_lshl_add_u32 v5, v3, 4, v5")
    a(f"s_mul_i32 s28, s23, {32*1152}")
    a(f"s_mul_i32 s29, s26, {16*1152}")
    a("s_add_u32 s28, s28, s29")
    a("s_mul_i32 s29, s27, 576")
    a("s_add_u32 s28, s28, s29")
    a("s_waitcnt lgkmcnt(0)")
    srd(a, 8, 4, SZ_X); srd(a, 12, 20, SZ_XN, WS_XN)
    VX=16; VS=56; VQ=57; VT=58; RS=60; TT=64; VO=72
    for i in range(9):
        a(f"buffer_load_dwordx4 {vr(VX+4*i)}, v5, s[8:11], s28 offen offset:{i*64}")
    a("s_mov_b32 s30, 0x3f803f80")
    a("s_waitcnt vmcnt(0)")
    ln_stats(a, VX, 36, VS, VQ, 30)
    xsum16_32(a, VS, VT); xsum16_32(a, VQ, VT)
    a("s_lshl_b32 s28, s22, 7")
    a("v_lshlrev_b32 v6, 3, v2")
    a("v_add_u32 v7, s28, v6")
    a(f"ds_write_b64 v7, {vr(VS,2)}")
    a("s_waitcnt lgkmcnt(0)")
    a("s_barrier")
    a("s_xor_b32 s28, s22, 1")
    a("s_lshl_b32 s28, s28, 7")
    a("v_add_u32 v7, s28, v6")
    a(f"ds_read_b64 {vr(VT,2)}, v7")
    a("s_waitcnt lgkmcnt(0)")
    a(f"v_add_f32 v{VS}, v{VS}, v{VT}")
    a(f"v_add_f32 v{VQ}, v{VQ}, v{VT+1}")
    ln_finish(a, VS, VQ, RS, RS+2)
    a(f"v_mov_b32 v{RS+1}, v{RS}")
    a(f"v_mov_b32 v{RS+3}, v{RS+2}")
    a("s_lshr_b32 s28, s23, 1")
    a("s_mul_i32 s28, s28, 73728")
    a("s_and_b32 s29, s23, 1")
    a("s_lshl_b32 s29, s29, 1")
    a("s_add_u32 s29, s29, s26")
    a("s_lshl_b32 s29, s29, 10")
    a("s_add_u32 s28, s28, s29")
    a(f"s_mul_i32 s29, s27, {9*4096}")
    a("s_add_u32 s28, s28, s29")
    for i in range(9):
        o = VO + 4*(i & 1)
        chunk_unpack(a, VX+4*i, TT); chunk_norm(a, TT, RS); chunk_pack(a, TT, o)
        a(f"buffer_store_dwordx4 {vr(o)}, v4, s[12:15], s28 offen " + SC("K1SC", "1"))
        if i < 8: a("s_add_u32 s28, s28, 4096")
    endtask(a)

def gen_poison(a, fused=False):
    load_ptr(a, 20, KA_WS)
    if not fused: a(f"s_sub_u32 s23, s2, {B_POIS}")
    a("v_and_b32 v1, 255, v0")
    a("v_lshlrev_b32 v1, 4, v1")
    for i in range(4): a(f"v_mov_b32 v{4+i}, -1")
    a("s_waitcnt lgkmcnt(0)")
    srd(a, 8, 20, SZ_OM + SZ_OE, WS_OM)
    assert WS_OE == WS_OM + SZ_OM and SZ_OM + SZ_OE == 36*65536
    a("s_lshl_b32 s24, s23, 16")
    for i in range(16):
        a(f"buffer_store_dwordx4 v[4:7], v1, s[8:11], s24 offen sc0 sc1")
        if i < 15: a("s_add_u32 s24, s24, 4096")
    endtask(a)

def gen_k1():
    a = Asm()
    a(f"s_cmp_lt_u32 s2, {B_LS}\ns_cbranch_scc1 k1_mod")
    a(f"s_cmp_lt_u32 s2, {B_W13}\ns_cbranch_scc1 k1_ls")
    a(f"s_cmp_lt_u32 s2, {B_XN}\ns_cbranch_scc1 k1_ones")
    a(f"s_cmp_lt_u32 s2, {B_POIS}\ns_cbranch_scc1 k1_xn")
    a(f"s_cmp_lt_u32 s2, {K1_NWG}\ns_cbranch_scc1 k1_pois")
    a("s_endpgm")
    a.label("k1_mod")
    a("s_mov_b32 s44, s2\ns_mov_b32 s45, 0")
    gen_mod(a, "k1", MODNC if SIDE == 'k2' else 64)
    a.label("k1_ls")
    wave_id(a, 22, 1)
    a(f"s_sub_u32 s23, s2, {B_LS}")
    a("s_lshl_b32 s23, s23, 2")
    a("s_add_u32 s23, s23, s22        ; task")
    if SIDE == 'k2':
        gen_ldsshuf(a, "k1", True, False)
    else:
        a("s_cmp_ge_u32 s23, 216\ns_cbranch_scc1 k1_lswo")
        gen_ldsshuf(a, "k1", True, False)
        a.label("k1_lswo")
        a("s_sub_u32 s23, s23, 216")
        gen_ldsshuf(a, "k1b", False, True)
    a.label("k1_ones"); gen_ones(a)
    a.label("k1_xn"); gen_xn(a)
    a.label("k1_pois"); gen_poison(a)
    return kernel("k1_prep_kernel", a, vgpr=112, sgpr=64), (K1_NWG, 256, K1_LDS)


def w13_load(a, tag, s_id, vb, vin, sdst):
    sdiv(a, 25, s_id, 648, 26, 27)
    sdiv(a, 27, 26, 18, 28, 29)
    a(f"s_mul_i32 s29, s28, {32*9216}")
    a("s_lshl_b32 s30, s27, 8")
    a("s_add_u32 s29, s29, s30        ; soffset")
    a(f"s_cmp_eq_u32 s25, 1\ns_cbranch_scc1 {tag}_w3")
    for j in range(8):
        a(f"buffer_load_dwordx4 {vr(vin+4*j)}, v{vb+1}, s[8:11], s29 offen")
        if j < 7: a("s_add_u32 s29, s29, 9216")
    a(f"s_branch {tag}_j")
    a.label(f"{tag}_w3")
    for j in range(8):
        a(f"buffer_load_dwordx4 {vr(vin+4*j)}, v{vb+1}, s[12:15], s29 offen")
        if j < 7: a("s_add_u32 s29, s29, 9216")
    a.label(f"{tag}_j")
    sdiv(a, 30, 27, 3, 31, 33)
    a("s_mul_i32 s30, s30, 110592")
    a("s_mul_i32 s33, s28, 6144")
    a("s_add_u32 s30, s30, s33")
    a("s_lshl_b32 s31, s31, 1")
    a("s_add_u32 s31, s31, s25")
    a("s_lshl_b32 s31, s31, 10")
    a(f"s_add_u32 s{sdst}, s30, s31")
def w13_finish(a, vb, vin, vout, sdst):
    for i in range(8):
        for jp in range(4):
            sel = "s41" if i & 1 else "s40"
            a(f"v_perm_b32 v{vout+4*i+jp}, v{vin+4*(2*jp+1)+(i>>1)}, v{vin+4*(2*jp)+(i>>1)}, {sel}")
        a(f"buffer_store_dwordx4 {vr(vout+4*i)}, v{vb}, s[16:19], s{sdst} offen sc0 sc1")
        if i < 7: a(f"s_add_u32 s{sdst}, s{sdst}, {SZ_W13S}")
def w2_load(a, s_id, vb, vin, sdst):
    sdiv(a, 25, s_id, 108, 26, 27)
    sdiv(a, 27, 26, 6, 28, 29)
    a("s_lshl_b32 s29, s27, 8")
    a("s_add_u32 s29, s29, s25")
    a("s_mul_i32 s29, s29, 1152")
    a("s_mul_i32 s30, s28, 192")
    a("s_add_u32 s29, s29, s30")
    for v in range(2):
        for j in range(4):
            a(f"s_add_u32 s30, s29, {(128*v+8*j)*1152}")
            a(f"buffer_load_dwordx3 {vr(vin+4*(4*v+j),3)}, v{vb+2}, s[44:47], s30 offen")
    a(f"s_mul_i32 s30, s25, {SZ_W2S}")
    a("s_mul_i32 s31, s28, 110592")
    a("s_add_u32 s30, s30, s31")
    a("s_mul_i32 s31, s27, 3072")
    a(f"s_add_u32 s{sdst}, s30, s31")
def w2_finish(a, vb, vin, vout, sdst):
    for i in range(6):
        for v in range(2):
            for jj in range(2):
                sel = "s41" if i & 1 else "s40"
                a(f"v_perm_b32 v{vout+4*i+2*v+jj}, v{vin+4*(4*v+2*jj+1)+(i>>1)}, v{vin+4*(4*v+2*jj)+(i>>1)}, {sel}")
        a(f"s_add_u32 s31, s{sdst}, {(i//3)*55296 + (i%3)*1024}")
        a(f"buffer_store_dwordx4 {vr(vout+4*i)}, v{vb}, s[48:51], s31 offen sc0 sc1")
```

```python
from common import *
from k1 import gen_mod, gen_ldsshuf, SIDE
K2_LDS = 73728 + 8*4096
WLATE = ENV('K2WLATE', '0')
L_MOD = 73728
QSCALE = 0x3eae1a4e
import struct, math
QSCALE = struct.unpack("<I", struct.pack("<f", math.log2(math.e)/math.sqrt(18.0)))[0]
EPS = struct.unpack("<I", struct.pack("<f", 1e-5))[0]
INV576 = struct.unpack("<I", struct.pack("<f", 1.0/576))[0]

def gen_k2():
    a = Asm()
    a("s_cmp_ge_u32 s2, 256\ns_cbranch_scc1 k2_exit")
    qkv_body(a, False)
    return kernel("k2_qkv_kernel", a, vgpr=152, sgpr=64), (256, 512, K2_LDS)

def tile_map(a):
    a("s_and_b32 s25, s2, 7")
    a("s_lshr_b32 s26, s2, 3")
    a("s_lshr_b32 s24, s25, 1")
    a("s_lshl_b32 s24, s24, 3")
    a("s_and_b32 s27, s26, 7")
    a("s_add_u32 s24, s24, s27        ; rb")
    a("s_and_b32 s23, s25, 1")
    a("s_lshl_b32 s23, s23, 2")
    a("s_lshr_b32 s27, s26, 3")
    a("s_add_u32 s23, s23, s27        ; slice")

def qkv_body(a, fused):
    LF = " sc1" if fused else ""
    if not fused:
        tile_map(a)
        a("s_cmp_eq_u32 s23, 7\ns_cbranch_scc1 " + ("k2_side" if SIDE == 'k2' else "k2_exit"))
        load_ptr(a, 20, KA_WS)
        wave_id(a, 22, 1)
    VL=1; VTOK=2; VG=3; VL16=4
    a(f"v_and_b32 v{VL}, 63, v0")
    a(f"v_and_b32 v{VTOK}, 15, v{VL}")
    a(f"v_lshrrev_b32 v{VG}, 4, v{VL}")
    a(f"v_lshlrev_b32 v{VL16}, 4, v{VL}")
    a("s_lshl_b32 s25, s23, 3")
    a("s_add_u32 s25, s25, s22        ; tau")
    a("s_lshr_b32 s26, s22, 1         ; tb")
    a("s_and_b32 s27, s22, 1          ; half")
    a("s_waitcnt lgkmcnt(0)")
    srd(a, 8, 20, SZ_XN, WS_XN); srd(a, 12, 20, 4608, WS_MOD); srd(a, 16, 20, SZ_WQKV, WS_WQKV)
    RING=6
    VX=16; VW=52; VACC=100; VT=132
    a(f"s_mul_i32 s28, s27, 1152")
    a(f"buffer_load_dwordx4 {vr(VT)}, v{VL16}, s[12:15], s28 offen" + LF)
    a(f"buffer_load_dwordx4 {vr(VT+4)}, v{VL16}, s[12:15], s28 offen offset:1024" + LF)
    a(f"s_add_u32 s28, s28, 2304")
    a(f"buffer_load_dwordx4 {vr(VT+8)}, v{VL16}, s[12:15], s28 offen" + LF)
    a(f"buffer_load_dwordx4 {vr(VT+12)}, v{VL16}, s[12:15], s28 offen offset:1024" + LF)
    a("s_mul_i32 s28, s24, 73728")
    a(f"s_mul_i32 s29, s27, {9*4096}")
    a("s_add_u32 s28, s28, s29")
    a("s_lshl_b32 s29, s26, 10")
    a("s_add_u32 s28, s28, s29")
    for i in range(9):
        a(f"buffer_load_dwordx4 {vr(VX+4*i)}, v{VL16}, s[8:11], s28 offen" + LF)
        if i < 8: a("s_add_u32 s28, s28, 4096")
    a(f"s_mul_i32 s40, s25, {18*2048}   ; W stream")
    nw = [0]
    def wload():
        k = nw[0]; nw[0] += 1
        t, uu = k >> 1, k & 1
        a(f"buffer_load_dwordx4 {vr(VW+8*(t % RING)+4*uu)}, v{VL16}, s[16:19], s40 offen offset:{uu*1024}" + LF)
        if uu: a("s_add_u32 s40, s40, 2048")
    a("s_lshl_b32 s28, s22, 12")
    a(f"s_add_u32 s33, s28, {L_MOD}")
    a(f"v_add_u32 v6, s33, v{VL16}")
    a.stamp(1)
    a("s_waitcnt vmcnt(9)")
    for i in range(4): a(f"ds_write_b128 v6, {vr(VT+4*i)} offset:{i*1024}")
    a("s_waitcnt lgkmcnt(0)")
    a.stamp(2)
    VC=[VACC, VACC+16]; VSF=[VACC+8, VACC+24]; VTT=VT; VO=VT+8
    a(f"v_lshlrev_b32 v8, 5, v{VG}")
    a(f"v_add_u32 v8, s33, v8")
    a(f"s_mul_i32 s28, s27, {9*4096}")
    a(f"s_lshl_b32 s29, s26, 10")
    a(f"s_add_u32 s28, s28, s29")
    a(f"v_add_u32 v9, s28, v{VL16}")
    def modread(i):
        b = i & 1
        a(f"ds_read_b128 {vr(VSF[b])}, v8 offset:{i*128}")
        a(f"ds_read_b128 {vr(VSF[b]+4)}, v8 offset:{i*128 + 16}")
        a(f"ds_read_b128 {vr(VC[b])}, v8 offset:{2048 + i*128}")
        a(f"ds_read_b128 {vr(VC[b]+4)}, v8 offset:{2048 + i*128 + 16}")
    modread(0)
    for i in range(9):
        if i < 8: modread(i+1)
        a(f"s_waitcnt vmcnt({8-i+nw[0]}) lgkmcnt({4 if i < 8 else 0})")
        if i == 0: a.stamp(3)
        chunk_unpack(a, VX+4*i, VTT); chunk_mod(a, VTT, VC[i&1], VSF[i&1]); chunk_pack(a, VTT, VO+4*(i&1))
        a(f"ds_write_b128 v9, {vr(VO+4*(i&1))} offset:{i*4096}")
        if WLATE == "0": wload()
    a.stamp(5)
    while nw[0] < 2*RING: wload()
    a("s_waitcnt lgkmcnt(0)")
    a("s_barrier")
    a.stamp(4)
    a("s_cmp_ge_u32 s25, 54\ns_cbranch_scc1 k2_exit")
    XB=[VX, VX+16]
    def xreads(t):
        b = XB[t & 1]
        for tb in range(4):
            off = t*4096 + tb*1024
            if off < 65536: a(f"ds_read_b128 {vr(b+4*tb)}, v{VL16} offset:{off}")
            else:           a(f"ds_read_b128 {vr(b+4*tb)}, v10 offset:{off-65536}")
    def gemm(vtype):
        nw[0] = 2*RING
        a("s_mov_b32 s41, s40")
        a(f"v_add_u32 v10, 0x10000, v{VL16}")
        xreads(0)
        for t in range(18):
            if t < 17: xreads(t+1)
            issued = min(18, t + RING)
            a(f"s_waitcnt vmcnt({2*(issued-t-1)}) lgkmcnt({4 if t < 17 else 0})")
            b = XB[t & 1]
            for uu in range(2):
                for tb in range(4):
                    acc = VACC + 16*uu + 4*tb
                    c = vr(acc) if t else "0"
                    w = vr(VW+8*(t % RING)+4*uu); x = vr(b+4*tb)
                    if vtype: a(f"v_mfma_f32_16x16x32_bf16 {vr(acc)}, {x}, {w}, {c}")
                    else:     a(f"v_mfma_f32_16x16x32_bf16 {vr(acc)}, {w}, {x}, {c}")
                if t + RING < 18:
                    a(f"buffer_load_dwordx4 {vr(VW+8*(t % RING)+4*uu)}, v{VL16}, s[16:19], s41 offen offset:{uu*1024}" + LF)
            if t + RING < 18: a("s_add_u32 s41, s41, 2048")
    a("s_cmp_ge_u32 s25, 52\ns_cbranch_scc1 k2_gv")
    a("s_cmp_ge_u32 s25, 48\ns_cbranch_scc1 k2_gq")
    a("s_cmp_ge_u32 s25, 32\ns_cbranch_scc1 k2_gv")
    a.label("k2_gq")
    gemm(False)
    a.stamp(6)
    srd(a, 8, 20, SZ_QA, WS_QA); srd(a, 12, 20, SZ_QB, WS_QB); srd(a, 16, 20, SZ_KV, WS_KV)
    a("s_cmp_ge_u32 s25, 48\ns_cbranch_scc1 k2_ext")
    def pack_pair16(acc0, acc1, o):
        a(f"v_cvt_pk_bf16_f32 v{o}, v{acc0}, v{acc0+1}")
        a(f"v_cvt_pk_bf16_f32 v{o+1}, v{acc0+2}, v{acc0+3}")
        a(f"v_cvt_pk_bf16_f32 v{o+2}, v{acc1}, v{acc1+1}")
        a(f"v_cvt_pk_bf16_f32 v{o+3}, v{acc1+2}, v{acc1+3}")
    a("s_lshl_b32 s28, s24, 11")
    a("s_cmp_ge_u32 s25, 16\ns_cbranch_scc1 k2_kmain")
    a(f"s_mov_b32 s33, {QSCALE:#x}")
    a("s_lshl_b32 s29, s25, 17")
    a("s_add_u32 s28, s28, s29")
    for uu in range(2):
        for tl in range(2):
            acc = VACC+16*uu+8*tl; o = VT+4*((2*uu+tl)&3)
            for j in range(8): a(f"v_mul_f32 v{acc+j}, s33, v{acc+j}")
            pack_pair16(acc, acc+4, o)
            a(f"v_permlane16_swap_b32 v{o}, v{o+2}")
            a(f"v_permlane16_swap_b32 v{o+1}, v{o+3}")
            a(f"s_add_u32 s29, s28, {uu*65536 + tl*1024}")
            a(f"buffer_store_dwordx4 {vr(o)}, v{VL16}, s[8:11], s29 offen " + SC("K2SC", "0"))
    a("s_endpgm")
    a.label("k2_kmain")
    a("s_sub_u32 s29, s25, 16")
    a(f"s_mul_i32 s29, s29, {2*KVH}")
    a("s_add_u32 s28, s28, s29")
    for uu in range(2):
        for tl in range(2):
            acc = VACC+16*uu+8*tl; o = VT+4*((2*uu+tl)&3)
            pack_pair16(acc, acc+4, o)
            a(f"v_permlane16_swap_b32 v{o}, v{o+2}")
            a(f"v_permlane16_swap_b32 v{o+1}, v{o+3}")
            a(f"s_add_u32 s29, s28, {uu*KVH + KV_KA + tl*1024}")
            a(f"buffer_store_dwordx4 {vr(o)}, v{VL16}, s[16:19], s29 offen " + SC("K2SC", "0"))
    a("s_endpgm")
    a.label("k2_ext")
    a("s_cmp_ge_u32 s25, 50\ns_cbranch_scc1 k2_kext")
    a(f"s_mov_b32 s33, {QSCALE:#x}")
    a(f"v_lshlrev_b32 v5, 15, v{VG}               ; 2g heads * 16384")
    a(f"v_lshl_add_u32 v5, v{VTOK}, 3, v5")
    a("s_sub_u32 s29, s25, 48")
    a("s_lshl_b32 s29, s29, 18")
    a("s_lshl_b32 s28, s24, 9         ; rb*64*8")
    a("s_add_u32 s28, s28, s29")
    a(f"v_mov_b32 v{VT+1}, 0")
    a(f"v_mov_b32 v{VT+3}, 0")
    for uu in range(2):
        for tb in range(4):
            acc = VACC+16*uu+4*tb
            for j in range(4): a(f"v_mul_f32 v{acc+j}, s33, v{acc+j}")
            a(f"v_cvt_pk_bf16_f32 v{VT}, v{acc}, v{acc+1}")
            a(f"v_cvt_pk_bf16_f32 v{VT+2}, v{acc+2}, v{acc+3}")
            a(f"s_add_u32 s29, s28, {uu*8*16384 + tb*128}")
            a(f"buffer_store_dwordx2 {vr(VT,2)}, v5, s[12:15], s29 offen")
            a(f"s_add_u32 s29, s29, 16384")
            a(f"buffer_store_dwordx2 {vr(VT+2,2)}, v5, s[12:15], s29 offen")
    a("s_endpgm")
    a.label("k2_kext")
    a(f"v_mul_u32_u24 v5, {2*KVH}, v{VG}")
    a(f"v_lshl_add_u32 v5, v{VTOK}, 3, v5")
    a("s_sub_u32 s29, s25, 50")
    a(f"s_mul_i32 s29, s29, {16*KVH}")
    a("s_lshl_b32 s28, s24, 9")
    a("s_add_u32 s28, s28, s29")
    a(f"v_mov_b32 v{VT+1}, 0x3f80")
    a(f"v_mov_b32 v{VT+3}, 0x3f80")
    for uu in range(2):
        for tb in range(4):
            acc = VACC+16*uu+4*tb
            a(f"v_cvt_pk_bf16_f32 v{VT}, v{acc}, v{acc+1}")
            a(f"v_cvt_pk_bf16_f32 v{VT+2}, v{acc+2}, v{acc+3}")
            a(f"s_add_u32 s29, s28, {uu*8*KVH + KV_KB + tb*128}")
            a(f"buffer_store_dwordx2 {vr(VT,2)}, v5, s[16:19], s29 offen")
            a(f"s_add_u32 s29, s29, {KVH}")
            a(f"buffer_store_dwordx2 {vr(VT+2,2)}, v5, s[16:19], s29 offen")
    a("s_endpgm")
    a.label("k2_gv")
    gemm(True)
    srd(a, 16, 20, SZ_KV, WS_KV)
    a(f"v_and_b32 v6, 1, v{VG}")
    a(f"v_mul_u32_u24 v5, 304, v6")
    a(f"v_lshrrev_b32 v6, 1, v{VG}")
    a(f"v_mul_u32_u24 v6, 608, v6")
    a(f"v_add_u32 v5, v5, v6")
    a(f"s_mul_i32 s28, s24, {2*1216}")
    a("s_cmp_ge_u32 s25, 52\ns_cbranch_scc1 k2_vext")
    a(f"v_lshl_add_u32 v5, v{VTOK}, 4, v5          ; d = m")
    a("s_sub_u32 s29, s25, 32")
    a(f"s_mul_i32 s29, s29, {2*KVH}")
    a("s_add_u32 s28, s28, s29")
    a(f"s_mov_b32 s31, {KVH}")
    a("s_branch k2_vstore")
    a.label("k2_vext")
    a(f"v_lshrrev_b32 v6, 1, v{VTOK}")
    a(f"v_mul_u32_u24 v6, {KVH}, v6")
    a(f"v_add_u32 v5, v5, v6")
    a(f"v_and_b32 v6, 1, v{VTOK}")
    a(f"v_lshl_add_u32 v5, v6, 4, v5")
    a(f"v_add_u32 v5, 256, v5                      ; d = 16 + (m&1)")
    a("s_sub_u32 s29, s25, 52")
    a(f"s_mul_i32 s29, s29, {16*KVH}")
    a("s_add_u32 s28, s28, s29")
    a(f"s_mov_b32 s31, {8*KVH}")
    a.label("k2_vstore")
    for uu in range(2):
        for tl in range(2):
            acc = VACC+16*uu+8*tl; o = VT+4*((2*uu+tl)&3)
            pack_pair16(acc, acc+4, o)
            a(f"v_permlane32_swap_b32 v{o}, v{o+2}")
            a(f"v_permlane32_swap_b32 v{o+1}, v{o+3}")
            a(f"s_add_u32 s29, s28, {KV_V + tl*1216}")
            a(f"buffer_store_dwordx4 {vr(o)}, v5, s[16:19], s29 offen " + SC("K2SC", "0"))
        if uu == 0: a("s_add_u32 s28, s28, s31")
    a("s_endpgm")
    if not fused:
        a.label("k2_side")
        wave_id(a, 22, 1)
        a("s_cmp_ge_u32 s24, 18\ns_cbranch_scc1 k2_side_wo")
        a("s_lshr_b32 s45, s22, 2")
        a("s_lshl_b32 s44, s24, 1")
        a("s_add_u32 s44, s44, s45")
        a("s_add_u32 s44, s44, 18")
        a("s_mul_i32 s45, s45, 12288")
        gen_mod(a, "k2")
        a.label("k2_side_wo")
        a("s_sub_u32 s23, s24, 18")
        a("s_lshl_b32 s23, s23, 3")
        a("s_add_u32 s23, s23, s22")
        a("s_cmp_ge_u32 s23, 72\ns_cbranch_scc1 k2_exit")
        gen_ldsshuf(a, "k2", False, True)
    a.label("k2_exit")
```

```python
from common import *
import k1, k2
from k1 import gen_mod, gen_ldsshuf, gen_xn, gen_ones, gen_poison
NPROD = 18 + 32 + 27
def gen_kf():
    a = Asm()
    a("s_cmp_ge_u32 s2, 256\ns_cbranch_scc1 k2_exit")
    wave_id(a, 22, 1)
    a("s_lshr_b32 s46, s22, 2")
    k1.END[0] = "kf_task_done"
    R = [("mod01", 18), ("xn", 32), ("wqkv", 27), ("mod25", 18), ("wo", 9), ("ones", 16), ("pois", 18)]
    base = 0; B = {}
    for nm, n in R:
        B[nm] = base; base += n
        a(f"s_cmp_lt_u32 s2, {base}\ns_cbranch_scc1 kf_{nm}")
    a("s_branch kf_task_done")
    a.label("kf_mod01")
    a("s_lshl_b32 s44, s2, 1\ns_add_u32 s44, s44, s46\ns_mul_i32 s45, s46, 12288")
    gen_mod(a, "kfa", 32)
    a.label("kf_xn")
    a(f"s_sub_u32 s23, s2, {B['xn']}\ns_lshl_b32 s23, s23, 1\ns_add_u32 s23, s23, s46")
    gen_xn(a, True)
    a.label("kf_wqkv")
    a(f"s_sub_u32 s23, s2, {B['wqkv']}\ns_lshl_b32 s23, s23, 3\ns_add_u32 s23, s23, s22")
    gen_ldsshuf(a, "kfq", True, False)
    a.label("kf_mod25")
    a(f"s_sub_u32 s44, s2, {B['mod25']}\ns_lshl_b32 s44, s44, 1\ns_add_u32 s44, s44, s46\ns_add_u32 s44, s44, 18\ns_mul_i32 s45, s46, 12288")
    gen_mod(a, "kfb", 64)
    a.label("kf_wo")
    a(f"s_sub_u32 s23, s2, {B['wo']}\ns_lshl_b32 s23, s23, 3\ns_add_u32 s23, s23, s22")
    gen_ldsshuf(a, "kfo", False, True)
    a.label("kf_ones")
    a(f"s_sub_u32 s23, s2, {B['ones']}\ns_lshl_b32 s23, s23, 1\ns_add_u32 s23, s23, s46")
    gen_ones(a, True)
    a.label("kf_pois")
    a(f"s_sub_u32 s23, s2, {B['pois']}\ns_lshl_b32 s23, s23, 1\ns_add_u32 s23, s23, s46")
    gen_poison(a, True)
    k1.END[0] = None
    a.label("kf_task_done")
    load_ptr(a, 6, KA_DBG); load_ptr(a, 20, KA_WS)
    wave_id(a, 22, 1)
    a("s_waitcnt vmcnt(0) lgkmcnt(0)")
    srd(a, 48, 6, 256)
    a(f"s_cmp_ge_u32 s2, {NPROD}\ns_cbranch_scc1 kf_nosig")
    a("s_barrier")
    a("s_cmp_lg_u32 s22, 0\ns_cbranch_scc1 kf_nosig")
    a("s_mov_b64 exec, 1")
    a("v_mov_b32 v1, 0\nv_mov_b32 v2, 1")
    a("buffer_atomic_add v2, v1, s[48:51], 0 offen sc0 sc1")
    a("s_waitcnt vmcnt(0)")
    a("v_readfirstlane_b32 s26, v2")
    a(f"s_cmp_lg_u32 s26, {NPROD-1}\ns_cbranch_scc1 kf_notlast")
    a("v_mov_b32 v1, 128\nv_mov_b32 v2, 1")
    a("buffer_store_dword v2, v1, s[48:51], 0 offen sc0 sc1")
    a.label("kf_notlast")
    a("s_mov_b64 exec, -1")
    a.label("kf_nosig")
    k2.tile_map(a)
    a("s_cmp_eq_u32 s23, 7\ns_cbranch_scc1 k2_exit")
    a("s_cmp_lg_u32 s22, 0\ns_cbranch_scc1 kf_nopoll")
    a("v_mov_b32 v1, 128")
    a("s_mov_b32 s29, 20000")
    a.label("kf_poll")
    a("buffer_load_dword v2, v1, s[48:51], 0 offen sc0 sc1")
    a("s_waitcnt vmcnt(0)")
    a("v_readfirstlane_b32 s26, v2")
    a("s_sub_u32 s29, s29, 1")
    a("s_cmp_eq_u32 s29, 0\ns_cbranch_scc1 kf_nopoll")
    a("s_cmp_eq_u32 s26, 0\ns_cbranch_scc1 kf_poll")
    a.label("kf_nopoll")
    a("s_barrier")
    k2.qkv_body(a, True)
    return kernel("kf_front_kernel", a, vgpr=152, sgpr=64), (256, 512, k2.K2_LDS)
```

```python
from common import *
import k1, k2
from k1 import gen_mod, gen_ldsshuf, gen_xn, gen_ones, gen_poison
NPROD = 36 + 64 + 54
ROLES = [("mod01", 36), ("xn", 64), ("wqkv", 54)]
def gen_kf():
    a = Asm()
    a("s_cmp_ge_u32 s2, 256\ns_cbranch_scc1 k2_exit")
    wave_id(a, 22, 1)
    a("s_lshr_b32 s46, s22, 2")
    a("s_and_b32 s23, s2, 1\ns_cmp_ge_u32 s2, 192\ns_cselect_b32 s23, s23, 0\ns_cmp_lg_u32 s23, 0\ns_cbranch_scc1 kf_side")
    k1.END[0] = "kf_task_done"
    base = 0; B = {}
    for nm, n in ROLES:
        B[nm] = base; base += n
        a(f"s_cmp_lt_u32 s2, {base}\ns_cbranch_scc1 kf_{nm}")
    a("s_branch kf_task_done")
    def upper_half(nbar, tag):
        a(f"s_cmp_eq_u32 s46, 0\ns_cbranch_scc1 kf_{tag}_go")
        for _ in range(nbar): a("s_barrier")
        a("s_branch kf_task_done")
        a.label(f"kf_{tag}_go")
    a.label("kf_mod01")
    upper_half(2, "mod01")
    a("s_mov_b32 s44, s2\ns_mov_b32 s45, 0")
    gen_mod(a, "kfa", 32)
    a.label("kf_xn")
    upper_half(1, "xn")
    a(f"s_sub_u32 s23, s2, {B['xn']}")
    gen_xn(a, True)
    a.label("kf_wqkv")
    upper_half(0, "wqkv")
    a(f"s_sub_u32 s23, s2, {B['wqkv']}\ns_lshl_b32 s23, s23, 2\ns_add_u32 s23, s23, s22")
    gen_ldsshuf(a, "kfq", True, False)
    a.label("kf_side")
    a("s_sub_u32 s47, s2, 193\ns_and_b32 s47, s47, -2\ns_add_u32 s47, s47, s46        ; slot 0..63")
    k1.END[0] = "kf_side1"
    a("s_cmp_ge_u32 s47, 32\ns_cbranch_scc1 kf_side1")
    a("s_mov_b32 s23, s47")
    gen_ones(a, True)
    a.label("kf_side1")
    k1.END[0] = "kf_side2"
    a("s_cmp_ge_u32 s47, 36\ns_cbranch_scc1 kf_side2")
    a("s_mov_b32 s23, s47")
    gen_poison(a, True)
    a.label("kf_side2")
    k1.END[0] = "k2_exit"
    a("s_cmp_ge_u32 s47, 36\ns_cbranch_scc1 kf_side_wo")
    a("s_add_u32 s44, s47, 18\ns_mul_i32 s45, s46, 12288")
    gen_mod(a, "kfb", 64)
    a.label("kf_side_wo")
    a("s_sub_u32 s23, s47, 36\ns_lshl_b32 s23, s23, 2\ns_and_b32 s24, s22, 3\ns_add_u32 s23, s23, s24")
    a("s_cmp_ge_u32 s23, 72\ns_cbranch_scc1 k2_exit")
    gen_ldsshuf(a, "kfo", False, True)
    k1.END[0] = None
    a.label("kf_task_done")
    load_ptr(a, 6, KA_DBG); load_ptr(a, 20, KA_WS)
    wave_id(a, 22, 1)
    a.stamp(7)
    a("s_waitcnt vmcnt(0) lgkmcnt(0)")
    a.stamp(8)
    srd(a, 48, 6, 256)
    a(f"s_cmp_ge_u32 s2, {NPROD}\ns_cbranch_scc1 kf_nosig")
    a("s_barrier")
    a("s_cmp_lg_u32 s22, 0\ns_cbranch_scc1 kf_nosig")
    a("s_mov_b64 exec, 1")
    NSUB = int(ENV("NSUB", "1")); assert NPROD % NSUB == 0 and NSUB in (1, 2)
    a(f"s_and_b32 s26, s2, {NSUB-1}\ns_lshl_b32 s26, s26, 6")
    a("v_mov_b32 v1, s26\nv_mov_b32 v2, 1")
    a("buffer_atomic_add v2, v1, s[48:51], 0 offen sc0 sc1")
    a("s_waitcnt vmcnt(0)")
    a("v_readfirstlane_b32 s26, v2")
    a(f"s_cmp_lg_u32 s26, {NPROD//NSUB-1}\ns_cbranch_scc1 kf_notlast")
    if NSUB > 1:
        a("v_mov_b32 v1, 192\nv_mov_b32 v2, 1")
        a("buffer_atomic_add v2, v1, s[48:51], 0 offen sc0 sc1")
        a("s_waitcnt vmcnt(0)")
        a("v_readfirstlane_b32 s26, v2")
        a(f"s_cmp_lg_u32 s26, {NSUB-1}\ns_cbranch_scc1 kf_notlast")
    a("v_mov_b32 v1, 128\nv_mov_b32 v2, 1")
    a("buffer_store_dword v2, v1, s[48:51], 0 offen sc0 sc1")
    a.label("kf_notlast")
    a("s_mov_b64 exec, -1")
    a.label("kf_nosig")
    a.stamp(9)
    k2.tile_map(a)
    a("s_cmp_lg_u32 s22, 0\ns_cbranch_scc1 kf_nopoll")
    a("v_mov_b32 v1, 128")
    a("s_mov_b32 s29, 20000")
    a.label("kf_poll")
    a("buffer_load_dword v2, v1, s[48:51], 0 offen sc0 sc1")
    a("s_waitcnt vmcnt(0)")
    a("v_readfirstlane_b32 s26, v2")
    a("s_sub_u32 s29, s29, 1")
    a("s_cmp_eq_u32 s29, 0\ns_cbranch_scc1 kf_nopoll")
    a("s_cmp_eq_u32 s26, 0\ns_cbranch_scc1 kf_poll")
    a.label("kf_nopoll")
    a("s_barrier")
    a.stamp(10)
    k2.qkv_body(a, True)
    return kernel("kf_front_kernel", a, vgpr=152, sgpr=64), (256, 512, k2.K2_LDS)
```

```python
from common import *
from k6 import reduce_loads, reduce_main
import os
MERGE6 = os.environ.get('MERGE6', '1') == '1'
L5_X=0; L5_H=73728
K5_LDS = 147456 + 64 + 1536
L5_CNT = 147456
L5_STAT = 147456 + 64
NLOG2E=0xbfb8aa3b
K5_A = int(os.environ.get('K5_A', '2'))
def gen_k5():
    a = Asm()
    a("s_cmp_ge_u32 s2, 256\ns_cbranch_scc1 k5_exit")
    load_ptr(a, 20, KA_WS)
    wave_id(a, 22, 1)
    ffn(a, False)
    return kernel("k5_ffn_kernel", a, vgpr=168, sgpr=64), (256, 768, K5_LDS)

def ffn(a, chained):
    XF = (" " + ENV("XLD", "sc1")) if chained else ""
    WF = "sc1" if chained else ENV('K5WF', '')
    VL=1; VTOK=2; VG=3; VL16=4
    a(f"v_and_b32 v{VL}, 63, v0")
    a(f"v_and_b32 v{VTOK}, 15, v{VL}")
    a(f"v_lshrrev_b32 v{VG}, 4, v{VL}")
    a(f"v_lshlrev_b32 v{VL16}, 4, v{VL}")
    A = K5_A; lgA = {1: 0, 2: 1, 4: 2, 8: 3}[A]
    a("s_and_b32 s25, s2, 7")
    a("s_lshr_b32 s26, s2, 3")
    a(f"s_and_b32 s23, s25, {8//A - 1}")
    a(f"s_lshl_b32 s23, s23, {lgA}")
    a(f"s_and_b32 s27, s26, {A-1}")
    a("s_add_u32 s23, s23, s27        ; slice")
    a(f"s_lshr_b32 s24, s25, {3-lgA}")
    a(f"s_lshl_b32 s24, s24, {5-lgA}")
    a(f"s_lshr_b32 s26, s26, {lgA}")
    a("s_add_u32 s24, s24, s26        ; rb")
    sdiv(a, 26, 22, 3, 27, 25)
    a("s_waitcnt lgkmcnt(0)")
    WBASE = WS_W13
    srd(a, 8, 20, SZ_X1F, WS_X1F); srd(a, 12, 20, 4608, WS_MOD+3*2304)
    srd(a, 16, 20, WS_W2 + SZ_W2 - WBASE, WBASE); srd(a, 44, 20, SZ_PART, WS_PART); srd(a, 48, 20, SZ_STP, WS_STP)
    VACC=8
    VW=104
    VX=152
    AX=5; AH=6
    XP=VACC
    MT=XP+24
    ST=XP+32
    a(f"s_mul_i32 s28, s27, 768")
    a(f"buffer_load_dwordx4 {vr(MT)}, v{VL16}, s[12:15], s28 offen")
    a(f"s_add_u32 s28, s28, 2304")
    a(f"buffer_load_dwordx4 {vr(MT+4)}, v{VL16}, s[12:15], s28 offen")
    a(f"s_mul_i32 s40, s23, {SZ_W13S}")
    a("s_mul_i32 s29, s22, 110592")
    a("s_add_u32 s40, s40, s29")
    a(f"s_mul_i32 s41, s23, {SZ_W2S}")
    a("s_mul_i32 s29, s22, 55296")
    a("s_add_u32 s41, s41, s29")
    a(f"s_add_u32 s41, s41, {WS_W2-WBASE:#x}")
    a(f"v_add_u32 v7, 4096, v{VL16}")
    def wload(slot, f, s):
        r = VW + 24*slot + 4*f
        if f < 4: a(f"buffer_load_dwordx4 {vr(r)}, v{VL16}, s[16:19], {s} offen offset:{f*1024} " + WF)
        else:     a(f"buffer_load_dwordx4 {vr(r)}, v7, s[16:19], {s} offen offset:{(f-4)*1024} " + WF)
    def stloads():
        a(f"s_lshl_b32 s28, s24, 6")
        a(f"s_lshl_b32 s29, s26, 4")
        a(f"s_add_u32 s28, s28, s29")
        a(f"s_lshl_b32 s28, s28, 5")
        a(f"v_lshlrev_b32 v{AX}, 5, v{VTOK}")
        a(f"buffer_load_dwordx4 {vr(ST)}, v{AX}, s[48:51], s28 offen" + XF)
        a(f"buffer_load_dwordx4 {vr(ST+4)}, v{AX}, s[48:51], s28 offen offset:16" + XF)
    def frloads():
        a("s_mul_i32 s28, s24, 73728")
        a(f"s_mul_i32 s29, s27, {6*4096}")
        a("s_add_u32 s28, s28, s29")
        a("s_lshl_b32 s29, s26, 10")
        a("s_add_u32 s28, s28, s29")
        for i in range(6):
            a(f"buffer_load_dwordx4 {vr(XP+4*i)}, v{VL16}, s[8:11], s28 offen" + XF)
            if i < 5: a("s_add_u32 s28, s28, 4096")
    def xloads():
        stloads(); frloads()
    def modstage():
        a("s_lshl_b32 s30, s22, 11")
        a(f"s_add_u32 s30, s30, {L5_H}")
        a(f"v_add_u32 v{AH}, s30, v{VL16}")
        if MERGE6:
            a(f"v_mov_b32 v{AX}, {L5_CNT}")
            a(f"v_mov_b32 v{VX}, 0")
            for o in range(0, 52, 4): a(f"ds_write_b32 v{AX}, v{VX} offset:{o}")
    EARLYW = chained
    if EARLYW and TAGS and XMODE in ("stp", "late"):
        def w01():
            for f in range(6): wload(0, f, "s40")
            a("s_add_u32 s40, s40, 6144")
            for f in range(6): wload(1, f, "s40")
            a("s_add_u32 s40, s40, 6144")
        if XMODE == "stp": w01()
        modstage()
        a("s_waitcnt vmcnt(%d)" % (12 if XMODE == "stp" else 0))
        a(f"ds_write_b128 v{AH}, {vr(MT)}")
        a(f"ds_write_b128 v{AH}, {vr(MT+4)} offset:1024")
        a("s_barrier")
        a.stamp(6)
        a("s_mov_b32 s57, 20000")
        a.label("k5_in_retry")
        xloads()
        a("s_waitcnt vmcnt(0)")
        any_poison(a, list(range(XP, XP+24)) + list(range(ST, ST+8)), VX)
        a("s_sub_u32 s57, s57, 1")
        a("s_cmp_eq_u32 s57, 0\ns_cbranch_scc1 k5_in_got")
        a("s_cmp_lg_u64 vcc, 0\ns_cbranch_scc1 k5_in_retry")
        a.label("k5_in_got")
    elif EARLYW and TAGS:
        for f in range(6): wload(0, f, "s40")
        a("s_add_u32 s40, s40, 6144")
        frloads()
        for f in range(6): wload(1, f, "s40")
        a("s_add_u32 s40, s40, 6144")
        modstage()
        a("s_waitcnt vmcnt(6)")
        any_poison(a, list(range(XP, XP+24)), VX)
        a("s_cmp_eq_u64 vcc, 0\ns_cbranch_scc1 k5_in_got")
        a("s_mov_b32 s57, 20000")
        a.label("k5_in_retry")
        frloads()
        a("s_waitcnt vmcnt(0)")
        any_poison(a, list(range(XP, XP+24)), VX)
        a("s_sub_u32 s57, s57, 1")
        a("s_cmp_eq_u32 s57, 0\ns_cbranch_scc1 k5_in_got")
        a("s_cmp_lg_u64 vcc, 0\ns_cbranch_scc1 k5_in_retry")
        a.label("k5_in_got")
        a(f"ds_write_b128 v{AH}, {vr(MT)}")
        a(f"ds_write_b128 v{AH}, {vr(MT+4)} offset:1024")
        a("s_mov_b32 s29, 0x3f803f80")
        ln_stats(a, XP, 24, ST, ST+1, 29)
        xsum16_32(a, ST, ST+2); xsum16_32(a, ST+1, ST+2)
        a("s_lshl_b32 s28, s27, 6")
        a("s_lshl_b32 s29, s26, 4")
        a("s_add_u32 s28, s28, s29")
        a(f"v_add_u32 v{AX}, s28, v{VTOK}")
        a(f"v_lshlrev_b32 v{AX}, 3, v{AX}")
        a(f"v_add_u32 v{AX}, {L5_STAT}, v{AX}")
        a(f"ds_write_b64 v{AX}, {vr(ST,2)}")
        a("s_waitcnt lgkmcnt(0)")
        a("s_barrier")
        a.stamp(6)
        a(f"v_add_u32 v{AX}, s29, v{VTOK}")
        a(f"v_lshlrev_b32 v{AX}, 3, v{AX}")
        a(f"v_add_u32 v{AX}, {L5_STAT}, v{AX}")
        a(f"ds_read_b64 {vr(ST,2)}, v{AX}")
        a(f"ds_read_b64 {vr(ST+2,2)}, v{AX} offset:512")
        a(f"ds_read_b64 {vr(ST+4,2)}, v{AX} offset:1024")
        a(f"v_mov_b32 v{ST+6}, 0")
        a(f"v_mov_b32 v{ST+7}, 0")
        a("s_waitcnt lgkmcnt(0)")
    elif EARLYW:
        for f in range(6): wload(0, f, "s40")
        a("s_add_u32 s40, s40, 6144")
        for f in range(6): wload(1, f, "s40")
        a("s_add_u32 s40, s40, 6144")
        modstage()
        a("s_waitcnt vmcnt(12)")
        a(f"ds_write_b128 v{AH}, {vr(MT)}")
        a(f"ds_write_b128 v{AH}, {vr(MT+4)} offset:1024")
        srd(a, 52, 20, SZ_CNT, WS_CNT)
        a("s_cmp_eq_u32 s58, 0\ns_cbranch_scc1 k5_in_nopoll")
        a(f"s_add_u32 s28, s24, {C_X1}")
        a(f"s_lshl_b32 s28, s28, 9")
        a(f"v_mov_b32 v8, s28")
        a("s_mov_b32 s29, 20000")
        a.label("k5_in_poll")
        a("buffer_load_dword v9, v8, s[52:55], 0 offen sc0 sc1")
        a("s_waitcnt vmcnt(0)")
        a("v_readfirstlane_b32 s28, v9")
        a("s_sub_u32 s29, s29, 1")
        a("s_cmp_eq_u32 s29, 0\ns_cbranch_scc1 k5_in_nopoll")
        a("s_cmp_ge_u32 s28, 8\ns_cbranch_scc0 k5_in_poll")
        a.label("k5_in_nopoll")
        a("s_barrier")
        a.stamp(6)
        xloads()
        a("s_waitcnt vmcnt(6)")
    else:
        xloads()
        modstage()
        a("s_waitcnt vmcnt(8)")
        a(f"ds_write_b128 v{AH}, {vr(MT)}")
        a(f"ds_write_b128 v{AH}, {vr(MT+4)} offset:1024")
        a("s_waitcnt vmcnt(6)")
    VS=ST; VQ=ST+1; VR=XP+40; VSH=XP+42
    a(f"v_add_f32 v{VS}, v{ST}, v{ST+2}")
    a(f"v_add_f32 v{VQ}, v{ST+1}, v{ST+3}")
    a(f"v_add_f32 v{ST+4}, v{ST+4}, v{ST+6}")
    a(f"v_add_f32 v{ST+5}, v{ST+5}, v{ST+7}")
    a(f"v_add_f32 v{VS}, v{VS}, v{ST+4}")
    a(f"v_add_f32 v{VQ}, v{VQ}, v{ST+5}")
    ln_finish(a, VS, VQ, VR, VSH)
    a(f"v_mov_b32 v{VR+1}, v{VR}")
    a(f"v_mov_b32 v{VSH+1}, v{VSH}")
    VC=[XP+48, XP+64]; VSF=[XP+56, XP+72]; VTT=XP+80; VO=XP+88
    a(f"v_lshlrev_b32 v{AX}, 5, v{VG}")
    a(f"v_add_u32 v{AX}, s30, v{AX}")
    a(f"s_mul_i32 s28, s27, {6*4096}")
    a(f"s_lshl_b32 s29, s26, 10")
    a(f"s_add_u32 s28, s28, s29")
    a(f"v_add_u32 v{AH}, s28, v{VL16}")
    def modread(i):
        b = i & 1
        a(f"ds_read_b128 {vr(VSF[b])}, v{AX} offset:{i*128}")
        a(f"ds_read_b128 {vr(VSF[b]+4)}, v{AX} offset:{i*128 + 16}")
        a(f"ds_read_b128 {vr(VC[b])}, v{AX} offset:{1024 + i*128}")
        a(f"ds_read_b128 {vr(VC[b]+4)}, v{AX} offset:{1024 + i*128 + 16}")
    a("s_waitcnt lgkmcnt(0)")
    modread(0)
    nw = 0
    for i in range(6):
        if i < 5: modread(i+1)
        if chained and TAGS: a(f"s_waitcnt lgkmcnt({4 if i < 5 else 0})")
        else: a(f"s_waitcnt vmcnt({5-i+nw}) lgkmcnt({4 if i < 5 else 0})")
        chunk_unpack(a, XP+4*i, VTT); chunk_norm(a, VTT, VR); chunk_mod(a, VTT, VC[i&1], VSF[i&1]); chunk_pack(a, VTT, VO+4*(i&1))
        a(f"ds_write_b128 v{AH}, {vr(VO+4*(i&1))} offset:{i*4096}")
        if not EARLYW:
            wload(0, i, "s40"); nw += 1
        elif TAGS and XMODE == "late":
            for f in (2*i, 2*i+1):
                wload(f // 6, f % 6, "s40")
                if f == 5: a("s_add_u32 s40, s40, 6144")
            if i == 5: a("s_add_u32 s40, s40, 6144")
    if not EARLYW:
        a("s_add_u32 s40, s40, 6144")
        for f in range(6): wload(1, f, "s40")
        a("s_add_u32 s40, s40, 6144")
    a("s_waitcnt lgkmcnt(0)")
    a("s_barrier")
    a.stamp(7)
    a(f"v_mov_b32 v{AX}, v{VL16}")
    def xread(tb, off): a(f"ds_read_b128 {vr(VX+4*tb)}, v{AX} offset:{off + tb*1024}")
    def step1(slot, first, do_x, xoff, wsrc, vm):
        for tb in range(4):
            w = f"lgkmcnt({3 if (do_x or True) else 0})"
            if tb == 0: a(f"s_waitcnt vmcnt({vm}) lgkmcnt({do_x_prev[0][tb]})")
            else:       a(f"s_waitcnt lgkmcnt({do_x_prev[0][tb]})")
            for f in range(6):
                acc = VACC + (f*4+tb)*4
                a(f"v_mfma_f32_16x16x32_bf16 {vr(acc)}, {vr(VW+24*slot+4*f)}, {vr(VX+4*tb)}, {'0' if first else vr(acc)}")
                if tb == 3 and wsrc: wload(slot, f, wsrc)
            if do_x: xread(tb, xoff)
        if wsrc: a(f"s_add_u32 {wsrc}, {wsrc}, 6144")
    steady = [3,3,3,3]; drain = [3,2,1,0]
    do_x_prev = [steady]
    for tb in range(4): xread(tb, 0)
    step1(0, True, True, 4096, "s40", 6)
    a(f"v_add_u32 v{AX}, 8192, v{AX}               ; base -> X(2)")
    a("s_mov_b32 s42, 7")
    a.label("k5_loop1")
    step1(1, False, True, 0, "s40", 6)
    step1(0, False, True, 4096, "s40", 6)
    a(f"v_add_u32 v{AX}, 8192, v{AX}")
    a("s_sub_u32 s42, s42, 1\ns_cmp_lg_u32 s42, 0\ns_cbranch_scc1 k5_loop1")
    step1(1, False, True, 0, "s40", 6)
    step1(0, False, True, 4096, "s41", 6)
    do_x_prev[0] = drain
    step1(1, False, False, 0, "s41", 6)
    a.stamp(8)
    T=VX
    a("s_mul_i32 s28, s22, 3")
    for uu in range(3):
        a(f"s_add_u32 s29, s28, {uu}")
        a("s_lshr_b32 s25, s29, 1")
        a("s_lshl_b32 s25, s25, 12")
        a("s_and_b32 s29, s29, 1")
        a("s_lshl_b32 s29, s29, 3")
        a("s_add_u32 s25, s25, s29")
        a(f"s_add_u32 s25, s25, {L5_H}")
        a(f"v_add_u32 v{AH}, s25, v{VL16}")
        for tb in range(4):
            g = VACC + ((2*uu)*4+tb)*4; u = VACC + ((2*uu+1)*4+tb)*4
            for j in range(4): a(f"v_mul_f32 v{T+j}, {NLOG2E:#x}, v{g+j}")
            for j in range(4): a(f"v_exp_f32 v{T+j}, v{T+j}")
            for j in range(4): a(f"v_mul_f32 v{g+j}, v{g+j}, v{u+j}")
            for j in range(4): a(f"v_add_f32 v{T+j}, 1.0, v{T+j}")
            for j in range(4): a(f"v_rcp_f32 v{T+j}, v{T+j}")
            a("s_nop 0")
            for j in range(4): a(f"v_mul_f32 v{g+j}, v{g+j}, v{T+j}")
            o = T+4+2*(tb&1)
            a(f"v_cvt_pk_bf16_f32 v{o}, v{g}, v{g+1}")
            a(f"v_cvt_pk_bf16_f32 v{o+1}, v{g+2}, v{g+3}")
            a(f"ds_write_b64 v{AH}, {vr(o,2)} offset:{tb*1024}")
    HCLS = ENV("HCLS", "1") == "1" and MERGE6
    a("s_waitcnt lgkmcnt(0)")
    TC = VACC + 48
    if HCLS:
        a("s_lshr_b32 s28, s22, 2\ns_lshl_b32 s28, s28, 2")
        a(f"s_add_u32 s28, s28, {L5_CNT + 4}")
        a("s_mov_b64 exec, 1")
        a(f"v_mov_b32 v{AH}, s28\nv_mov_b32 v{TC}, 1")
        a(f"ds_add_u32 v{AH}, v{TC}")
        a("s_mov_b64 exec, -1")
        a(f"v_mov_b32 v{AH}, {L5_CNT}")
    else:
        a("s_barrier")
    def wait_class(c):
        if not HCLS: return
        a.label(f"k5_hw{c}")
        a(f"ds_read_b32 v{TC}, v{AH} offset:{4+4*c}")
        a("s_waitcnt lgkmcnt(0)")
        a(f"v_readfirstlane_b32 s28, v{TC}")
        a(f"s_cmp_ge_u32 s28, 4\ns_cbranch_scc0 k5_hw{c}")
    wait_class(0)
    a.stamp(9)
    G2P = ENV("G2PRIO", "1") == "1"
    if G2P: a("s_setprio 1")
    a(f"v_add_u32 v{AX}, {L5_H}, v{VL16}")
    def w2load(rs, uu):
        a(f"buffer_load_dwordx4 {vr(VW+12*rs+4*uu)}, v{VL16}, s[16:19], s41 offen offset:{uu*1024} " + WF)
    def step2(rs, first, do_x, xoff, reload, vm, lg):
        for tb in range(4):
            if tb == 0: a(f"s_waitcnt vmcnt({vm}) lgkmcnt({lg[tb]})")
            else:       a(f"s_waitcnt lgkmcnt({lg[tb]})")
            for uu in range(3):
                acc = VACC + (uu*4+tb)*4
                a(f"v_mfma_f32_16x16x32_bf16 {vr(acc)}, {vr(VW+12*rs+4*uu)}, {vr(VX+4*tb)}, {'0' if first else vr(acc)}")
                if tb == 3 and reload: w2load(rs, uu)
            if do_x: xread(tb, xoff)
        if reload: a("s_add_u32 s41, s41, 3072")
    for tb in range(4): xread(tb, 0)
    if HCLS:
        for p in range(18):
            if p in (5, 11): wait_class((p+1)//6)
            vm = 3*min(3, 17-p)
            step2(p & 3, p == 0, p < 17, 4096 if p % 2 == 0 else 0, p + 4 <= 17, vm, steady if p < 17 else drain)
            if p % 2 == 0 and p < 16: a(f"v_add_u32 v{AX}, 8192, v{AX}")
    else:
        step2(0, True, True, 4096, True, 9, steady)
        a(f"v_add_u32 v{AX}, 8192, v{AX}")
        step2(1, False, True, 0, True, 9, steady)
        a("s_mov_b32 s42, 3")
        a.label("k5_loop2")
        step2(2, False, True, 4096, True, 9, steady)
        a(f"v_add_u32 v{AX}, 8192, v{AX}")
        step2(3, False, True, 0, True, 9, steady)
        step2(0, False, True, 4096, True, 9, steady)
        a(f"v_add_u32 v{AX}, 8192, v{AX}")
        step2(1, False, True, 0, True, 9, steady)
        a("s_sub_u32 s42, s42, 1\ns_cmp_lg_u32 s42, 0\ns_cbranch_scc1 k5_loop2")
        step2(2, False, True, 4096, False, 9, steady)
        a(f"v_add_u32 v{AX}, 8192, v{AX}")
        step2(3, False, True, 0, False, 6, steady)
        step2(0, False, True, 4096, False, 3, steady)
        step2(1, False, False, 0, False, 0, drain)
    if G2P: a("s_setprio 0")
    a.stamp(10)
    a(f"s_mul_i32 s28, s23, {SZ_PARTS}")
    a("s_mul_i32 s29, s24, 73728")
    a("s_add_u32 s28, s28, s29")
    a("s_mul_i32 s29, s22, 6144")
    a("s_add_u32 s28, s28, s29")
    for q in range(6):
        uu = q >> 1; h = q & 1
        o = VW + 4*q
        for k in range(2):
            acc = VACC + (uu*4 + 2*h + k)*4
            a(f"v_cvt_pk_bf16_f32 v{o+2*k}, v{acc}, v{acc+1}")
            a(f"v_cvt_pk_bf16_f32 v{o+2*k+1}, v{acc+2}, v{acc+3}")
        if q < 4: a(f"buffer_store_dwordx4 {vr(o)}, v{VL16}, s[44:47], s28 offen offset:{q*1024} " + SC("K5SC", "1"))
        else:     a(f"buffer_store_dwordx4 {vr(o)}, v7, s[44:47], s28 offen offset:{(q-4)*1024} " + SC("K5SC", "1"))
    if MERGE6 and ENV("STAGED", "1") == "1":
        RC = L5_CNT + 16; RF = L5_CNT + 28; RS = L5_CNT + 40
        load_ptr(a, 4, KA_OUT)
        a("s_waitcnt vmcnt(0) lgkmcnt(0)")
        a.stamp(11)
        srd(a, 52, 20, SZ_CNT, WS_CNT)
        srd(a, 8, 20, SZ_PART, WS_PART); srd(a, 12, 20, SZ_X1F, WS_X1F); srd(a, 16, 20, 2304, WS_MOD+5*2304); srd(a, 48, 4, SZ_X)
        a("s_lshr_b32 s30, s22, 2         ; class")
        a("s_lshl_b32 s42, s30, 2")
        a(f"s_add_u32 s57, s42, {RC}")
        a("v_mov_b32 v25, s57")
        a("v_mov_b32 v7, 1")
        a("s_mov_b64 exec, 1")
        a("ds_add_rtn_u32 v8, v25, v7")
        a("s_waitcnt lgkmcnt(0)")
        a("v_readfirstlane_b32 s26, v8")
        a("s_mul_i32 s28, s24, 3")
        a("s_add_u32 s28, s28, s30")
        a(f"s_add_u32 s28, s28, {C_RED3}")
        a("s_lshl_b32 s28, s28, 9")
        a("v_mov_b32 v6, s28")
        a("s_cmp_lg_u32 s26, 3\ns_cbranch_scc1 k5_nosig")
        a("buffer_atomic_add v7, v6, s[52:55], 0 offen sc1")
        a.label("k5_nosig")
        a("s_mov_b64 exec, -1")
        a("v_mov_b32 v23, s28")
        a("s_and_b32 s29, s22, 3")
        a("s_cmp_eq_u32 s29, 3\ns_cbranch_scc1 k5_noload")
        reduce_loads(a, True, staged=True)
        a.label("k5_noload")
        a("s_cmp_lg_u32 s26, 3\ns_cbranch_scc1 k5_waitgo")
        a("s_mov_b32 s29, 20000")
        a.label("k5_poll")
        a("buffer_load_dword v24, v23, s[52:55], 0 offen sc0 sc1")
        a("s_waitcnt vmcnt(0)")
        a("v_readfirstlane_b32 s25, v24")
        a("s_sub_u32 s29, s29, 1")
        a("s_cmp_eq_u32 s29, 0\ns_cbranch_scc1 k5_release")
        a("s_cmp_ge_u32 s25, 8\ns_cbranch_scc0 k5_poll")
        a.label("k5_release")
        a(f"v_add_u32 v24, {RF-RC}, v25")
        a("v_mov_b32 v26, 1")
        a("ds_write_b32 v24, v26")
        a("s_waitcnt lgkmcnt(0)")
        a.label("k5_waitgo")
        a("s_and_b32 s29, s22, 3")
        a("s_cmp_eq_u32 s29, 3\ns_cbranch_scc1 k5_exit")
        a.label("k5_go")
        a(f"ds_read_b32 v24, v25 offset:{RF-RC}")
        a("s_waitcnt lgkmcnt(0)")
        a("v_readfirstlane_b32 s25, v24")
        a("s_cmp_eq_u32 s25, 0\ns_cbranch_scc1 k5_go")
        a.stamp(12)
        def sync3():
            a("v_mov_b32 v26, 1")
            a("s_mov_b64 exec, 1")
            a(f"ds_add_u32 v25, v26 offset:{RS-RC}")
            a("s_mov_b64 exec, -1")
            a.label("k5_sc")
            a(f"ds_read_b32 v24, v25 offset:{RS-RC}")
            a("s_waitcnt lgkmcnt(0)")
            a("v_readfirstlane_b32 s25, v24")
            a("s_cmp_ge_u32 s25, 3\ns_cbranch_scc0 k5_sc")
        reduce_main(a, True, sync=sync3)
    elif MERGE6:
        load_ptr(a, 4, KA_OUT)
        a("s_waitcnt vmcnt(0) lgkmcnt(0)")
        if ENV("ST2", "0") != "1": a.stamp(11)
        srd(a, 52, 20, SZ_CNT, WS_CNT)
        srd(a, 8, 20, SZ_PART, WS_PART); srd(a, 12, 20, SZ_X1F, WS_X1F); srd(a, 16, 20, 2304, WS_MOD+5*2304); srd(a, 48, 4, SZ_X)
        a(f"v_mov_b32 v6, {L5_CNT}")
        a("v_mov_b32 v7, 1")
        a("s_mov_b64 exec, 1")
        a("ds_add_rtn_u32 v8, v6, v7")
        a("s_waitcnt lgkmcnt(0)")
        a("v_readfirstlane_b32 s26, v8")
        a(f"s_add_u32 s28, s24, {C_RED}")
        a("s_lshl_b32 s28, s28, 9")
        a("v_mov_b32 v6, s28")
        a("s_cmp_lg_u32 s26, 11\ns_cbranch_scc1 k5_nosig")
        a("buffer_atomic_add v7, v6, s[52:55], 0 offen sc1")
        a.label("k5_nosig")
        a("s_mov_b64 exec, -1")
        a("v_mov_b32 v23, s28")
        a("s_cmp_ge_u32 s22, 9\ns_cbranch_scc1 k5_noload")
        reduce_loads(a, True)
        a.label("k5_noload")
        a("s_cmp_lg_u32 s26, 11\ns_cbranch_scc1 k5_nopoll")
        a("s_mov_b32 s29, 20000")
        a.label("k5_poll")
        a("buffer_load_dword v24, v23, s[52:55], 0 offen sc0 sc1")
        a("s_waitcnt vmcnt(0)")
        a("v_readfirstlane_b32 s25, v24")
        a("s_sub_u32 s29, s29, 1")
        a("s_cmp_eq_u32 s29, 0\ns_cbranch_scc1 k5_nopoll")
        a("s_cmp_ge_u32 s25, 8\ns_cbranch_scc0 k5_poll")
        a.label("k5_nopoll")
        a("s_barrier")
        if ENV("ST2", "0") != "1": a.stamp(12)
        a("s_cmp_ge_u32 s22, 9\ns_cbranch_scc1 k5_exit")
        reduce_main(a, True)
    a.label("k5_exit")
```

```python
from common import *
K6_LDS = 3*32*208
PERT = ENV('PERT', '')
def reduce_loads(a, merged, staged=False):
    if staged:
        a("v_mov_b32 v5, s30")
        a("s_lshl_b32 s27, s30, 8")
        a("v_subrev_u32 v6, s27, v0                   ; r")
        a("s_lshl_b32 s27, s30, 3")
        a("s_add_u32 s27, s27, s23")
        a("v_mov_b32 v7, s27                          ; idx = 8c + x")
    else:
        a("v_mul_u32_u24 v5, 5462, v0")
        a("v_lshrrev_b32 v5, 20, v5                   ; hg = t/192")
        a("v_mul_u32_u24 v6, 192, v5")
        a("v_sub_u32 v6, v0, v6                       ; r")
        a("s_mul_i32 s27, s23, 3")
        a("v_add_u32 v7, s27, v5")
    a("v_and_b32 v8, 1, v7                        ; half")
    a("v_lshrrev_b32 v7, 1, v7                    ; gi")
    a("v_and_b32 v9, 1, v7                        ; a")
    a("v_lshrrev_b32 v7, 1, v7                    ; sp")
    a("v_mul_u32_u24 v10, 10923, v6")
    a("v_lshrrev_b32 v10, 16, v10                 ; token 0..31")
    a("v_mul_u32_u24 v11, 6, v10")
    a("v_sub_u32 v11, v6, v11                     ; c")
    a("v_mul_u32_u24 v12, 12, v7")
    a("v_mul_u32_u24 v13, 6, v8")
    a("v_add3_u32 v12, v12, v13, v11")
    a("v_lshl_add_u32 v13, v9, 5, v10")
    a("v_lshrrev_b32 v14, 2, v12")
    a("v_lshlrev_b32 v14, 12, v14")
    a("v_and_b32 v15, 3, v12")
    a("v_lshl_add_u32 v14, v15, 8, v14")
    a("v_lshrrev_b32 v15, 4, v13")
    a("v_lshl_add_u32 v14, v15, 10, v14")
    a("v_and_b32 v15, 15, v13")
    a("v_lshl_add_u32 v14, v15, 4, v14")
    a("s_mul_i32 s27, s24, 73728")
    a(f"buffer_load_dwordx4 {vr(48)}, v14, s[12:15], s27 offen" + (" sc1" if merged else ""))
    a("v_lshlrev_b32 v15, 5, v12")
    a(f"buffer_load_dwordx4 {vr(52)}, v15, s[16:19], 0 offen")
    a(f"buffer_load_dwordx4 {vr(56)}, v15, s[16:19], 0 offen offset:16")
    a("v_mul_u32_u24 v13, 1152, v13")
    a("v_lshl_add_u32 v13, v12, 4, v13")
    a("v_lshrrev_b32 v15, 5, v6                   ; cw")
    a("v_cmp_le_u32 vcc, 3, v15")
    a("v_cndmask_b32 v16, 0, 1, vcc               ; wl")
    a("v_mul_u32_u24 v17, 3, v16")
    a("v_sub_u32 v17, v15, v17                    ; uu")
    a("v_and_b32 v18, 31, v6                      ; lane32")
    a("v_lshl_add_u32 v19, v7, 1, v16")
    a("v_mul_u32_u24 v19, 6144, v19")
    a("v_lshl_add_u32 v20, v17, 1, v9")
    a("v_lshl_add_u32 v19, v20, 10, v19")
    a("v_lshl_add_u32 v20, v8, 5, v18")
    a("v_lshl_add_u32 v19, v20, 4, v19")
    a("v_mul_u32_u24 v20, 6656, v5")
    a("v_and_b32 v21, 15, v18")
    a("v_mul_u32_u24 v21, 208, v21")
    a("v_add_u32 v20, v20, v21")
    a("v_lshrrev_b32 v21, 4, v18")
    a("v_mul_u32_u24 v21, 96, v21")
    a("v_add_u32 v20, v20, v21")
    a("v_lshl_add_u32 v20, v15, 2, v20")
    a("v_mul_u32_u24 v21, 6656, v5")
    a("v_mul_u32_u24 v22, 208, v10")
    a("v_add_u32 v21, v21, v22")
    a("v_lshl_add_u32 v21, v11, 5, v21")

def reduce_main(a, merged, ldsb=0, sync=None):
    SCL = (" " + ENV("PLD", "sc1")) if merged else ""
    VP=64; VA=96; VR=48; VGB=52
    a("s_mul_i32 s27, s24, 73728")
    for x in range(8):
        a(f"buffer_load_dwordx4 {vr(VP+4*x)}, v19, s[8:11], s27 offen{SCL}")
        if x < 7: a(f"s_add_u32 s27, s27, {SZ_PARTS}")
    for x in range(8):
        a(f"s_waitcnt vmcnt({7-x})")
        for q in range(4):
            r = VP+4*x+q
            if x == 0:
                a(f"v_lshlrev_b32 v{VA+2*q}, 16, v{r}")
                a(f"v_and_b32 v{VA+2*q+1}, 0xffff0000, v{r}")
            else:
                a(f"v_lshlrev_b32 v9, 16, v{r}")
                a(f"v_and_b32 v10, 0xffff0000, v{r}")
                a(f"v_add_f32 v{VA+2*q}, v{VA+2*q}, v9")
                a(f"v_add_f32 v{VA+2*q+1}, v{VA+2*q+1}, v10")
    for k in range(2):
        for j in range(4):
            a(f"ds_write_b32 v20, v{VA+4*k+j} offset:{ldsb + k*16*208 + j*24}")
    a("s_waitcnt lgkmcnt(0)")
    if sync: sync()
    else: a("s_barrier")
    a(f"ds_read_b128 {vr(VA)}, v21 offset:{ldsb}")
    a(f"ds_read_b128 {vr(VA+4)}, v21 offset:{ldsb+16}")
    a("s_waitcnt lgkmcnt(0)")
    for q in range(4):
        a(f"v_lshlrev_b32 v9, 16, v{VR+q}")
        a(f"v_and_b32 v10, 0xffff0000, v{VR+q}")
        a(f"v_fmac_f32 v9, v{VGB+2*q}, v{VA+2*q}")
        a(f"v_fmac_f32 v10, v{VGB+2*q+1}, v{VA+2*q+1}")
        if PERT:
            kind, val = PERT.split(":")
            if kind == "scale":
                a(f"v_mul_f32 v9, {f32(float(val)):#x}, v9"); a(f"v_mul_f32 v10, {f32(float(val)):#x}, v10")
        a(f"v_cvt_pk_bf16_f32 v{VR+q}, v9, v10")
    a(f"s_mul_i32 s27, s24, {64*1152}")
    a(f"buffer_store_dwordx4 {vr(VR)}, v13, s[48:51], s27 offen")

def gen_k6():
    a = Asm()
    a(f"s_cmp_ge_u32 s2, 256\ns_cbranch_scc1 k6_exit")
    load_ptr(a, 4, KA_OUT); load_ptr(a, 20, KA_WS)
    a("s_and_b32 s23, s2, 7           ; x")
    a("s_lshr_b32 s24, s2, 3          ; rb")
    a("s_waitcnt lgkmcnt(0)")
    srd(a, 8, 20, SZ_PART, WS_PART); srd(a, 12, 20, SZ_X1F, WS_X1F); srd(a, 16, 20, 2304, WS_MOD+5*2304); srd(a, 48, 4, SZ_X)
    reduce_loads(a, False)
    reduce_main(a, False)
    a.label("k6_exit")
    return kernel("k6_reduce_kernel", a, vgpr=112, sgpr=64), (256, 576, K6_LDS)
```

```python
from asmgen import *
S=2048; D=576; H=32; DH=18; F=4608
KA_X=0; KA_WQKV=8; KA_WO=16; KA_BX=24; KA_W1=32; KA_W3=40; KA_W2=48; KA_C=56; KA_WMOD=64; KA_OUT=72; KA_DBG=80; KA_WS=88
WS_MOD =0x0000000;  SZ_MOD = 6*576*4
WS_WQKV=0x0010000;  SZ_WQKV= 54*18*2048
WS_WO  =0x0200000;  SZ_WO  = 36*18*1024
WS_W13 =0x0300000;  SZ_W13S= 12*18*6144; SZ_W13=8*SZ_W13S
WS_W2  =0x0E00000;  SZ_W2S = 12*18*3072; SZ_W2 =8*SZ_W2S
WS_QA  =0x1400000;  SZ_QA  = 32*65536
WS_QB  =0x1600000;  SZ_QB  = 32*16384
WS_KV  =0x1700000;  KVH=159744; SZ_KV = 32*KVH
KV_KA=0; KV_KB=65536; KV_V=81920
WS_OM  =0x1C00000;  SZ_OM  = 32*65536
WS_OE  =0x1E00000;  SZ_OE  = 32*2048*4
WS_X1  =0x1F00000;  SZ_X1  = 2048*1152
WS_PART=0x2200000;  SZ_PARTS=2048*1152; SZ_PART=8*SZ_PARTS
WS_XN  =0x3400000;  SZ_XN = 2048*1152
WS_X1F =0x3700000;  SZ_X1F = 2048*1152
WS_STP =0x3A00000;  SZ_STP = 2048*32
WS_CNT =0x3B00000;  SZ_CNT = 128*1024
C_QB=0; C_RED=16; C_X1=64; C_W=128; C_RED3=160
SZ_X = 2048*1152

def load_ptr(a, sdst, off):
    a(f"s_load_dwordx2 s[{sdst}:{sdst+1}], s[0:1], {off}")

def srd(a, r, sptr, size, off=0):
    assert r % 4 == 0
    if off:
        a(f"s_add_u32 s{r}, s{sptr}, {off:#x} ;srd")
        a(f"s_addc_u32 s{r+1}, s{sptr+1}, 0 ;srd")
    else:
        a(f"s_mov_b32 s{r}, s{sptr} ;srd")
        a(f"s_mov_b32 s{r+1}, s{sptr+1} ;srd")
    a(f"s_mov_b32 s{r+2}, {size:#x} ;srd")
    a(f"s_mov_b32 s{r+3}, 0x00020000 ;srd")

def wave_id(a, sdst, vtmp):
    a(f"v_lshrrev_b32 v{vtmp}, 6, v0")
    a(f"v_readfirstlane_b32 s{sdst}, v{vtmp}")

def sdiv(a, sq, sn, d, srem=None, stmp=None):
    magic = (1 << 32) // d + 1
    a(f"s_mul_hi_u32 s{sq}, s{sn}, {magic:#x}")
    if srem is not None:
        a(f"s_mul_i32 s{stmp}, s{sq}, {d}")
        a(f"s_sub_u32 s{srem}, s{sn}, s{stmp}")

def bf16_round_f32(a, vdst, vsrc, vtmp=None):
    a(f"v_cvt_pk_bf16_f32 v{vdst}, v{vsrc}, v{vsrc}")
    a(f"v_and_b32 v{vdst}, 0xffff0000, v{vdst}")

def vr(b, n=4): return f"v[{b}:{b+n-1}]"
def sr(b, n=2): return f"s[{b}:{b+n-1}]"

def xsum16_32(a, v, t):
    a(f"v_mov_b32 v{t}, v{v}")
    a(f"v_permlane16_swap_b32 v{v}, v{t}")
    a(f"v_add_f32 v{v}, v{v}, v{t}")
    a(f"v_mov_b32 v{t}, v{v}")
    a(f"v_permlane32_swap_b32 v{v}, v{t}")
    a(f"v_add_f32 v{v}, v{v}, v{t}")

import struct as _st, math as _m
def f32(x): return _st.unpack("<I", _st.pack("<f", x))[0]
EPS = f32(1e-5); INV576 = f32(1.0/576)

def ln_stats(a, vx, n, vs, vq, sones):
    a(f"v_mov_b32 v{vs}, 0"); a(f"v_mov_b32 v{vq}, 0")
    for i in range(n):
        a(f"v_dot2_f32_bf16 v{vs}, v{vx+i}, s{sones}, v{vs}")
        a(f"v_dot2_f32_bf16 v{vq}, v{vx+i}, v{vx+i}, v{vq}")

def ln_finish(a, vs, vq, vrstd, vshift):
    a(f"v_mul_f32 v{vs}, {INV576:#x}, v{vs}           ; mean")
    a(f"v_mul_f32 v{vq}, {INV576:#x}, v{vq}")
    a(f"v_fma_f32 v{vq}, -v{vs}, v{vs}, v{vq}          ; var")
    a(f"v_max_f32 v{vq}, 0, v{vq}")
    a(f"v_add_f32 v{vq}, {EPS:#x}, v{vq}")
    a(f"v_rsq_f32 v{vrstd}, v{vq}")
    a(f"v_mul_f32 v{vshift}, v{vs}, v{vrstd}")
    a(f"v_sub_f32 v{vshift}, 0, v{vshift}")

def chunk_unpack(a, vx, vt):
    for q in range(4):
        a(f"v_lshlrev_b32 v{vt+2*q}, 16, v{vx+q}")
        a(f"v_and_b32 v{vt+2*q+1}, 0xffff0000, v{vx+q}")
def chunk_norm(a, vt, vrs):
    for q in range(4):
        a(f"v_pk_fma_f32 {vr(vt+2*q,2)}, {vr(vt+2*q,2)}, {vr(vrs,2)}, {vr(vrs+2,2)}")
def chunk_mod(a, vt, vc, vsft):
    for q in range(4):
        a(f"v_pk_fma_f32 {vr(vt+2*q,2)}, {vr(vt+2*q,2)}, {vr(vc+2*q,2)}, {vr(vsft+2*q,2)}")
def chunk_pack(a, vt, vout):
    for q in range(4):
        a(f"v_cvt_pk_bf16_f32 v{vout+q}, v{vt+2*q}, v{vt+2*q+1}")

import os as _os
def ENV(name, default): return _os.environ.get(name, default)
def SC(name, default):
    return "sc0 sc1" if _os.environ.get(name, default) == "1" else ""

TAGS = ENV('TAGS', '1') == '1'
def any_poison(a, regs, vt):
    a(f"v_max3_u32 v{vt}, v{regs[0]}, v{regs[1]}, v{regs[2]}")
    i = 3
    while i + 1 < len(regs):
        a(f"v_max3_u32 v{vt}, v{regs[i]}, v{regs[i+1]}, v{vt}"); i += 2
    if i < len(regs): a(f"v_max_u32 v{vt}, v{regs[i]}, v{vt}")
    a(f"v_cmp_eq_u32 vcc, -1, v{vt}")
XMODE = ENV('XMODE', 'late')
NOSTATS = TAGS and XMODE not in ('stp', 'late')

MTPRE = ENV('MTPRE', '0') == '1'
def ffn_mod_prefetch(a, q):
    sdiv(a, 26, 22, 3, 27, 28)
    a("s_mul_i32 s28, s27, 768")
    a(f"s_add_u32 s28, s28, {3*2304}")
    a(f"buffer_load_dwordx4 v[144:147], v4, s[{q}:{q+3}], s28 offen")
    a("s_add_u32 s28, s28, 2304")
    a(f"buffer_load_dwordx4 v[148:151], v4, s[{q}:{q+3}], s28 offen")
LNIN = ENV('LNIN', '0') == '1'
CDOT = ENV('CDOT', '0') == '1'
```

```python
from common import *
from k1 import gen_mod, gen_ldsshuf, SIDE
K2_LDS = 73728 + 8*4096
WLATE = ENV('K2WLATE', '0')
L_MOD = 73728
QSCALE = 0x3eae1a4e
import struct, math
QSCALE = struct.unpack("<I", struct.pack("<f", math.log2(math.e)/math.sqrt(18.0)))[0]
EPS = struct.unpack("<I", struct.pack("<f", 1e-5))[0]
INV576 = struct.unpack("<I", struct.pack("<f", 1.0/576))[0]

def gen_k2():
    a = Asm()
    a("s_cmp_ge_u32 s2, 256\ns_cbranch_scc1 k2_exit")
    qkv_body(a, False)
    return kernel("k2_qkv_kernel", a, vgpr=152, sgpr=64), (256, 512, K2_LDS)

def tile_map(a):
    a("s_and_b32 s25, s2, 7")
    a("s_lshr_b32 s26, s2, 3")
    a("s_lshr_b32 s24, s25, 1")
    a("s_lshl_b32 s24, s24, 3")
    a("s_and_b32 s27, s26, 7")
    a("s_add_u32 s24, s24, s27        ; rb")
    a("s_and_b32 s23, s25, 1")
    a("s_lshl_b32 s23, s23, 2")
    a("s_lshr_b32 s27, s26, 3")
    a("s_add_u32 s23, s23, s27        ; slice")

_sid = [0]
def out_store(a, text):
    m = ENV("K2SC", "0")
    if m == "2":
        _sid[0] += 1; n = _sid[0]
        a(f"s_cmp_lt_u32 s22, 4\ns_cbranch_scc1 k2_st{n}a")
        a(text); a(f"s_branch k2_st{n}b"); a.label(f"k2_st{n}a"); a(text + " sc0 sc1"); a.label(f"k2_st{n}b")
    else:
        a(text + (" sc0 sc1" if m == "1" else ""))

def qkv_body(a, fused):
    LF = " sc1" if fused else ""
    if not fused:
        tile_map(a)
        a("s_cmp_eq_u32 s23, 7\ns_cbranch_scc1 " + ("k2_side" if SIDE == 'k2' else "k2_exit"))
        load_ptr(a, 20, KA_WS)
        wave_id(a, 22, 1)
    VL=1; VTOK=2; VG=3; VL16=4
    a(f"v_and_b32 v{VL}, 63, v0")
    a(f"v_and_b32 v{VTOK}, 15, v{VL}")
    a(f"v_lshrrev_b32 v{VG}, 4, v{VL}")
    a(f"v_lshlrev_b32 v{VL16}, 4, v{VL}")
    a("s_lshl_b32 s25, s23, 3")
    a("s_add_u32 s25, s25, s22        ; tau")
    a("s_lshr_b32 s26, s22, 1         ; tb")
    a("s_and_b32 s27, s22, 1          ; half")
    a("s_waitcnt lgkmcnt(0)")
    srd(a, 8, 20, SZ_XN, WS_XN); srd(a, 12, 20, 4608, WS_MOD); srd(a, 16, 20, SZ_WQKV, WS_WQKV)
    RING=6
    VX=16; VW=52; VACC=100; VT=132
    a(f"s_mul_i32 s28, s27, 1152")
    a(f"buffer_load_dwordx4 {vr(VT)}, v{VL16}, s[12:15], s28 offen" + LF)
    a(f"buffer_load_dwordx4 {vr(VT+4)}, v{VL16}, s[12:15], s28 offen offset:1024" + LF)
    a(f"s_add_u32 s28, s28, 2304")
    a(f"buffer_load_dwordx4 {vr(VT+8)}, v{VL16}, s[12:15], s28 offen" + LF)
    a(f"buffer_load_dwordx4 {vr(VT+12)}, v{VL16}, s[12:15], s28 offen offset:1024" + LF)
    a("s_mul_i32 s28, s24, 73728")
    a(f"s_mul_i32 s29, s27, {9*4096}")
    a("s_add_u32 s28, s28, s29")
    a("s_lshl_b32 s29, s26, 10")
    a("s_add_u32 s28, s28, s29")
    for i in range(9):
        a(f"buffer_load_dwordx4 {vr(VX+4*i)}, v{VL16}, s[8:11], s28 offen" + LF)
        if i < 8: a("s_add_u32 s28, s28, 4096")
    a(f"s_mul_i32 s40, s25, {18*2048}   ; W stream")
    nw = [0]
    def wload():
        k = nw[0]; nw[0] += 1
        t, uu = k >> 1, k & 1
        a(f"buffer_load_dwordx4 {vr(VW+8*(t % RING)+4*uu)}, v{VL16}, s[16:19], s40 offen offset:{uu*1024}" + LF)
        if uu: a("s_add_u32 s40, s40, 2048")
    a("s_lshl_b32 s28, s22, 12")
    a(f"s_add_u32 s33, s28, {L_MOD}")
    a(f"v_add_u32 v6, s33, v{VL16}")
    a.stamp(1)
    a("s_waitcnt vmcnt(9)")
    for i in range(4): a(f"ds_write_b128 v6, {vr(VT+4*i)} offset:{i*1024}")
    a("s_waitcnt lgkmcnt(0)")
    a.stamp(2)
    VC=[VACC, VACC+16]; VSF=[VACC+8, VACC+24]; VTT=VT; VO=VT+8
    a(f"v_lshlrev_b32 v8, 5, v{VG}")
    a(f"v_add_u32 v8, s33, v8")
    a(f"s_mul_i32 s28, s27, {9*4096}")
    a(f"s_lshl_b32 s29, s26, 10")
    a(f"s_add_u32 s28, s28, s29")
    a(f"v_add_u32 v9, s28, v{VL16}")
    def modread(i):
        b = i & 1
        a(f"ds_read_b128 {vr(VSF[b])}, v8 offset:{i*128}")
        a(f"ds_read_b128 {vr(VSF[b]+4)}, v8 offset:{i*128 + 16}")
        a(f"ds_read_b128 {vr(VC[b])}, v8 offset:{2048 + i*128}")
        a(f"ds_read_b128 {vr(VC[b]+4)}, v8 offset:{2048 + i*128 + 16}")
    modread(0)
    for i in range(9):
        if i < 8: modread(i+1)
        a(f"s_waitcnt vmcnt({8-i+nw[0]}) lgkmcnt({4 if i < 8 else 0})")
        if i == 0: a.stamp(3)
        chunk_unpack(a, VX+4*i, VTT); chunk_mod(a, VTT, VC[i&1], VSF[i&1]); chunk_pack(a, VTT, VO+4*(i&1))
        a(f"ds_write_b128 v9, {vr(VO+4*(i&1))} offset:{i*4096}")
        if WLATE == "0": wload()
    a.stamp(5)
    while nw[0] < 2*RING: wload()
    a("s_waitcnt lgkmcnt(0)")
    a("s_barrier")
    a.stamp(4)
    a("s_cmp_ge_u32 s25, 54\ns_cbranch_scc1 k2_exit")
    XB=[VX, VX+16]
    def xreads(t):
        b = XB[t & 1]
        for tb in range(4):
            off = t*4096 + tb*1024
            if off < 65536: a(f"ds_read_b128 {vr(b+4*tb)}, v{VL16} offset:{off}")
            else:           a(f"ds_read_b128 {vr(b+4*tb)}, v10 offset:{off-65536}")
    def gemm(vtype):
        nw[0] = 2*RING
        a("s_mov_b32 s41, s40")
        a(f"v_add_u32 v10, 0x10000, v{VL16}")
        xreads(0)
        for t in range(18):
            if t < 17: xreads(t+1)
            issued = min(18, t + RING)
            a(f"s_waitcnt vmcnt({2*(issued-t-1)}) lgkmcnt({4 if t < 17 else 0})")
            b = XB[t & 1]
            for uu in range(2):
                for tb in range(4):
                    acc = VACC + 16*uu + 4*tb
                    c = vr(acc) if t else "0"
                    w = vr(VW+8*(t % RING)+4*uu); x = vr(b+4*tb)
                    if vtype: a(f"v_mfma_f32_16x16x32_bf16 {vr(acc)}, {x}, {w}, {c}")
                    else:     a(f"v_mfma_f32_16x16x32_bf16 {vr(acc)}, {w}, {x}, {c}")
                if t + RING < 18:
                    a(f"buffer_load_dwordx4 {vr(VW+8*(t % RING)+4*uu)}, v{VL16}, s[16:19], s41 offen offset:{uu*1024}" + LF)
            if t + RING < 18: a("s_add_u32 s41, s41, 2048")
    a("s_cmp_ge_u32 s25, 52\ns_cbranch_scc1 k2_gv")
    a("s_cmp_ge_u32 s25, 48\ns_cbranch_scc1 k2_gq")
    a("s_cmp_ge_u32 s25, 32\ns_cbranch_scc1 k2_gv")
    a.label("k2_gq")
    gemm(False)
    a.stamp(6)
    srd(a, 8, 20, SZ_QA, WS_QA); srd(a, 12, 20, SZ_QB, WS_QB); srd(a, 16, 20, SZ_KV, WS_KV)
    a("s_cmp_ge_u32 s25, 48\ns_cbranch_scc1 k2_ext")
    def pack_pair16(acc0, acc1, o):
        a(f"v_cvt_pk_bf16_f32 v{o}, v{acc0}, v{acc0+1}")
        a(f"v_cvt_pk_bf16_f32 v{o+1}, v{acc0+2}, v{acc0+3}")
        a(f"v_cvt_pk_bf16_f32 v{o+2}, v{acc1}, v{acc1+1}")
        a(f"v_cvt_pk_bf16_f32 v{o+3}, v{acc1+2}, v{acc1+3}")
    a("s_lshl_b32 s28, s24, 11")
    a("s_cmp_ge_u32 s25, 16\ns_cbranch_scc1 k2_kmain")
    a(f"s_mov_b32 s33, {QSCALE:#x}")
    a("s_lshl_b32 s29, s25, 17")
    a("s_add_u32 s28, s28, s29")
    for uu in range(2):
        for tl in range(2):
            acc = VACC+16*uu+8*tl; o = VT+4*((2*uu+tl)&3)
            for j in range(8): a(f"v_mul_f32 v{acc+j}, s33, v{acc+j}")
            pack_pair16(acc, acc+4, o)
            a(f"v_permlane16_swap_b32 v{o}, v{o+2}")
            a(f"v_permlane16_swap_b32 v{o+1}, v{o+3}")
            a(f"s_add_u32 s29, s28, {uu*65536 + tl*1024}")
            out_store(a, f"buffer_store_dwordx4 {vr(o)}, v{VL16}, s[8:11], s29 offen")
    a("s_endpgm")
    a.label("k2_kmain")
    a("s_sub_u32 s29, s25, 16")
    a(f"s_mul_i32 s29, s29, {2*KVH}")
    a("s_add_u32 s28, s28, s29")
    for uu in range(2):
        for tl in range(2):
            acc = VACC+16*uu+8*tl; o = VT+4*((2*uu+tl)&3)
            pack_pair16(acc, acc+4, o)
            a(f"v_permlane16_swap_b32 v{o}, v{o+2}")
            a(f"v_permlane16_swap_b32 v{o+1}, v{o+3}")
            a(f"s_add_u32 s29, s28, {uu*KVH + KV_KA + tl*1024}")
            out_store(a, f"buffer_store_dwordx4 {vr(o)}, v{VL16}, s[16:19], s29 offen")
    a("s_endpgm")
    a.label("k2_ext")
    a("s_cmp_ge_u32 s25, 50\ns_cbranch_scc1 k2_kext")
    a(f"s_mov_b32 s33, {QSCALE:#x}")
    a(f"v_lshlrev_b32 v5, 15, v{VG}               ; 2g heads * 16384")
    a(f"v_lshl_add_u32 v5, v{VTOK}, 3, v5")
    a("s_sub_u32 s29, s25, 48")
    a("s_lshl_b32 s29, s29, 18")
    a("s_lshl_b32 s28, s24, 9         ; rb*64*8")
    a("s_add_u32 s28, s28, s29")
    a(f"v_mov_b32 v{VT+1}, 0")
    a(f"v_mov_b32 v{VT+3}, 0")
    for uu in range(2):
        for tb in range(4):
            acc = VACC+16*uu+4*tb
            for j in range(4): a(f"v_mul_f32 v{acc+j}, s33, v{acc+j}")
            a(f"v_cvt_pk_bf16_f32 v{VT}, v{acc}, v{acc+1}")
            a(f"v_cvt_pk_bf16_f32 v{VT+2}, v{acc+2}, v{acc+3}")
            a(f"s_add_u32 s29, s28, {uu*8*16384 + tb*128}")
            a(f"buffer_store_dwordx2 {vr(VT,2)}, v5, s[12:15], s29 offen")
            a(f"s_add_u32 s29, s29, 16384")
            a(f"buffer_store_dwordx2 {vr(VT+2,2)}, v5, s[12:15], s29 offen")
    a("s_endpgm")
    a.label("k2_kext")
    a(f"v_mul_u32_u24 v5, {2*KVH}, v{VG}")
    a(f"v_lshl_add_u32 v5, v{VTOK}, 3, v5")
    a("s_sub_u32 s29, s25, 50")
    a(f"s_mul_i32 s29, s29, {16*KVH}")
    a("s_lshl_b32 s28, s24, 9")
    a("s_add_u32 s28, s28, s29")
    a(f"v_mov_b32 v{VT+1}, 0x3f80")
    a(f"v_mov_b32 v{VT+3}, 0x3f80")
    for uu in range(2):
        for tb in range(4):
            acc = VACC+16*uu+4*tb
            a(f"v_cvt_pk_bf16_f32 v{VT}, v{acc}, v{acc+1}")
            a(f"v_cvt_pk_bf16_f32 v{VT+2}, v{acc+2}, v{acc+3}")
            a(f"s_add_u32 s29, s28, {uu*8*KVH + KV_KB + tb*128}")
            a(f"buffer_store_dwordx2 {vr(VT,2)}, v5, s[16:19], s29 offen")
            a(f"s_add_u32 s29, s29, {KVH}")
            a(f"buffer_store_dwordx2 {vr(VT+2,2)}, v5, s[16:19], s29 offen")
    a("s_endpgm")
    a.label("k2_gv")
    gemm(True)
    srd(a, 16, 20, SZ_KV, WS_KV)
    a(f"v_and_b32 v6, 1, v{VG}")
    a(f"v_mul_u32_u24 v5, 304, v6")
    a(f"v_lshrrev_b32 v6, 1, v{VG}")
    a(f"v_mul_u32_u24 v6, 608, v6")
    a(f"v_add_u32 v5, v5, v6")
    a(f"s_mul_i32 s28, s24, {2*1216}")
    a("s_cmp_ge_u32 s25, 52\ns_cbranch_scc1 k2_vext")
    a(f"v_lshl_add_u32 v5, v{VTOK}, 4, v5          ; d = m")
    a("s_sub_u32 s29, s25, 32")
    a(f"s_mul_i32 s29, s29, {2*KVH}")
    a("s_add_u32 s28, s28, s29")
    a(f"s_mov_b32 s31, {KVH}")
    a("s_branch k2_vstore")
    a.label("k2_vext")
    a(f"v_lshrrev_b32 v6, 1, v{VTOK}")
    a(f"v_mul_u32_u24 v6, {KVH}, v6")
    a(f"v_add_u32 v5, v5, v6")
    a(f"v_and_b32 v6, 1, v{VTOK}")
    a(f"v_lshl_add_u32 v5, v6, 4, v5")
    a(f"v_add_u32 v5, 256, v5                      ; d = 16 + (m&1)")
    a("s_sub_u32 s29, s25, 52")
    a(f"s_mul_i32 s29, s29, {16*KVH}")
    a("s_add_u32 s28, s28, s29")
    a(f"s_mov_b32 s31, {8*KVH}")
    a.label("k2_vstore")
    for uu in range(2):
        for tl in range(2):
            acc = VACC+16*uu+8*tl; o = VT+4*((2*uu+tl)&3)
            pack_pair16(acc, acc+4, o)
            a(f"v_permlane32_swap_b32 v{o}, v{o+2}")
            a(f"v_permlane32_swap_b32 v{o+1}, v{o+3}")
            a(f"s_add_u32 s29, s28, {KV_V + tl*1216}")
            out_store(a, f"buffer_store_dwordx4 {vr(o)}, v5, s[16:19], s29 offen")
        if uu == 0: a("s_add_u32 s28, s28, s31")
    a("s_endpgm")
    if not fused:
        a.label("k2_side")
        wave_id(a, 22, 1)
        a("s_cmp_ge_u32 s24, 18\ns_cbranch_scc1 k2_side_wo")
        a("s_lshr_b32 s45, s22, 2")
        a("s_lshl_b32 s44, s24, 1")
        a("s_add_u32 s44, s44, s45")
        a("s_add_u32 s44, s44, 18")
        a("s_mul_i32 s45, s45, 12288")
        gen_mod(a, "k2")
        a.label("k2_side_wo")
        a("s_sub_u32 s23, s24, 18")
        a("s_lshl_b32 s23, s23, 3")
        a("s_add_u32 s23, s23, s22")
        a("s_cmp_ge_u32 s23, 72\ns_cbranch_scc1 k2_exit")
        gen_ldsshuf(a, "k2", False, True)
    a.label("k2_exit")
```

```python
from common import *
from k1 import w13_load, w13_finish, w2_load, w2_finish, shuffle_lane_setup, perm_consts
from k4 import oproj
import k5 as _k5
K3_LDS = KVH + 64
L3_CNT = KVH
UN = int(ENV('UN', '4'))
import os
MERGE4 = os.environ.get('MERGE4', '1') == '1'
MERGE5 = MERGE4 and os.environ.get('MERGE5', '1') == '1'
OMSC = 'sc0 sc1' if (MERGE4 or os.environ.get('OMSC', '0') == '1') else ''
ST1 = 16

def gen_k3():
    a = Asm()
    a("s_cmp_ge_u32 s2, 256\ns_cbranch_scc1 k3_exit")
    load_ptr(a, 20, KA_WS)
    wave_id(a, 22, 1)
    a("s_cmp_ge_u32 s22, 8\ns_cbranch_scc1 k3_helper")
    VL=1; VL16=2; VQI=3; VHH=4
    a(f"v_and_b32 v{VL}, 63, v0")
    a(f"v_lshlrev_b32 v{VL16}, 4, v{VL}")
    a(f"v_and_b32 v{VQI}, 31, v{VL}")
    a(f"v_lshrrev_b32 v{VHH}, 5, v{VL}")
    a("s_and_b32 s23, s2, 31          ; head")
    a("s_lshr_b32 s24, s2, 5          ; qb")
    a("s_waitcnt lgkmcnt(0)")
    srd(a, 8, 20, SZ_KV, WS_KV); srd(a, 12, 20, SZ_QA, WS_QA); srd(a, 16, 20, SZ_QB, WS_QB)
    VQA=8; VQB=12
    VS=[16, 32]
    VP=48
    VO=56
    VKA=[72, 76]; VKB=[80, 82]; VV=[84, 92]
    AKA=100; AKB=101; AV=102; VT=104
    a("s_lshl_b32 s25, s24, 3")
    a("s_add_u32 s25, s25, s22")
    a("s_lshl_b32 s26, s23, 16")
    a("s_lshl_b32 s27, s25, 10")
    a("s_add_u32 s26, s26, s27")
    a(f"buffer_load_dwordx4 {vr(VQA)}, v{VL16}, s[12:15], s26 offen")
    a("s_lshl_b32 s26, s23, 14")
    a("s_lshl_b32 s27, s25, 8")
    a("s_add_u32 s26, s26, s27")
    a(f"v_lshlrev_b32 v5, 3, v{VQI}")
    a(f"buffer_load_dwordx2 {vr(VQB,2)}, v5, s[16:19], s26 offen")
    a(f"s_mul_i32 s28, s23, {KVH}")
    def dma(off_expr_sgpr, vl=VL16, q=8):
        a(f"s_mov_b32 m0, s{off_expr_sgpr}")
        a(f"s_add_u32 s30, s28, s{off_expr_sgpr}")
        a(f"buffer_load_dwordx4 v{vl}, s[{q}:{q+3}], s30 offen lds")
    def chunks(base, first, count):
        n = (count + 7)//8
        for i in range(n):
            a(f"s_add_u32 s29, s22, {8*i}")
            if 8*i + 7 >= count: a(f"s_min_u32 s29, s29, {count-1}")
            a(f"s_lshl_b32 s29, s29, 10")
            a(f"s_add_u32 s29, s29, {base + first*1024}")
            dma(29)
        return n
    assert (ST1*1216) % 1024 == 0
    n1 = chunks(KV_KA, 0, ST1) + chunks(KV_KB, 0, ST1//4) + chunks(KV_V, 0, ST1*1216//1024)
    nKA2 = 64-ST1; nKB2 = (64-ST1)//4; nV2 = (64-ST1)*1216//1024
    def dma2(sj, vl, q):
        a(f"s_min_u32 s29, s{sj}, {nKA2+nKB2+nV2-1}")
        a(f"s_cmp_ge_u32 s29, {nKA2}")
        a(f"s_cselect_b32 s31, {ST1//4}, 0")
        a(f"s_add_u32 s31, s31, {ST1}")
        a(f"s_cmp_ge_u32 s29, {nKA2+nKB2}")
        a(f"s_cselect_b32 s30, {ST1*1216//1024}, 0")
        a(f"s_add_u32 s29, s29, s31")
        a(f"s_add_u32 s29, s29, s30")
        a(f"s_lshl_b32 s29, s29, 10")
        dma(29, vl, q)
    n2 = 0
    a(f"v_mov_b32 v6, {L3_CNT}")
    a(f"v_mov_b32 v7, 0")
    a(f"ds_write_b32 v6, v7")
    a(f"ds_write_b32 v6, v7 offset:4")
    a(f"ds_write_b32 v6, v7 offset:8")
    a(f"ds_write_b32 v6, v7 offset:12")
    a(f"v_mov_b32 v{AKA}, v{VL16}")
    a(f"v_lshlrev_b32 v{AKB}, 3, v{VQI}")
    a(f"v_add_u32 v{AKB}, {KV_KB}, v{AKB}")
    a(f"v_min_u32 v5, 18, v{VQI}")
    a(f"v_cmp_lt_u32 vcc, 19, v{VQI}")
    a(f"v_cndmask_b32 v5, v5, 0, vcc")
    a(f"v_mov_b32 v6, 4")
    a(f"v_cmp_lt_u32 vcc, 27, v{VQI}")
    a(f"v_cndmask_b32 v5, v5, v6, vcc")
    a(f"v_lshlrev_b32 v5, 4, v5")
    a(f"v_mul_u32_u24 v6, 304, v{VHH}")
    a(f"v_add_u32 v5, v5, v6")
    a(f"v_add_u32 v{AV}, {KV_V}, v5")
    a(f"s_waitcnt vmcnt({n1+n2})")
    a(f"v_cmp_eq_u32 vcc, 0, v{VHH}")
    a(f"v_cndmask_b32 v{VQB}, 0, v{VQB}, vcc")
    a(f"v_mov_b32 v{VQB+1}, 0")
    a(f"s_waitcnt vmcnt({n2}) lgkmcnt(0)")
    a("s_barrier")
    a.stamp(1)
    a("s_mov_b32 s34, 0")

    def kread(buf, tile_off):
        a(f"ds_read_b128 {vr(VKA[buf])}, v{AKA} offset:{tile_off*1024}")
        a(f"ds_read_b64 {vr(VKB[buf],2)}, v{AKB} offset:{tile_off*256}")
    def vread(buf, tile_off):
        a(f"ds_read_b128 {vr(VV[buf])}, v{AV} offset:{tile_off*1216}")
        a(f"ds_read_b128 {vr(VV[buf]+4)}, v{AV} offset:{tile_off*1216+608}")
    def qk1(sb, kb): a(f"v_mfma_f32_32x32x16_bf16 {vr(VS[sb],16)}, {vr(VKA[kb])}, {vr(VQA)}, 0")
    def qk2(sb, kb): a(f"v_mfma_f32_32x32x8bf16_1k {vr(VS[sb],16)}, {vr(VKB[kb],2)}, {vr(VQB,2)}, {vr(VS[sb],16)}")
    def setmax(vm):
        a(f"v_mov_b32 v{VT+1}, v{vm}")
        a(f"v_permlane32_swap_b32 v{vm}, v{VT+1}")
        a(f"v_max_f32 v{vm}, v{vm}, v{VT+1}")
        a(f"v_sub_f32 v{vm}, 0, v{vm}")
        a(f"v_cvt_pk_bf16_f32 v{vm}, v{vm}, 0")
        a(f"v_and_b32 v{vm}, 0xffff, v{vm}")
        a(f"v_cmp_eq_u32 vcc, 0, v{VHH}")
        a(f"v_cndmask_b32 v{VQB+1}, 0, v{vm}, vcc")
    def tilemax(sb, vm, first):
        s = VS[sb]
        if first:
            a(f"v_max3_f32 v{vm}, v{s}, v{s+1}, v{s+2}")
            a(f"v_max_f32 v{vm}, v{vm}, v{s+3}")
            rng = range(4, 16, 2)
        else:
            rng = range(0, 16, 2)
        for i in rng: a(f"v_max3_f32 v{vm}, v{s+i}, v{s+i+1}, v{vm}")

    kread(0, 0)
    a("s_waitcnt lgkmcnt(0)")
    qk1(0, 0); qk2(0, 0)
    tilemax(0, VT, True)
    setmax(VT)

    if ENV("APRIO", "0") == "1":
        a("s_cmp_lt_u32 s22, 4\ns_cbranch_scc1 k3_noprio\ns_setprio 1\nk3_noprio:")
    a.label("k3_pass")
    a(f"v_mov_b32 v{AKA}, v{VL16}")
    a(f"v_lshlrev_b32 v{AKB}, 3, v{VQI}")
    a(f"v_add_u32 v{AKB}, {KV_KB}, v{AKB}")
    a(f"v_add_u32 v{AV}, {KV_V}, v5")
    for i in range(16): a(f"v_mov_b32 v{VO+i}, 0")
    for r in list(range(VV[1]+4, VV[1]+8)) + [VP+4, VP+5, VP+6, VS[1]+14, VS[1]+15]: a(f"v_mov_b32 v{r}, 0")
    kread(0, 0); kread(1, 1); vread(0, 0)
    a("s_waitcnt lgkmcnt(4)")
    qk1(0, 0); qk2(0, 0)
    kread(0, 2)
    def body(j, do_k, do_v, pend_k):
        sb = j & 1; nb = sb ^ 1
        s = VS[sb]; sp = VS[nb]
        ex = lambda i: a(f"v_exp_f32 v{s+i}, v{s+i}")
        cv = lambda i: a(f"v_cvt_pk_bf16_f32 v{VP+i}, v{s+2*i}, v{s+2*i+1}")
        a(f"s_waitcnt lgkmcnt({2 if pend_k else 0})")
        ex(0); ex(1)
        a(f"v_cvt_pk_bf16_f32 v{VP+7}, v{sp+14}, v{sp+15}")
        ex(2); ex(3)
        a(f"v_mfma_f32_32x32x16_bf16 {vr(VO,16)}, {vr(VV[nb]+4)}, {vr(VP+4)}, {vr(VO,16)}")
        if do_v: vread(nb, j+1)
        cv(0); ex(4); ex(5); cv(1); ex(6)
        if do_v: qk1(nb, nb)
        ex(7); cv(2); ex(8); ex(9); cv(3); ex(10)
        if do_v: qk2(nb, nb)
        ex(11); cv(4); ex(12); ex(13)
        a(f"v_mfma_f32_32x32x16_bf16 {vr(VO,16)}, {vr(VV[sb])}, {vr(VP)}, {vr(VO,16)}")
        cv(5); ex(14); ex(15); cv(6)
        if do_k: kread(nb, j+3)
    def tail(j):
        sb = j & 1; s = VS[sb]
        a("s_nop 0")
        a(f"v_cvt_pk_bf16_f32 v{VP+7}, v{s+14}, v{s+15}")
        a(f"v_mfma_f32_32x32x16_bf16 {vr(VO,16)}, {vr(VV[sb]+4)}, {vr(VP+4)}, {vr(VO,16)}")
    def bump(n):
        a(f"v_add_u32 v{AKA}, {n*1024}, v{AKA}")
        a(f"v_add_u32 v{AKB}, {n*256}, v{AKB}")
        a(f"v_add_u32 v{AV}, {n*1216}, v{AV}")
    n_a = (ST1-4)//UN
    a(f"s_mov_b32 s33, {n_a}")
    a.label("k3_loop1")
    for j in range(UN): body(j, True, True, True)
    bump(UN)
    a("s_sub_u32 s33, s33, 1\ns_cmp_lg_u32 s33, 0\ns_cbranch_scc1 k3_loop1")
    a("s_cmp_lg_u32 s34, 0\ns_cbranch_scc1 k3_nosync")
    a(f"v_mov_b32 v6, {L3_CNT}")
    a.label("k3_poll")
    a("ds_read_b32 v7, v6")
    a("s_waitcnt lgkmcnt(0)")
    a("v_readfirstlane_b32 s33, v7")
    a("s_cmp_ge_u32 s33, 4\ns_cbranch_scc0 k3_poll")
    a.label("k3_nosync")
    n_b = (60 - n_a*UN)//UN
    a(f"s_mov_b32 s33, {n_b}")
    a.label("k3_loop2")
    for j in range(UN): body(j, True, True, True)
    bump(UN)
    a("s_sub_u32 s33, s33, 1\ns_cmp_lg_u32 s33, 0\ns_cbranch_scc1 k3_loop2")
    body(0, True, True, True)
    body(1, False, True, True)
    body(2, False, True, False)
    body(3, False, False, False)
    tail(3)
    a.stamp(2)
    a("s_cmp_lg_u32 s34, 0\ns_cbranch_scc1 k3_final")
    a(f"v_add_f32 v{VT}, |v{VO}|, |v{VO+1}|")
    for i in range(2, 16): a(f"v_add_f32 v{VT}, v{VT}, |v{VO+i}|")
    a(f"v_mov_b32 v{VT+1}, 0x7e800000")
    a(f"v_cmp_nlt_f32 vcc, v{VT}, v{VT+1}")
    a("s_cmp_eq_u64 vcc, 0\ns_cbranch_scc1 k3_final")
    a("s_mov_b32 s34, 1")
    a(f"v_mov_b32 v{VQB+1}, 0")
    a(f"v_mov_b32 v{AKA}, v{VL16}")
    a(f"v_lshlrev_b32 v{AKB}, 3, v{VQI}")
    a(f"v_add_u32 v{AKB}, {KV_KB}, v{AKB}")
    a(f"v_mov_b32 v{VT}, 0xff800000")
    a("s_mov_b32 s33, 64")
    a.label("k3_maxloop")
    kread(0, 0)
    a("s_waitcnt lgkmcnt(0)")
    qk1(0, 0); qk2(0, 0)
    tilemax(0, VT, False)
    a(f"v_add_u32 v{AKA}, 1024, v{AKA}")
    a(f"v_add_u32 v{AKB}, 256, v{AKB}")
    a("s_sub_u32 s33, s33, 1\ns_cmp_lg_u32 s33, 0\ns_cbranch_scc1 k3_maxloop")
    setmax(VT)
    a("s_branch k3_pass")
    a.label("k3_final")
    if ENV("APRIO", "0") == "1": a("s_setprio 0")
    srd(a, 8, 20, SZ_OM, WS_OM); srd(a, 12, 20, SZ_OE, WS_OE)
    a(f"v_mov_b32 v{VT}, v{VO+10}")
    a(f"v_mov_b32 v{VT+1}, v{VO+10}")
    a(f"v_permlane32_swap_b32 v{VT}, v{VT+1}")
    a(f"v_rcp_f32 v{VT}, v{VT}")
    for i in list(range(8)) + [8, 9]: a(f"v_mul_f32 v{VO+i}, v{VO+i}, v{VT}")
    a(f"v_cvt_pk_bf16_f32 v{VP}, v{VO}, v{VO+1}")
    a(f"v_cvt_pk_bf16_f32 v{VP+1}, v{VO+2}, v{VO+3}")
    a(f"v_cvt_pk_bf16_f32 v{VP+2}, v{VO+4}, v{VO+5}")
    a(f"v_cvt_pk_bf16_f32 v{VP+3}, v{VO+6}, v{VO+7}")
    a(f"v_cvt_pk_bf16_f32 v{VP+4}, v{VO+8}, v{VO+9}")
    a(f"v_permlane32_swap_b32 v{VP}, v{VP+2}")
    a(f"v_permlane32_swap_b32 v{VP+1}, v{VP+3}")
    a("s_lshl_b32 s26, s23, 16")
    a("s_lshl_b32 s27, s25, 10")
    a("s_add_u32 s26, s26, s27")
    a(f"buffer_store_dwordx4 {vr(VP)}, v{VL16}, s[8:11], s26 offen " + OMSC)
    a("s_lshl_b32 s26, s23, 13")
    a("s_lshl_b32 s27, s25, 7")
    a("s_add_u32 s26, s26, s27")
    a(f"v_lshlrev_b32 v5, 2, v{VQI}")
    a(f"v_cmp_eq_u32 vcc, 0, v{VHH}")
    a("s_and_saveexec_b64 s[36:37], vcc")
    a(f"buffer_store_dword v{VP+4}, v5, s[12:15], s26 offen " + (OMSC if MERGE4 else ""))
    if MERGE5 and TAGS:
        a("s_mov_b64 exec, s[36:37]")
        a("s_branch k3_proj")
    elif MERGE4:
        a("s_mov_b64 exec, s[36:37]")
        a("s_waitcnt vmcnt(0)")
        srd(a, 52, 20, SZ_CNT, WS_CNT)
        a("s_mov_b32 s58, 0")
        a(f"v_mov_b32 v6, {L3_CNT+4}")
        a("v_mov_b32 v7, 1")
        a("s_mov_b64 exec, 1")
        a("ds_add_rtn_u32 v8, v6, v7")
        a("s_waitcnt lgkmcnt(0)")
        a("v_readfirstlane_b32 s26, v8")
        a("s_cmp_lg_u32 s26, 7\ns_cbranch_scc1 k3_nosig")
        a("s_lshl_b32 s26, s24, 9")
        a("v_mov_b32 v6, s26")
        a("buffer_atomic_add v7, v6, s[52:55], 0 offen sc1")
        a("s_mov_b32 s58, 1")
        a.label("k3_nosig")
        a("s_mov_b64 exec, -1")
        a("s_branch k3_proj")
    else:
        a("s_endpgm")
    a.label("k3_helper")
    if ENV("HPRIO", "1") == "1": a("s_setprio 2")
    load_ptr(a, 4, KA_W1); load_ptr(a, 6, KA_W3); load_ptr(a, 42, KA_W2)
    shuffle_lane_setup(a, 4)
    perm_consts(a)
    a("s_lshl_b32 s23, s2, 2")
    a("s_add_u32 s23, s23, s22")
    a("s_sub_u32 s23, s23, 8")
    a("s_waitcnt lgkmcnt(0)")
    srd(a, 8, 4, 576*9216); srd(a, 12, 6, 576*9216); srd(a, 16, 20, SZ_W13, WS_W13)
    srd(a, 44, 42, 4608*1152); srd(a, 48, 20, SZ_W2, WS_W2); srd(a, 52, 20, SZ_KV, WS_KV)
    VLH = 4
    a("s_barrier")
    a("s_and_b32 s26, s2, 31")
    a(f"s_mul_i32 s28, s26, {KVH}")
    a("s_sub_u32 s35, s22, 8")
    a(f"s_mov_b32 s33, {-(-(nKA2+nKB2+nV2)//4)}")
    a.label("k3_hdma")
    dma2(35, VLH, 52)
    a("s_add_u32 s35, s35, 4")
    a("s_sub_u32 s33, s33, 1\ns_cmp_lg_u32 s33, 0\ns_cbranch_scc1 k3_hdma")
    VI=[8, 40]; VOUT=72; SD=[34, 35]
    w13_load(a, "k3h0", 23, 4, VI[0], SD[0])
    a("s_waitcnt vmcnt(8)")
    a(f"v_mov_b32 v110, {L3_CNT}")
    a(f"v_mov_b32 v111, 1")
    a("s_mov_b64 exec, 1")
    a("ds_add_u32 v110, v111")
    a("s_mov_b64 exec, -1")
    if MERGE5 and TAGS:
        assert SZ_X1F == 1024*2304 and SZ_STP == 1024*64
        srd(a, 52, 20, WS_STP + SZ_STP - WS_X1F, WS_X1F)
        for i in range(4): a(f"v_mov_b32 v{112+i}, -1")
        a("s_mul_i32 s26, s23, 2304")
        a("buffer_store_dwordx4 v[112:115], v4, s[52:55], s26 offen sc0 sc1")
        a("buffer_store_dwordx4 v[112:115], v4, s[52:55], s26 offen offset:1024 sc0 sc1")
        a("s_mov_b64 exec, 0xffff")
        a("buffer_store_dwordx4 v[112:115], v4, s[52:55], s26 offen offset:2048 sc0 sc1")
        a("s_lshl_b32 s26, s23, 6")
        a(f"s_add_u32 s26, s26, {WS_STP - WS_X1F:#x}")
        a("s_mov_b64 exec, 0xf")
        a("buffer_store_dwordx4 v[112:115], v4, s[52:55], s26 offen sc0 sc1")
        a("s_mov_b64 exec, -1")
    NP = 4 if (MERGE5 and TAGS) else 0
    a("s_cmp_ge_u32 s23, 272\ns_cbranch_scc1 k3_hb")
    a("s_add_u32 s24, s23, 1024")
    w13_load(a, "k3h1", 24, 4, VI[1], SD[1])
    a(f"s_waitcnt vmcnt({8+NP})")
    w13_finish(a, 4, VI[0], VOUT, SD[0])
    a("s_waitcnt vmcnt(8)")
    w13_finish(a, 4, VI[1], VOUT, SD[1])
    a("s_branch k3_hdone")
    a.label("k3_hb")
    a("s_sub_u32 s24, s23, 272")
    w2_load(a, 24, 4, VI[1], SD[1])
    a(f"s_waitcnt vmcnt({8+NP})")
    w13_finish(a, 4, VI[0], VOUT, SD[0])
    a("s_cmp_ge_u32 s23, 384\ns_cbranch_scc1 k3_hc")
    a("s_add_u32 s24, s23, 480        ; 752 + gw - 272")
    w2_load(a, 24, 4, VI[0], SD[0])
    a("s_waitcnt vmcnt(16)")
    w2_finish(a, 4, VI[1], VOUT, SD[1])
    a("s_waitcnt vmcnt(6)")
    w2_finish(a, 4, VI[0], VOUT, SD[0])
    a("s_branch k3_hdone")
    a.label("k3_hc")
    a("s_waitcnt vmcnt(8)")
    w2_finish(a, 4, VI[1], VOUT, SD[1])
    a.label("k3_hdone")
    if ENV("HPRIO", "1") == "1": a("s_setprio 0")
    if MERGE5:
        a("s_waitcnt vmcnt(0)")
        srd(a, 52, 20, SZ_CNT, WS_CNT)
        a(f"v_mov_b32 v6, {L3_CNT+8}")
        a("v_mov_b32 v7, 1")
        a("s_mov_b64 exec, 1")
        a("ds_add_rtn_u32 v8, v6, v7")
        a("s_waitcnt lgkmcnt(0)")
        a("v_readfirstlane_b32 s26, v8")
        a("s_cmp_lg_u32 s26, 3\ns_cbranch_scc1 k3_hnosig")
        a("s_and_b32 s26, s2, 7")
        a(f"s_add_u32 s26, s26, {C_W}")
        a("s_lshl_b32 s26, s26, 9")
        a("v_mov_b32 v6, s26")
        a("buffer_atomic_add v7, v6, s[52:55], 0 offen sc1")
        a.label("k3_hnosig")
        a("s_mov_b64 exec, -1")
        a("s_mov_b32 s58, 0")
        a("s_cmp_eq_u32 s22, 8\ns_cbranch_scc1 k3_proj")
        if TAGS and MTPRE:
            srd(a, 48, 20, SZ_MOD, WS_MOD)
            ffn_mod_prefetch(a, 48)
        a("s_barrier\ns_barrier" + ("" if NOSTATS else "\ns_barrier") + "          ; the barriers of the projection phase")
        a("s_branch k3_ffn")
    if MERGE4:
        a("s_cmp_lg_u32 s22, 8\ns_cbranch_scc1 k3_exit")
        a("s_mov_b32 s58, 0")
        a.label("k3_proj")
        a("s_and_b32 s26, s2, 31")
        a("s_lshr_b32 s56, s2, 5")
        a("s_lshr_b32 s23, s26, 3")
        a("s_and_b32 s24, s26, 7")
        a("s_lshl_b32 s27, s56, 3")
        a("s_add_u32 s24, s24, s27        ; tg")
        oproj(a, "k3p", True, chain=(L3_CNT+12 if MERGE5 else None))
    if MERGE5:
        a.label("k3_ffn")
        _k5.ffn(a, True)
    a.label("k3_exit")
    return kernel("k3_attn_kernel", a, vgpr=168 if MERGE5 else (144 if MERGE4 else 112), sgpr=64), (256, 768, K3_LDS)
```

```python
from common import *
K4_LDS = 36864
NPRE = 6
SPIN_MAX = 20000

def oproj(a, tag, merged, chain=None):
    VL=1; VTOK=2; VG=3; VL16=4
    NOSTAT = bool(merged and chain and NOSTATS)
    load_ptr(a, 4, KA_X)
    a(f"v_and_b32 v{VL}, 63, v0")
    a(f"v_and_b32 v{VTOK}, 15, v{VL}")
    a(f"v_lshrrev_b32 v{VG}, 4, v{VL}")
    a(f"v_lshlrev_b32 v{VL16}, 4, v{VL}")
    a("s_waitcnt lgkmcnt(0)")
    srd(a, 8, 20, SZ_OM, WS_OM); srd(a, 12, 20, SZ_OE, WS_OE); srd(a, 16, 20, SZ_WO, WS_WO)
    srd(a, 44, 4, SZ_X); srd(a, 48, 20, SZ_MOD, WS_MOD)
    if merged: srd(a, 52, 20, SZ_CNT, WS_CNT)
    VX=12; VW=28; VACC=100; VR=108; VGA=112; VT=116; VB=[128,136]
    OSC = (" " + ENV("OLD", "sc1")) if merged else ""
    a("s_mul_i32 s25, s23, 9")
    a("s_add_u32 s25, s25, s22        ; unit")
    a(f"s_mul_i32 s43, s25, {18*1024}")
    nw = [0]
    def wload():
        t = nw[0]; nw[0] += 1
        if t and t % 4 == 0: a("s_add_u32 s43, s43, 4096")
        a(f"buffer_load_dwordx4 {vr(VW+4*t)}, v{VL16}, s[16:19], s43 offen offset:{(t%4)*1024}")
    def epi_loads():
        a(f"v_mul_u32_u24 v6, 1152, v{VTOK}")
        a(f"v_lshl_add_u32 v6, v{VG}, 3, v6            ; tok*1152 + g*8")
        a(f"s_mul_i32 s27, s24, {32*1152}")
        a("s_lshl_b32 s26, s25, 5         ; 16u*2")
        a("s_add_u32 s27, s27, s26")
        a(f"buffer_load_dwordx2 {vr(VR,2)}, v6, s[44:47], s27 offen")
        a(f"s_add_u32 s26, s27, {16*1152}")
        a(f"buffer_load_dwordx2 {vr(VR+2,2)}, v6, s[44:47], s26 offen")
        a(f"v_lshlrev_b32 v7, 4, v{VG}")
        a("s_lshl_b32 s26, s25, 6")
        a(f"s_add_u32 s26, s26, {2*576*4}")
        a(f"buffer_load_dwordx4 {vr(VGA)}, v7, s[48:51], s26 offen")
    def xloads():
        a(f"s_cmp_eq_u32 s22, 8\ns_cbranch_scc1 {tag}_ext")
        a(f"v_lshrrev_b32 v5, 1, v{VG}")
        a(f"v_lshlrev_b32 v5, 16, v5")
        a(f"v_and_b32 v6, 1, v{VG}")
        a(f"v_lshl_add_u32 v5, v6, 9, v5")
        a(f"v_lshl_add_u32 v5, v{VTOK}, 4, v5")
        a("s_lshl_b32 s40, s22, 18        ; t0 = 2w -> head 4w -> *65536")
        a("s_lshl_b32 s26, s24, 10")
        a("s_add_u32 s40, s40, s26")
        for i in range(4):
            a(f"s_add_u32 s26, s40, {(i>>1)*2*65536 + (i&1)*256}")
            a(f"buffer_load_dwordx4 {vr(VX+4*i)}, v5, s[8:11], s26 offen{OSC}")
        a(f"s_branch {tag}_j")
        a.label(f"{tag}_ext")
        a(f"v_lshlrev_b32 v5, 15, v{VG}")
        a(f"v_lshl_add_u32 v5, v{VTOK}, 2, v5")
        a("s_lshl_b32 s40, s24, 7         ; 32 tg * 4")
        for i in range(4):
            for q in range(4):
                a(f"s_add_u32 s26, s40, {(16*(i>>1)+q)*8192 + (i&1)*64}")
                a(f"buffer_load_dword v{VX+4*i+q}, v5, s[12:15], s26 offen{OSC}")
        a.label(f"{tag}_j")
    if merged and TAGS and chain:
        LATEW = ENV("LATEW", "0") == "1"
        nmt = 2 if MTPRE else 0
        def WL():
            nw[0] = 0
            a(f"s_mul_i32 s43, s25, {18*1024}")
            for t in range(18): wload()
            epi_loads()
            if MTPRE: ffn_mod_prefetch(a, 48)
        if LATEW:
            a("s_lshr_b32 s59, s22, 2\ns_cmp_eq_u32 s59, 1\ns_cselect_b32 s59, 1, 0")
            a(f"s_cbranch_scc1 {tag}_late")
        WL()
        a.label(f"{tag}_late")
        a("s_barrier")
        a.stamp(3)
        a(f"s_mov_b32 s57, {SPIN_MAX}")
        a(f"v_and_b32 v9, 7, v{VL}")
        a(f"v_add_u32 v9, {C_W}, v9")
        a(f"v_lshlrev_b32 v9, 9, v9")
        a(f"v_mov_b32 v10, 32")
        a.label(f"{tag}_retry")
        a(f"s_cmp_lg_u32 s22, 1\ns_cbranch_scc1 {tag}_nocw")
        a("buffer_load_dword v10, v9, s[52:55], 0 offen sc0 sc1")
        a.label(f"{tag}_nocw")
        xloads()
        if LATEW:
            a(f"s_cmp_eq_u32 s59, 0\ns_cbranch_scc1 {tag}_w0")
            a("s_mov_b32 s59, 0")
            WL()
            a(f"s_waitcnt vmcnt({21+nmt})")
            a(f"s_branch {tag}_chk")
            a.label(f"{tag}_w0")
        a("s_waitcnt vmcnt(0)")
        a.label(f"{tag}_chk")
        any_poison(a, list(range(VX, VX+16)), 8)
        a("s_mov_b64 s[40:41], vcc")
        a("v_cmp_gt_u32 vcc, 32, v10")
        a("s_or_b64 vcc, vcc, s[40:41]")
        a("s_sub_u32 s57, s57, 1")
        a(f"s_cmp_eq_u32 s57, 0\ns_cbranch_scc1 {tag}_got")
        a(f"s_cmp_lg_u64 vcc, 0\ns_cbranch_scc1 {tag}_retry")
        a.label(f"{tag}_got")
        a("s_lshl_b32 s26, s22, 12")
        a(f"v_add_u32 v7, s26, v{VL16}")
        for i in range(4): a(f"ds_write_b128 v7, {vr(VX+4*i)} offset:{i*1024}")
    elif merged:
        for t in range(18): wload()
        epi_loads()
        a(f"s_cmp_eq_u32 s58, 0\ns_cbranch_scc1 {tag}_nopoll")
        a(f"v_min_u32 v5, 8, v{VL}")
        a(f"v_add_u32 v6, {C_W}, v5")
        a(f"v_mov_b32 v7, s56")
        a(f"v_cmp_gt_u32 vcc, {8 if chain else 0}, v5")
        a(f"v_cndmask_b32 v5, v7, v6, vcc")
        a(f"v_lshlrev_b32 v5, 9, v5")
        a(f"s_mov_b32 s57, {SPIN_MAX}")
        a.label(f"{tag}_poll")
        a("buffer_load_dword v6, v5, s[52:55], 0 offen sc0 sc1")
        a("s_waitcnt vmcnt(0)")
        a("v_cmp_gt_u32 vcc, 32, v6")
        a("s_sub_u32 s57, s57, 1")
        a(f"s_cmp_eq_u32 s57, 0\ns_cbranch_scc1 {tag}_nopoll")
        a(f"s_cmp_lg_u64 vcc, 0\ns_cbranch_scc1 {tag}_poll")
        a.label(f"{tag}_nopoll")
        a("s_barrier")
        a.stamp(3)
        xloads()
        a("s_lshl_b32 s26, s22, 12")
        a(f"v_add_u32 v7, s26, v{VL16}")
        a("s_waitcnt vmcnt(0)")
        for i in range(4): a(f"ds_write_b128 v7, {vr(VX+4*i)} offset:{i*1024}")
    else:
        xloads()
        for t in range(NPRE): wload()
        a("s_lshl_b32 s26, s22, 12")
        a(f"v_add_u32 v7, s26, v{VL16}")
        a(f"s_waitcnt vmcnt({NPRE})")
        for i in range(4): a(f"ds_write_b128 v7, {vr(VX+4*i)} offset:{i*1024}")
        epi_loads()
    a("s_waitcnt lgkmcnt(0)")
    a("s_barrier")
    if merged: a("s_waitcnt vmcnt(0)")
    a.stamp(4)
    def xr(t):
        b = VB[t & 1]
        a(f"ds_read_b128 {vr(b)}, v{VL16} offset:{t*2048}")
        a(f"ds_read_b128 {vr(b+4)}, v{VL16} offset:{t*2048+1024}")
    xr(0)
    for t in range(18):
        if t < 17: xr(t+1)
        if merged:
            a(f"s_waitcnt lgkmcnt({2 if t < 17 else 0})")
        else:
            for _ in range(2):
                if nw[0] < 18: wload()
            issued_after = (nw[0] - 1 - t) + (3 if t < NPRE else 0)
            a(f"s_waitcnt vmcnt({issued_after}) lgkmcnt({2 if t < 17 else 0})")
        for tb in range(2):
            acc = VACC+4*tb
            a(f"v_mfma_f32_16x16x32_bf16 {vr(acc)}, {vr(VW+4*t)}, {vr(VB[t&1]+4*tb)}, {vr(acc) if t else '0'}")
    a.stamp(5)
    srd(a, 8, 20, SZ_X1F, WS_X1F); srd(a, 12, 20, SZ_STP, WS_STP)
    a(f"v_lshrrev_b32 v8, 1, v{VG}")
    a(f"v_lshlrev_b32 v8, 8, v8")
    a(f"v_lshl_add_u32 v8, v{VTOK}, 4, v8")
    a(f"v_and_b32 v9, 1, v{VG}")
    a(f"v_lshl_add_u32 v8, v9, 10, v8")
    a("s_lshr_b32 s40, s24, 1")
    a("s_mul_i32 s40, s40, 73728      ; rb")
    a("s_and_b32 s41, s24, 1")
    a("s_lshl_b32 s41, s41, 11")
    a("s_add_u32 s40, s40, s41")
    a("s_lshr_b32 s41, s25, 1")
    a("s_lshl_b32 s41, s41, 12        ; t*4096")
    a("s_add_u32 s40, s40, s41")
    a("s_and_b32 s41, s25, 1")
    a("s_lshl_b32 s41, s41, 9")
    a("s_add_u32 s40, s40, s41")
    a("s_mov_b32 s42, 0x3f803f80")
    VS = VT+4
    for tb in range(2):
        acc = VACC+4*tb; r = VR+2*tb
        a(f"v_lshlrev_b32 v{VT}, 16, v{r}")
        a(f"v_and_b32 v{VT+1}, 0xffff0000, v{r}")
        a(f"v_lshlrev_b32 v{VT+2}, 16, v{r+1}")
        a(f"v_and_b32 v{VT+3}, 0xffff0000, v{r+1}")
        for j in range(4): a(f"v_fmac_f32 v{VT+j}, v{VGA+j}, v{acc+j}")
        a(f"v_cvt_pk_bf16_f32 v{r}, v{VT}, v{VT+1}")
        a(f"v_cvt_pk_bf16_f32 v{r+1}, v{VT+2}, v{VT+3}")
        if NOSTAT: continue
        a(f"v_mov_b32 v{VS+2*tb}, 0")
        a(f"v_mov_b32 v{VS+2*tb+1}, 0")
        for q in range(2):
            a(f"v_dot2_f32_bf16 v{VS+2*tb}, v{r+q}, s42, v{VS+2*tb}")
            a(f"v_dot2_f32_bf16 v{VS+2*tb+1}, v{r+q}, v{r+q}, v{VS+2*tb+1}")
    a(f"v_permlane16_swap_b32 v{VR}, v{VR+2}")
    a(f"v_permlane16_swap_b32 v{VR+1}, v{VR+3}")
    a(f"buffer_store_dwordx4 {vr(VR)}, v8, s[8:11], s40 offen " + SC("K4SC", "1"))
    if NOSTAT: return
    for i in range(4): xsum16_32(a, VS+i, VT)
    a("s_lshl_b32 s26, s22, 8")
    a(f"v_lshlrev_b32 v9, 3, v{VTOK}")
    a(f"v_add_u32 v9, s26, v9")
    a(f"ds_write_b64 v9, {vr(VS,2)} offset:36864")
    a(f"ds_write_b64 v9, {vr(VS+2,2)} offset:{36864+128}")
    a("s_waitcnt lgkmcnt(0)")
    a("s_barrier")
    a(f"s_cmp_lg_u32 s22, 0\ns_cbranch_scc1 {tag}_done")
    a(f"v_and_b32 v9, 31, v{VL}")
    a(f"v_lshlrev_b32 v10, 3, v9")
    for w in range(9): a(f"ds_read_b64 {vr(VW+2*w,2)}, v10 offset:{36864+w*256}")
    a("s_waitcnt lgkmcnt(0)")
    for w in range(1, 9):
        a(f"v_add_f32 v{VW}, v{VW}, v{VW+2*w}")
        a(f"v_add_f32 v{VW+1}, v{VW+1}, v{VW+2*w+1}")
    a(f"v_lshlrev_b32 v9, 5, v9")
    a("s_lshl_b32 s26, s24, 10        ; 32 tokens * 32 B")
    a("s_lshl_b32 s40, s23, 3")
    a("s_add_u32 s26, s26, s40")
    a(f"v_cmp_gt_u32 vcc, 32, v{VL}")
    a("s_and_saveexec_b64 s[40:41], vcc")
    a(f"buffer_store_dwordx2 {vr(VW,2)}, v9, s[12:15], s26 offen" + (" sc0 sc1" if chain else ""))
    if chain: a("s_mov_b64 exec, s[40:41]")
    a.label(f"{tag}_done")
    if not chain:
        a("s_endpgm")
        return
    if TAGS: return
    a("s_waitcnt vmcnt(0)")
    a(f"v_mov_b32 v6, {chain}")
    a("v_mov_b32 v7, 1")
    a("s_mov_b64 exec, 1")
    a("ds_add_rtn_u32 v8, v6, v7")
    a("s_waitcnt lgkmcnt(0)")
    a("v_readfirstlane_b32 s26, v8")
    a("s_mov_b32 s58, 0")
    a(f"s_cmp_lg_u32 s26, 8\ns_cbranch_scc1 {tag}_nosig")
    a("s_lshr_b32 s26, s24, 1")
    a(f"s_add_u32 s26, s26, {C_X1}")
    a("s_lshl_b32 s26, s26, 9")
    a("v_mov_b32 v6, s26")
    a("buffer_atomic_add v7, v6, s[52:55], 0 offen sc1")
    a("s_mov_b32 s58, 1")
    a.label(f"{tag}_nosig")
    a("s_mov_b64 exec, -1")

def gen_k4():
    a = Asm()
    a("s_cmp_ge_u32 s2, 256\ns_cbranch_scc1 k4_exit")
    load_ptr(a, 20, KA_WS)
    wave_id(a, 22, 1)
    a("s_and_b32 s25, s2, 7")
    a("s_lshr_b32 s26, s2, 3")
    a("s_lshr_b32 s24, s25, 1")
    a("s_lshl_b32 s24, s24, 4")
    a("s_lshr_b32 s27, s26, 1")
    a("s_add_u32 s24, s24, s27        ; tg")
    a("s_and_b32 s23, s25, 1")
    a("s_lshl_b32 s23, s23, 1")
    a("s_and_b32 s27, s26, 1")
    a("s_add_u32 s23, s23, s27        ; ng")
    oproj(a, "k4", False)
    a.label("k4_exit")
    return kernel("k4_oproj_kernel", a, vgpr=144, sgpr=64), (256, 576, 36864+2304)
```

```python
from common import *
from k6 import reduce_loads, reduce_main
import os
MERGE6 = os.environ.get('MERGE6', '1') == '1'
L5_X=0; L5_H=73728
K5_LDS = 147456 + 64 + 1536
L5_CNT = 147456
L5_STAT = 147456 + 64
NLOG2E=0xbfb8aa3b
K5_A = int(os.environ.get('K5_A', '2'))
def gen_k5():
    a = Asm()
    a("s_cmp_ge_u32 s2, 256\ns_cbranch_scc1 k5_exit")
    load_ptr(a, 20, KA_WS)
    wave_id(a, 22, 1)
    ffn(a, False)
    return kernel("k5_ffn_kernel", a, vgpr=168, sgpr=64), (256, 768, K5_LDS)

def ffn(a, chained):
    XF = (" " + ENV("XLD", "sc1")) if chained else ""
    WF = "sc1" if chained else ENV('K5WF', '')
    VL=1; VTOK=2; VG=3; VL16=4
    a(f"v_and_b32 v{VL}, 63, v0")
    a(f"v_and_b32 v{VTOK}, 15, v{VL}")
    a(f"v_lshrrev_b32 v{VG}, 4, v{VL}")
    a(f"v_lshlrev_b32 v{VL16}, 4, v{VL}")
    A = K5_A; lgA = {1: 0, 2: 1, 4: 2, 8: 3}[A]
    a("s_and_b32 s25, s2, 7")
    a("s_lshr_b32 s26, s2, 3")
    a(f"s_and_b32 s23, s25, {8//A - 1}")
    a(f"s_lshl_b32 s23, s23, {lgA}")
    a(f"s_and_b32 s27, s26, {A-1}")
    a("s_add_u32 s23, s23, s27        ; slice")
    a(f"s_lshr_b32 s24, s25, {3-lgA}")
    a(f"s_lshl_b32 s24, s24, {5-lgA}")
    a(f"s_lshr_b32 s26, s26, {lgA}")
    a("s_add_u32 s24, s24, s26        ; rb")
    sdiv(a, 26, 22, 3, 27, 25)
    a("s_waitcnt lgkmcnt(0)")
    WBASE = WS_W13
    srd(a, 8, 20, SZ_X1F, WS_X1F); srd(a, 12, 20, 4608, WS_MOD+3*2304)
    srd(a, 16, 20, WS_W2 + SZ_W2 - WBASE, WBASE); srd(a, 44, 20, SZ_PART, WS_PART); srd(a, 48, 20, SZ_STP, WS_STP)
    VACC=8
    VW=104
    VX=152
    AX=5; AH=6
    XP=VACC
    PRE = chained and TAGS and MTPRE and XMODE in ("stp", "late")
    MT = 144 if PRE else XP+24
    ST=XP+32
    if not PRE:
        a(f"s_mul_i32 s28, s27, 768")
        a(f"buffer_load_dwordx4 {vr(MT)}, v{VL16}, s[12:15], s28 offen")
        a(f"s_add_u32 s28, s28, 2304")
        a(f"buffer_load_dwordx4 {vr(MT+4)}, v{VL16}, s[12:15], s28 offen")
    a(f"s_mul_i32 s40, s23, {SZ_W13S}")
    a("s_mul_i32 s29, s22, 110592")
    a("s_add_u32 s40, s40, s29")
    a(f"s_mul_i32 s41, s23, {SZ_W2S}")
    a("s_mul_i32 s29, s22, 55296")
    a("s_add_u32 s41, s41, s29")
    a(f"s_add_u32 s41, s41, {WS_W2-WBASE:#x}")
    a(f"v_add_u32 v7, 4096, v{VL16}")
    def wload(slot, f, s):
        r = VW + 24*slot + 4*f
        if f < 4: a(f"buffer_load_dwordx4 {vr(r)}, v{VL16}, s[16:19], {s} offen offset:{f*1024} " + WF)
        else:     a(f"buffer_load_dwordx4 {vr(r)}, v7, s[16:19], {s} offen offset:{(f-4)*1024} " + WF)
    def stloads():
        a(f"s_lshl_b32 s28, s24, 6")
        a(f"s_lshl_b32 s29, s26, 4")
        a(f"s_add_u32 s28, s28, s29")
        a(f"s_lshl_b32 s28, s28, 5")
        a(f"v_lshlrev_b32 v{AX}, 5, v{VTOK}")
        a(f"buffer_load_dwordx4 {vr(ST)}, v{AX}, s[48:51], s28 offen" + XF)
        a(f"buffer_load_dwordx4 {vr(ST+4)}, v{AX}, s[48:51], s28 offen offset:16" + XF)
    def frloads():
        a("s_mul_i32 s28, s24, 73728")
        a(f"s_mul_i32 s29, s27, {6*4096}")
        a("s_add_u32 s28, s28, s29")
        a("s_lshl_b32 s29, s26, 10")
        a("s_add_u32 s28, s28, s29")
        for i in range(6):
            a(f"buffer_load_dwordx4 {vr(XP+4*i)}, v{VL16}, s[8:11], s28 offen" + XF)
            if i < 5: a("s_add_u32 s28, s28, 4096")
    def xloads():
        stloads(); frloads()
    def modstage():
        a("s_lshl_b32 s30, s22, 11")
        a(f"s_add_u32 s30, s30, {L5_H}")
        a(f"v_add_u32 v{AH}, s30, v{VL16}")
        if MERGE6:
            a(f"v_mov_b32 v{AX}, {L5_CNT}")
            a(f"v_mov_b32 v{VX}, 0")
            for o in range(0, 52, 4): a(f"ds_write_b32 v{AX}, v{VX} offset:{o}")
    EARLYW = chained
    if EARLYW and TAGS and XMODE in ("stp", "late"):
        def w01():
            for f in range(6): wload(0, f, "s40")
            a("s_add_u32 s40, s40, 6144")
            for f in range(6): wload(1, f, "s40")
            a("s_add_u32 s40, s40, 6144")
        if XMODE == "stp": w01()
        modstage()
        a("s_waitcnt vmcnt(%d)" % (12 if XMODE == "stp" else 0))
        a(f"ds_write_b128 v{AH}, {vr(MT)}")
        a(f"ds_write_b128 v{AH}, {vr(MT+4)} offset:1024")
        a("s_barrier")
        a.stamp(6)
        a("s_mov_b32 s57, 20000")
        a.label("k5_in_retry")
        xloads()
        a("s_waitcnt vmcnt(0)")
        any_poison(a, list(range(XP, XP+24)) + list(range(ST, ST+8)), VX)
        a("s_sub_u32 s57, s57, 1")
        a("s_cmp_eq_u32 s57, 0\ns_cbranch_scc1 k5_in_got")
        a("s_cmp_lg_u64 vcc, 0\ns_cbranch_scc1 k5_in_retry")
        a.label("k5_in_got")
    elif EARLYW and TAGS:
        for f in range(6): wload(0, f, "s40")
        a("s_add_u32 s40, s40, 6144")
        frloads()
        for f in range(6): wload(1, f, "s40")
        a("s_add_u32 s40, s40, 6144")
        modstage()
        a("s_waitcnt vmcnt(6)")
        any_poison(a, list(range(XP, XP+24)), VX)
        a("s_cmp_eq_u64 vcc, 0\ns_cbranch_scc1 k5_in_got")
        a("s_mov_b32 s57, 20000")
        a.label("k5_in_retry")
        frloads()
        a("s_waitcnt vmcnt(0)")
        any_poison(a, list(range(XP, XP+24)), VX)
        a("s_sub_u32 s57, s57, 1")
        a("s_cmp_eq_u32 s57, 0\ns_cbranch_scc1 k5_in_got")
        a("s_cmp_lg_u64 vcc, 0\ns_cbranch_scc1 k5_in_retry")
        a.label("k5_in_got")
        a(f"ds_write_b128 v{AH}, {vr(MT)}")
        a(f"ds_write_b128 v{AH}, {vr(MT+4)} offset:1024")
        a("s_mov_b32 s29, 0x3f803f80")
        ln_stats(a, XP, 24, ST, ST+1, 29)
        xsum16_32(a, ST, ST+2); xsum16_32(a, ST+1, ST+2)
        a("s_lshl_b32 s28, s27, 6")
        a("s_lshl_b32 s29, s26, 4")
        a("s_add_u32 s28, s28, s29")
        a(f"v_add_u32 v{AX}, s28, v{VTOK}")
        a(f"v_lshlrev_b32 v{AX}, 3, v{AX}")
        a(f"v_add_u32 v{AX}, {L5_STAT}, v{AX}")
        a(f"ds_write_b64 v{AX}, {vr(ST,2)}")
        a("s_waitcnt lgkmcnt(0)")
        a("s_barrier")
        a.stamp(6)
        a(f"v_add_u32 v{AX}, s29, v{VTOK}")
        a(f"v_lshlrev_b32 v{AX}, 3, v{AX}")
        a(f"v_add_u32 v{AX}, {L5_STAT}, v{AX}")
        a(f"ds_read_b64 {vr(ST,2)}, v{AX}")
        a(f"ds_read_b64 {vr(ST+2,2)}, v{AX} offset:512")
        a(f"ds_read_b64 {vr(ST+4,2)}, v{AX} offset:1024")
        a(f"v_mov_b32 v{ST+6}, 0")
        a(f"v_mov_b32 v{ST+7}, 0")
        a("s_waitcnt lgkmcnt(0)")
    elif EARLYW:
        for f in range(6): wload(0, f, "s40")
        a("s_add_u32 s40, s40, 6144")
        for f in range(6): wload(1, f, "s40")
        a("s_add_u32 s40, s40, 6144")
        modstage()
        a("s_waitcnt vmcnt(12)")
        a(f"ds_write_b128 v{AH}, {vr(MT)}")
        a(f"ds_write_b128 v{AH}, {vr(MT+4)} offset:1024")
        srd(a, 52, 20, SZ_CNT, WS_CNT)
        a("s_cmp_eq_u32 s58, 0\ns_cbranch_scc1 k5_in_nopoll")
        a(f"s_add_u32 s28, s24, {C_X1}")
        a(f"s_lshl_b32 s28, s28, 9")
        a(f"v_mov_b32 v8, s28")
        a("s_mov_b32 s29, 20000")
        a.label("k5_in_poll")
        a("buffer_load_dword v9, v8, s[52:55], 0 offen sc0 sc1")
        a("s_waitcnt vmcnt(0)")
        a("v_readfirstlane_b32 s28, v9")
        a("s_sub_u32 s29, s29, 1")
        a("s_cmp_eq_u32 s29, 0\ns_cbranch_scc1 k5_in_nopoll")
        a("s_cmp_ge_u32 s28, 8\ns_cbranch_scc0 k5_in_poll")
        a.label("k5_in_nopoll")
        a("s_barrier")
        a.stamp(6)
        xloads()
        a("s_waitcnt vmcnt(6)")
    else:
        xloads()
        modstage()
        a("s_waitcnt vmcnt(8)")
        a(f"ds_write_b128 v{AH}, {vr(MT)}")
        a(f"ds_write_b128 v{AH}, {vr(MT+4)} offset:1024")
        a("s_waitcnt vmcnt(6)")
    VS=ST; VQ=ST+1; VR=XP+40; VSH=XP+42
    a(f"v_add_f32 v{VS}, v{ST}, v{ST+2}")
    a(f"v_add_f32 v{VQ}, v{ST+1}, v{ST+3}")
    a(f"v_add_f32 v{ST+4}, v{ST+4}, v{ST+6}")
    a(f"v_add_f32 v{ST+5}, v{ST+5}, v{ST+7}")
    a(f"v_add_f32 v{VS}, v{VS}, v{ST+4}")
    a(f"v_add_f32 v{VQ}, v{VQ}, v{ST+5}")
    ln_finish(a, VS, VQ, VR, VSH)
    a(f"v_mov_b32 v{VR+1}, v{VR}")
    a(f"v_mov_b32 v{VSH+1}, v{VSH}")
    VC=[XP+48, XP+64]; VSF=[XP+56, XP+72]; VTT=XP+80; VO=XP+88
    a(f"v_lshlrev_b32 v{AX}, 5, v{VG}")
    a(f"v_add_u32 v{AX}, s30, v{AX}")
    a(f"s_mul_i32 s28, s27, {6*4096}")
    a(f"s_lshl_b32 s29, s26, 10")
    a(f"s_add_u32 s28, s28, s29")
    a(f"v_add_u32 v{AH}, s28, v{VL16}")
    def modread(i):
        b = i & 1
        a(f"ds_read_b128 {vr(VSF[b])}, v{AX} offset:{i*128}")
        a(f"ds_read_b128 {vr(VSF[b]+4)}, v{AX} offset:{i*128 + 16}")
        a(f"ds_read_b128 {vr(VC[b])}, v{AX} offset:{1024 + i*128}")
        a(f"ds_read_b128 {vr(VC[b]+4)}, v{AX} offset:{1024 + i*128 + 16}")
    a("s_waitcnt lgkmcnt(0)")
    modread(0)
    nw = 0
    for i in range(6):
        if i < 5: modread(i+1)
        if chained and TAGS: a(f"s_waitcnt lgkmcnt({4 if i < 5 else 0})")
        else: a(f"s_waitcnt vmcnt({5-i+nw}) lgkmcnt({4 if i < 5 else 0})")
        chunk_unpack(a, XP+4*i, VTT); chunk_norm(a, VTT, VR); chunk_mod(a, VTT, VC[i&1], VSF[i&1]); chunk_pack(a, VTT, VO+4*(i&1))
        a(f"ds_write_b128 v{AH}, {vr(VO+4*(i&1))} offset:{i*4096}")
        if not EARLYW:
            wload(0, i, "s40"); nw += 1
        elif TAGS and XMODE == "late":
            for f in (2*i, 2*i+1):
                wload(f // 6, f % 6, "s40")
                if f == 5: a("s_add_u32 s40, s40, 6144")
            if i == 5: a("s_add_u32 s40, s40, 6144")
    if not EARLYW:
        a("s_add_u32 s40, s40, 6144")
        for f in range(6): wload(1, f, "s40")
        a("s_add_u32 s40, s40, 6144")
    a("s_waitcnt lgkmcnt(0)")
    a("s_barrier")
    a.stamp(7)
    a(f"v_mov_b32 v{AX}, v{VL16}")
    def xread(tb, off): a(f"ds_read_b128 {vr(VX+4*tb)}, v{AX} offset:{off + tb*1024}")
    def step1(slot, first, do_x, xoff, wsrc, vm):
        for tb in range(4):
            w = f"lgkmcnt({3 if (do_x or True) else 0})"
            if tb == 0: a(f"s_waitcnt vmcnt({vm}) lgkmcnt({do_x_prev[0][tb]})")
            else:       a(f"s_waitcnt lgkmcnt({do_x_prev[0][tb]})")
            for f in range(6):
                acc = VACC + (f*4+tb)*4
                a(f"v_mfma_f32_16x16x32_bf16 {vr(acc)}, {vr(VW+24*slot+4*f)}, {vr(VX+4*tb)}, {'0' if first else vr(acc)}")
                if tb == 3 and wsrc: wload(slot, f, wsrc)
            if do_x: xread(tb, xoff)
        if wsrc: a(f"s_add_u32 {wsrc}, {wsrc}, 6144")
    steady = [3,3,3,3]; drain = [3,2,1,0]
    do_x_prev = [steady]
    for tb in range(4): xread(tb, 0)
    step1(0, True, True, 4096, "s40", 6)
    a(f"v_add_u32 v{AX}, 8192, v{AX}               ; base -> X(2)")
    a("s_mov_b32 s42, 7")
    a.label("k5_loop1")
    step1(1, False, True, 0, "s40", 6)
    step1(0, False, True, 4096, "s40", 6)
    a(f"v_add_u32 v{AX}, 8192, v{AX}")
    a("s_sub_u32 s42, s42, 1\ns_cmp_lg_u32 s42, 0\ns_cbranch_scc1 k5_loop1")
    step1(1, False, True, 0, "s40", 6)
    step1(0, False, True, 4096, "s41", 6)
    do_x_prev[0] = drain
    step1(1, False, False, 0, "s41", 6)
    a.stamp(8)
    T=VX
    a("s_mul_i32 s28, s22, 3")
    for uu in range(3):
        a(f"s_add_u32 s29, s28, {uu}")
        a("s_lshr_b32 s25, s29, 1")
        a("s_lshl_b32 s25, s25, 12")
        a("s_and_b32 s29, s29, 1")
        a("s_lshl_b32 s29, s29, 3")
        a("s_add_u32 s25, s25, s29")
        a(f"s_add_u32 s25, s25, {L5_H}")
        a(f"v_add_u32 v{AH}, s25, v{VL16}")
        for tb in range(4):
            g = VACC + ((2*uu)*4+tb)*4; u = VACC + ((2*uu+1)*4+tb)*4
            for j in range(4): a(f"v_mul_f32 v{T+j}, {NLOG2E:#x}, v{g+j}")
            for j in range(4): a(f"v_exp_f32 v{T+j}, v{T+j}")
            for j in range(4): a(f"v_mul_f32 v{g+j}, v{g+j}, v{u+j}")
            for j in range(4): a(f"v_add_f32 v{T+j}, 1.0, v{T+j}")
            for j in range(4): a(f"v_rcp_f32 v{T+j}, v{T+j}")
            a("s_nop 0")
            for j in range(4): a(f"v_mul_f32 v{g+j}, v{g+j}, v{T+j}")
            o = T+4+2*(tb&1)
            a(f"v_cvt_pk_bf16_f32 v{o}, v{g}, v{g+1}")
            a(f"v_cvt_pk_bf16_f32 v{o+1}, v{g+2}, v{g+3}")
            a(f"ds_write_b64 v{AH}, {vr(o,2)} offset:{tb*1024}")
    HCLS = ENV("HCLS", "1") == "1" and MERGE6
    a("s_waitcnt lgkmcnt(0)")
    TC = VACC + 48
    if HCLS:
        a("s_lshr_b32 s28, s22, 2\ns_lshl_b32 s28, s28, 2")
        a(f"s_add_u32 s28, s28, {L5_CNT + 4}")
        a("s_mov_b64 exec, 1")
        a(f"v_mov_b32 v{AH}, s28\nv_mov_b32 v{TC}, 1")
        a(f"ds_add_u32 v{AH}, v{TC}")
        a("s_mov_b64 exec, -1")
        a(f"v_mov_b32 v{AH}, {L5_CNT}")
    else:
        a("s_barrier")
    def wait_class(c):
        if not HCLS: return
        a.label(f"k5_hw{c}")
        a(f"ds_read_b32 v{TC}, v{AH} offset:{4+4*c}")
        a("s_waitcnt lgkmcnt(0)")
        a(f"v_readfirstlane_b32 s28, v{TC}")
        a(f"s_cmp_ge_u32 s28, 4\ns_cbranch_scc0 k5_hw{c}")
    wait_class(0)
    a.stamp(9)
    G2P = ENV("G2PRIO", "1") == "1"
    if G2P: a("s_setprio 1")
    a(f"v_add_u32 v{AX}, {L5_H}, v{VL16}")
    def w2load(rs, uu):
        a(f"buffer_load_dwordx4 {vr(VW+12*rs+4*uu)}, v{VL16}, s[16:19], s41 offen offset:{uu*1024} " + WF)
    def step2(rs, first, do_x, xoff, reload, vm, lg):
        for tb in range(4):
            if tb == 0: a(f"s_waitcnt vmcnt({vm}) lgkmcnt({lg[tb]})")
            else:       a(f"s_waitcnt lgkmcnt({lg[tb]})")
            for uu in range(3):
                acc = VACC + (uu*4+tb)*4
                a(f"v_mfma_f32_16x16x32_bf16 {vr(acc)}, {vr(VW+12*rs+4*uu)}, {vr(VX+4*tb)}, {'0' if first else vr(acc)}")
                if tb == 3 and reload: w2load(rs, uu)
            if do_x: xread(tb, xoff)
        if reload: a("s_add_u32 s41, s41, 3072")
    for tb in range(4): xread(tb, 0)
    if HCLS:
        for p in range(18):
            if p in (5, 11): wait_class((p+1)//6)
            vm = 3*min(3, 17-p)
            step2(p & 3, p == 0, p < 17, 4096 if p % 2 == 0 else 0, p + 4 <= 17, vm, steady if p < 17 else drain)
            if p % 2 == 0 and p < 16: a(f"v_add_u32 v{AX}, 8192, v{AX}")
    else:
        step2(0, True, True, 4096, True, 9, steady)
        a(f"v_add_u32 v{AX}, 8192, v{AX}")
        step2(1, False, True, 0, True, 9, steady)
        a("s_mov_b32 s42, 3")
        a.label("k5_loop2")
        step2(2, False, True, 4096, True, 9, steady)
        a(f"v_add_u32 v{AX}, 8192, v{AX}")
        step2(3, False, True, 0, True, 9, steady)
        step2(0, False, True, 4096, True, 9, steady)
        a(f"v_add_u32 v{AX}, 8192, v{AX}")
        step2(1, False, True, 0, True, 9, steady)
        a("s_sub_u32 s42, s42, 1\ns_cmp_lg_u32 s42, 0\ns_cbranch_scc1 k5_loop2")
        step2(2, False, True, 4096, False, 9, steady)
        a(f"v_add_u32 v{AX}, 8192, v{AX}")
        step2(3, False, True, 0, False, 6, steady)
        step2(0, False, True, 4096, False, 3, steady)
        step2(1, False, False, 0, False, 0, drain)
    if G2P: a("s_setprio 0")
    a.stamp(10)
    a(f"s_mul_i32 s28, s23, {SZ_PARTS}")
    a("s_mul_i32 s29, s24, 73728")
    a("s_add_u32 s28, s28, s29")
    a("s_mul_i32 s29, s22, 6144")
    a("s_add_u32 s28, s28, s29")
    for q in range(6):
        uu = q >> 1; h = q & 1
        o = VW + 4*q
        for k in range(2):
            acc = VACC + (uu*4 + 2*h + k)*4
            a(f"v_cvt_pk_bf16_f32 v{o+2*k}, v{acc}, v{acc+1}")
            a(f"v_cvt_pk_bf16_f32 v{o+2*k+1}, v{acc+2}, v{acc+3}")
        if q < 4: a(f"buffer_store_dwordx4 {vr(o)}, v{VL16}, s[44:47], s28 offen offset:{q*1024} " + SC("K5SC", "1"))
        else:     a(f"buffer_store_dwordx4 {vr(o)}, v7, s[44:47], s28 offen offset:{(q-4)*1024} " + SC("K5SC", "1"))
    if MERGE6 and ENV("STAGED", "1") == "1":
        RC = L5_CNT + 16; RF = L5_CNT + 28; RS = L5_CNT + 40
        load_ptr(a, 4, KA_OUT)
        a("s_waitcnt vmcnt(0) lgkmcnt(0)")
        a.stamp(11)
        srd(a, 52, 20, SZ_CNT, WS_CNT)
        srd(a, 8, 20, SZ_PART, WS_PART); srd(a, 12, 20, SZ_X1F, WS_X1F); srd(a, 16, 20, 2304, WS_MOD+5*2304); srd(a, 48, 4, SZ_X)
        a("s_lshr_b32 s30, s22, 2         ; class")
        a("s_lshl_b32 s42, s30, 2")
        a(f"s_add_u32 s57, s42, {RC}")
        a("v_mov_b32 v25, s57")
        a("v_mov_b32 v7, 1")
        a("s_mov_b64 exec, 1")
        a("ds_add_rtn_u32 v8, v25, v7")
        a("s_waitcnt lgkmcnt(0)")
        a("v_readfirstlane_b32 s26, v8")
        a("s_mul_i32 s28, s24, 3")
        a("s_add_u32 s28, s28, s30")
        a(f"s_add_u32 s28, s28, {C_RED3}")
        a("s_lshl_b32 s28, s28, 9")
        a("v_mov_b32 v6, s28")
        a("s_cmp_lg_u32 s26, 3\ns_cbranch_scc1 k5_nosig")
        a("buffer_atomic_add v7, v6, s[52:55], 0 offen sc1")
        a.label("k5_nosig")
        a("s_mov_b64 exec, -1")
        a("v_mov_b32 v23, s28")
        a("s_and_b32 s29, s22, 3")
        a("s_cmp_eq_u32 s29, 3\ns_cbranch_scc1 k5_noload")
        reduce_loads(a, True, staged=True)
        a.label("k5_noload")
        a("s_cmp_lg_u32 s26, 3\ns_cbranch_scc1 k5_waitgo")
        a("s_mov_b32 s29, 20000")
        a.label("k5_poll")
        a("buffer_load_dword v24, v23, s[52:55], 0 offen sc0 sc1")
        a("s_waitcnt vmcnt(0)")
        a("v_readfirstlane_b32 s25, v24")
        a("s_sub_u32 s29, s29, 1")
        a("s_cmp_eq_u32 s29, 0\ns_cbranch_scc1 k5_release")
        a("s_cmp_ge_u32 s25, 8\ns_cbranch_scc0 k5_poll")
        a.label("k5_release")
        a(f"v_add_u32 v24, {RF-RC}, v25")
        a("v_mov_b32 v26, 1")
        a("ds_write_b32 v24, v26")
        a("s_waitcnt lgkmcnt(0)")
        a.label("k5_waitgo")
        a("s_and_b32 s29, s22, 3")
        a("s_cmp_eq_u32 s29, 3\ns_cbranch_scc1 k5_exit")
        a.label("k5_go")
        a(f"ds_read_b32 v24, v25 offset:{RF-RC}")
        a("s_waitcnt lgkmcnt(0)")
        a("v_readfirstlane_b32 s25, v24")
        a("s_cmp_eq_u32 s25, 0\ns_cbranch_scc1 k5_go")
        a.stamp(12)
        def sync3():
            a("v_mov_b32 v26, 1")
            a("s_mov_b64 exec, 1")
            a(f"ds_add_u32 v25, v26 offset:{RS-RC}")
            a("s_mov_b64 exec, -1")
            a.label("k5_sc")
            a(f"ds_read_b32 v24, v25 offset:{RS-RC}")
            a("s_waitcnt lgkmcnt(0)")
            a("v_readfirstlane_b32 s25, v24")
            a("s_cmp_ge_u32 s25, 3\ns_cbranch_scc0 k5_sc")
        reduce_main(a, True, sync=sync3)
    elif MERGE6:
        load_ptr(a, 4, KA_OUT)
        a("s_waitcnt vmcnt(0) lgkmcnt(0)")
        if ENV("ST2", "0") != "1": a.stamp(11)
        srd(a, 52, 20, SZ_CNT, WS_CNT)
        srd(a, 8, 20, SZ_PART, WS_PART); srd(a, 12, 20, SZ_X1F, WS_X1F); srd(a, 16, 20, 2304, WS_MOD+5*2304); srd(a, 48, 4, SZ_X)
        a(f"v_mov_b32 v6, {L5_CNT}")
        a("v_mov_b32 v7, 1")
        a("s_mov_b64 exec, 1")
        a("ds_add_rtn_u32 v8, v6, v7")
        a("s_waitcnt lgkmcnt(0)")
        a("v_readfirstlane_b32 s26, v8")
        a(f"s_add_u32 s28, s24, {C_RED}")
        a("s_lshl_b32 s28, s28, 9")
        a("v_mov_b32 v6, s28")
        a("s_cmp_lg_u32 s26, 11\ns_cbranch_scc1 k5_nosig")
        a("buffer_atomic_add v7, v6, s[52:55], 0 offen sc1")
        a.label("k5_nosig")
        a("s_mov_b64 exec, -1")
        a("v_mov_b32 v23, s28")
        a("s_cmp_ge_u32 s22, 9\ns_cbranch_scc1 k5_noload")
        reduce_loads(a, True)
        a.label("k5_noload")
        a("s_cmp_lg_u32 s26, 11\ns_cbranch_scc1 k5_nopoll")
        a("s_mov_b32 s29, 20000")
        a.label("k5_poll")
        a("buffer_load_dword v24, v23, s[52:55], 0 offen sc0 sc1")
        a("s_waitcnt vmcnt(0)")
        a("v_readfirstlane_b32 s25, v24")
        a("s_sub_u32 s29, s29, 1")
        a("s_cmp_eq_u32 s29, 0\ns_cbranch_scc1 k5_nopoll")
        a("s_cmp_ge_u32 s25, 8\ns_cbranch_scc0 k5_poll")
        a.label("k5_nopoll")
        a("s_barrier")
        if ENV("ST2", "0") != "1": a.stamp(12)
        a("s_cmp_ge_u32 s22, 9\ns_cbranch_scc1 k5_exit")
        reduce_main(a, True)
    a.label("k5_exit")
```

```python
from common import *
from k6 import reduce_loads, reduce_main
import os
MERGE6 = os.environ.get('MERGE6', '1') == '1'
L5_X=0; L5_H=73728
K5_LDS = 147456 + 64 + 1536
L5_CNT = 147456
L5_STAT = 147456 + 64
NLOG2E=0xbfb8aa3b
K5_A = int(os.environ.get('K5_A', '2'))
def gen_k5():
    a = Asm()
    a("s_cmp_ge_u32 s2, 256\ns_cbranch_scc1 k5_exit")
    load_ptr(a, 20, KA_WS)
    wave_id(a, 22, 1)
    ffn(a, False)
    return kernel("k5_ffn_kernel", a, vgpr=168, sgpr=64), (256, 768, K5_LDS)

def ffn(a, chained):
    XF = (" " + ENV("XLD", "sc1")) if chained else ""
    WF = "sc1" if chained else ENV('K5WF', '')
    VL=1; VTOK=2; VG=3; VL16=4
    a(f"v_and_b32 v{VL}, 63, v0")
    a(f"v_and_b32 v{VTOK}, 15, v{VL}")
    a(f"v_lshrrev_b32 v{VG}, 4, v{VL}")
    a(f"v_lshlrev_b32 v{VL16}, 4, v{VL}")
    A = K5_A; lgA = {1: 0, 2: 1, 4: 2, 8: 3}[A]
    a("s_and_b32 s25, s2, 7")
    a("s_lshr_b32 s26, s2, 3")
    a(f"s_and_b32 s23, s25, {8//A - 1}")
    a(f"s_lshl_b32 s23, s23, {lgA}")
    a(f"s_and_b32 s27, s26, {A-1}")
    a("s_add_u32 s23, s23, s27        ; slice")
    a(f"s_lshr_b32 s24, s25, {3-lgA}")
    a(f"s_lshl_b32 s24, s24, {5-lgA}")
    a(f"s_lshr_b32 s26, s26, {lgA}")
    a("s_add_u32 s24, s24, s26        ; rb")
    sdiv(a, 26, 22, 3, 27, 25)
    a("s_waitcnt lgkmcnt(0)")
    WBASE = WS_W13
    srd(a, 8, 20, SZ_X1F, WS_X1F); srd(a, 12, 20, 4608, WS_MOD+3*2304)
    srd(a, 16, 20, WS_W2 + SZ_W2 - WBASE, WBASE); srd(a, 44, 20, SZ_PART, WS_PART); srd(a, 48, 20, SZ_STP, WS_STP)
    VACC=8
    VW=104
    VX=152
    AX=5; AH=6
    XP=VACC
    PRE = chained and TAGS and MTPRE and XMODE in ("stp", "late")
    MT = 144 if PRE else XP+24
    ST=XP+32
    if not PRE:
        a(f"s_mul_i32 s28, s27, 768")
        a(f"buffer_load_dwordx4 {vr(MT)}, v{VL16}, s[12:15], s28 offen")
        a(f"s_add_u32 s28, s28, 2304")
        a(f"buffer_load_dwordx4 {vr(MT+4)}, v{VL16}, s[12:15], s28 offen")
    a(f"s_mul_i32 s40, s23, {SZ_W13S}")
    a("s_mul_i32 s29, s22, 110592")
    a("s_add_u32 s40, s40, s29")
    a(f"s_mul_i32 s41, s23, {SZ_W2S}")
    a("s_mul_i32 s29, s22, 55296")
    a("s_add_u32 s41, s41, s29")
    a(f"s_add_u32 s41, s41, {WS_W2-WBASE:#x}")
    a(f"v_add_u32 v7, 4096, v{VL16}")
    def wload(slot, f, s):
        r = VW + 24*slot + 4*f
        if f < 4: a(f"buffer_load_dwordx4 {vr(r)}, v{VL16}, s[16:19], {s} offen offset:{f*1024} " + WF)
        else:     a(f"buffer_load_dwordx4 {vr(r)}, v7, s[16:19], {s} offen offset:{(f-4)*1024} " + WF)
    def stloads():
        a(f"s_lshl_b32 s28, s24, 6")
        a(f"s_lshl_b32 s29, s26, 4")
        a(f"s_add_u32 s28, s28, s29")
        a(f"s_lshl_b32 s28, s28, 5")
        a(f"v_lshlrev_b32 v{AX}, 5, v{VTOK}")
        a(f"buffer_load_dwordx4 {vr(ST)}, v{AX}, s[48:51], s28 offen" + XF)
        a(f"buffer_load_dwordx4 {vr(ST+4)}, v{AX}, s[48:51], s28 offen offset:16" + XF)
    def frloads():
        a("s_mul_i32 s28, s24, 73728")
        a(f"s_mul_i32 s29, s27, {6*4096}")
        a("s_add_u32 s28, s28, s29")
        a("s_lshl_b32 s29, s26, 10")
        a("s_add_u32 s28, s28, s29")
        for i in range(6):
            a(f"buffer_load_dwordx4 {vr(XP+4*i)}, v{VL16}, s[8:11], s28 offen" + XF)
            if i < 5: a("s_add_u32 s28, s28, 4096")
    def xloads():
        stloads(); frloads()
    def modstage():
        a("s_lshl_b32 s30, s22, 11")
        a(f"s_add_u32 s30, s30, {L5_H}")
        a(f"v_add_u32 v{AH}, s30, v{VL16}")
        if MERGE6:
            a(f"v_mov_b32 v{AX}, {L5_CNT}")
            a(f"v_mov_b32 v{VX}, 0")
            for o in range(0, 52, 4): a(f"ds_write_b32 v{AX}, v{VX} offset:{o}")
    EARLYW = chained
    if EARLYW and TAGS and XMODE in ("stp", "late"):
        def w01():
            for f in range(6): wload(0, f, "s40")
            a("s_add_u32 s40, s40, 6144")
            for f in range(6): wload(1, f, "s40")
            a("s_add_u32 s40, s40, 6144")
        if XMODE == "stp": w01()
        modstage()
        a("s_waitcnt vmcnt(%d)" % (12 if XMODE == "stp" else 0))
        a(f"ds_write_b128 v{AH}, {vr(MT)}")
        a(f"ds_write_b128 v{AH}, {vr(MT+4)} offset:1024")
        a("s_barrier")
        a.stamp(6)
        a("s_mov_b32 s57, 20000")
        a.label("k5_in_retry")
        xloads()
        a("s_waitcnt vmcnt(0)")
        any_poison(a, list(range(XP, XP+24)) + list(range(ST, ST+8)), VX)
        a("s_sub_u32 s57, s57, 1")
        a("s_cmp_eq_u32 s57, 0\ns_cbranch_scc1 k5_in_got")
        a("s_cmp_lg_u64 vcc, 0\ns_cbranch_scc1 k5_in_retry")
        a.label("k5_in_got")
    elif EARLYW and TAGS:
        for f in range(6): wload(0, f, "s40")
        a("s_add_u32 s40, s40, 6144")
        frloads()
        for f in range(6): wload(1, f, "s40")
        a("s_add_u32 s40, s40, 6144")
        modstage()
        a("s_waitcnt vmcnt(6)")
        any_poison(a, list(range(XP, XP+24)), VX)
        a("s_cmp_eq_u64 vcc, 0\ns_cbranch_scc1 k5_in_got")
        a("s_mov_b32 s57, 20000")
        a.label("k5_in_retry")
        frloads()
        a("s_waitcnt vmcnt(0)")
        any_poison(a, list(range(XP, XP+24)), VX)
        a("s_sub_u32 s57, s57, 1")
        a("s_cmp_eq_u32 s57, 0\ns_cbranch_scc1 k5_in_got")
        a("s_cmp_lg_u64 vcc, 0\ns_cbranch_scc1 k5_in_retry")
        a.label("k5_in_got")
        a(f"ds_write_b128 v{AH}, {vr(MT)}")
        a(f"ds_write_b128 v{AH}, {vr(MT+4)} offset:1024")
        a("s_mov_b32 s29, 0x3f803f80")
        ln_stats(a, XP, 24, ST, ST+1, 29)
        xsum16_32(a, ST, ST+2); xsum16_32(a, ST+1, ST+2)
        a("s_lshl_b32 s28, s27, 6")
        a("s_lshl_b32 s29, s26, 4")
        a("s_add_u32 s28, s28, s29")
        a(f"v_add_u32 v{AX}, s28, v{VTOK}")
        a(f"v_lshlrev_b32 v{AX}, 3, v{AX}")
        a(f"v_add_u32 v{AX}, {L5_STAT}, v{AX}")
        a(f"ds_write_b64 v{AX}, {vr(ST,2)}")
        a("s_waitcnt lgkmcnt(0)")
        a("s_barrier")
        a.stamp(6)
        a(f"v_add_u32 v{AX}, s29, v{VTOK}")
        a(f"v_lshlrev_b32 v{AX}, 3, v{AX}")
        a(f"v_add_u32 v{AX}, {L5_STAT}, v{AX}")
        a(f"ds_read_b64 {vr(ST,2)}, v{AX}")
        a(f"ds_read_b64 {vr(ST+2,2)}, v{AX} offset:512")
        a(f"ds_read_b64 {vr(ST+4,2)}, v{AX} offset:1024")
        a(f"v_mov_b32 v{ST+6}, 0")
        a(f"v_mov_b32 v{ST+7}, 0")
        a("s_waitcnt lgkmcnt(0)")
    elif EARLYW:
        for f in range(6): wload(0, f, "s40")
        a("s_add_u32 s40, s40, 6144")
        for f in range(6): wload(1, f, "s40")
        a("s_add_u32 s40, s40, 6144")
        modstage()
        a("s_waitcnt vmcnt(12)")
        a(f"ds_write_b128 v{AH}, {vr(MT)}")
        a(f"ds_write_b128 v{AH}, {vr(MT+4)} offset:1024")
        srd(a, 52, 20, SZ_CNT, WS_CNT)
        a("s_cmp_eq_u32 s58, 0\ns_cbranch_scc1 k5_in_nopoll")
        a(f"s_add_u32 s28, s24, {C_X1}")
        a(f"s_lshl_b32 s28, s28, 9")
        a(f"v_mov_b32 v8, s28")
        a("s_mov_b32 s29, 20000")
        a.label("k5_in_poll")
        a("buffer_load_dword v9, v8, s[52:55], 0 offen sc0 sc1")
        a("s_waitcnt vmcnt(0)")
        a("v_readfirstlane_b32 s28, v9")
        a("s_sub_u32 s29, s29, 1")
        a("s_cmp_eq_u32 s29, 0\ns_cbranch_scc1 k5_in_nopoll")
        a("s_cmp_ge_u32 s28, 8\ns_cbranch_scc0 k5_in_poll")
        a.label("k5_in_nopoll")
        a("s_barrier")
        a.stamp(6)
        xloads()
        a("s_waitcnt vmcnt(6)")
    else:
        xloads()
        modstage()
        a("s_waitcnt vmcnt(8)")
        a(f"ds_write_b128 v{AH}, {vr(MT)}")
        a(f"ds_write_b128 v{AH}, {vr(MT+4)} offset:1024")
        a("s_waitcnt vmcnt(6)")
    VS=ST; VQ=ST+1; VR=XP+40; VSH=XP+42
    a(f"v_add_f32 v{VS}, v{ST}, v{ST+2}")
    a(f"v_add_f32 v{VQ}, v{ST+1}, v{ST+3}")
    a(f"v_add_f32 v{ST+4}, v{ST+4}, v{ST+6}")
    a(f"v_add_f32 v{ST+5}, v{ST+5}, v{ST+7}")
    a(f"v_add_f32 v{VS}, v{VS}, v{ST+4}")
    a(f"v_add_f32 v{VQ}, v{VQ}, v{ST+5}")
    ln_finish(a, VS, VQ, VR, VSH)
    a(f"v_mov_b32 v{VR+1}, v{VR}")
    a(f"v_mov_b32 v{VSH+1}, v{VSH}")
    VC=[XP+48, XP+64]; VSF=[XP+56, XP+72]; VTT=XP+80; VO=XP+88
    a(f"v_lshlrev_b32 v{AX}, 5, v{VG}")
    a(f"v_add_u32 v{AX}, s30, v{AX}")
    a(f"s_mul_i32 s28, s27, {6*4096}")
    a(f"s_lshl_b32 s29, s26, 10")
    a(f"s_add_u32 s28, s28, s29")
    a(f"v_add_u32 v{AH}, s28, v{VL16}")
    def modread(i):
        b = i & 1
        a(f"ds_read_b128 {vr(VSF[b])}, v{AX} offset:{i*128}")
        a(f"ds_read_b128 {vr(VSF[b]+4)}, v{AX} offset:{i*128 + 16}")
        a(f"ds_read_b128 {vr(VC[b])}, v{AX} offset:{1024 + i*128}")
        a(f"ds_read_b128 {vr(VC[b]+4)}, v{AX} offset:{1024 + i*128 + 16}")
    a("s_waitcnt lgkmcnt(0)")
    modread(0)
    nw = 0
    for i in range(6):
        if i < 5: modread(i+1)
        if chained and TAGS: a(f"s_waitcnt lgkmcnt({4 if i < 5 else 0})")
        else: a(f"s_waitcnt vmcnt({5-i+nw}) lgkmcnt({4 if i < 5 else 0})")
        chunk_unpack(a, XP+4*i, VTT); chunk_norm(a, VTT, VR); chunk_mod(a, VTT, VC[i&1], VSF[i&1]); chunk_pack(a, VTT, VO+4*(i&1))
        a(f"ds_write_b128 v{AH}, {vr(VO+4*(i&1))} offset:{i*4096}")
        if not EARLYW:
            wload(0, i, "s40"); nw += 1
        elif TAGS and XMODE == "late":
            for f in (2*i, 2*i+1):
                wload(f // 6, f % 6, "s40")
                if f == 5: a("s_add_u32 s40, s40, 6144")
            if i == 5: a("s_add_u32 s40, s40, 6144")
    if not EARLYW:
        a("s_add_u32 s40, s40, 6144")
        for f in range(6): wload(1, f, "s40")
        a("s_add_u32 s40, s40, 6144")
    a("s_waitcnt lgkmcnt(0)")
    a("s_barrier")
    a.stamp(7)
    a(f"v_mov_b32 v{AX}, v{VL16}")
    def xread(tb, off): a(f"ds_read_b128 {vr(VX+4*tb)}, v{AX} offset:{off + tb*1024}")
    def step1(slot, first, do_x, xoff, wsrc, vm):
        for tb in range(4):
            w = f"lgkmcnt({3 if (do_x or True) else 0})"
            if tb == 0: a(f"s_waitcnt vmcnt({vm}) lgkmcnt({do_x_prev[0][tb]})")
            else:       a(f"s_waitcnt lgkmcnt({do_x_prev[0][tb]})")
            for f in range(6):
                acc = VACC + (f*4+tb)*4
                a(f"v_mfma_f32_16x16x32_bf16 {vr(acc)}, {vr(VW+24*slot+4*f)}, {vr(VX+4*tb)}, {'0' if first else vr(acc)}")
                if tb == 3 and wsrc: wload(slot, f, wsrc)
            if do_x: xread(tb, xoff)
        if wsrc: a(f"s_add_u32 {wsrc}, {wsrc}, 6144")
    steady = [3,3,3,3]; drain = [3,2,1,0]
    do_x_prev = [steady]
    for tb in range(4): xread(tb, 0)
    step1(0, True, True, 4096, "s40", 6)
    a(f"v_add_u32 v{AX}, 8192, v{AX}               ; base -> X(2)")
    a("s_mov_b32 s42, 7")
    a.label("k5_loop1")
    step1(1, False, True, 0, "s40", 6)
    step1(0, False, True, 4096, "s40", 6)
    a(f"v_add_u32 v{AX}, 8192, v{AX}")
    a("s_sub_u32 s42, s42, 1\ns_cmp_lg_u32 s42, 0\ns_cbranch_scc1 k5_loop1")
    step1(1, False, True, 0, "s40", 6)
    step1(0, False, True, 4096, "s41", 6)
    do_x_prev[0] = drain
    step1(1, False, False, 0, "s41", 6)
    a.stamp(8)
    T=VX
    a("s_mul_i32 s28, s22, 3")
    for uu in range(3):
        a(f"s_add_u32 s29, s28, {uu}")
        a("s_lshr_b32 s25, s29, 1")
        a("s_lshl_b32 s25, s25, 12")
        a("s_and_b32 s29, s29, 1")
        a("s_lshl_b32 s29, s29, 3")
        a("s_add_u32 s25, s25, s29")
        a(f"s_add_u32 s25, s25, {L5_H}")
        a(f"v_add_u32 v{AH}, s25, v{VL16}")
        for tb in range(4):
            g = VACC + ((2*uu)*4+tb)*4; u = VACC + ((2*uu+1)*4+tb)*4
            for j in range(4): a(f"v_mul_f32 v{T+j}, {NLOG2E:#x}, v{g+j}")
            for j in range(4): a(f"v_exp_f32 v{T+j}, v{T+j}")
            for j in range(4): a(f"v_mul_f32 v{g+j}, v{g+j}, v{u+j}")
            for j in range(4): a(f"v_add_f32 v{T+j}, 1.0, v{T+j}")
            for j in range(4): a(f"v_rcp_f32 v{T+j}, v{T+j}")
            a("s_nop 0")
            for j in range(4): a(f"v_mul_f32 v{g+j}, v{g+j}, v{T+j}")
            o = T+4+2*(tb&1)
            a(f"v_cvt_pk_bf16_f32 v{o}, v{g}, v{g+1}")
            a(f"v_cvt_pk_bf16_f32 v{o+1}, v{g+2}, v{g+3}")
            a(f"ds_write_b64 v{AH}, {vr(o,2)} offset:{tb*1024}")
    HCLS = ENV("HCLS", "1") == "1" and MERGE6
    a("s_waitcnt lgkmcnt(0)")
    TC = VACC + 48
    if HCLS:
        a("s_lshr_b32 s28, s22, 2\ns_lshl_b32 s28, s28, 2")
        a(f"s_add_u32 s28, s28, {L5_CNT + 4}")
        a("s_mov_b64 exec, 1")
        a(f"v_mov_b32 v{AH}, s28\nv_mov_b32 v{TC}, 1")
        a(f"ds_add_u32 v{AH}, v{TC}")
        a("s_mov_b64 exec, -1")
        a(f"v_mov_b32 v{AH}, {L5_CNT}")
    else:
        a("s_barrier")
    def wait_class(c):
        if not HCLS: return
        a.label(f"k5_hw{c}")
        a(f"ds_read_b32 v{TC}, v{AH} offset:{4+4*c}")
        a("s_waitcnt lgkmcnt(0)")
        a(f"v_readfirstlane_b32 s28, v{TC}")
        a(f"s_cmp_ge_u32 s28, 4\ns_cbranch_scc0 k5_hw{c}")
    wait_class(0)
    a.stamp(9)
    G2P = ENV("G2PRIO", "1") == "1"
    if G2P: a("s_setprio 1")
    G2C = ENV("G2CLS", "0") == "1"
    if G2C:
        a("s_lshr_b32 s28, s22, 2")
        a("s_cmp_eq_u32 s28, 0\ns_cbranch_scc1 k5_p0")
        a("s_cmp_eq_u32 s28, 1\ns_cbranch_scc1 k5_p1")
        a("s_setprio 2\ns_branch k5_p0")
        a.label("k5_p1")
        a("s_setprio 1")
        a.label("k5_p0")
    a(f"v_add_u32 v{AX}, {L5_H}, v{VL16}")
    def w2load(rs, uu):
        a(f"buffer_load_dwordx4 {vr(VW+12*rs+4*uu)}, v{VL16}, s[16:19], s41 offen offset:{uu*1024} " + WF)
    def step2(rs, first, do_x, xoff, reload, vm, lg):
        for tb in range(4):
            if tb == 0: a(f"s_waitcnt vmcnt({vm}) lgkmcnt({lg[tb]})")
            else:       a(f"s_waitcnt lgkmcnt({lg[tb]})")
            for uu in range(3):
                acc = VACC + (uu*4+tb)*4
                a(f"v_mfma_f32_16x16x32_bf16 {vr(acc)}, {vr(VW+12*rs+4*uu)}, {vr(VX+4*tb)}, {'0' if first else vr(acc)}")
                if tb == 3 and reload: w2load(rs, uu)
            if do_x: xread(tb, xoff)
        if reload: a("s_add_u32 s41, s41, 3072")
    for tb in range(4): xread(tb, 0)
    if HCLS:
        for p in range(18):
            if p in (5, 11): wait_class((p+1)//6)
            vm = 3*min(3, 17-p)
            step2(p & 3, p == 0, p < 17, 4096 if p % 2 == 0 else 0, p + 4 <= 17, vm, steady if p < 17 else drain)
            if p % 2 == 0 and p < 16: a(f"v_add_u32 v{AX}, 8192, v{AX}")
    else:
        step2(0, True, True, 4096, True, 9, steady)
        a(f"v_add_u32 v{AX}, 8192, v{AX}")
        step2(1, False, True, 0, True, 9, steady)
        a("s_mov_b32 s42, 3")
        a.label("k5_loop2")
        step2(2, False, True, 4096, True, 9, steady)
        a(f"v_add_u32 v{AX}, 8192, v{AX}")
        step2(3, False, True, 0, True, 9, steady)
        step2(0, False, True, 4096, True, 9, steady)
        a(f"v_add_u32 v{AX}, 8192, v{AX}")
        step2(1, False, True, 0, True, 9, steady)
        a("s_sub_u32 s42, s42, 1\ns_cmp_lg_u32 s42, 0\ns_cbranch_scc1 k5_loop2")
        step2(2, False, True, 4096, False, 9, steady)
        a(f"v_add_u32 v{AX}, 8192, v{AX}")
        step2(3, False, True, 0, False, 6, steady)
        step2(0, False, True, 4096, False, 3, steady)
        step2(1, False, False, 0, False, 0, drain)
    if G2P or G2C: a("s_setprio 0")
    a.stamp(10)
    a(f"s_mul_i32 s28, s23, {SZ_PARTS}")
    a("s_mul_i32 s29, s24, 73728")
    a("s_add_u32 s28, s28, s29")
    a("s_mul_i32 s29, s22, 6144")
    a("s_add_u32 s28, s28, s29")
    for q in range(6):
        uu = q >> 1; h = q & 1
        o = VW + 4*q
        for k in range(2):
            acc = VACC + (uu*4 + 2*h + k)*4
            a(f"v_cvt_pk_bf16_f32 v{o+2*k}, v{acc}, v{acc+1}")
            a(f"v_cvt_pk_bf16_f32 v{o+2*k+1}, v{acc+2}, v{acc+3}")
        if q < 4: a(f"buffer_store_dwordx4 {vr(o)}, v{VL16}, s[44:47], s28 offen offset:{q*1024} " + SC("K5SC", "1"))
        else:     a(f"buffer_store_dwordx4 {vr(o)}, v7, s[44:47], s28 offen offset:{(q-4)*1024} " + SC("K5SC", "1"))
    if MERGE6 and ENV("STAGED", "1") == "1":
        RC = L5_CNT + 16; RF = L5_CNT + 28; RS = L5_CNT + 40
        load_ptr(a, 4, KA_OUT)
        a("s_waitcnt vmcnt(0) lgkmcnt(0)")
        a.stamp(11)
        srd(a, 52, 20, SZ_CNT, WS_CNT)
        srd(a, 8, 20, SZ_PART, WS_PART); srd(a, 12, 20, SZ_X1F, WS_X1F); srd(a, 16, 20, 2304, WS_MOD+5*2304); srd(a, 48, 4, SZ_X)
        a("s_lshr_b32 s30, s22, 2         ; class")
        a("s_lshl_b32 s42, s30, 2")
        a(f"s_add_u32 s57, s42, {RC}")
        a("v_mov_b32 v25, s57")
        a("v_mov_b32 v7, 1")
        a("s_mov_b64 exec, 1")
        a("ds_add_rtn_u32 v8, v25, v7")
        a("s_waitcnt lgkmcnt(0)")
        a("v_readfirstlane_b32 s26, v8")
        a("s_mul_i32 s28, s24, 3")
        a("s_add_u32 s28, s28, s30")
        a(f"s_add_u32 s28, s28, {C_RED3}")
        a("s_lshl_b32 s28, s28, 9")
        a("v_mov_b32 v6, s28")
        a("s_cmp_lg_u32 s26, 3\ns_cbranch_scc1 k5_nosig")
        a("buffer_atomic_add v7, v6, s[52:55], 0 offen sc1")
        a.label("k5_nosig")
        a("s_mov_b64 exec, -1")
        a("v_mov_b32 v23, s28")
        a("s_and_b32 s29, s22, 3")
        a("s_cmp_eq_u32 s29, 3\ns_cbranch_scc1 k5_noload")
        reduce_loads(a, True, staged=True)
        a.label("k5_noload")
        a("s_cmp_lg_u32 s26, 3\ns_cbranch_scc1 k5_waitgo")
        a("s_mov_b32 s29, 20000")
        a.label("k5_poll")
        a("buffer_load_dword v24, v23, s[52:55], 0 offen sc0 sc1")
        a("s_waitcnt vmcnt(0)")
        a("v_readfirstlane_b32 s25, v24")
        a("s_sub_u32 s29, s29, 1")
        a("s_cmp_eq_u32 s29, 0\ns_cbranch_scc1 k5_release")
        a("s_cmp_ge_u32 s25, 8\ns_cbranch_scc0 k5_poll")
        a.label("k5_release")
        a(f"v_add_u32 v24, {RF-RC}, v25")
        a("v_mov_b32 v26, 1")
        a("ds_write_b32 v24, v26")
        a("s_waitcnt lgkmcnt(0)")
        a.label("k5_waitgo")
        a("s_and_b32 s29, s22, 3")
        a("s_cmp_eq_u32 s29, 3\ns_cbranch_scc1 k5_exit")
        a.label("k5_go")
        a(f"ds_read_b32 v24, v25 offset:{RF-RC}")
        a("s_waitcnt lgkmcnt(0)")
        a("v_readfirstlane_b32 s25, v24")
        a("s_cmp_eq_u32 s25, 0\ns_cbranch_scc1 k5_go")
        a.stamp(12)
        def sync3():
            a("v_mov_b32 v26, 1")
            a("s_mov_b64 exec, 1")
            a(f"ds_add_u32 v25, v26 offset:{RS-RC}")
            a("s_mov_b64 exec, -1")
            a.label("k5_sc")
            a(f"ds_read_b32 v24, v25 offset:{RS-RC}")
            a("s_waitcnt lgkmcnt(0)")
            a("v_readfirstlane_b32 s25, v24")
            a("s_cmp_ge_u32 s25, 3\ns_cbranch_scc0 k5_sc")
        reduce_main(a, True, sync=sync3)
    elif MERGE6:
        load_ptr(a, 4, KA_OUT)
        a("s_waitcnt vmcnt(0) lgkmcnt(0)")
        if ENV("ST2", "0") != "1": a.stamp(11)
        srd(a, 52, 20, SZ_CNT, WS_CNT)
        srd(a, 8, 20, SZ_PART, WS_PART); srd(a, 12, 20, SZ_X1F, WS_X1F); srd(a, 16, 20, 2304, WS_MOD+5*2304); srd(a, 48, 4, SZ_X)
        a(f"v_mov_b32 v6, {L5_CNT}")
        a("v_mov_b32 v7, 1")
        a("s_mov_b64 exec, 1")
        a("ds_add_rtn_u32 v8, v6, v7")
        a("s_waitcnt lgkmcnt(0)")
        a("v_readfirstlane_b32 s26, v8")
        a(f"s_add_u32 s28, s24, {C_RED}")
        a("s_lshl_b32 s28, s28, 9")
        a("v_mov_b32 v6, s28")
        a("s_cmp_lg_u32 s26, 11\ns_cbranch_scc1 k5_nosig")
        a("buffer_atomic_add v7, v6, s[52:55], 0 offen sc1")
        a.label("k5_nosig")
        a("s_mov_b64 exec, -1")
        a("v_mov_b32 v23, s28")
        a("s_cmp_ge_u32 s22, 9\ns_cbranch_scc1 k5_noload")
        reduce_loads(a, True)
        a.label("k5_noload")
        a("s_cmp_lg_u32 s26, 11\ns_cbranch_scc1 k5_nopoll")
        a("s_mov_b32 s29, 20000")
        a.label("k5_poll")
        a("buffer_load_dword v24, v23, s[52:55], 0 offen sc0 sc1")
        a("s_waitcnt vmcnt(0)")
        a("v_readfirstlane_b32 s25, v24")
        a("s_sub_u32 s29, s29, 1")
        a("s_cmp_eq_u32 s29, 0\ns_cbranch_scc1 k5_nopoll")
        a("s_cmp_ge_u32 s25, 8\ns_cbranch_scc0 k5_poll")
        a.label("k5_nopoll")
        a("s_barrier")
        if ENV("ST2", "0") != "1": a.stamp(12)
        a("s_cmp_ge_u32 s22, 9\ns_cbranch_scc1 k5_exit")
        reduce_main(a, True)
    a.label("k5_exit")
```

```python
from common import *
from k6 import reduce_loads, reduce_main
import os
MERGE6 = os.environ.get('MERGE6', '1') == '1'
L5_X=0; L5_H=73728
K5_LDS = 147456 + 64 + 1536
L5_CNT = 147456
L5_STAT = 147456 + 64
NLOG2E=0xbfb8aa3b
K5_A = int(os.environ.get('K5_A', '2'))
def gen_k5():
    a = Asm()
    a("s_cmp_ge_u32 s2, 256\ns_cbranch_scc1 k5_exit")
    load_ptr(a, 20, KA_WS)
    wave_id(a, 22, 1)
    ffn(a, False)
    return kernel("k5_ffn_kernel", a, vgpr=168, sgpr=64), (256, 768, K5_LDS)

def ffn(a, chained):
    XF = (" " + ENV("XLD", "sc1")) if chained else ""
    WF = "sc1" if chained else ENV('K5WF', '')
    VL=1; VTOK=2; VG=3; VL16=4
    a(f"v_and_b32 v{VL}, 63, v0")
    a(f"v_and_b32 v{VTOK}, 15, v{VL}")
    a(f"v_lshrrev_b32 v{VG}, 4, v{VL}")
    a(f"v_lshlrev_b32 v{VL16}, 4, v{VL}")
    A = K5_A; lgA = {1: 0, 2: 1, 4: 2, 8: 3}[A]
    a("s_and_b32 s25, s2, 7")
    a("s_lshr_b32 s26, s2, 3")
    a(f"s_and_b32 s23, s25, {8//A - 1}")
    a(f"s_lshl_b32 s23, s23, {lgA}")
    a(f"s_and_b32 s27, s26, {A-1}")
    a("s_add_u32 s23, s23, s27        ; slice")
    a(f"s_lshr_b32 s24, s25, {3-lgA}")
    a(f"s_lshl_b32 s24, s24, {5-lgA}")
    a(f"s_lshr_b32 s26, s26, {lgA}")
    a("s_add_u32 s24, s24, s26        ; rb")
    sdiv(a, 26, 22, 3, 27, 25)
    a("s_waitcnt lgkmcnt(0)")
    WBASE = WS_W13
    srd(a, 8, 20, SZ_X1F, WS_X1F); srd(a, 12, 20, 4608, WS_MOD+3*2304)
    srd(a, 16, 20, WS_W2 + SZ_W2 - WBASE, WBASE); srd(a, 44, 20, SZ_PART, WS_PART); srd(a, 48, 20, SZ_STP, WS_STP)
    VACC=8
    VW=104
    VX=152
    AX=5; AH=6
    XP=VACC
    PRE = chained and TAGS and MTPRE and XMODE in ("stp", "late")
    MT = 144 if PRE else XP+24
    ST=XP+32
    if not PRE:
        a(f"s_mul_i32 s28, s27, 768")
        a(f"buffer_load_dwordx4 {vr(MT)}, v{VL16}, s[12:15], s28 offen")
        a(f"s_add_u32 s28, s28, 2304")
        a(f"buffer_load_dwordx4 {vr(MT+4)}, v{VL16}, s[12:15], s28 offen")
    a(f"s_mul_i32 s40, s23, {SZ_W13S}")
    a("s_mul_i32 s29, s22, 110592")
    a("s_add_u32 s40, s40, s29")
    a(f"s_mul_i32 s41, s23, {SZ_W2S}")
    a("s_mul_i32 s29, s22, 55296")
    a("s_add_u32 s41, s41, s29")
    a(f"s_add_u32 s41, s41, {WS_W2-WBASE:#x}")
    a(f"v_add_u32 v7, 4096, v{VL16}")
    def wload(slot, f, s):
        r = VW + 24*slot + 4*f
        if f < 4: a(f"buffer_load_dwordx4 {vr(r)}, v{VL16}, s[16:19], {s} offen offset:{f*1024} " + WF)
        else:     a(f"buffer_load_dwordx4 {vr(r)}, v7, s[16:19], {s} offen offset:{(f-4)*1024} " + WF)
    def stloads():
        a(f"s_lshl_b32 s28, s24, 6")
        a(f"s_lshl_b32 s29, s26, 4")
        a(f"s_add_u32 s28, s28, s29")
        a(f"s_lshl_b32 s28, s28, 5")
        a(f"v_lshlrev_b32 v{AX}, 5, v{VTOK}")
        a(f"buffer_load_dwordx4 {vr(ST)}, v{AX}, s[48:51], s28 offen" + XF)
        a(f"buffer_load_dwordx4 {vr(ST+4)}, v{AX}, s[48:51], s28 offen offset:16" + XF)
    def frloads():
        a("s_mul_i32 s28, s24, 73728")
        a(f"s_mul_i32 s29, s27, {6*4096}")
        a("s_add_u32 s28, s28, s29")
        a("s_lshl_b32 s29, s26, 10")
        a("s_add_u32 s28, s28, s29")
        for i in range(6):
            a(f"buffer_load_dwordx4 {vr(XP+4*i)}, v{VL16}, s[8:11], s28 offen" + XF)
            if i < 5: a("s_add_u32 s28, s28, 4096")
    def xloads():
        stloads(); frloads()
    def modstage():
        a("s_lshl_b32 s30, s22, 11")
        a(f"s_add_u32 s30, s30, {L5_H}")
        a(f"v_add_u32 v{AH}, s30, v{VL16}")
        if MERGE6:
            a(f"v_mov_b32 v{AX}, {L5_CNT}")
            a(f"v_mov_b32 v{VX}, 0")
            for o in range(0, 52, 4): a(f"ds_write_b32 v{AX}, v{VX} offset:{o}")
    EARLYW = chained
    if EARLYW and TAGS and XMODE in ("stp", "late"):
        def w01():
            for f in range(6): wload(0, f, "s40")
            a("s_add_u32 s40, s40, 6144")
            for f in range(6): wload(1, f, "s40")
            a("s_add_u32 s40, s40, 6144")
        if XMODE == "stp": w01()
        modstage()
        a("s_waitcnt vmcnt(%d)" % (12 if XMODE == "stp" else 0))
        a(f"ds_write_b128 v{AH}, {vr(MT)}")
        a(f"ds_write_b128 v{AH}, {vr(MT+4)} offset:1024")
        a("s_barrier")
        a.stamp(6)
        a("s_mov_b32 s57, 20000")
        a.label("k5_in_retry")
        xloads()
        a("s_waitcnt vmcnt(0)")
        any_poison(a, list(range(XP, XP+24)) + list(range(ST, ST+8)), VX)
        a("s_sub_u32 s57, s57, 1")
        a("s_cmp_eq_u32 s57, 0\ns_cbranch_scc1 k5_in_got")
        a("s_cmp_lg_u64 vcc, 0\ns_cbranch_scc1 k5_in_retry")
        a.label("k5_in_got")
    elif EARLYW and TAGS:
        for f in range(6): wload(0, f, "s40")
        a("s_add_u32 s40, s40, 6144")
        frloads()
        for f in range(6): wload(1, f, "s40")
        a("s_add_u32 s40, s40, 6144")
        modstage()
        a("s_waitcnt vmcnt(6)")
        any_poison(a, list(range(XP, XP+24)), VX)
        a("s_cmp_eq_u64 vcc, 0\ns_cbranch_scc1 k5_in_got")
        a("s_mov_b32 s57, 20000")
        a.label("k5_in_retry")
        frloads()
        a("s_waitcnt vmcnt(0)")
        any_poison(a, list(range(XP, XP+24)), VX)
        a("s_sub_u32 s57, s57, 1")
        a("s_cmp_eq_u32 s57, 0\ns_cbranch_scc1 k5_in_got")
        a("s_cmp_lg_u64 vcc, 0\ns_cbranch_scc1 k5_in_retry")
        a.label("k5_in_got")
        a(f"ds_write_b128 v{AH}, {vr(MT)}")
        a(f"ds_write_b128 v{AH}, {vr(MT+4)} offset:1024")
        a("s_mov_b32 s29, 0x3f803f80")
        ln_stats(a, XP, 24, ST, ST+1, 29)
        xsum16_32(a, ST, ST+2); xsum16_32(a, ST+1, ST+2)
        a("s_lshl_b32 s28, s27, 6")
        a("s_lshl_b32 s29, s26, 4")
        a("s_add_u32 s28, s28, s29")
        a(f"v_add_u32 v{AX}, s28, v{VTOK}")
        a(f"v_lshlrev_b32 v{AX}, 3, v{AX}")
        a(f"v_add_u32 v{AX}, {L5_STAT}, v{AX}")
        a(f"ds_write_b64 v{AX}, {vr(ST,2)}")
        a("s_waitcnt lgkmcnt(0)")
        a("s_barrier")
        a.stamp(6)
        a(f"v_add_u32 v{AX}, s29, v{VTOK}")
        a(f"v_lshlrev_b32 v{AX}, 3, v{AX}")
        a(f"v_add_u32 v{AX}, {L5_STAT}, v{AX}")
        a(f"ds_read_b64 {vr(ST,2)}, v{AX}")
        a(f"ds_read_b64 {vr(ST+2,2)}, v{AX} offset:512")
        a(f"ds_read_b64 {vr(ST+4,2)}, v{AX} offset:1024")
        a(f"v_mov_b32 v{ST+6}, 0")
        a(f"v_mov_b32 v{ST+7}, 0")
        a("s_waitcnt lgkmcnt(0)")
    elif EARLYW:
        for f in range(6): wload(0, f, "s40")
        a("s_add_u32 s40, s40, 6144")
        for f in range(6): wload(1, f, "s40")
        a("s_add_u32 s40, s40, 6144")
        modstage()
        a("s_waitcnt vmcnt(12)")
        a(f"ds_write_b128 v{AH}, {vr(MT)}")
        a(f"ds_write_b128 v{AH}, {vr(MT+4)} offset:1024")
        srd(a, 52, 20, SZ_CNT, WS_CNT)
        a("s_cmp_eq_u32 s58, 0\ns_cbranch_scc1 k5_in_nopoll")
        a(f"s_add_u32 s28, s24, {C_X1}")
        a(f"s_lshl_b32 s28, s28, 9")
        a(f"v_mov_b32 v8, s28")
        a("s_mov_b32 s29, 20000")
        a.label("k5_in_poll")
        a("buffer_load_dword v9, v8, s[52:55], 0 offen sc0 sc1")
        a("s_waitcnt vmcnt(0)")
        a("v_readfirstlane_b32 s28, v9")
        a("s_sub_u32 s29, s29, 1")
        a("s_cmp_eq_u32 s29, 0\ns_cbranch_scc1 k5_in_nopoll")
        a("s_cmp_ge_u32 s28, 8\ns_cbranch_scc0 k5_in_poll")
        a.label("k5_in_nopoll")
        a("s_barrier")
        a.stamp(6)
        xloads()
        a("s_waitcnt vmcnt(6)")
    else:
        xloads()
        modstage()
        a("s_waitcnt vmcnt(8)")
        a(f"ds_write_b128 v{AH}, {vr(MT)}")
        a(f"ds_write_b128 v{AH}, {vr(MT+4)} offset:1024")
        a("s_waitcnt vmcnt(6)")
    VS=ST; VQ=ST+1; VR=XP+40; VSH=XP+42
    a(f"v_add_f32 v{VS}, v{ST}, v{ST+2}")
    a(f"v_add_f32 v{VQ}, v{ST+1}, v{ST+3}")
    a(f"v_add_f32 v{ST+4}, v{ST+4}, v{ST+6}")
    a(f"v_add_f32 v{ST+5}, v{ST+5}, v{ST+7}")
    a(f"v_add_f32 v{VS}, v{VS}, v{ST+4}")
    a(f"v_add_f32 v{VQ}, v{VQ}, v{ST+5}")
    ln_finish(a, VS, VQ, VR, VSH)
    a(f"v_mov_b32 v{VR+1}, v{VR}")
    a(f"v_mov_b32 v{VSH+1}, v{VSH}")
    VC=[XP+48, XP+64]; VSF=[XP+56, XP+72]; VTT=XP+80; VO=XP+88
    a(f"v_lshlrev_b32 v{AX}, 5, v{VG}")
    a(f"v_add_u32 v{AX}, s30, v{AX}")
    a(f"s_mul_i32 s28, s27, {6*4096}")
    a(f"s_lshl_b32 s29, s26, 10")
    a(f"s_add_u32 s28, s28, s29")
    a(f"v_add_u32 v{AH}, s28, v{VL16}")
    def modread(i):
        b = i & 1
        a(f"ds_read_b128 {vr(VSF[b])}, v{AX} offset:{i*128}")
        a(f"ds_read_b128 {vr(VSF[b]+4)}, v{AX} offset:{i*128 + 16}")
        a(f"ds_read_b128 {vr(VC[b])}, v{AX} offset:{1024 + i*128}")
        a(f"ds_read_b128 {vr(VC[b]+4)}, v{AX} offset:{1024 + i*128 + 16}")
    a("s_waitcnt lgkmcnt(0)")
    modread(0)
    nw = 0
    for i in range(6):
        if i < 5: modread(i+1)
        if chained and TAGS: a(f"s_waitcnt lgkmcnt({4 if i < 5 else 0})")
        else: a(f"s_waitcnt vmcnt({5-i+nw}) lgkmcnt({4 if i < 5 else 0})")
        chunk_unpack(a, XP+4*i, VTT); chunk_norm(a, VTT, VR); chunk_mod(a, VTT, VC[i&1], VSF[i&1]); chunk_pack(a, VTT, VO+4*(i&1))
        a(f"ds_write_b128 v{AH}, {vr(VO+4*(i&1))} offset:{i*4096}")
        if not EARLYW:
            wload(0, i, "s40"); nw += 1
        elif TAGS and XMODE == "late":
            for f in (2*i, 2*i+1):
                wload(f // 6, f % 6, "s40")
                if f == 5: a("s_add_u32 s40, s40, 6144")
            if i == 5: a("s_add_u32 s40, s40, 6144")
    if not EARLYW:
        a("s_add_u32 s40, s40, 6144")
        for f in range(6): wload(1, f, "s40")
        a("s_add_u32 s40, s40, 6144")
    a("s_waitcnt lgkmcnt(0)")
    a("s_barrier")
    a.stamp(7)
    a(f"v_mov_b32 v{AX}, v{VL16}")
    def xread(tb, off): a(f"ds_read_b128 {vr(VX+4*tb)}, v{AX} offset:{off + tb*1024}")
    def step1(slot, first, do_x, xoff, wsrc, vm):
        for tb in range(4):
            w = f"lgkmcnt({3 if (do_x or True) else 0})"
            if tb == 0: a(f"s_waitcnt vmcnt({vm}) lgkmcnt({do_x_prev[0][tb]})")
            else:       a(f"s_waitcnt lgkmcnt({do_x_prev[0][tb]})")
            for f in range(6):
                acc = VACC + (f*4+tb)*4
                a(f"v_mfma_f32_16x16x32_bf16 {vr(acc)}, {vr(VW+24*slot+4*f)}, {vr(VX+4*tb)}, {'0' if first else vr(acc)}")
                if tb == 3 and wsrc: wload(slot, f, wsrc)
            if do_x: xread(tb, xoff)
        if wsrc: a(f"s_add_u32 {wsrc}, {wsrc}, 6144")
    steady = [3,3,3,3]; drain = [3,2,1,0]
    do_x_prev = [steady]
    for tb in range(4): xread(tb, 0)
    step1(0, True, True, 4096, "s40", 6)
    a(f"v_add_u32 v{AX}, 8192, v{AX}               ; base -> X(2)")
    a("s_mov_b32 s42, 7")
    a.label("k5_loop1")
    step1(1, False, True, 0, "s40", 6)
    step1(0, False, True, 4096, "s40", 6)
    a(f"v_add_u32 v{AX}, 8192, v{AX}")
    a("s_sub_u32 s42, s42, 1\ns_cmp_lg_u32 s42, 0\ns_cbranch_scc1 k5_loop1")
    step1(1, False, True, 0, "s40", 6)
    step1(0, False, True, 4096, "s41", 6)
    do_x_prev[0] = drain
    step1(1, False, False, 0, "s41", 6)
    a.stamp(8)
    T=VX
    a("s_mul_i32 s28, s22, 3")
    for uu in range(3):
        a(f"s_add_u32 s29, s28, {uu}")
        a("s_lshr_b32 s25, s29, 1")
        a("s_lshl_b32 s25, s25, 12")
        a("s_and_b32 s29, s29, 1")
        a("s_lshl_b32 s29, s29, 3")
        a("s_add_u32 s25, s25, s29")
        a(f"s_add_u32 s25, s25, {L5_H}")
        a(f"v_add_u32 v{AH}, s25, v{VL16}")
        for tb in range(4):
            g = VACC + ((2*uu)*4+tb)*4; u = VACC + ((2*uu+1)*4+tb)*4
            for j in range(4): a(f"v_mul_f32 v{T+j}, {NLOG2E:#x}, v{g+j}")
            for j in range(4): a(f"v_exp_f32 v{T+j}, v{T+j}")
            for j in range(4): a(f"v_mul_f32 v{g+j}, v{g+j}, v{u+j}")
            for j in range(4): a(f"v_add_f32 v{T+j}, 1.0, v{T+j}")
            for j in range(4): a(f"v_rcp_f32 v{T+j}, v{T+j}")
            a("s_nop 0")
            for j in range(4): a(f"v_mul_f32 v{g+j}, v{g+j}, v{T+j}")
            o = T+4+2*(tb&1)
            a(f"v_cvt_pk_bf16_f32 v{o}, v{g}, v{g+1}")
            a(f"v_cvt_pk_bf16_f32 v{o+1}, v{g+2}, v{g+3}")
            a(f"ds_write_b64 v{AH}, {vr(o,2)} offset:{tb*1024}")
    HCLS = ENV("HCLS", "1") == "1" and MERGE6
    a("s_waitcnt lgkmcnt(0)")
    TC = VACC + 48
    if HCLS:
        a("s_lshr_b32 s28, s22, 2\ns_lshl_b32 s28, s28, 2")
        a(f"s_add_u32 s28, s28, {L5_CNT + 4}")
        a("s_mov_b64 exec, 1")
        a(f"v_mov_b32 v{AH}, s28\nv_mov_b32 v{TC}, 1")
        a(f"ds_add_u32 v{AH}, v{TC}")
        a("s_mov_b64 exec, -1")
        a(f"v_mov_b32 v{AH}, {L5_CNT}")
    else:
        a("s_barrier")
    def wait_class(c):
        if not HCLS: return
        a.label(f"k5_hw{c}")
        a(f"ds_read_b32 v{TC}, v{AH} offset:{4+4*c}")
        a("s_waitcnt lgkmcnt(0)")
        a(f"v_readfirstlane_b32 s28, v{TC}")
        a(f"s_cmp_ge_u32 s28, 4\ns_cbranch_scc0 k5_hw{c}")
    wait_class(0)
    a.stamp(9)
    G2P = ENV("G2PRIO", "1") == "1"
    if G2P: a("s_setprio 1")
    G2C = ENV("G2CLS", "0") == "1"
    if G2C:
        a("s_lshr_b32 s28, s22, 2")
        a("s_cmp_eq_u32 s28, 0\ns_cbranch_scc1 k5_p0")
        a("s_cmp_eq_u32 s28, 1\ns_cbranch_scc1 k5_p1")
        a("s_setprio 2\ns_branch k5_p0")
        a.label("k5_p1")
        a("s_setprio 1")
        a.label("k5_p0")
    a(f"v_add_u32 v{AX}, {L5_H}, v{VL16}")
    def w2load(rs, uu):
        a(f"buffer_load_dwordx4 {vr(VW+12*rs+4*uu)}, v{VL16}, s[16:19], s41 offen offset:{uu*1024} " + WF)
    def step2(rs, first, do_x, xoff, reload, vm, lg):
        for tb in range(4):
            if tb == 0: a(f"s_waitcnt vmcnt({vm}) lgkmcnt({lg[tb]})")
            else:       a(f"s_waitcnt lgkmcnt({lg[tb]})")
            for uu in range(3):
                acc = VACC + (uu*4+tb)*4
                a(f"v_mfma_f32_16x16x32_bf16 {vr(acc)}, {vr(VW+12*rs+4*uu)}, {vr(VX+4*tb)}, {'0' if first else vr(acc)}")
                if tb == 3 and reload: w2load(rs, uu)
            if do_x: xread(tb, xoff)
        if reload: a("s_add_u32 s41, s41, 3072")
    for tb in range(4): xread(tb, 0)
    if HCLS:
        for p in range(18):
            if p in (5, 11): wait_class((p+1)//6)
            vm = 3*min(3, 17-p)
            step2(p & 3, p == 0, p < 17, 4096 if p % 2 == 0 else 0, p + 4 <= 17, vm, steady if p < 17 else drain)
            if p % 2 == 0 and p < 16: a(f"v_add_u32 v{AX}, 8192, v{AX}")
    else:
        step2(0, True, True, 4096, True, 9, steady)
        a(f"v_add_u32 v{AX}, 8192, v{AX}")
        step2(1, False, True, 0, True, 9, steady)
        a("s_mov_b32 s42, 3")
        a.label("k5_loop2")
        step2(2, False, True, 4096, True, 9, steady)
        a(f"v_add_u32 v{AX}, 8192, v{AX}")
        step2(3, False, True, 0, True, 9, steady)
        step2(0, False, True, 4096, True, 9, steady)
        a(f"v_add_u32 v{AX}, 8192, v{AX}")
        step2(1, False, True, 0, True, 9, steady)
        a("s_sub_u32 s42, s42, 1\ns_cmp_lg_u32 s42, 0\ns_cbranch_scc1 k5_loop2")
        step2(2, False, True, 4096, False, 9, steady)
        a(f"v_add_u32 v{AX}, 8192, v{AX}")
        step2(3, False, True, 0, False, 6, steady)
        step2(0, False, True, 4096, False, 3, steady)
        step2(1, False, False, 0, False, 0, drain)
    if G2P or G2C: a("s_setprio 0")
    a.stamp(10)
    a(f"s_mul_i32 s28, s23, {SZ_PARTS}")
    a("s_mul_i32 s29, s24, 73728")
    a("s_add_u32 s28, s28, s29")
    a("s_mul_i32 s29, s22, 6144")
    a("s_add_u32 s28, s28, s29")
    OWN = MERGE6 and ENV("STAGED", "1") == "1" and ENV("OWNSKIP", "1") == "1"
    L5_OWN = 20480
    if OWN:
        a("s_lshr_b32 s25, s22, 1\ns_and_b32 s25, s25, 1")
        a("s_lshr_b32 s26, s23, 2")
        a("s_cmp_eq_u32 s25, s26\ns_cselect_b32 s25, 1, 0")
        a("s_lshr_b32 s26, s23, 1\ns_and_b32 s26, s26, 1")
        a("s_xor_b32 s27, s26, 1")
        a("s_and_b32 s27, s27, s25")
        a("s_and_b32 s26, s26, s25")
        a("s_and_b32 s29, s23, 1")
        a("s_cmp_eq_u32 s29, 0")
        a("s_cselect_b32 s56, -1, 0\ns_cselect_b32 s57, 0, -1")
        a("s_not_b64 s[58:59], s[56:57]")
        a("s_lshr_b32 s29, s22, 2\ns_mul_i32 s29, s29, 3072")
        a("s_and_b32 s30, s22, 1\ns_mul_i32 s30, s30, 1536")
        a("s_add_u32 s29, s29, s30")
        a(f"s_add_u32 s29, s29, {L5_OWN}")
        a(f"v_and_b32 v{AH}, 31, v{VL}")
        a(f"v_lshlrev_b32 v{AH}, 4, v{AH}")
        a(f"v_add_u32 v{AH}, s29, v{AH}")
    for q in range(6):
        uu = q >> 1; h = q & 1
        o = VW + 4*q
        for k in range(2):
            acc = VACC + (uu*4 + 2*h + k)*4
            a(f"v_cvt_pk_bf16_f32 v{o+2*k}, v{acc}, v{acc+1}")
            a(f"v_cvt_pk_bf16_f32 v{o+2*k+1}, v{acc+2}, v{acc+3}")
        st = (f"buffer_store_dwordx4 {vr(o)}, v{VL16}, s[44:47], s28 offen offset:{q*1024} " if q < 4 else
              f"buffer_store_dwordx4 {vr(o)}, v7, s[44:47], s28 offen offset:{(q-4)*1024} ") + SC("K5SC", "1")
        if OWN:
            a(f"s_cmp_eq_u32 s{26 if h else 27}, 0\ns_cbranch_scc1 k5_po{q}a")
            a("s_mov_b64 exec, s[56:57]")
            a(f"ds_write_b128 v{AH}, {vr(o)} offset:{uu*512}")
            a("s_mov_b64 exec, s[58:59]")
            a(st)
            a("s_mov_b64 exec, -1")
            a(f"s_branch k5_po{q}b")
            a.label(f"k5_po{q}a")
            a(st)
            a.label(f"k5_po{q}b")
        else:
            a(st)
    if MERGE6 and ENV("STAGED", "1") == "1":
        RC = L5_CNT + 16; RF = L5_CNT + 28; RS = L5_CNT + 40
        load_ptr(a, 4, KA_OUT)
        a("s_waitcnt vmcnt(0) lgkmcnt(0)")
        a.stamp(11)
        srd(a, 52, 20, SZ_CNT, WS_CNT)
        srd(a, 8, 20, SZ_PART, WS_PART); srd(a, 12, 20, SZ_X1F, WS_X1F); srd(a, 16, 20, 2304, WS_MOD+5*2304); srd(a, 48, 4, SZ_X)
        a("s_lshr_b32 s30, s22, 2         ; class")
        a("s_lshl_b32 s42, s30, 2")
        a(f"s_add_u32 s57, s42, {RC}")
        a("v_mov_b32 v25, s57")
        a("v_mov_b32 v7, 1")
        a("s_mov_b64 exec, 1")
        a("ds_add_rtn_u32 v8, v25, v7")
        a("s_waitcnt lgkmcnt(0)")
        a("v_readfirstlane_b32 s26, v8")
        a("s_mul_i32 s28, s24, 3")
        a("s_add_u32 s28, s28, s30")
        a(f"s_add_u32 s28, s28, {C_RED3}")
        a("s_lshl_b32 s28, s28, 9")
        a("v_mov_b32 v6, s28")
        a("s_cmp_lg_u32 s26, 3\ns_cbranch_scc1 k5_nosig")
        a("buffer_atomic_add v7, v6, s[52:55], 0 offen sc1")
        a.label("k5_nosig")
        a("s_mov_b64 exec, -1")
        a("v_mov_b32 v23, s28")
        a("s_and_b32 s29, s22, 3")
        a("s_cmp_eq_u32 s29, 3\ns_cbranch_scc1 k5_noload")
        reduce_loads(a, True, staged=True)
        a.label("k5_noload")
        a("s_cmp_lg_u32 s26, 3\ns_cbranch_scc1 k5_waitgo")
        a("s_mov_b32 s29, 20000")
        a.label("k5_poll")
        a("buffer_load_dword v24, v23, s[52:55], 0 offen sc0 sc1")
        a("s_waitcnt vmcnt(0)")
        a("v_readfirstlane_b32 s25, v24")
        a("s_sub_u32 s29, s29, 1")
        a("s_cmp_eq_u32 s29, 0\ns_cbranch_scc1 k5_release")
        a("s_cmp_ge_u32 s25, 8\ns_cbranch_scc0 k5_poll")
        a.label("k5_release")
        a(f"v_add_u32 v24, {RF-RC}, v25")
        a("v_mov_b32 v26, 1")
        a("ds_write_b32 v24, v26")
        a("s_waitcnt lgkmcnt(0)")
        a.label("k5_waitgo")
        a("s_and_b32 s29, s22, 3")
        a("s_cmp_eq_u32 s29, 3\ns_cbranch_scc1 k5_exit")
        a.label("k5_go")
        a(f"ds_read_b32 v24, v25 offset:{RF-RC}")
        a("s_waitcnt lgkmcnt(0)")
        a("v_readfirstlane_b32 s25, v24")
        a("s_cmp_eq_u32 s25, 0\ns_cbranch_scc1 k5_go")
        a.stamp(12)
        def sync3():
            a("v_mov_b32 v26, 1")
            a("s_mov_b64 exec, 1")
            a(f"ds_add_u32 v25, v26 offset:{RS-RC}")
            a("s_mov_b64 exec, -1")
            a.label("k5_sc")
            a(f"ds_read_b32 v24, v25 offset:{RS-RC}")
            a("s_waitcnt lgkmcnt(0)")
            a("v_readfirstlane_b32 s25, v24")
            a("s_cmp_ge_u32 s25, 3\ns_cbranch_scc0 k5_sc")
        reduce_main(a, True, sync=sync3, own=(L5_OWN if OWN else None))
    elif MERGE6:
        load_ptr(a, 4, KA_OUT)
        a("s_waitcnt vmcnt(0) lgkmcnt(0)")
        if ENV("ST2", "0") != "1": a.stamp(11)
        srd(a, 52, 20, SZ_CNT, WS_CNT)
        srd(a, 8, 20, SZ_PART, WS_PART); srd(a, 12, 20, SZ_X1F, WS_X1F); srd(a, 16, 20, 2304, WS_MOD+5*2304); srd(a, 48, 4, SZ_X)
        a(f"v_mov_b32 v6, {L5_CNT}")
        a("v_mov_b32 v7, 1")
        a("s_mov_b64 exec, 1")
        a("ds_add_rtn_u32 v8, v6, v7")
        a("s_waitcnt lgkmcnt(0)")
        a("v_readfirstlane_b32 s26, v8")
        a(f"s_add_u32 s28, s24, {C_RED}")
        a("s_lshl_b32 s28, s28, 9")
        a("v_mov_b32 v6, s28")
        a("s_cmp_lg_u32 s26, 11\ns_cbranch_scc1 k5_nosig")
        a("buffer_atomic_add v7, v6, s[52:55], 0 offen sc1")
        a.label("k5_nosig")
        a("s_mov_b64 exec, -1")
        a("v_mov_b32 v23, s28")
        a("s_cmp_ge_u32 s22, 9\ns_cbranch_scc1 k5_noload")
        reduce_loads(a, True)
        a.label("k5_noload")
        a("s_cmp_lg_u32 s26, 11\ns_cbranch_scc1 k5_nopoll")
        a("s_mov_b32 s29, 20000")
        a.label("k5_poll")
        a("buffer_load_dword v24, v23, s[52:55], 0 offen sc0 sc1")
        a("s_waitcnt vmcnt(0)")
        a("v_readfirstlane_b32 s25, v24")
        a("s_sub_u32 s29, s29, 1")
        a("s_cmp_eq_u32 s29, 0\ns_cbranch_scc1 k5_nopoll")
        a("s_cmp_ge_u32 s25, 8\ns_cbranch_scc0 k5_poll")
        a.label("k5_nopoll")
        a("s_barrier")
        if ENV("ST2", "0") != "1": a.stamp(12)
        a("s_cmp_ge_u32 s22, 9\ns_cbranch_scc1 k5_exit")
        reduce_main(a, True)
    a.label("k5_exit")
```

```python
from common import *
K6_LDS = 3*32*208
PERT = ENV('PERT', '')
def reduce_loads(a, merged, staged=False):
    if staged:
        a("v_mov_b32 v5, s30")
        a("s_lshl_b32 s27, s30, 8")
        a("v_subrev_u32 v6, s27, v0                   ; r")
        a("s_lshl_b32 s27, s30, 3")
        a("s_add_u32 s27, s27, s23")
        a("v_mov_b32 v7, s27                          ; idx = 8c + x")
    else:
        a("v_mul_u32_u24 v5, 5462, v0")
        a("v_lshrrev_b32 v5, 20, v5                   ; hg = t/192")
        a("v_mul_u32_u24 v6, 192, v5")
        a("v_sub_u32 v6, v0, v6                       ; r")
        a("s_mul_i32 s27, s23, 3")
        a("v_add_u32 v7, s27, v5")
    a("v_and_b32 v8, 1, v7                        ; half")
    a("v_lshrrev_b32 v7, 1, v7                    ; gi")
    a("v_and_b32 v9, 1, v7                        ; a")
    a("v_lshrrev_b32 v7, 1, v7                    ; sp")
    a("v_mul_u32_u24 v10, 10923, v6")
    a("v_lshrrev_b32 v10, 16, v10                 ; token 0..31")
    a("v_mul_u32_u24 v11, 6, v10")
    a("v_sub_u32 v11, v6, v11                     ; c")
    a("v_mul_u32_u24 v12, 12, v7")
    a("v_mul_u32_u24 v13, 6, v8")
    a("v_add3_u32 v12, v12, v13, v11")
    a("v_lshl_add_u32 v13, v9, 5, v10")
    a("v_lshrrev_b32 v14, 2, v12")
    a("v_lshlrev_b32 v14, 12, v14")
    a("v_and_b32 v15, 3, v12")
    a("v_lshl_add_u32 v14, v15, 8, v14")
    a("v_lshrrev_b32 v15, 4, v13")
    a("v_lshl_add_u32 v14, v15, 10, v14")
    a("v_and_b32 v15, 15, v13")
    a("v_lshl_add_u32 v14, v15, 4, v14")
    a("s_mul_i32 s27, s24, 73728")
    a(f"buffer_load_dwordx4 {vr(48)}, v14, s[12:15], s27 offen" + (" sc1" if merged else ""))
    a("v_lshlrev_b32 v15, 5, v12")
    a(f"buffer_load_dwordx4 {vr(52)}, v15, s[16:19], 0 offen")
    a(f"buffer_load_dwordx4 {vr(56)}, v15, s[16:19], 0 offen offset:16")
    a("v_mul_u32_u24 v13, 1152, v13")
    a("v_lshl_add_u32 v13, v12, 4, v13")
    a("v_lshrrev_b32 v15, 5, v6                   ; cw")
    a("v_cmp_le_u32 vcc, 3, v15")
    a("v_cndmask_b32 v16, 0, 1, vcc               ; wl")
    a("v_mul_u32_u24 v17, 3, v16")
    a("v_sub_u32 v17, v15, v17                    ; uu")
    a("v_and_b32 v18, 31, v6                      ; lane32")
    a("v_lshl_add_u32 v19, v7, 1, v16")
    a("v_mul_u32_u24 v19, 6144, v19")
    a("v_lshl_add_u32 v20, v17, 1, v9")
    a("v_lshl_add_u32 v19, v20, 10, v19")
    a("v_lshl_add_u32 v20, v8, 5, v18")
    a("v_lshl_add_u32 v19, v20, 4, v19")
    a("v_mul_u32_u24 v20, 6656, v5")
    a("v_and_b32 v21, 15, v18")
    a("v_mul_u32_u24 v21, 208, v21")
    a("v_add_u32 v20, v20, v21")
    a("v_lshrrev_b32 v21, 4, v18")
    a("v_mul_u32_u24 v21, 96, v21")
    a("v_add_u32 v20, v20, v21")
    a("v_lshl_add_u32 v20, v15, 2, v20")
    a("v_mul_u32_u24 v21, 6656, v5")
    a("v_mul_u32_u24 v22, 208, v10")
    a("v_add_u32 v21, v21, v22")
    a("v_lshl_add_u32 v21, v11, 5, v21")

def reduce_main(a, merged, ldsb=0, sync=None, own=None):
    SCL = (" " + ENV("PLD", "sc1")) if merged else ""
    VP=64; VA=96; VR=48; VGB=52
    if own is None:
        a("s_mul_i32 s27, s24, 73728")
        for x in range(8):
            a(f"buffer_load_dwordx4 {vr(VP+4*x)}, v19, s[8:11], s27 offen{SCL}")
            if x < 7: a(f"s_add_u32 s27, s27, {SZ_PARTS}")
    else:
        for i in range(7):
            a(f"s_add_u32 s28, s23, {i+1}\ns_and_b32 s28, s28, 7")
            a(f"s_mul_i32 s28, s28, {SZ_PARTS}")
            a("s_mul_i32 s27, s24, 73728\ns_add_u32 s27, s27, s28")
            a(f"buffer_load_dwordx4 {vr(VP+4*i)}, v19, s[8:11], s27 offen{SCL}")
        a("s_mul_i32 s27, s30, 3072")
        a(f"s_add_u32 s27, s27, {own}")
        a("v_lshlrev_b32 v9, 4, v6")
        a("v_add_u32 v9, s27, v9")
        a(f"ds_read_b128 {vr(VP+28)}, v9")
    for x in range(8):
        if own is None: a(f"s_waitcnt vmcnt({7-x})")
        elif x < 7: a(f"s_waitcnt vmcnt({6-x})")
        else: a("s_waitcnt lgkmcnt(0)")
        for q in range(4):
            r = VP+4*x+q
            if x == 0:
                a(f"v_lshlrev_b32 v{VA+2*q}, 16, v{r}")
                a(f"v_and_b32 v{VA+2*q+1}, 0xffff0000, v{r}")
            else:
                a(f"v_lshlrev_b32 v9, 16, v{r}")
                a(f"v_and_b32 v10, 0xffff0000, v{r}")
                a(f"v_add_f32 v{VA+2*q}, v{VA+2*q}, v9")
                a(f"v_add_f32 v{VA+2*q+1}, v{VA+2*q+1}, v10")
    for k in range(2):
        for j in range(4):
            a(f"ds_write_b32 v20, v{VA+4*k+j} offset:{ldsb + k*16*208 + j*24}")
    a("s_waitcnt lgkmcnt(0)")
    if sync: sync()
    else: a("s_barrier")
    a(f"ds_read_b128 {vr(VA)}, v21 offset:{ldsb}")
    a(f"ds_read_b128 {vr(VA+4)}, v21 offset:{ldsb+16}")
    a("s_waitcnt lgkmcnt(0)")
    for q in range(4):
        a(f"v_lshlrev_b32 v9, 16, v{VR+q}")
        a(f"v_and_b32 v10, 0xffff0000, v{VR+q}")
        a(f"v_fmac_f32 v9, v{VGB+2*q}, v{VA+2*q}")
        a(f"v_fmac_f32 v10, v{VGB+2*q+1}, v{VA+2*q+1}")
        if PERT:
            kind, val = PERT.split(":")
            if kind == "scale":
                a(f"v_mul_f32 v9, {f32(float(val)):#x}, v9"); a(f"v_mul_f32 v10, {f32(float(val)):#x}, v10")
        a(f"v_cvt_pk_bf16_f32 v{VR+q}, v9, v10")
    a(f"s_mul_i32 s27, s24, {64*1152}")
    a(f"buffer_store_dwordx4 {vr(VR)}, v13, s[48:51], s27 offen")

def gen_k6():
    a = Asm()
    a(f"s_cmp_ge_u32 s2, 256\ns_cbranch_scc1 k6_exit")
    load_ptr(a, 4, KA_OUT); load_ptr(a, 20, KA_WS)
    a("s_and_b32 s23, s2, 7           ; x")
    a("s_lshr_b32 s24, s2, 3          ; rb")
    a("s_waitcnt lgkmcnt(0)")
    srd(a, 8, 20, SZ_PART, WS_PART); srd(a, 12, 20, SZ_X1F, WS_X1F); srd(a, 16, 20, 2304, WS_MOD+5*2304); srd(a, 48, 4, SZ_X)
    reduce_loads(a, False)
    reduce_main(a, False)
    a.label("k6_exit")
    return kernel("k6_reduce_kernel", a, vgpr=112, sgpr=64), (256, 576, K6_LDS)
```

```python
from common import *
import os
SIDE = os.environ.get('SIDE', 'k2')
MODNC = int(os.environ.get('MODNC', '32'))
NWG_MOD=(1152//MODNC) if SIDE == 'k2' else 54; NWG_LS=54 if SIDE == 'k2' else 72; NWG_W13=0; NWG_W2=0; NWG_ONES=32; NWG_XN=64; NWG_POIS=36
B_LS=NWG_MOD; B_W13=B_LS+NWG_LS; B_W2=B_W13+NWG_W13; B_ONES=B_W2+NWG_W2; B_XN=B_ONES+NWG_ONES; B_POIS=B_XN+NWG_XN; K1_NWG=B_POIS+NWG_POIS
K1_LDS=4*9216

LOG2E=0x3fb8aa3b
END = [None]
def endtask(a):
    if END[0] is None: a("s_endpgm")
    else: a("s_mov_b64 exec, -1\ns_branch " + END[0])
XTRA = [None]
def extra_loads(a):
    if XTRA[0] is None: return 0
    XTRA[0][0](a); return XTRA[0][1]
def MSC(): return "sc0 sc1" if END[0] else ""

def gen_mod(a, tag, NC=64):
    LG = {64: 3, 32: 2}[NC]
    NRG = 256 >> LG
    NR = 576 // NRG
    load_ptr(a, 4, KA_WMOD); load_ptr(a, 6, KA_C); load_ptr(a, 20, KA_WS)
    a("v_and_b32 v30, 255, v0")
    a(f"v_and_b32 v1, {(1 << LG) - 1}, v30           ; cg")
    a(f"v_lshrrev_b32 v2, {LG}, v30       ; rg")
    a("s_waitcnt lgkmcnt(0)")
    srd(a, 8, 4, 576*6912); srd(a, 12, 6, 1152); srd(a, 16, 20, SZ_MOD, WS_MOD)
    a("v_lshlrev_b32 v3, 1, v30")
    a("buffer_load_ushort v4, v3, s[12:15], 0 offen")
    a("buffer_load_ushort v5, v3, s[12:15], 0 offen offset:512")
    a("buffer_load_ushort v6, v3, s[12:15], 0 offen offset:1024")
    a("v_mul_u32_u24 v7, 6912, v2")
    a("v_lshl_add_u32 v7, v1, 4, v7")
    a(f"s_mul_i32 s22, s44, {NC*2}         ; n0*2")
    for i in range(NR):
        r = 32 + 4*i
        a(f"buffer_load_dwordx4 {vr(r)}, v7, s[8:11], s22 offen")
        if i < NR-1: a(f"s_add_u32 s22, s22, {NRG*6912}")
    NX = extra_loads(a)
    a("v_lshlrev_b32 v9, 2, v30")
    a("v_add_u32 v9, s45, v9")
    a(f"s_waitcnt vmcnt({NR+NX})")
    for j, v in enumerate([4, 5, 6]):
        a(f"v_lshlrev_b32 v{v}, 16, v{v}")
        a(f"v_mul_f32 v8, {LOG2E:#x}, v{v}")
        a(f"v_exp_f32 v8, -v8")
        a(f"v_add_f32 v8, 1.0, v8")
        a(f"v_rcp_f32 v8, v8")
        a(f"v_mul_f32 v8, v8, v{v}")
        bf16_round_f32(a, 8, 8)
        a(f"ds_write_b32 v9, v8 offset:{j*1024}")
    a("s_waitcnt lgkmcnt(0)")
    a("s_barrier")
    a("v_lshlrev_b32 v9, 2, v2")
    a("v_add_u32 v9, s45, v9")
    for i in range(NR):
        a(f"ds_read_b32 v{10+i}, v9 offset:{i*NRG*4}")
    for j in range(8): a(f"v_mov_b32 v{104+j}, 0")
    a("s_waitcnt lgkmcnt(0)")
    for i in range(NR):
        a(f"s_waitcnt vmcnt({NR-1-i+NX})")
        r = 32 + 4*i
        for q in range(4):
            a(f"v_lshlrev_b32 v28, 16, v{r+q}")
            a(f"v_and_b32 v29, 0xffff0000, v{r+q}")
            a(f"v_fmac_f32 v{104+2*q}, v{10+i}, v28")
            a(f"v_fmac_f32 v{105+2*q}, v{10+i}, v29")
    a(f"v_mul_u32_u24 v9, {NC*4}, v2")
    a("v_lshl_add_u32 v9, v1, 5, v9")
    a("v_add_u32 v9, s45, v9")
    a("ds_write_b128 v9, v[104:107] offset:4096")
    a("ds_write_b128 v9, v[108:111] offset:4112")
    a("s_waitcnt lgkmcnt(0)")
    a("s_barrier")
    a("v_cmp_gt_u32 vcc, 64, v30")
    a("s_and_saveexec_b64 s[24:25], vcc")
    lend = f"{tag}_mod_end"
    a(f"s_cbranch_execz {lend}")
    a(f"v_and_b32 v10, {NC-1}, v30                 ; column")
    a("v_lshlrev_b32 v9, 2, v10")
    a("v_add_u32 v3, s45, v9")
    if NC == 32:
        a(f"v_lshrrev_b32 v11, 5, v30")
        a(f"v_mul_u32_u24 v11, {32*NC*4}, v11")
        a("v_add_u32 v3, v3, v11")
    for i in range(32):
        a(f"ds_read_b32 v{32+i}, v3 offset:{4096+i*NC*4}")
    a("s_waitcnt lgkmcnt(0)")
    for st in [16, 8, 4, 2, 1]:
        for i in range(st):
            a(f"v_add_f32 v{32+i}, v{32+i}, v{32+i+st}")
    if NC == 32:
        a("v_mov_b32 v33, v32")
        a("v_permlane32_swap_b32 v32, v33")
        a("v_add_f32 v32, v32, v33")
    bf16_round_f32(a, 32, 32)
    sdiv(a, 22, 44, 576 // NC)
    a("s_cmp_eq_u32 s22, 1")
    a("s_cselect_b32 s23, 1, 0")
    a("s_cmp_eq_u32 s22, 4")
    a("s_cselect_b32 s23, 1, s23")
    lskip = f"{tag}_noone"
    a("s_cmp_eq_u32 s23, 0")
    a(f"s_cbranch_scc1 {lskip}")
    a("v_add_f32 v32, 1.0, v32")
    bf16_round_f32(a, 32, 32)
    a.label(lskip)
    a(f"s_mul_i32 s22, s44, {NC*4}")
    a("buffer_store_dword v32, v9, s[16:19], s22 offen " + MSC())
    a.label(lend)
    endtask(a)

def gather(a, addr):
    for u in range(9):
        for j in range(8):
            a(f"ds_read_u16 v{72+j}, {addr(u, j)}")
        a("s_waitcnt lgkmcnt(0)")
        for jp in range(4):
            a(f"v_lshl_or_b32 v{32+4*u+jp}, v{72+2*jp+1}, 16, v{72+2*jp}")

def gen_ldsshuf(a, tag, do_qkv, do_wo):
    load_ptr(a, 4, KA_WQKV); load_ptr(a, 6, KA_WO); load_ptr(a, 20, KA_WS)
    a("v_and_b32 v1, 63, v0           ; lane")
    a("s_mul_i32 s24, s22, 9216")
    for i in range(9):
        a(f"v_add_u32 v2, {i*64}, v1")
        a(f"v_mul_u32_u24 v{10+i}, 3641, v2")
        a(f"v_lshrrev_b32 v{10+i}, 16, v{10+i}      ; row")
        a(f"v_mul_u32_u24 v3, 18, v{10+i}")
        a(f"v_sub_u32 v{20+i}, v2, v3              ; cc")
    a("v_and_b32 v4, 15, v1           ; m")
    a("v_lshrrev_b32 v5, 4, v1        ; g")
    a("v_lshlrev_b32 v6, 4, v1        ; lane*16")
    a("v_add_u32 v7, s24, v6")
    a("v_mul_u32_u24 v8, 2304, v5     ; g*8*288")
    a("v_add_u32 v8, s24, v8")
    a("s_waitcnt lgkmcnt(0)")
    if do_qkv: shuf_qkv(a)
    if do_wo: shuf_wo(a, tag)

def shuf_qkv(a):
    srd(a, 8, 4, 576*3456); srd(a, 12, 20, SZ_WQKV, WS_WQKV)
    sdiv(a, 25, 23, 12, 26, 27)
    a("s_lshr_b32 s27, s26, 2         ; sec")
    a("s_and_b32 s28, s26, 3          ; oct")
    a(f"s_mul_i32 s29, s25, {32*3456}")
    a("s_mul_i32 s30, s27, 1152")
    a("s_add_u32 s29, s29, s30")
    a("s_mul_i32 s30, s28, 288")
    a("s_add_u32 s29, s29, s30        ; soffset")
    for i in range(9):
        a(f"v_mul_u32_u24 v2, 3456, v{10+i}")
        a(f"v_lshl_add_u32 v2, v{20+i}, 4, v2")
        a(f"buffer_load_dwordx4 {vr(32+4*i)}, v2, s[8:11], s29 offen")
    NX = extra_loads(a)
    for i in range(9):
        a(f"s_waitcnt vmcnt({8-i+NX})")
        a(f"ds_write_b128 v7, {vr(32+4*i)} offset:{i*1024}")
    a("v_lshl_add_u32 v2, v4, 1, v8   ; main: + m*2")
    a("v_lshrrev_b32 v3, 1, v4")
    a("v_mul_u32_u24 v3, 36, v3")
    a("v_and_b32 v9, 1, v4")
    a("v_lshl_add_u32 v3, v9, 1, v3")
    a("v_add_u32 v3, 32, v3")
    a("v_add_u32 v3, v3, v8           ; ext")
    a("s_waitcnt lgkmcnt(0)")
    gather(a, lambda u, j: (f"v2 offset:{j*288 + 36*u}" if u < 8 else f"v3 offset:{j*288}"))
    a("s_lshl_b32 s30, s27, 4")
    a("s_lshl_b32 s31, s28, 2")
    a("s_add_u32 s30, s30, s31")
    a("s_mul_i32 s30, s30, 18")
    a("s_add_u32 s30, s30, s25")
    a("s_lshl_b32 s30, s30, 11        ; (tau*18+t)*2048")
    a("s_lshl_b32 s31, s27, 1")
    a("s_lshr_b32 s33, s28, 1")
    a("s_add_u32 s31, s31, s33")
    a("s_add_u32 s31, s31, 48")
    a("s_mul_i32 s31, s31, 18")
    a("s_add_u32 s31, s31, s25")
    a("s_lshl_b32 s31, s31, 11")
    a("s_and_b32 s33, s28, 1")
    a("s_lshl_b32 s33, s33, 10")
    a("s_add_u32 s31, s31, s33")
    a("s_waitcnt lgkmcnt(0)")
    for u in range(8):
        a(f"s_add_u32 s33, s30, {(u>>1)*18*2048 + (u&1)*1024}")
        a(f"buffer_store_dwordx4 {vr(32+4*u)}, v6, s[12:15], s33 offen " + SC("K1SC", "1"))
    a(f"buffer_store_dwordx4 {vr(64)}, v6, s[12:15], s31 offen " + SC("K1SC", "1"))
    endtask(a)

def shuf_wo(a, tag):
    srd(a, 8, 6, 576*1152); srd(a, 12, 20, SZ_WO, WS_WO)
    a("s_lshr_b32 s25, s23, 2         ; t")
    a("s_and_b32 s28, s23, 3          ; ng")
    a("s_mul_i32 s29, s28, 288")
    lext = f"{tag}_wo_ext"; lj = f"{tag}_wo_j"
    a("s_cmp_ge_u32 s25, 16")
    a(f"s_cbranch_scc1 {lext}")
    for i in range(9):
        a(f"v_lshrrev_b32 v2, 4, v{10+i}")
        a(f"v_mul_u32_u24 v2, 18, v2")
        a(f"v_and_b32 v3, 15, v{10+i}")
        a(f"v_add_u32 v{10+i}, v2, v3")
    a("s_mul_i32 s30, s25, 36         ; 18*2t")
    a(f"s_branch {lj}")
    a.label(lext)
    for i in range(9):
        a(f"v_lshrrev_b32 v2, 1, v{10+i}")
        a(f"v_mul_u32_u24 v2, 18, v2")
        a(f"v_and_b32 v3, 1, v{10+i}")
        a(f"v_add_u32 v{10+i}, v2, v3")
    a("s_sub_u32 s30, s25, 16")
    a("s_mul_i32 s30, s30, 288        ; 18*16e")
    a("s_add_u32 s30, s30, 16")
    a.label(lj)
    a("s_mul_i32 s30, s30, 1152")
    a("s_add_u32 s29, s29, s30")
    for i in range(9):
        a(f"v_mul_u32_u24 v2, 1152, v{10+i}")
        a(f"v_lshl_add_u32 v2, v{20+i}, 4, v2")
        a(f"buffer_load_dwordx4 {vr(32+4*i)}, v2, s[8:11], s29 offen")
    for i in range(9):
        a(f"s_waitcnt vmcnt({8-i})")
        a(f"ds_write_b128 v7, {vr(32+4*i)} offset:{i*1024}")
    a("v_lshl_add_u32 v2, v4, 1, v8")
    a("s_waitcnt lgkmcnt(0)")
    gather(a, lambda u, j: f"v2 offset:{j*288 + 32*u}")
    a("s_mul_i32 s30, s28, 162        ; ng*9*18")
    a("s_add_u32 s30, s30, s25")
    a("s_lshl_b32 s30, s30, 10")
    a("s_waitcnt lgkmcnt(0)")
    for u in range(9):
        a(f"s_add_u32 s33, s30, {u*18*1024}")
        a(f"buffer_store_dwordx4 {vr(32+4*u)}, v6, s[12:15], s33 offen " + SC("K1SC", "1"))
    endtask(a)

def perm_consts(a):
    a("s_mov_b32 s40, 0x05040100")
    a("s_mov_b32 s41, 0x07060302")

def w13_task(a, s_id, vb, wt=''):
    sdiv(a, 25, s_id, 648, 26, 27)
    sdiv(a, 27, 26, 18, 28, 29)
    a(f"s_mul_i32 s29, s28, {32*9216}")
    a("s_lshl_b32 s30, s27, 8")
    a("s_add_u32 s29, s29, s30        ; soffset")
    l3 = a.newlabel("w3"); lj = a.newlabel("w13j")
    vin = vb+4; vout = vb+36
    a("s_cmp_eq_u32 s25, 1")
    a(f"s_cbranch_scc1 {l3}")
    for j in range(8):
        a(f"buffer_load_dwordx4 {vr(vin+4*j)}, v{vb+1}, s[8:11], s29 offen")
        if j < 7: a("s_add_u32 s29, s29, 9216")
    a(f"s_branch {lj}")
    a.label(l3)
    for j in range(8):
        a(f"buffer_load_dwordx4 {vr(vin+4*j)}, v{vb+1}, s[12:15], s29 offen")
        if j < 7: a("s_add_u32 s29, s29, 9216")
    a.label(lj)
    sdiv(a, 30, 27, 3, 31, 33)
    a("s_mul_i32 s30, s30, 110592")
    a("s_mul_i32 s33, s28, 6144")
    a("s_add_u32 s30, s30, s33")
    a("s_lshl_b32 s31, s31, 1")
    a("s_add_u32 s31, s31, s25")
    a("s_lshl_b32 s31, s31, 10")
    a("s_add_u32 s30, s30, s31")
    a("s_waitcnt vmcnt(0)")
    for i in range(8):
        for jp in range(4):
            sel = "s41" if i & 1 else "s40"
            a(f"v_perm_b32 v{vout+4*i+jp}, v{vin+4*(2*jp+1)+(i>>1)}, v{vin+4*(2*jp)+(i>>1)}, {sel}")
        a(f"buffer_store_dwordx4 {vr(vout+4*i)}, v{vb}, s[16:19], s30 offen {wt}")
        if i < 7: a(f"s_add_u32 s30, s30, {SZ_W13S}")

def w2_task(a, s_id, vb, wt='', srd_in=8, srd_out=16):
    sdiv(a, 25, s_id, 108, 26, 27)
    sdiv(a, 27, 26, 6, 28, 29)
    a("s_lshl_b32 s29, s27, 8")
    a("s_add_u32 s29, s29, s25")
    a("s_mul_i32 s29, s29, 1152")
    a("s_mul_i32 s30, s28, 192")
    a("s_add_u32 s29, s29, s30")
    vin = vb+4; vout = vb+36
    for v in range(2):
        for j in range(4):
            a(f"s_add_u32 s30, s29, {(128*v+8*j)*1152}")
            a(f"buffer_load_dwordx3 {vr(vin+4*(4*v+j),3)}, v{vb+2}, s[{srd_in}:{srd_in+3}], s30 offen")
    a(f"s_mul_i32 s30, s25, {SZ_W2S}")
    a("s_mul_i32 s31, s28, 110592")
    a("s_add_u32 s30, s30, s31")
    a("s_mul_i32 s31, s27, 3072")
    a("s_add_u32 s30, s30, s31")
    a("s_waitcnt vmcnt(0)")
    for i in range(6):
        for v in range(2):
            for jj in range(2):
                sel = "s41" if i & 1 else "s40"
                a(f"v_perm_b32 v{vout+4*i+2*v+jj}, v{vin+4*(4*v+2*jj+1)+(i>>1)}, v{vin+4*(4*v+2*jj)+(i>>1)}, {sel}")
        a(f"s_add_u32 s31, s30, {(i//3)*55296 + (i%3)*1024}")
        a(f"buffer_store_dwordx4 {vr(vout+4*i)}, v{vb}, s[{srd_out}:{srd_out+3}], s31 offen {wt}")

def shuffle_lane_setup(a, vb):
    a(f"v_and_b32 v{vb+3}, 63, v0")
    a(f"v_lshlrev_b32 v{vb}, 4, v{vb+3}          ; lane*16")
    a(f"v_lshrrev_b32 v{vb+1}, 4, v{vb+3}        ; g")
    a(f"v_and_b32 v{vb+3}, 15, v{vb+3}           ; m")
    a(f"v_mul_u32_u24 v{vb+2}, {32*1152}, v{vb+1}")
    a(f"v_mad_u32_u24 v{vb+2}, v{vb+3}, 12, v{vb+2}   ; w2 voffset")
    a(f"v_mul_u32_u24 v{vb+1}, {8*9216}, v{vb+1}")
    a(f"v_lshl_add_u32 v{vb+1}, v{vb+3}, 4, v{vb+1}   ; w13 voffset")

def gen_w13(a):
    load_ptr(a, 4, KA_W1); load_ptr(a, 6, KA_W3); load_ptr(a, 20, KA_WS)
    wave_id(a, 22, 1)
    a(f"s_sub_u32 s23, s2, {B_W13}")
    a("s_lshl_b32 s23, s23, 2")
    a("s_add_u32 s23, s23, s22")
    shuffle_lane_setup(a, 4)
    perm_consts(a)
    a("s_waitcnt lgkmcnt(0)")
    srd(a, 8, 4, 576*9216); srd(a, 12, 6, 576*9216); srd(a, 16, 20, SZ_W13, WS_W13)
    w13_task(a, 23, 4)
    a("s_endpgm")

def gen_w2(a):
    load_ptr(a, 4, KA_W2); load_ptr(a, 20, KA_WS)
    wave_id(a, 22, 1)
    a(f"s_sub_u32 s23, s2, {B_W2}")
    a("s_lshl_b32 s23, s23, 2")
    a("s_add_u32 s23, s23, s22")
    shuffle_lane_setup(a, 4)
    perm_consts(a)
    a("s_waitcnt lgkmcnt(0)")
    srd(a, 8, 4, 4608*1152); srd(a, 16, 20, SZ_W2, WS_W2)
    w2_task(a, 23, 4)
    a("s_endpgm")

def gen_ones(a, fused=False):
    load_ptr(a, 20, KA_WS)
    if not fused: a(f"s_sub_u32 s23, s2, {B_ONES}")
    a("s_cmp_eq_u32 s23, 0\ns_cselect_b32 s25, 1, 0")
    a(f"s_mul_i32 s23, s23, {KVH}")
    a(f"s_add_u32 s23, s23, {KV_V+18*16}")
    a("v_and_b32 v2, 255, v0")
    a("v_mul_u32_u24 v1, 304, v2")
    for i in range(4): a(f"v_mov_b32 v{4+i}, 0x3f803f80")
    a("s_waitcnt lgkmcnt(0)")
    srd(a, 8, 20, SZ_KV, WS_KV)
    a("buffer_store_dwordx4 v[4:7], v1, s[8:11], s23 offen")
    a(f"s_cmp_eq_u32 s25, 0\ns_cbranch_scc1 k1_ones_end")
    srd(a, 12, 20, SZ_CNT, WS_CNT)
    a("v_lshlrev_b32 v1, 9, v2")
    a("v_mov_b32 v8, 0")
    a("buffer_store_dword v8, v1, s[12:15], 0 offen sc0 sc1")
    a.label("k1_ones_end")
    endtask(a)

def gen_xn(a, fused=False):
    load_ptr(a, 4, KA_X); load_ptr(a, 20, KA_WS)
    if not fused: wave_id(a, 22, 1)
    a("v_and_b32 v1, 63, v0")
    a("v_and_b32 v2, 15, v1           ; tok")
    a("v_lshrrev_b32 v3, 4, v1        ; g")
    a("v_lshlrev_b32 v4, 4, v1        ; lane*16")
    if not fused: a(f"s_sub_u32 s23, s2, {B_XN}")
    a("s_lshr_b32 s26, s22, 1")
    a("s_and_b32 s26, s26, 1          ; tbl")
    a("s_and_b32 s27, s22, 1          ; half")
    a("v_mul_u32_u24 v5, 1152, v2")
    a("v_lshl_add_u32 v5, v3, 4, v5")
    a(f"s_mul_i32 s28, s23, {32*1152}")
    a(f"s_mul_i32 s29, s26, {16*1152}")
    a("s_add_u32 s28, s28, s29")
    a("s_mul_i32 s29, s27, 576")
    a("s_add_u32 s28, s28, s29")
    a("s_waitcnt lgkmcnt(0)")
    srd(a, 8, 4, SZ_X); srd(a, 12, 20, SZ_XN, WS_XN)
    VX=16; VS=56; VQ=57; VT=58; RS=60; TT=64; VO=72
    for i in range(9):
        a(f"buffer_load_dwordx4 {vr(VX+4*i)}, v5, s[8:11], s28 offen offset:{i*64}")
    a("s_mov_b32 s30, 0x3f803f80")
    a("s_waitcnt vmcnt(0)")
    ln_stats(a, VX, 36, VS, VQ, 30)
    xsum16_32(a, VS, VT); xsum16_32(a, VQ, VT)
    a("s_lshl_b32 s28, s22, 7")
    a("v_lshlrev_b32 v6, 3, v2")
    a("v_add_u32 v7, s28, v6")
    a(f"ds_write_b64 v7, {vr(VS,2)}")
    a("s_waitcnt lgkmcnt(0)")
    a("s_barrier")
    a("s_xor_b32 s28, s22, 1")
    a("s_lshl_b32 s28, s28, 7")
    a("v_add_u32 v7, s28, v6")
    a(f"ds_read_b64 {vr(VT,2)}, v7")
    a("s_waitcnt lgkmcnt(0)")
    a(f"v_add_f32 v{VS}, v{VS}, v{VT}")
    a(f"v_add_f32 v{VQ}, v{VQ}, v{VT+1}")
    ln_finish(a, VS, VQ, RS, RS+2)
    a(f"v_mov_b32 v{RS+1}, v{RS}")
    a(f"v_mov_b32 v{RS+3}, v{RS+2}")
    a("s_lshr_b32 s28, s23, 1")
    a("s_mul_i32 s28, s28, 73728")
    a("s_and_b32 s29, s23, 1")
    a("s_lshl_b32 s29, s29, 1")
    a("s_add_u32 s29, s29, s26")
    a("s_lshl_b32 s29, s29, 10")
    a("s_add_u32 s28, s28, s29")
    a(f"s_mul_i32 s29, s27, {9*4096}")
    a("s_add_u32 s28, s28, s29")
    for i in range(9):
        o = VO + 4*(i & 1)
        chunk_unpack(a, VX+4*i, TT); chunk_norm(a, TT, RS); chunk_pack(a, TT, o)
        a(f"buffer_store_dwordx4 {vr(o)}, v4, s[12:15], s28 offen " + SC("K1SC", "1"))
        if i < 8: a("s_add_u32 s28, s28, 4096")
    endtask(a)

def gen_poison(a, fused=False):
    load_ptr(a, 20, KA_WS)
    if not fused: a(f"s_sub_u32 s23, s2, {B_POIS}")
    a("v_and_b32 v1, 255, v0")
    a("v_lshlrev_b32 v1, 4, v1")
    for i in range(4): a(f"v_mov_b32 v{4+i}, -1")
    a("s_waitcnt lgkmcnt(0)")
    srd(a, 8, 20, SZ_OM + SZ_OE, WS_OM)
    assert WS_OE == WS_OM + SZ_OM and SZ_OM + SZ_OE == 36*65536
    a("s_lshl_b32 s24, s23, 16")
    for i in range(16):
        a(f"buffer_store_dwordx4 v[4:7], v1, s[8:11], s24 offen sc0 sc1")
        if i < 15: a("s_add_u32 s24, s24, 4096")
    endtask(a)

def gen_k1():
    a = Asm()
    a(f"s_cmp_lt_u32 s2, {B_LS}\ns_cbranch_scc1 k1_mod")
    a(f"s_cmp_lt_u32 s2, {B_W13}\ns_cbranch_scc1 k1_ls")
    a(f"s_cmp_lt_u32 s2, {B_XN}\ns_cbranch_scc1 k1_ones")
    a(f"s_cmp_lt_u32 s2, {B_POIS}\ns_cbranch_scc1 k1_xn")
    a(f"s_cmp_lt_u32 s2, {K1_NWG}\ns_cbranch_scc1 k1_pois")
    a("s_endpgm")
    a.label("k1_mod")
    a("s_mov_b32 s44, s2\ns_mov_b32 s45, 0")
    gen_mod(a, "k1", MODNC if SIDE == 'k2' else 64)
    a.label("k1_ls")
    wave_id(a, 22, 1)
    a(f"s_sub_u32 s23, s2, {B_LS}")
    a("s_lshl_b32 s23, s23, 2")
    a("s_add_u32 s23, s23, s22        ; task")
    if SIDE == 'k2':
        gen_ldsshuf(a, "k1", True, False)
    else:
        a("s_cmp_ge_u32 s23, 216\ns_cbranch_scc1 k1_lswo")
        gen_ldsshuf(a, "k1", True, False)
        a.label("k1_lswo")
        a("s_sub_u32 s23, s23, 216")
        gen_ldsshuf(a, "k1b", False, True)
    a.label("k1_ones"); gen_ones(a)
    a.label("k1_xn"); gen_xn(a)
    a.label("k1_pois"); gen_poison(a)
    return kernel("k1_prep_kernel", a, vgpr=112, sgpr=64), (K1_NWG, 256, K1_LDS)


def w13_load(a, tag, s_id, vb, vin, sdst):
    sdiv(a, 25, s_id, 648, 26, 27)
    sdiv(a, 27, 26, 18, 28, 29)
    a(f"s_mul_i32 s29, s28, {32*9216}")
    a("s_lshl_b32 s30, s27, 8")
    a("s_add_u32 s29, s29, s30        ; soffset")
    a(f"s_cmp_eq_u32 s25, 1\ns_cbranch_scc1 {tag}_w3")
    for j in range(8):
        a(f"buffer_load_dwordx4 {vr(vin+4*j)}, v{vb+1}, s[8:11], s29 offen")
        if j < 7: a("s_add_u32 s29, s29, 9216")
    a(f"s_branch {tag}_j")
    a.label(f"{tag}_w3")
    for j in range(8):
        a(f"buffer_load_dwordx4 {vr(vin+4*j)}, v{vb+1}, s[12:15], s29 offen")
        if j < 7: a("s_add_u32 s29, s29, 9216")
    a.label(f"{tag}_j")
    sdiv(a, 30, 27, 3, 31, 33)
    a("s_mul_i32 s30, s30, 110592")
    a("s_mul_i32 s33, s28, 6144")
    a("s_add_u32 s30, s30, s33")
    a("s_lshl_b32 s31, s31, 1")
    a("s_add_u32 s31, s31, s25")
    a("s_lshl_b32 s31, s31, 10")
    a(f"s_add_u32 s{sdst}, s30, s31")
def w13_finish(a, vb, vin, vout, sdst):
    for i in range(8):
        for jp in range(4):
            sel = "s41" if i & 1 else "s40"
            a(f"v_perm_b32 v{vout+4*i+jp}, v{vin+4*(2*jp+1)+(i>>1)}, v{vin+4*(2*jp)+(i>>1)}, {sel}")
        a(f"buffer_store_dwordx4 {vr(vout+4*i)}, v{vb}, s[16:19], s{sdst} offen sc0 sc1")
        if i < 7: a(f"s_add_u32 s{sdst}, s{sdst}, {SZ_W13S}")
def w2_load(a, s_id, vb, vin, sdst):
    sdiv(a, 25, s_id, 108, 26, 27)
    sdiv(a, 27, 26, 6, 28, 29)
    a("s_lshl_b32 s29, s27, 8")
    a("s_add_u32 s29, s29, s25")
    a("s_mul_i32 s29, s29, 1152")
    a("s_mul_i32 s30, s28, 192")
    a("s_add_u32 s29, s29, s30")
    for v in range(2):
        for j in range(4):
            a(f"s_add_u32 s30, s29, {(128*v+8*j)*1152}")
            a(f"buffer_load_dwordx3 {vr(vin+4*(4*v+j),3)}, v{vb+2}, s[44:47], s30 offen")
    a(f"s_mul_i32 s30, s25, {SZ_W2S}")
    a("s_mul_i32 s31, s28, 110592")
    a("s_add_u32 s30, s30, s31")
    a("s_mul_i32 s31, s27, 3072")
    a(f"s_add_u32 s{sdst}, s30, s31")
def w2_finish(a, vb, vin, vout, sdst):
    for i in range(6):
        for v in range(2):
            for jj in range(2):
                sel = "s41" if i & 1 else "s40"
                a(f"v_perm_b32 v{vout+4*i+2*v+jj}, v{vin+4*(4*v+2*jj+1)+(i>>1)}, v{vin+4*(4*v+2*jj)+(i>>1)}, {sel}")
        a(f"s_add_u32 s31, s{sdst}, {(i//3)*55296 + (i%3)*1024}")
        a(f"buffer_store_dwordx4 {vr(vout+4*i)}, v{vb}, s[48:51], s31 offen sc0 sc1")
```

```python
from common import *
from k1 import gen_mod, gen_ldsshuf, SIDE
K2_LDS = 73728 + 8*4096
WLATE = ENV('K2WLATE', '0')
L_MOD = 73728
QSCALE = 0x3eae1a4e
import struct, math
QSCALE = struct.unpack("<I", struct.pack("<f", math.log2(math.e)/math.sqrt(18.0)))[0]
EPS = struct.unpack("<I", struct.pack("<f", 1e-5))[0]
INV576 = struct.unpack("<I", struct.pack("<f", 1.0/576))[0]

def gen_k2():
    a = Asm()
    a("s_cmp_ge_u32 s2, 256\ns_cbranch_scc1 k2_exit")
    qkv_body(a, False)
    return kernel("k2_qkv_kernel", a, vgpr=152, sgpr=64), (256, 512, K2_LDS)

def tile_map(a):
    a("s_and_b32 s25, s2, 7")
    a("s_lshr_b32 s26, s2, 3")
    a("s_lshr_b32 s24, s25, 1")
    a("s_lshl_b32 s24, s24, 3")
    a("s_and_b32 s27, s26, 7")
    a("s_add_u32 s24, s24, s27        ; rb")
    a("s_and_b32 s23, s25, 1")
    a("s_lshl_b32 s23, s23, 2")
    a("s_lshr_b32 s27, s26, 3")
    a("s_add_u32 s23, s23, s27        ; slice")

_sid = [0]
def out_store(a, text):
    m = ENV("K2SC", "0")
    if m == "2":
        _sid[0] += 1; n = _sid[0]
        a(f"s_cmp_lt_u32 s22, 4\ns_cbranch_scc1 k2_st{n}a")
        a(text); a(f"s_branch k2_st{n}b"); a.label(f"k2_st{n}a"); a(text + " sc0 sc1"); a.label(f"k2_st{n}b")
    else:
        a(text + (" sc0 sc1" if m == "1" else ""))

def qkv_body(a, fused):
    LF = " sc1" if fused else ""
    if not fused:
        tile_map(a)
        a("s_cmp_eq_u32 s23, 7\ns_cbranch_scc1 " + ("k2_side" if SIDE == 'k2' else "k2_exit"))
        load_ptr(a, 20, KA_WS)
        wave_id(a, 22, 1)
    VL=1; VTOK=2; VG=3; VL16=4
    a(f"v_and_b32 v{VL}, 63, v0")
    a(f"v_and_b32 v{VTOK}, 15, v{VL}")
    a(f"v_lshrrev_b32 v{VG}, 4, v{VL}")
    a(f"v_lshlrev_b32 v{VL16}, 4, v{VL}")
    a("s_lshl_b32 s25, s23, 3")
    a("s_add_u32 s25, s25, s22        ; tau")
    a("s_lshr_b32 s26, s22, 1         ; tb")
    a("s_and_b32 s27, s22, 1          ; half")
    a("s_waitcnt lgkmcnt(0)")
    srd(a, 8, 20, SZ_XN, WS_XN); srd(a, 12, 20, 4608, WS_MOD); srd(a, 16, 20, SZ_WQKV, WS_WQKV)
    RING=6
    VX=16; VW=52; VACC=100; VT=132
    a(f"s_mul_i32 s28, s27, 1152")
    a(f"buffer_load_dwordx4 {vr(VT)}, v{VL16}, s[12:15], s28 offen" + LF)
    a(f"buffer_load_dwordx4 {vr(VT+4)}, v{VL16}, s[12:15], s28 offen offset:1024" + LF)
    a(f"s_add_u32 s28, s28, 2304")
    a(f"buffer_load_dwordx4 {vr(VT+8)}, v{VL16}, s[12:15], s28 offen" + LF)
    a(f"buffer_load_dwordx4 {vr(VT+12)}, v{VL16}, s[12:15], s28 offen offset:1024" + LF)
    OWNLN = fused and LNIN
    if not OWNLN:
        a("s_mul_i32 s28, s24, 73728")
        a(f"s_mul_i32 s29, s27, {9*4096}")
        a("s_add_u32 s28, s28, s29")
        a("s_lshl_b32 s29, s26, 10")
        a("s_add_u32 s28, s28, s29")
        for i in range(9):
            a(f"buffer_load_dwordx4 {vr(VX+4*i)}, v{VL16}, s[8:11], s28 offen" + LF)
            if i < 8: a("s_add_u32 s28, s28, 4096")
    a(f"s_mul_i32 s40, s25, {18*2048}   ; W stream")
    nw = [0]
    def wload():
        k = nw[0]; nw[0] += 1
        t, uu = k >> 1, k & 1
        a(f"buffer_load_dwordx4 {vr(VW+8*(t % RING)+4*uu)}, v{VL16}, s[16:19], s40 offen offset:{uu*1024}" + LF)
        if uu: a("s_add_u32 s40, s40, 2048")
    a("s_lshl_b32 s28, s22, 12")
    a(f"s_add_u32 s33, s28, {L_MOD}")
    a(f"v_add_u32 v6, s33, v{VL16}")
    a.stamp(1)
    a("s_waitcnt vmcnt(%d)" % (0 if OWNLN else 9))
    for i in range(4): a(f"ds_write_b128 v6, {vr(VT+4*i)} offset:{i*1024}")
    a("s_waitcnt lgkmcnt(0)")
    a.stamp(2)
    VC=[VACC, VACC+16]; VSF=[VACC+8, VACC+24]; VTT=VT; VO=VT+8
    a(f"v_lshlrev_b32 v8, 5, v{VG}")
    a(f"v_add_u32 v8, s33, v8")
    a(f"s_mul_i32 s28, s27, {9*4096}")
    a(f"s_lshl_b32 s29, s26, 10")
    a(f"s_add_u32 s28, s28, s29")
    a(f"v_add_u32 v9, s28, v{VL16}")
    def modread(i):
        b = i & 1
        a(f"ds_read_b128 {vr(VSF[b])}, v8 offset:{i*128}")
        a(f"ds_read_b128 {vr(VSF[b]+4)}, v8 offset:{i*128 + 16}")
        a(f"ds_read_b128 {vr(VC[b])}, v8 offset:{2048 + i*128}")
        a(f"ds_read_b128 {vr(VC[b]+4)}, v8 offset:{2048 + i*128 + 16}")
    modread(0)
    for i in range(9):
        if i < 8: modread(i+1)
        if OWNLN: a(f"s_waitcnt lgkmcnt({4 if i < 8 else 0})")
        else: a(f"s_waitcnt vmcnt({8-i+nw[0]}) lgkmcnt({4 if i < 8 else 0})")
        if i == 0: a.stamp(3)
        chunk_unpack(a, VX+4*i, VTT); chunk_mod(a, VTT, VC[i&1], VSF[i&1]); chunk_pack(a, VTT, VO+4*(i&1))
        a(f"ds_write_b128 v9, {vr(VO+4*(i&1))} offset:{i*4096}")
        if WLATE == "0": wload()
    a.stamp(5)
    while nw[0] < 2*RING: wload()
    a("s_waitcnt lgkmcnt(0)")
    a("s_barrier")
    a.stamp(4)
    a("s_cmp_ge_u32 s25, 54\ns_cbranch_scc1 k2_exit")
    XB=[VX, VX+16]
    def xreads(t):
        b = XB[t & 1]
        for tb in range(4):
            off = t*4096 + tb*1024
            if off < 65536: a(f"ds_read_b128 {vr(b+4*tb)}, v{VL16} offset:{off}")
            else:           a(f"ds_read_b128 {vr(b+4*tb)}, v10 offset:{off-65536}")
    def gemm(vtype):
        nw[0] = 2*RING
        a("s_mov_b32 s41, s40")
        a(f"v_add_u32 v10, 0x10000, v{VL16}")
        xreads(0)
        for t in range(18):
            if t < 17: xreads(t+1)
            issued = min(18, t + RING)
            a(f"s_waitcnt vmcnt({2*(issued-t-1)}) lgkmcnt({4 if t < 17 else 0})")
            b = XB[t & 1]
            for uu in range(2):
                for tb in range(4):
                    acc = VACC + 16*uu + 4*tb
                    c = vr(acc) if t else "0"
                    w = vr(VW+8*(t % RING)+4*uu); x = vr(b+4*tb)
                    if vtype: a(f"v_mfma_f32_16x16x32_bf16 {vr(acc)}, {x}, {w}, {c}")
                    else:     a(f"v_mfma_f32_16x16x32_bf16 {vr(acc)}, {w}, {x}, {c}")
                if t + RING < 18:
                    a(f"buffer_load_dwordx4 {vr(VW+8*(t % RING)+4*uu)}, v{VL16}, s[16:19], s41 offen offset:{uu*1024}" + LF)
            if t + RING < 18: a("s_add_u32 s41, s41, 2048")
    a("s_cmp_ge_u32 s25, 52\ns_cbranch_scc1 k2_gv")
    a("s_cmp_ge_u32 s25, 48\ns_cbranch_scc1 k2_gq")
    a("s_cmp_ge_u32 s25, 32\ns_cbranch_scc1 k2_gv")
    a.label("k2_gq")
    gemm(False)
    a.stamp(6)
    srd(a, 8, 20, SZ_QA, WS_QA); srd(a, 12, 20, SZ_QB, WS_QB); srd(a, 16, 20, SZ_KV, WS_KV)
    a("s_cmp_ge_u32 s25, 48\ns_cbranch_scc1 k2_ext")
    def pack_pair16(acc0, acc1, o):
        a(f"v_cvt_pk_bf16_f32 v{o}, v{acc0}, v{acc0+1}")
        a(f"v_cvt_pk_bf16_f32 v{o+1}, v{acc0+2}, v{acc0+3}")
        a(f"v_cvt_pk_bf16_f32 v{o+2}, v{acc1}, v{acc1+1}")
        a(f"v_cvt_pk_bf16_f32 v{o+3}, v{acc1+2}, v{acc1+3}")
    a("s_lshl_b32 s28, s24, 11")
    a("s_cmp_ge_u32 s25, 16\ns_cbranch_scc1 k2_kmain")
    a(f"s_mov_b32 s33, {QSCALE:#x}")
    a("s_lshl_b32 s29, s25, 17")
    a("s_add_u32 s28, s28, s29")
    for uu in range(2):
        for tl in range(2):
            acc = VACC+16*uu+8*tl; o = VT+4*((2*uu+tl)&3)
            for j in range(8): a(f"v_mul_f32 v{acc+j}, s33, v{acc+j}")
            pack_pair16(acc, acc+4, o)
            a(f"v_permlane16_swap_b32 v{o}, v{o+2}")
            a(f"v_permlane16_swap_b32 v{o+1}, v{o+3}")
            a(f"s_add_u32 s29, s28, {uu*65536 + tl*1024}")
            out_store(a, f"buffer_store_dwordx4 {vr(o)}, v{VL16}, s[8:11], s29 offen")
    a("s_endpgm")
    a.label("k2_kmain")
    a("s_sub_u32 s29, s25, 16")
    a(f"s_mul_i32 s29, s29, {2*KVH}")
    a("s_add_u32 s28, s28, s29")
    for uu in range(2):
        for tl in range(2):
            acc = VACC+16*uu+8*tl; o = VT+4*((2*uu+tl)&3)
            pack_pair16(acc, acc+4, o)
            a(f"v_permlane16_swap_b32 v{o}, v{o+2}")
            a(f"v_permlane16_swap_b32 v{o+1}, v{o+3}")
            a(f"s_add_u32 s29, s28, {uu*KVH + KV_KA + tl*1024}")
            out_store(a, f"buffer_store_dwordx4 {vr(o)}, v{VL16}, s[16:19], s29 offen")
    a("s_endpgm")
    a.label("k2_ext")
    a("s_cmp_ge_u32 s25, 50\ns_cbranch_scc1 k2_kext")
    a(f"s_mov_b32 s33, {QSCALE:#x}")
    a(f"v_lshlrev_b32 v5, 15, v{VG}               ; 2g heads * 16384")
    a(f"v_lshl_add_u32 v5, v{VTOK}, 3, v5")
    a("s_sub_u32 s29, s25, 48")
    a("s_lshl_b32 s29, s29, 18")
    a("s_lshl_b32 s28, s24, 9         ; rb*64*8")
    a("s_add_u32 s28, s28, s29")
    a(f"v_mov_b32 v{VT+1}, 0")
    a(f"v_mov_b32 v{VT+3}, 0")
    for uu in range(2):
        for tb in range(4):
            acc = VACC+16*uu+4*tb
            for j in range(4): a(f"v_mul_f32 v{acc+j}, s33, v{acc+j}")
            a(f"v_cvt_pk_bf16_f32 v{VT}, v{acc}, v{acc+1}")
            a(f"v_cvt_pk_bf16_f32 v{VT+2}, v{acc+2}, v{acc+3}")
            a(f"s_add_u32 s29, s28, {uu*8*16384 + tb*128}")
            a(f"buffer_store_dwordx2 {vr(VT,2)}, v5, s[12:15], s29 offen")
            a(f"s_add_u32 s29, s29, 16384")
            a(f"buffer_store_dwordx2 {vr(VT+2,2)}, v5, s[12:15], s29 offen")
    a("s_endpgm")
    a.label("k2_kext")
    a(f"v_mul_u32_u24 v5, {2*KVH}, v{VG}")
    a(f"v_lshl_add_u32 v5, v{VTOK}, 3, v5")
    a("s_sub_u32 s29, s25, 50")
    a(f"s_mul_i32 s29, s29, {16*KVH}")
    a("s_lshl_b32 s28, s24, 9")
    a("s_add_u32 s28, s28, s29")
    a(f"v_mov_b32 v{VT+1}, 0x3f80")
    a(f"v_mov_b32 v{VT+3}, 0x3f80")
    for uu in range(2):
        for tb in range(4):
            acc = VACC+16*uu+4*tb
            a(f"v_cvt_pk_bf16_f32 v{VT}, v{acc}, v{acc+1}")
            a(f"v_cvt_pk_bf16_f32 v{VT+2}, v{acc+2}, v{acc+3}")
            a(f"s_add_u32 s29, s28, {uu*8*KVH + KV_KB + tb*128}")
            a(f"buffer_store_dwordx2 {vr(VT,2)}, v5, s[16:19], s29 offen")
            a(f"s_add_u32 s29, s29, {KVH}")
            a(f"buffer_store_dwordx2 {vr(VT+2,2)}, v5, s[16:19], s29 offen")
    a("s_endpgm")
    a.label("k2_gv")
    gemm(True)
    srd(a, 16, 20, SZ_KV, WS_KV)
    a(f"v_and_b32 v6, 1, v{VG}")
    a(f"v_mul_u32_u24 v5, 304, v6")
    a(f"v_lshrrev_b32 v6, 1, v{VG}")
    a(f"v_mul_u32_u24 v6, 608, v6")
    a(f"v_add_u32 v5, v5, v6")
    a(f"s_mul_i32 s28, s24, {2*1216}")
    a("s_cmp_ge_u32 s25, 52\ns_cbranch_scc1 k2_vext")
    a(f"v_lshl_add_u32 v5, v{VTOK}, 4, v5          ; d = m")
    a("s_sub_u32 s29, s25, 32")
    a(f"s_mul_i32 s29, s29, {2*KVH}")
    a("s_add_u32 s28, s28, s29")
    a(f"s_mov_b32 s31, {KVH}")
    a("s_branch k2_vstore")
    a.label("k2_vext")
    a(f"v_lshrrev_b32 v6, 1, v{VTOK}")
    a(f"v_mul_u32_u24 v6, {KVH}, v6")
    a(f"v_add_u32 v5, v5, v6")
    a(f"v_and_b32 v6, 1, v{VTOK}")
    a(f"v_lshl_add_u32 v5, v6, 4, v5")
    a(f"v_add_u32 v5, 256, v5                      ; d = 16 + (m&1)")
    a("s_sub_u32 s29, s25, 52")
    a(f"s_mul_i32 s29, s29, {16*KVH}")
    a("s_add_u32 s28, s28, s29")
    a(f"s_mov_b32 s31, {8*KVH}")
    a.label("k2_vstore")
    for uu in range(2):
        for tl in range(2):
            acc = VACC+16*uu+8*tl; o = VT+4*((2*uu+tl)&3)
            pack_pair16(acc, acc+4, o)
            a(f"v_permlane32_swap_b32 v{o}, v{o+2}")
            a(f"v_permlane32_swap_b32 v{o+1}, v{o+3}")
            a(f"s_add_u32 s29, s28, {KV_V + tl*1216}")
            out_store(a, f"buffer_store_dwordx4 {vr(o)}, v5, s[16:19], s29 offen")
        if uu == 0: a("s_add_u32 s28, s28, s31")
    a("s_endpgm")
    if not fused:
        a.label("k2_side")
        wave_id(a, 22, 1)
        a("s_cmp_ge_u32 s24, 18\ns_cbranch_scc1 k2_side_wo")
        a("s_lshr_b32 s45, s22, 2")
        a("s_lshl_b32 s44, s24, 1")
        a("s_add_u32 s44, s44, s45")
        a("s_add_u32 s44, s44, 18")
        a("s_mul_i32 s45, s45, 12288")
        gen_mod(a, "k2")
        a.label("k2_side_wo")
        a("s_sub_u32 s23, s24, 18")
        a("s_lshl_b32 s23, s23, 3")
        a("s_add_u32 s23, s23, s22")
        a("s_cmp_ge_u32 s23, 72\ns_cbranch_scc1 k2_exit")
        gen_ldsshuf(a, "k2", False, True)
    a.label("k2_exit")

def own_ln_loads(a, base, q=52):
    load_ptr(a, 54 if False else 56, KA_X)
    a("v_and_b32 v116, 63, v0")
    a("v_and_b32 v117, 15, v116")
    a("v_mul_u32_u24 v117, 1152, v117")
    a("v_lshrrev_b32 v116, 4, v116")
    a("v_lshl_add_u32 v116, v116, 4, v117")
    a("s_and_b32 s58, s2, 7\ns_lshr_b32 s58, s58, 1\ns_lshl_b32 s58, s58, 3")
    a("s_lshr_b32 s59, s2, 3\ns_and_b32 s59, s59, 7\ns_add_u32 s58, s58, s59")
    a(f"s_mul_i32 s58, s58, {64*1152}")
    a(f"s_lshr_b32 s59, s47, 1\ns_mul_i32 s59, s59, {16*1152}\ns_add_u32 s58, s58, s59")
    a("s_and_b32 s59, s47, 1\ns_mul_i32 s59, s59, 576\ns_add_u32 s58, s58, s59")
    a("s_waitcnt lgkmcnt(0)")
    srd(a, q, 56, SZ_X)
    for i in range(9):
        a(f"buffer_load_dwordx4 {vr(base+4*i)}, v116, s[{q}:{q+3}], s58 offen offset:{i*64}")

def own_ln_post(a):
    VL=1; VTOK=2; VX=16; VS=56; VQ=57; VT=58; RS=60; TT=64
    a(f"v_and_b32 v{VL}, 63, v0")
    a(f"v_and_b32 v{VTOK}, 15, v{VL}")
    a("s_mov_b32 s30, 0x3f803f80")
    a("s_waitcnt vmcnt(0)")
    ln_stats(a, VX, 36, VS, VQ, 30)
    xsum16_32(a, VS, VT); xsum16_32(a, VQ, VT)
    a("s_lshl_b32 s28, s22, 7")
    a(f"v_lshlrev_b32 v6, 3, v{VTOK}")
    a("v_add_u32 v7, s28, v6")
    a(f"ds_write_b64 v7, {vr(VS,2)}")
    a("s_waitcnt lgkmcnt(0)")
    a("s_barrier")
    a("s_xor_b32 s28, s22, 1")
    a("s_lshl_b32 s28, s28, 7")
    a("v_add_u32 v7, s28, v6")
    a(f"ds_read_b64 {vr(VT,2)}, v7")
    a("s_waitcnt lgkmcnt(0)")
    a(f"v_add_f32 v{VS}, v{VS}, v{VT}")
    a(f"v_add_f32 v{VQ}, v{VQ}, v{VT+1}")
    ln_finish(a, VS, VQ, RS, RS+2)
    a(f"v_mov_b32 v{RS+1}, v{RS}")
    a(f"v_mov_b32 v{RS+3}, v{RS+2}")
    for i in range(9):
        chunk_unpack(a, VX+4*i, TT); chunk_norm(a, TT, RS); chunk_pack(a, TT, VX+4*i)
```

```python
from common import *
import k1, k2
from k1 import gen_mod, gen_ldsshuf, gen_xn, gen_ones, gen_poison
NPROD = (36 + 54) if LNIN else (36 + 64 + 54)
ROLES = [("mod01", 36), ("wqkv", 54)] if LNIN else [("mod01", 36), ("xn", 64), ("wqkv", 54)]
def gen_kf():
    a = Asm()
    a("s_cmp_ge_u32 s2, 256\ns_cbranch_scc1 k2_exit")
    wave_id(a, 22, 1)
    a("s_lshr_b32 s46, s22, 2")
    a("s_mov_b32 s47, s22")
    a("s_and_b32 s23, s2, 1\ns_cmp_ge_u32 s2, 192\ns_cselect_b32 s23, s23, 0\ns_cmp_lg_u32 s23, 0\ns_cbranch_scc1 kf_side")
    k1.END[0] = "kf_task_done"
    base = 0; B = {}
    for nm, n in ROLES:
        B[nm] = base; base += n
        a(f"s_cmp_lt_u32 s2, {base}\ns_cbranch_scc1 kf_{nm}")
    if LNIN: k2.own_ln_loads(a, 16)
    a("s_branch kf_task_done")
    def upper_half(nbar, tag):
        a(f"s_cmp_eq_u32 s46, 0\ns_cbranch_scc1 kf_{tag}_go")
        if LNIN: k2.own_ln_loads(a, 16)
        for _ in range(nbar): a("s_barrier")
        a("s_branch kf_task_done")
        a.label(f"kf_{tag}_go")
    a.label("kf_mod01")
    upper_half(2, "mod01")
    a("s_mov_b32 s44, s2\ns_mov_b32 s45, 0")
    def to16(base):
        for i in range(36): a(f"v_mov_b32 v{16+i}, v{base+i}")
    if LNIN:
        k1.XTRA[0] = (lambda a_: k2.own_ln_loads(a_, 68), 9)
        k1.END[0] = "kf_mod01_end"
    gen_mod(a, "kfa", 32)
    if LNIN:
        k1.XTRA[0] = None
        a.label("kf_mod01_end")
        a("s_waitcnt vmcnt(0)")
        to16(68)
        a("s_branch kf_task_done")
        k1.END[0] = "kf_task_done"
    if not LNIN:
        a.label("kf_xn")
        upper_half(1, "xn")
        a(f"s_sub_u32 s23, s2, {B['xn']}")
        gen_xn(a, True)
    a.label("kf_wqkv")
    upper_half(0, "wqkv")
    a(f"s_sub_u32 s23, s2, {B['wqkv']}\ns_lshl_b32 s23, s23, 2\ns_add_u32 s23, s23, s22")
    if LNIN:
        k1.XTRA[0] = (lambda a_: k2.own_ln_loads(a_, 80), 9)
        k1.END[0] = "kf_wqkv_end"
    gen_ldsshuf(a, "kfq", True, False)
    if LNIN:
        k1.XTRA[0] = None
        a.label("kf_wqkv_end")
        a("s_waitcnt vmcnt(0)")
        to16(80)
        a("s_branch kf_task_done")
        k1.END[0] = "kf_task_done"
    a.label("kf_side")
    a("s_sub_u32 s47, s2, 193\ns_and_b32 s47, s47, -2\ns_add_u32 s47, s47, s46        ; slot 0..63")
    k1.END[0] = "kf_side1"
    a("s_cmp_ge_u32 s47, 32\ns_cbranch_scc1 kf_side1")
    a("s_mov_b32 s23, s47")
    gen_ones(a, True)
    a.label("kf_side1")
    k1.END[0] = "kf_side2"
    a("s_cmp_ge_u32 s47, 36\ns_cbranch_scc1 kf_side2")
    a("s_mov_b32 s23, s47")
    gen_poison(a, True)
    a.label("kf_side2")
    k1.END[0] = "k2_exit"
    a("s_cmp_ge_u32 s47, 36\ns_cbranch_scc1 kf_side_wo")
    a("s_add_u32 s44, s47, 18\ns_mul_i32 s45, s46, 12288")
    gen_mod(a, "kfb", 64)
    a.label("kf_side_wo")
    a("s_sub_u32 s23, s47, 36\ns_lshl_b32 s23, s23, 2\ns_and_b32 s24, s22, 3\ns_add_u32 s23, s23, s24")
    a("s_cmp_ge_u32 s23, 72\ns_cbranch_scc1 k2_exit")
    gen_ldsshuf(a, "kfo", False, True)
    k1.END[0] = None
    a.label("kf_task_done")
    load_ptr(a, 6, KA_DBG); load_ptr(a, 20, KA_WS)
    wave_id(a, 22, 1)
    a.stamp(7)
    a("s_waitcnt vmcnt(0) lgkmcnt(0)")
    a.stamp(8)
    srd(a, 48, 6, 256)
    a(f"s_cmp_ge_u32 s2, {NPROD}\ns_cbranch_scc1 kf_nosig")
    a("s_barrier")
    a("s_cmp_lg_u32 s22, 0\ns_cbranch_scc1 kf_nosig")
    a("s_mov_b64 exec, 1")
    NSUB = int(ENV("NSUB", "1")); assert NPROD % NSUB == 0 and NSUB in (1, 2)
    a(f"s_and_b32 s26, s2, {NSUB-1}\ns_lshl_b32 s26, s26, 6")
    a("v_mov_b32 v1, s26\nv_mov_b32 v2, 1")
    a("buffer_atomic_add v2, v1, s[48:51], 0 offen sc0 sc1")
    a("s_waitcnt vmcnt(0)")
    a("v_readfirstlane_b32 s26, v2")
    a(f"s_cmp_lg_u32 s26, {NPROD//NSUB-1}\ns_cbranch_scc1 kf_notlast")
    if NSUB > 1:
        a("v_mov_b32 v1, 192\nv_mov_b32 v2, 1")
        a("buffer_atomic_add v2, v1, s[48:51], 0 offen sc0 sc1")
        a("s_waitcnt vmcnt(0)")
        a("v_readfirstlane_b32 s26, v2")
        a(f"s_cmp_lg_u32 s26, {NSUB-1}\ns_cbranch_scc1 kf_notlast")
    a("v_mov_b32 v1, 128\nv_mov_b32 v2, 1")
    a("buffer_store_dword v2, v1, s[48:51], 0 offen sc0 sc1")
    a.label("kf_notlast")
    a("s_mov_b64 exec, -1")
    a.label("kf_nosig")
    a.stamp(9)
    k2.tile_map(a)
    if LNIN: k2.own_ln_post(a)
    a("s_cmp_lg_u32 s22, 0\ns_cbranch_scc1 kf_nopoll")
    a("v_mov_b32 v1, 128")
    a("s_mov_b32 s29, 20000")
    a.label("kf_poll")
    a("buffer_load_dword v2, v1, s[48:51], 0 offen sc0 sc1")
    a("s_waitcnt vmcnt(0)")
    a("v_readfirstlane_b32 s26, v2")
    a("s_sub_u32 s29, s29, 1")
    a("s_cmp_eq_u32 s29, 0\ns_cbranch_scc1 kf_nopoll")
    a("s_cmp_eq_u32 s26, 0\ns_cbranch_scc1 kf_poll")
    a.label("kf_nopoll")
    a("s_barrier")
    a.stamp(10)
    k2.qkv_body(a, True)
    return kernel("kf_front_kernel", a, vgpr=152, sgpr=64), (256, 512, k2.K2_LDS)
```

```python
from common import *
from k6 import reduce_loads, reduce_main
import os
MERGE6 = os.environ.get('MERGE6', '1') == '1'
L5_X=0; L5_H=73728
K5_LDS = 147456 + 64 + 1536
L5_CNT = 147456
L5_STAT = 147456 + 64
NLOG2E=0xbfb8aa3b
K5_A = int(os.environ.get('K5_A', '2'))
def gen_k5():
    a = Asm()
    a("s_cmp_ge_u32 s2, 256\ns_cbranch_scc1 k5_exit")
    load_ptr(a, 20, KA_WS)
    wave_id(a, 22, 1)
    ffn(a, False)
    return kernel("k5_ffn_kernel", a, vgpr=168, sgpr=64), (256, 768, K5_LDS)

def ffn(a, chained):
    XF = (" " + ENV("XLD", "sc1")) if chained else ""
    WF = "sc1" if chained else ENV('K5WF', '')
    VL=1; VTOK=2; VG=3; VL16=4
    a(f"v_and_b32 v{VL}, 63, v0")
    a(f"v_and_b32 v{VTOK}, 15, v{VL}")
    a(f"v_lshrrev_b32 v{VG}, 4, v{VL}")
    a(f"v_lshlrev_b32 v{VL16}, 4, v{VL}")
    A = K5_A; lgA = {1: 0, 2: 1, 4: 2, 8: 3}[A]
    a("s_and_b32 s25, s2, 7")
    a("s_lshr_b32 s26, s2, 3")
    a(f"s_and_b32 s23, s25, {8//A - 1}")
    a(f"s_lshl_b32 s23, s23, {lgA}")
    a(f"s_and_b32 s27, s26, {A-1}")
    a("s_add_u32 s23, s23, s27        ; slice")
    a(f"s_lshr_b32 s24, s25, {3-lgA}")
    a(f"s_lshl_b32 s24, s24, {5-lgA}")
    a(f"s_lshr_b32 s26, s26, {lgA}")
    a("s_add_u32 s24, s24, s26        ; rb")
    sdiv(a, 26, 22, 3, 27, 25)
    a("s_waitcnt lgkmcnt(0)")
    WBASE = WS_W13
    srd(a, 8, 20, SZ_X1F, WS_X1F); srd(a, 12, 20, 4608, WS_MOD+3*2304)
    srd(a, 16, 20, WS_W2 + SZ_W2 - WBASE, WBASE); srd(a, 44, 20, SZ_PART, WS_PART); srd(a, 48, 20, SZ_STP, WS_STP)
    VACC=8
    VW=104
    VX=152
    AX=5; AH=6
    XP=VACC
    PRE = chained and TAGS and MTPRE and XMODE in ("stp", "late")
    MT = 144 if PRE else XP+24
    ST=XP+32
    if not PRE:
        a(f"s_mul_i32 s28, s27, 768")
        a(f"buffer_load_dwordx4 {vr(MT)}, v{VL16}, s[12:15], s28 offen")
        a(f"s_add_u32 s28, s28, 2304")
        a(f"buffer_load_dwordx4 {vr(MT+4)}, v{VL16}, s[12:15], s28 offen")
    a(f"s_mul_i32 s40, s23, {SZ_W13S}")
    a("s_mul_i32 s29, s22, 110592")
    a("s_add_u32 s40, s40, s29")
    a(f"s_mul_i32 s41, s23, {SZ_W2S}")
    a("s_mul_i32 s29, s22, 55296")
    a("s_add_u32 s41, s41, s29")
    a(f"s_add_u32 s41, s41, {WS_W2-WBASE:#x}")
    a(f"v_add_u32 v7, 4096, v{VL16}")
    def wload(slot, f, s):
        r = VW + 24*slot + 4*f
        if f < 4: a(f"buffer_load_dwordx4 {vr(r)}, v{VL16}, s[16:19], {s} offen offset:{f*1024} " + WF)
        else:     a(f"buffer_load_dwordx4 {vr(r)}, v7, s[16:19], {s} offen offset:{(f-4)*1024} " + WF)
    def stloads():
        a(f"s_lshl_b32 s28, s24, 6")
        a(f"s_lshl_b32 s29, s26, 4")
        a(f"s_add_u32 s28, s28, s29")
        a(f"s_lshl_b32 s28, s28, 5")
        a(f"v_lshlrev_b32 v{AX}, 5, v{VTOK}")
        a(f"buffer_load_dwordx4 {vr(ST)}, v{AX}, s[48:51], s28 offen" + XF)
        a(f"buffer_load_dwordx4 {vr(ST+4)}, v{AX}, s[48:51], s28 offen offset:16" + XF)
    def frloads():
        a("s_mul_i32 s28, s24, 73728")
        a(f"s_mul_i32 s29, s27, {6*4096}")
        a("s_add_u32 s28, s28, s29")
        a("s_lshl_b32 s29, s26, 10")
        a("s_add_u32 s28, s28, s29")
        for i in range(6):
            a(f"buffer_load_dwordx4 {vr(XP+4*i)}, v{VL16}, s[8:11], s28 offen" + XF)
            if i < 5: a("s_add_u32 s28, s28, 4096")
    def xloads():
        stloads(); frloads()
    def modstage():
        a("s_lshl_b32 s30, s22, 11")
        a(f"s_add_u32 s30, s30, {L5_H}")
        a(f"v_add_u32 v{AH}, s30, v{VL16}")
        if MERGE6:
            a(f"v_mov_b32 v{AX}, {L5_CNT}")
            a(f"v_mov_b32 v{VX}, 0")
            for o in range(0, 52, 4): a(f"ds_write_b32 v{AX}, v{VX} offset:{o}")
    EARLYW = chained
    if EARLYW and TAGS and XMODE in ("stp", "late"):
        def w01():
            for f in range(6): wload(0, f, "s40")
            a("s_add_u32 s40, s40, 6144")
            for f in range(6): wload(1, f, "s40")
            a("s_add_u32 s40, s40, 6144")
        if XMODE == "stp": w01()
        modstage()
        a("s_waitcnt vmcnt(%d)" % (12 if XMODE == "stp" else 0))
        a(f"ds_write_b128 v{AH}, {vr(MT)}")
        a(f"ds_write_b128 v{AH}, {vr(MT+4)} offset:1024")
        a("s_barrier")
        a.stamp(6)
        a("s_mov_b32 s57, 20000")
        a.label("k5_in_retry")
        xloads()
        a("s_waitcnt vmcnt(0)")
        any_poison(a, list(range(XP, XP+24)) + list(range(ST, ST+8)), VX)
        a("s_sub_u32 s57, s57, 1")
        a("s_cmp_eq_u32 s57, 0\ns_cbranch_scc1 k5_in_got")
        a("s_cmp_lg_u64 vcc, 0\ns_cbranch_scc1 k5_in_retry")
        a.label("k5_in_got")
    elif EARLYW and TAGS:
        for f in range(6): wload(0, f, "s40")
        a("s_add_u32 s40, s40, 6144")
        frloads()
        for f in range(6): wload(1, f, "s40")
        a("s_add_u32 s40, s40, 6144")
        modstage()
        a("s_waitcnt vmcnt(6)")
        any_poison(a, list(range(XP, XP+24)), VX)
        a("s_cmp_eq_u64 vcc, 0\ns_cbranch_scc1 k5_in_got")
        a("s_mov_b32 s57, 20000")
        a.label("k5_in_retry")
        frloads()
        a("s_waitcnt vmcnt(0)")
        any_poison(a, list(range(XP, XP+24)), VX)
        a("s_sub_u32 s57, s57, 1")
        a("s_cmp_eq_u32 s57, 0\ns_cbranch_scc1 k5_in_got")
        a("s_cmp_lg_u64 vcc, 0\ns_cbranch_scc1 k5_in_retry")
        a.label("k5_in_got")
        a(f"ds_write_b128 v{AH}, {vr(MT)}")
        a(f"ds_write_b128 v{AH}, {vr(MT+4)} offset:1024")
        a("s_mov_b32 s29, 0x3f803f80")
        ln_stats(a, XP, 24, ST, ST+1, 29)
        xsum16_32(a, ST, ST+2); xsum16_32(a, ST+1, ST+2)
        a("s_lshl_b32 s28, s27, 6")
        a("s_lshl_b32 s29, s26, 4")
        a("s_add_u32 s28, s28, s29")
        a(f"v_add_u32 v{AX}, s28, v{VTOK}")
        a(f"v_lshlrev_b32 v{AX}, 3, v{AX}")
        a(f"v_add_u32 v{AX}, {L5_STAT}, v{AX}")
        a(f"ds_write_b64 v{AX}, {vr(ST,2)}")
        a("s_waitcnt lgkmcnt(0)")
        a("s_barrier")
        a.stamp(6)
        a(f"v_add_u32 v{AX}, s29, v{VTOK}")
        a(f"v_lshlrev_b32 v{AX}, 3, v{AX}")
        a(f"v_add_u32 v{AX}, {L5_STAT}, v{AX}")
        a(f"ds_read_b64 {vr(ST,2)}, v{AX}")
        a(f"ds_read_b64 {vr(ST+2,2)}, v{AX} offset:512")
        a(f"ds_read_b64 {vr(ST+4,2)}, v{AX} offset:1024")
        a(f"v_mov_b32 v{ST+6}, 0")
        a(f"v_mov_b32 v{ST+7}, 0")
        a("s_waitcnt lgkmcnt(0)")
    elif EARLYW:
        for f in range(6): wload(0, f, "s40")
        a("s_add_u32 s40, s40, 6144")
        for f in range(6): wload(1, f, "s40")
        a("s_add_u32 s40, s40, 6144")
        modstage()
        a("s_waitcnt vmcnt(12)")
        a(f"ds_write_b128 v{AH}, {vr(MT)}")
        a(f"ds_write_b128 v{AH}, {vr(MT+4)} offset:1024")
        srd(a, 52, 20, SZ_CNT, WS_CNT)
        a("s_cmp_eq_u32 s58, 0\ns_cbranch_scc1 k5_in_nopoll")
        a(f"s_add_u32 s28, s24, {C_X1}")
        a(f"s_lshl_b32 s28, s28, 9")
        a(f"v_mov_b32 v8, s28")
        a("s_mov_b32 s29, 20000")
        a.label("k5_in_poll")
        a("buffer_load_dword v9, v8, s[52:55], 0 offen sc0 sc1")
        a("s_waitcnt vmcnt(0)")
        a("v_readfirstlane_b32 s28, v9")
        a("s_sub_u32 s29, s29, 1")
        a("s_cmp_eq_u32 s29, 0\ns_cbranch_scc1 k5_in_nopoll")
        a("s_cmp_ge_u32 s28, 8\ns_cbranch_scc0 k5_in_poll")
        a.label("k5_in_nopoll")
        a("s_barrier")
        a.stamp(6)
        xloads()
        a("s_waitcnt vmcnt(6)")
    else:
        xloads()
        modstage()
        a("s_waitcnt vmcnt(8)")
        a(f"ds_write_b128 v{AH}, {vr(MT)}")
        a(f"ds_write_b128 v{AH}, {vr(MT+4)} offset:1024")
        a("s_waitcnt vmcnt(6)")
    VS=ST; VQ=ST+1; VR=XP+40; VSH=XP+42
    a(f"v_add_f32 v{VS}, v{ST}, v{ST+2}")
    a(f"v_add_f32 v{VQ}, v{ST+1}, v{ST+3}")
    a(f"v_add_f32 v{ST+4}, v{ST+4}, v{ST+6}")
    a(f"v_add_f32 v{ST+5}, v{ST+5}, v{ST+7}")
    a(f"v_add_f32 v{VS}, v{VS}, v{ST+4}")
    a(f"v_add_f32 v{VQ}, v{VQ}, v{ST+5}")
    ln_finish(a, VS, VQ, VR, VSH)
    a(f"v_mov_b32 v{VR+1}, v{VR}")
    a(f"v_mov_b32 v{VSH+1}, v{VSH}")
    VC=[XP+48, XP+64]; VSF=[XP+56, XP+72]; VTT=XP+80; VO=XP+88
    a(f"v_lshlrev_b32 v{AX}, 5, v{VG}")
    a(f"v_add_u32 v{AX}, s30, v{AX}")
    a(f"s_mul_i32 s28, s27, {6*4096}")
    a(f"s_lshl_b32 s29, s26, 10")
    a(f"s_add_u32 s28, s28, s29")
    a(f"v_add_u32 v{AH}, s28, v{VL16}")
    def modread(i):
        b = i & 1
        a(f"ds_read_b128 {vr(VSF[b])}, v{AX} offset:{i*128}")
        a(f"ds_read_b128 {vr(VSF[b]+4)}, v{AX} offset:{i*128 + 16}")
        a(f"ds_read_b128 {vr(VC[b])}, v{AX} offset:{1024 + i*128}")
        a(f"ds_read_b128 {vr(VC[b]+4)}, v{AX} offset:{1024 + i*128 + 16}")
    a("s_waitcnt lgkmcnt(0)")
    modread(0)
    nw = 0
    for i in range(6):
        if i < 5: modread(i+1)
        if chained and TAGS: a(f"s_waitcnt lgkmcnt({4 if i < 5 else 0})")
        else: a(f"s_waitcnt vmcnt({5-i+nw}) lgkmcnt({4 if i < 5 else 0})")
        chunk_unpack(a, XP+4*i, VTT); chunk_norm(a, VTT, VR); chunk_mod(a, VTT, VC[i&1], VSF[i&1]); chunk_pack(a, VTT, VO+4*(i&1))
        a(f"ds_write_b128 v{AH}, {vr(VO+4*(i&1))} offset:{i*4096}")
        if not EARLYW:
            wload(0, i, "s40"); nw += 1
        elif TAGS and XMODE == "late":
            for f in (2*i, 2*i+1):
                wload(f // 6, f % 6, "s40")
                if f == 5: a("s_add_u32 s40, s40, 6144")
            if i == 5: a("s_add_u32 s40, s40, 6144")
    if not EARLYW:
        a("s_add_u32 s40, s40, 6144")
        for f in range(6): wload(1, f, "s40")
        a("s_add_u32 s40, s40, 6144")
    a("s_waitcnt lgkmcnt(0)")
    a("s_barrier")
    a.stamp(7)
    a(f"v_mov_b32 v{AX}, v{VL16}")
    def xread(tb, off): a(f"ds_read_b128 {vr(VX+4*tb)}, v{AX} offset:{off + tb*1024}")
    def step1(slot, first, do_x, xoff, wsrc, vm):
        for tb in range(4):
            w = f"lgkmcnt({3 if (do_x or True) else 0})"
            if tb == 0: a(f"s_waitcnt vmcnt({vm}) lgkmcnt({do_x_prev[0][tb]})")
            else:       a(f"s_waitcnt lgkmcnt({do_x_prev[0][tb]})")
            for f in range(6):
                acc = VACC + (f*4+tb)*4
                a(f"v_mfma_f32_16x16x32_bf16 {vr(acc)}, {vr(VW+24*slot+4*f)}, {vr(VX+4*tb)}, {'0' if first else vr(acc)}")
                if tb == 3 and wsrc: wload(slot, f, wsrc)
            if do_x: xread(tb, xoff)
        if wsrc: a(f"s_add_u32 {wsrc}, {wsrc}, 6144")
    steady = [3,3,3,3]; drain = [3,2,1,0]
    do_x_prev = [steady]
    for tb in range(4): xread(tb, 0)
    step1(0, True, True, 4096, "s40", 6)
    a(f"v_add_u32 v{AX}, 8192, v{AX}               ; base -> X(2)")
    a("s_mov_b32 s42, 7")
    a.label("k5_loop1")
    step1(1, False, True, 0, "s40", 6)
    step1(0, False, True, 4096, "s40", 6)
    a(f"v_add_u32 v{AX}, 8192, v{AX}")
    a("s_sub_u32 s42, s42, 1\ns_cmp_lg_u32 s42, 0\ns_cbranch_scc1 k5_loop1")
    step1(1, False, True, 0, "s40", 6)
    step1(0, False, True, 4096, "s41", 6)
    do_x_prev[0] = drain
    step1(1, False, False, 0, "s41", 6)
    a.stamp(8)
    T=VX
    a(f"s_mov_b32 s56, {NLOG2E:#x}\ns_mov_b32 s57, {NLOG2E:#x}\ns_mov_b32 s58, 1.0\ns_mov_b32 s59, 1.0")
    a("s_mul_i32 s28, s22, 3")
    for uu in range(3):
        a(f"s_add_u32 s29, s28, {uu}")
        a("s_lshr_b32 s25, s29, 1")
        a("s_lshl_b32 s25, s25, 12")
        a("s_and_b32 s29, s29, 1")
        a("s_lshl_b32 s29, s29, 3")
        a("s_add_u32 s25, s25, s29")
        a(f"s_add_u32 s25, s25, {L5_H}")
        a(f"v_add_u32 v{AH}, s25, v{VL16}")
        for tb in range(4):
            g = VACC + ((2*uu)*4+tb)*4; u = VACC + ((2*uu+1)*4+tb)*4
            if ENV("PKSW", "1") == "1":
                for j in (0, 2): a(f"v_pk_mul_f32 {vr(T+j,2)}, {vr(g+j,2)}, s[56:57]")
                for j in range(4): a(f"v_exp_f32 v{T+j}, v{T+j}")
                for j in (0, 2): a(f"v_pk_mul_f32 {vr(g+j,2)}, {vr(g+j,2)}, {vr(u+j,2)}")
                for j in (0, 2): a(f"v_pk_add_f32 {vr(T+j,2)}, {vr(T+j,2)}, s[58:59]")
                for j in range(4): a(f"v_rcp_f32 v{T+j}, v{T+j}")
                a("s_nop 0")
                for j in (0, 2): a(f"v_pk_mul_f32 {vr(g+j,2)}, {vr(g+j,2)}, {vr(T+j,2)}")
            else:
                for j in range(4): a(f"v_mul_f32 v{T+j}, {NLOG2E:#x}, v{g+j}")
                for j in range(4): a(f"v_exp_f32 v{T+j}, v{T+j}")
                for j in range(4): a(f"v_mul_f32 v{g+j}, v{g+j}, v{u+j}")
                for j in range(4): a(f"v_add_f32 v{T+j}, 1.0, v{T+j}")
                for j in range(4): a(f"v_rcp_f32 v{T+j}, v{T+j}")
                a("s_nop 0")
                for j in range(4): a(f"v_mul_f32 v{g+j}, v{g+j}, v{T+j}")
            o = T+4+2*(tb&1)
            a(f"v_cvt_pk_bf16_f32 v{o}, v{g}, v{g+1}")
            a(f"v_cvt_pk_bf16_f32 v{o+1}, v{g+2}, v{g+3}")
            a(f"ds_write_b64 v{AH}, {vr(o,2)} offset:{tb*1024}")
    HCLS = ENV("HCLS", "1") == "1" and MERGE6
    a("s_waitcnt lgkmcnt(0)")
    TC = VACC + 48
    if HCLS:
        a("s_lshr_b32 s28, s22, 2\ns_lshl_b32 s28, s28, 2")
        a(f"s_add_u32 s28, s28, {L5_CNT + 4}")
        a("s_mov_b64 exec, 1")
        a(f"v_mov_b32 v{AH}, s28\nv_mov_b32 v{TC}, 1")
        a(f"ds_add_u32 v{AH}, v{TC}")
        a("s_mov_b64 exec, -1")
        a(f"v_mov_b32 v{AH}, {L5_CNT}")
    else:
        a("s_barrier")
    def wait_class(c):
        if not HCLS: return
        a.label(f"k5_hw{c}")
        a(f"ds_read_b32 v{TC}, v{AH} offset:{4+4*c}")
        a("s_waitcnt lgkmcnt(0)")
        a(f"v_readfirstlane_b32 s28, v{TC}")
        a(f"s_cmp_ge_u32 s28, 4\ns_cbranch_scc0 k5_hw{c}")
    wait_class(0)
    a.stamp(9)
    G2P = ENV("G2PRIO", "1") == "1"
    if G2P: a("s_setprio 1")
    G2C = ENV("G2CLS", "0") == "1"
    if G2C:
        a("s_lshr_b32 s28, s22, 2")
        a("s_cmp_eq_u32 s28, 0\ns_cbranch_scc1 k5_p0")
        a("s_cmp_eq_u32 s28, 1\ns_cbranch_scc1 k5_p1")
        a("s_setprio 2\ns_branch k5_p0")
        a.label("k5_p1")
        a("s_setprio 1")
        a.label("k5_p0")
    a(f"v_add_u32 v{AX}, {L5_H}, v{VL16}")
    def w2load(rs, uu):
        a(f"buffer_load_dwordx4 {vr(VW+12*rs+4*uu)}, v{VL16}, s[16:19], s41 offen offset:{uu*1024} " + WF)
    def step2(rs, first, do_x, xoff, reload, vm, lg):
        for tb in range(4):
            if tb == 0: a(f"s_waitcnt vmcnt({vm}) lgkmcnt({lg[tb]})")
            else:       a(f"s_waitcnt lgkmcnt({lg[tb]})")
            for uu in range(3):
                acc = VACC + (uu*4+tb)*4
                a(f"v_mfma_f32_16x16x32_bf16 {vr(acc)}, {vr(VW+12*rs+4*uu)}, {vr(VX+4*tb)}, {'0' if first else vr(acc)}")
                if tb == 3 and reload: w2load(rs, uu)
            if do_x: xread(tb, xoff)
        if reload: a("s_add_u32 s41, s41, 3072")
    for tb in range(4): xread(tb, 0)
    if HCLS:
        for p in range(18):
            if p in (5, 11): wait_class((p+1)//6)
            vm = 3*min(3, 17-p)
            step2(p & 3, p == 0, p < 17, 4096 if p % 2 == 0 else 0, p + 4 <= 17, vm, steady if p < 17 else drain)
            if p % 2 == 0 and p < 16: a(f"v_add_u32 v{AX}, 8192, v{AX}")
    else:
        step2(0, True, True, 4096, True, 9, steady)
        a(f"v_add_u32 v{AX}, 8192, v{AX}")
        step2(1, False, True, 0, True, 9, steady)
        a("s_mov_b32 s42, 3")
        a.label("k5_loop2")
        step2(2, False, True, 4096, True, 9, steady)
        a(f"v_add_u32 v{AX}, 8192, v{AX}")
        step2(3, False, True, 0, True, 9, steady)
        step2(0, False, True, 4096, True, 9, steady)
        a(f"v_add_u32 v{AX}, 8192, v{AX}")
        step2(1, False, True, 0, True, 9, steady)
        a("s_sub_u32 s42, s42, 1\ns_cmp_lg_u32 s42, 0\ns_cbranch_scc1 k5_loop2")
        step2(2, False, True, 4096, False, 9, steady)
        a(f"v_add_u32 v{AX}, 8192, v{AX}")
        step2(3, False, True, 0, False, 6, steady)
        step2(0, False, True, 4096, False, 3, steady)
        step2(1, False, False, 0, False, 0, drain)
    if G2P or G2C: a("s_setprio 0")
    a.stamp(10)
    a(f"s_mul_i32 s28, s23, {SZ_PARTS}")
    a("s_mul_i32 s29, s24, 73728")
    a("s_add_u32 s28, s28, s29")
    a("s_mul_i32 s29, s22, 6144")
    a("s_add_u32 s28, s28, s29")
    OWN = MERGE6 and ENV("STAGED", "1") == "1" and ENV("OWNSKIP", "1") == "1"
    L5_OWN = 20480
    if OWN:
        a("s_lshr_b32 s25, s22, 1\ns_and_b32 s25, s25, 1")
        a("s_lshr_b32 s26, s23, 2")
        a("s_cmp_eq_u32 s25, s26\ns_cselect_b32 s25, 1, 0")
        a("s_lshr_b32 s26, s23, 1\ns_and_b32 s26, s26, 1")
        a("s_xor_b32 s27, s26, 1")
        a("s_and_b32 s27, s27, s25")
        a("s_and_b32 s26, s26, s25")
        a("s_and_b32 s29, s23, 1")
        a("s_cmp_eq_u32 s29, 0")
        a("s_cselect_b32 s56, -1, 0\ns_cselect_b32 s57, 0, -1")
        a("s_not_b64 s[58:59], s[56:57]")
        a("s_lshr_b32 s29, s22, 2\ns_mul_i32 s29, s29, 3072")
        a("s_and_b32 s30, s22, 1\ns_mul_i32 s30, s30, 1536")
        a("s_add_u32 s29, s29, s30")
        a(f"s_add_u32 s29, s29, {L5_OWN}")
        a(f"v_and_b32 v{AH}, 31, v{VL}")
        a(f"v_lshlrev_b32 v{AH}, 4, v{AH}")
        a(f"v_add_u32 v{AH}, s29, v{AH}")
    for q in range(6):
        uu = q >> 1; h = q & 1
        o = VW + 4*q
        for k in range(2):
            acc = VACC + (uu*4 + 2*h + k)*4
            a(f"v_cvt_pk_bf16_f32 v{o+2*k}, v{acc}, v{acc+1}")
            a(f"v_cvt_pk_bf16_f32 v{o+2*k+1}, v{acc+2}, v{acc+3}")
        st = (f"buffer_store_dwordx4 {vr(o)}, v{VL16}, s[44:47], s28 offen offset:{q*1024} " if q < 4 else
              f"buffer_store_dwordx4 {vr(o)}, v7, s[44:47], s28 offen offset:{(q-4)*1024} ") + SC("K5SC", "1")
        if OWN:
            a(f"s_cmp_eq_u32 s{26 if h else 27}, 0\ns_cbranch_scc1 k5_po{q}a")
            a("s_mov_b64 exec, s[56:57]")
            a(f"ds_write_b128 v{AH}, {vr(o)} offset:{uu*512}")
            a("s_mov_b64 exec, s[58:59]")
            a(st)
            a("s_mov_b64 exec, -1")
            a(f"s_branch k5_po{q}b")
            a.label(f"k5_po{q}a")
            a(st)
            a.label(f"k5_po{q}b")
        else:
            a(st)
    if MERGE6 and ENV("STAGED", "1") == "1":
        RC = L5_CNT + 16; RF = L5_CNT + 28; RS = L5_CNT + 40
        load_ptr(a, 4, KA_OUT)
        a("s_waitcnt vmcnt(0) lgkmcnt(0)")
        a.stamp(11)
        srd(a, 52, 20, SZ_CNT, WS_CNT)
        srd(a, 8, 20, SZ_PART, WS_PART); srd(a, 12, 20, SZ_X1F, WS_X1F); srd(a, 16, 20, 2304, WS_MOD+5*2304); srd(a, 48, 4, SZ_X)
        a("s_lshr_b32 s30, s22, 2         ; class")
        a("s_lshl_b32 s42, s30, 2")
        a(f"s_add_u32 s57, s42, {RC}")
        a("v_mov_b32 v25, s57")
        a("v_mov_b32 v7, 1")
        a("s_mov_b64 exec, 1")
        a("ds_add_rtn_u32 v8, v25, v7")
        a("s_waitcnt lgkmcnt(0)")
        a("v_readfirstlane_b32 s26, v8")
        a("s_mul_i32 s28, s24, 3")
        a("s_add_u32 s28, s28, s30")
        a(f"s_add_u32 s28, s28, {C_RED3}")
        a("s_lshl_b32 s28, s28, 9")
        a("v_mov_b32 v6, s28")
        a("s_cmp_lg_u32 s26, 3\ns_cbranch_scc1 k5_nosig")
        a("buffer_atomic_add v7, v6, s[52:55], 0 offen sc1")
        a.label("k5_nosig")
        a("s_mov_b64 exec, -1")
        a("v_mov_b32 v23, s28")
        a("s_and_b32 s29, s22, 3")
        a("s_cmp_eq_u32 s29, 3\ns_cbranch_scc1 k5_noload")
        reduce_loads(a, True, staged=True)
        a.label("k5_noload")
        a("s_cmp_lg_u32 s26, 3\ns_cbranch_scc1 k5_waitgo")
        a("s_mov_b32 s29, 20000")
        a.label("k5_poll")
        a("buffer_load_dword v24, v23, s[52:55], 0 offen sc0 sc1")
        a("s_waitcnt vmcnt(0)")
        a("v_readfirstlane_b32 s25, v24")
        a("s_sub_u32 s29, s29, 1")
        a("s_cmp_eq_u32 s29, 0\ns_cbranch_scc1 k5_release")
        a("s_cmp_ge_u32 s25, 8\ns_cbranch_scc0 k5_poll")
        a.label("k5_release")
        a(f"v_add_u32 v24, {RF-RC}, v25")
        a("v_mov_b32 v26, 1")
        a("ds_write_b32 v24, v26")
        a("s_waitcnt lgkmcnt(0)")
        a.label("k5_waitgo")
        a("s_and_b32 s29, s22, 3")
        a("s_cmp_eq_u32 s29, 3\ns_cbranch_scc1 k5_exit")
        a.label("k5_go")
        a(f"ds_read_b32 v24, v25 offset:{RF-RC}")
        a("s_waitcnt lgkmcnt(0)")
        a("v_readfirstlane_b32 s25, v24")
        a("s_cmp_eq_u32 s25, 0\ns_cbranch_scc1 k5_go")
        a.stamp(12)
        def sync3():
            a("v_mov_b32 v26, 1")
            a("s_mov_b64 exec, 1")
            a(f"ds_add_u32 v25, v26 offset:{RS-RC}")
            a("s_mov_b64 exec, -1")
            a.label("k5_sc")
            a(f"ds_read_b32 v24, v25 offset:{RS-RC}")
            a("s_waitcnt lgkmcnt(0)")
            a("v_readfirstlane_b32 s25, v24")
            a("s_cmp_ge_u32 s25, 3\ns_cbranch_scc0 k5_sc")
        reduce_main(a, True, sync=sync3, own=(L5_OWN if OWN else None))
    elif MERGE6:
        load_ptr(a, 4, KA_OUT)
        a("s_waitcnt vmcnt(0) lgkmcnt(0)")
        if ENV("ST2", "0") != "1": a.stamp(11)
        srd(a, 52, 20, SZ_CNT, WS_CNT)
        srd(a, 8, 20, SZ_PART, WS_PART); srd(a, 12, 20, SZ_X1F, WS_X1F); srd(a, 16, 20, 2304, WS_MOD+5*2304); srd(a, 48, 4, SZ_X)
        a(f"v_mov_b32 v6, {L5_CNT}")
        a("v_mov_b32 v7, 1")
        a("s_mov_b64 exec, 1")
        a("ds_add_rtn_u32 v8, v6, v7")
        a("s_waitcnt lgkmcnt(0)")
        a("v_readfirstlane_b32 s26, v8")
        a(f"s_add_u32 s28, s24, {C_RED}")
        a("s_lshl_b32 s28, s28, 9")
        a("v_mov_b32 v6, s28")
        a("s_cmp_lg_u32 s26, 11\ns_cbranch_scc1 k5_nosig")
        a("buffer_atomic_add v7, v6, s[52:55], 0 offen sc1")
        a.label("k5_nosig")
        a("s_mov_b64 exec, -1")
        a("v_mov_b32 v23, s28")
        a("s_cmp_ge_u32 s22, 9\ns_cbranch_scc1 k5_noload")
        reduce_loads(a, True)
        a.label("k5_noload")
        a("s_cmp_lg_u32 s26, 11\ns_cbranch_scc1 k5_nopoll")
        a("s_mov_b32 s29, 20000")
        a.label("k5_poll")
        a("buffer_load_dword v24, v23, s[52:55], 0 offen sc0 sc1")
        a("s_waitcnt vmcnt(0)")
        a("v_readfirstlane_b32 s25, v24")
        a("s_sub_u32 s29, s29, 1")
        a("s_cmp_eq_u32 s29, 0\ns_cbranch_scc1 k5_nopoll")
        a("s_cmp_ge_u32 s25, 8\ns_cbranch_scc0 k5_poll")
        a.label("k5_nopoll")
        a("s_barrier")
        if ENV("ST2", "0") != "1": a.stamp(12)
        a("s_cmp_ge_u32 s22, 9\ns_cbranch_scc1 k5_exit")
        reduce_main(a, True)
    a.label("k5_exit")
```

```python
from common import *
import os
SIDE = os.environ.get('SIDE', 'k2')
MODNC = int(os.environ.get('MODNC', '32'))
NWG_MOD=(1152//MODNC) if SIDE == 'k2' else 54; NWG_LS=54 if SIDE == 'k2' else 72; NWG_W13=0; NWG_W2=0; NWG_ONES=32; NWG_XN=64; NWG_POIS=36
B_LS=NWG_MOD; B_W13=B_LS+NWG_LS; B_W2=B_W13+NWG_W13; B_ONES=B_W2+NWG_W2; B_XN=B_ONES+NWG_ONES; B_POIS=B_XN+NWG_XN; K1_NWG=B_POIS+NWG_POIS
K1_LDS=4*9216

LOG2E=0x3fb8aa3b
END = [None]
def endtask(a):
    if END[0] is None: a("s_endpgm")
    else: a("s_mov_b64 exec, -1\ns_branch " + END[0])
XTRA = [None]
def extra_loads(a):
    if XTRA[0] is None: return 0
    XTRA[0][0](a); return XTRA[0][1]
def MSC(): return "sc0 sc1" if END[0] else ""

def gen_mod(a, tag, NC=64):
    LG = {64: 3, 32: 2}[NC]
    NRG = 256 >> LG
    NR = 576 // NRG
    load_ptr(a, 4, KA_WMOD); load_ptr(a, 6, KA_C); load_ptr(a, 20, KA_WS)
    a("v_and_b32 v30, 255, v0")
    a(f"v_and_b32 v1, {(1 << LG) - 1}, v30           ; cg")
    a(f"v_lshrrev_b32 v2, {LG}, v30       ; rg")
    a("s_waitcnt lgkmcnt(0)")
    srd(a, 8, 4, 576*6912); srd(a, 12, 6, 1152); srd(a, 16, 20, SZ_MOD, WS_MOD)
    a("v_lshlrev_b32 v3, 1, v30")
    a("buffer_load_ushort v4, v3, s[12:15], 0 offen")
    a("buffer_load_ushort v5, v3, s[12:15], 0 offen offset:512")
    a("buffer_load_ushort v6, v3, s[12:15], 0 offen offset:1024")
    a("v_mul_u32_u24 v7, 6912, v2")
    a("v_lshl_add_u32 v7, v1, 4, v7")
    a(f"s_mul_i32 s22, s44, {NC*2}         ; n0*2")
    for i in range(NR):
        r = 32 + 4*i
        a(f"buffer_load_dwordx4 {vr(r)}, v7, s[8:11], s22 offen")
        if i < NR-1: a(f"s_add_u32 s22, s22, {NRG*6912}")
    NX = extra_loads(a)
    a("v_lshlrev_b32 v9, 2, v30")
    a("v_add_u32 v9, s45, v9")
    a(f"s_waitcnt vmcnt({NR+NX})")
    for j, v in enumerate([4, 5, 6]):
        a(f"v_lshlrev_b32 v{v}, 16, v{v}")
        a(f"v_mul_f32 v8, {LOG2E:#x}, v{v}")
        a(f"v_exp_f32 v8, -v8")
        a(f"v_add_f32 v8, 1.0, v8")
        a(f"v_rcp_f32 v8, v8")
        a(f"v_mul_f32 v8, v8, v{v}")
        bf16_round_f32(a, 8, 8)
        a(f"ds_write_b32 v9, v8 offset:{j*1024}")
    a("s_waitcnt lgkmcnt(0)")
    a("s_barrier")
    a("v_lshlrev_b32 v9, 2, v2")
    a("v_add_u32 v9, s45, v9")
    for i in range(NR):
        a(f"ds_read_b32 v{10+i}, v9 offset:{i*NRG*4}")
    for j in range(8): a(f"v_mov_b32 v{104+j}, 0")
    a("s_waitcnt lgkmcnt(0)")
    for i in range(NR):
        a(f"s_waitcnt vmcnt({NR-1-i+NX})")
        r = 32 + 4*i
        if ENV("MODDOT", "1") == "1":
            a(f"v_lshrrev_b32 v28, 16, v{10+i}")
            for q in range(4):
                a(f"v_dot2_f32_bf16 v{104+2*q}, v{r+q}, v28, v{104+2*q}")
                a(f"v_dot2_f32_bf16 v{105+2*q}, v{r+q}, v{10+i}, v{105+2*q}")
            continue
        for q in range(4):
            a(f"v_lshlrev_b32 v28, 16, v{r+q}")
            a(f"v_and_b32 v29, 0xffff0000, v{r+q}")
            a(f"v_fmac_f32 v{104+2*q}, v{10+i}, v28")
            a(f"v_fmac_f32 v{105+2*q}, v{10+i}, v29")
    a(f"v_mul_u32_u24 v9, {NC*4}, v2")
    a("v_lshl_add_u32 v9, v1, 5, v9")
    a("v_add_u32 v9, s45, v9")
    a("ds_write_b128 v9, v[104:107] offset:4096")
    a("ds_write_b128 v9, v[108:111] offset:4112")
    a("s_waitcnt lgkmcnt(0)")
    a("s_barrier")
    a("v_cmp_gt_u32 vcc, 64, v30")
    a("s_and_saveexec_b64 s[24:25], vcc")
    lend = f"{tag}_mod_end"
    a(f"s_cbranch_execz {lend}")
    a(f"v_and_b32 v10, {NC-1}, v30                 ; column")
    a("v_lshlrev_b32 v9, 2, v10")
    a("v_add_u32 v3, s45, v9")
    if NC == 32:
        a(f"v_lshrrev_b32 v11, 5, v30")
        a(f"v_mul_u32_u24 v11, {32*NC*4}, v11")
        a("v_add_u32 v3, v3, v11")
    for i in range(32):
        a(f"ds_read_b32 v{32+i}, v3 offset:{4096+i*NC*4}")
    a("s_waitcnt lgkmcnt(0)")
    for st in [16, 8, 4, 2, 1]:
        for i in range(st):
            a(f"v_add_f32 v{32+i}, v{32+i}, v{32+i+st}")
    if NC == 32:
        a("v_mov_b32 v33, v32")
        a("v_permlane32_swap_b32 v32, v33")
        a("v_add_f32 v32, v32, v33")
    bf16_round_f32(a, 32, 32)
    sdiv(a, 22, 44, 576 // NC)
    a("s_cmp_eq_u32 s22, 1")
    a("s_cselect_b32 s23, 1, 0")
    a("s_cmp_eq_u32 s22, 4")
    a("s_cselect_b32 s23, 1, s23")
    lskip = f"{tag}_noone"
    a("s_cmp_eq_u32 s23, 0")
    a(f"s_cbranch_scc1 {lskip}")
    a("v_add_f32 v32, 1.0, v32")
    bf16_round_f32(a, 32, 32)
    a.label(lskip)
    a(f"s_mul_i32 s22, s44, {NC*4}")
    a("buffer_store_dword v32, v9, s[16:19], s22 offen " + MSC())
    a.label(lend)
    endtask(a)

def gather(a, addr):
    for u in range(9):
        for j in range(8):
            a(f"ds_read_u16 v{72+j}, {addr(u, j)}")
        a("s_waitcnt lgkmcnt(0)")
        for jp in range(4):
            a(f"v_lshl_or_b32 v{32+4*u+jp}, v{72+2*jp+1}, 16, v{72+2*jp}")

def gen_ldsshuf(a, tag, do_qkv, do_wo):
    load_ptr(a, 4, KA_WQKV); load_ptr(a, 6, KA_WO); load_ptr(a, 20, KA_WS)
    a("v_and_b32 v1, 63, v0           ; lane")
    a("s_mul_i32 s24, s22, 9216")
    for i in range(9):
        a(f"v_add_u32 v2, {i*64}, v1")
        a(f"v_mul_u32_u24 v{10+i}, 3641, v2")
        a(f"v_lshrrev_b32 v{10+i}, 16, v{10+i}      ; row")
        a(f"v_mul_u32_u24 v3, 18, v{10+i}")
        a(f"v_sub_u32 v{20+i}, v2, v3              ; cc")
    a("v_and_b32 v4, 15, v1           ; m")
    a("v_lshrrev_b32 v5, 4, v1        ; g")
    a("v_lshlrev_b32 v6, 4, v1        ; lane*16")
    a("v_add_u32 v7, s24, v6")
    a("v_mul_u32_u24 v8, 2304, v5     ; g*8*288")
    a("v_add_u32 v8, s24, v8")
    a("s_waitcnt lgkmcnt(0)")
    if do_qkv: shuf_qkv(a)
    if do_wo: shuf_wo(a, tag)

def shuf_qkv(a):
    srd(a, 8, 4, 576*3456); srd(a, 12, 20, SZ_WQKV, WS_WQKV)
    sdiv(a, 25, 23, 12, 26, 27)
    a("s_lshr_b32 s27, s26, 2         ; sec")
    a("s_and_b32 s28, s26, 3          ; oct")
    a(f"s_mul_i32 s29, s25, {32*3456}")
    a("s_mul_i32 s30, s27, 1152")
    a("s_add_u32 s29, s29, s30")
    a("s_mul_i32 s30, s28, 288")
    a("s_add_u32 s29, s29, s30        ; soffset")
    for i in range(9):
        a(f"v_mul_u32_u24 v2, 3456, v{10+i}")
        a(f"v_lshl_add_u32 v2, v{20+i}, 4, v2")
        a(f"buffer_load_dwordx4 {vr(32+4*i)}, v2, s[8:11], s29 offen")
    NX = extra_loads(a)
    for i in range(9):
        a(f"s_waitcnt vmcnt({8-i+NX})")
        a(f"ds_write_b128 v7, {vr(32+4*i)} offset:{i*1024}")
    a("v_lshl_add_u32 v2, v4, 1, v8   ; main: + m*2")
    a("v_lshrrev_b32 v3, 1, v4")
    a("v_mul_u32_u24 v3, 36, v3")
    a("v_and_b32 v9, 1, v4")
    a("v_lshl_add_u32 v3, v9, 1, v3")
    a("v_add_u32 v3, 32, v3")
    a("v_add_u32 v3, v3, v8           ; ext")
    a("s_waitcnt lgkmcnt(0)")
    gather(a, lambda u, j: (f"v2 offset:{j*288 + 36*u}" if u < 8 else f"v3 offset:{j*288}"))
    a("s_lshl_b32 s30, s27, 4")
    a("s_lshl_b32 s31, s28, 2")
    a("s_add_u32 s30, s30, s31")
    a("s_mul_i32 s30, s30, 18")
    a("s_add_u32 s30, s30, s25")
    a("s_lshl_b32 s30, s30, 11        ; (tau*18+t)*2048")
    a("s_lshl_b32 s31, s27, 1")
    a("s_lshr_b32 s33, s28, 1")
    a("s_add_u32 s31, s31, s33")
    a("s_add_u32 s31, s31, 48")
    a("s_mul_i32 s31, s31, 18")
    a("s_add_u32 s31, s31, s25")
    a("s_lshl_b32 s31, s31, 11")
    a("s_and_b32 s33, s28, 1")
    a("s_lshl_b32 s33, s33, 10")
    a("s_add_u32 s31, s31, s33")
    a("s_waitcnt lgkmcnt(0)")
    for u in range(8):
        a(f"s_add_u32 s33, s30, {(u>>1)*18*2048 + (u&1)*1024}")
        a(f"buffer_store_dwordx4 {vr(32+4*u)}, v6, s[12:15], s33 offen " + SC("K1SC", "1"))
    a(f"buffer_store_dwordx4 {vr(64)}, v6, s[12:15], s31 offen " + SC("K1SC", "1"))
    endtask(a)

def shuf_wo(a, tag):
    srd(a, 8, 6, 576*1152); srd(a, 12, 20, SZ_WO, WS_WO)
    a("s_lshr_b32 s25, s23, 2         ; t")
    a("s_and_b32 s28, s23, 3          ; ng")
    a("s_mul_i32 s29, s28, 288")
    lext = f"{tag}_wo_ext"; lj = f"{tag}_wo_j"
    a("s_cmp_ge_u32 s25, 16")
    a(f"s_cbranch_scc1 {lext}")
    for i in range(9):
        a(f"v_lshrrev_b32 v2, 4, v{10+i}")
        a(f"v_mul_u32_u24 v2, 18, v2")
        a(f"v_and_b32 v3, 15, v{10+i}")
        a(f"v_add_u32 v{10+i}, v2, v3")
    a("s_mul_i32 s30, s25, 36         ; 18*2t")
    a(f"s_branch {lj}")
    a.label(lext)
    for i in range(9):
        a(f"v_lshrrev_b32 v2, 1, v{10+i}")
        a(f"v_mul_u32_u24 v2, 18, v2")
        a(f"v_and_b32 v3, 1, v{10+i}")
        a(f"v_add_u32 v{10+i}, v2, v3")
    a("s_sub_u32 s30, s25, 16")
    a("s_mul_i32 s30, s30, 288        ; 18*16e")
    a("s_add_u32 s30, s30, 16")
    a.label(lj)
    a("s_mul_i32 s30, s30, 1152")
    a("s_add_u32 s29, s29, s30")
    for i in range(9):
        a(f"v_mul_u32_u24 v2, 1152, v{10+i}")
        a(f"v_lshl_add_u32 v2, v{20+i}, 4, v2")
        a(f"buffer_load_dwordx4 {vr(32+4*i)}, v2, s[8:11], s29 offen")
    for i in range(9):
        a(f"s_waitcnt vmcnt({8-i})")
        a(f"ds_write_b128 v7, {vr(32+4*i)} offset:{i*1024}")
    a("v_lshl_add_u32 v2, v4, 1, v8")
    a("s_waitcnt lgkmcnt(0)")
    gather(a, lambda u, j: f"v2 offset:{j*288 + 32*u}")
    a("s_mul_i32 s30, s28, 162        ; ng*9*18")
    a("s_add_u32 s30, s30, s25")
    a("s_lshl_b32 s30, s30, 10")
    a("s_waitcnt lgkmcnt(0)")
    for u in range(9):
        a(f"s_add_u32 s33, s30, {u*18*1024}")
        a(f"buffer_store_dwordx4 {vr(32+4*u)}, v6, s[12:15], s33 offen " + SC("K1SC", "1"))
    endtask(a)

def perm_consts(a):
    a("s_mov_b32 s40, 0x05040100")
    a("s_mov_b32 s41, 0x07060302")

def w13_task(a, s_id, vb, wt=''):
    sdiv(a, 25, s_id, 648, 26, 27)
    sdiv(a, 27, 26, 18, 28, 29)
    a(f"s_mul_i32 s29, s28, {32*9216}")
    a("s_lshl_b32 s30, s27, 8")
    a("s_add_u32 s29, s29, s30        ; soffset")
    l3 = a.newlabel("w3"); lj = a.newlabel("w13j")
    vin = vb+4; vout = vb+36
    a("s_cmp_eq_u32 s25, 1")
    a(f"s_cbranch_scc1 {l3}")
    for j in range(8):
        a(f"buffer_load_dwordx4 {vr(vin+4*j)}, v{vb+1}, s[8:11], s29 offen")
        if j < 7: a("s_add_u32 s29, s29, 9216")
    a(f"s_branch {lj}")
    a.label(l3)
    for j in range(8):
        a(f"buffer_load_dwordx4 {vr(vin+4*j)}, v{vb+1}, s[12:15], s29 offen")
        if j < 7: a("s_add_u32 s29, s29, 9216")
    a.label(lj)
    sdiv(a, 30, 27, 3, 31, 33)
    a("s_mul_i32 s30, s30, 110592")
    a("s_mul_i32 s33, s28, 6144")
    a("s_add_u32 s30, s30, s33")
    a("s_lshl_b32 s31, s31, 1")
    a("s_add_u32 s31, s31, s25")
    a("s_lshl_b32 s31, s31, 10")
    a("s_add_u32 s30, s30, s31")
    a("s_waitcnt vmcnt(0)")
    for i in range(8):
        for jp in range(4):
            sel = "s41" if i & 1 else "s40"
            a(f"v_perm_b32 v{vout+4*i+jp}, v{vin+4*(2*jp+1)+(i>>1)}, v{vin+4*(2*jp)+(i>>1)}, {sel}")
        a(f"buffer_store_dwordx4 {vr(vout+4*i)}, v{vb}, s[16:19], s30 offen {wt}")
        if i < 7: a(f"s_add_u32 s30, s30, {SZ_W13S}")

def w2_task(a, s_id, vb, wt='', srd_in=8, srd_out=16):
    sdiv(a, 25, s_id, 108, 26, 27)
    sdiv(a, 27, 26, 6, 28, 29)
    a("s_lshl_b32 s29, s27, 8")
    a("s_add_u32 s29, s29, s25")
    a("s_mul_i32 s29, s29, 1152")
    a("s_mul_i32 s30, s28, 192")
    a("s_add_u32 s29, s29, s30")
    vin = vb+4; vout = vb+36
    for v in range(2):
        for j in range(4):
            a(f"s_add_u32 s30, s29, {(128*v+8*j)*1152}")
            a(f"buffer_load_dwordx3 {vr(vin+4*(4*v+j),3)}, v{vb+2}, s[{srd_in}:{srd_in+3}], s30 offen")
    a(f"s_mul_i32 s30, s25, {SZ_W2S}")
    a("s_mul_i32 s31, s28, 110592")
    a("s_add_u32 s30, s30, s31")
    a("s_mul_i32 s31, s27, 3072")
    a("s_add_u32 s30, s30, s31")
    a("s_waitcnt vmcnt(0)")
    for i in range(6):
        for v in range(2):
            for jj in range(2):
                sel = "s41" if i & 1 else "s40"
                a(f"v_perm_b32 v{vout+4*i+2*v+jj}, v{vin+4*(4*v+2*jj+1)+(i>>1)}, v{vin+4*(4*v+2*jj)+(i>>1)}, {sel}")
        a(f"s_add_u32 s31, s30, {(i//3)*55296 + (i%3)*1024}")
        a(f"buffer_store_dwordx4 {vr(vout+4*i)}, v{vb}, s[{srd_out}:{srd_out+3}], s31 offen {wt}")

def shuffle_lane_setup(a, vb):
    a(f"v_and_b32 v{vb+3}, 63, v0")
    a(f"v_lshlrev_b32 v{vb}, 4, v{vb+3}          ; lane*16")
    a(f"v_lshrrev_b32 v{vb+1}, 4, v{vb+3}        ; g")
    a(f"v_and_b32 v{vb+3}, 15, v{vb+3}           ; m")
    a(f"v_mul_u32_u24 v{vb+2}, {32*1152}, v{vb+1}")
    a(f"v_mad_u32_u24 v{vb+2}, v{vb+3}, 12, v{vb+2}   ; w2 voffset")
    a(f"v_mul_u32_u24 v{vb+1}, {8*9216}, v{vb+1}")
    a(f"v_lshl_add_u32 v{vb+1}, v{vb+3}, 4, v{vb+1}   ; w13 voffset")

def gen_w13(a):
    load_ptr(a, 4, KA_W1); load_ptr(a, 6, KA_W3); load_ptr(a, 20, KA_WS)
    wave_id(a, 22, 1)
    a(f"s_sub_u32 s23, s2, {B_W13}")
    a("s_lshl_b32 s23, s23, 2")
    a("s_add_u32 s23, s23, s22")
    shuffle_lane_setup(a, 4)
    perm_consts(a)
    a("s_waitcnt lgkmcnt(0)")
    srd(a, 8, 4, 576*9216); srd(a, 12, 6, 576*9216); srd(a, 16, 20, SZ_W13, WS_W13)
    w13_task(a, 23, 4)
    a("s_endpgm")

def gen_w2(a):
    load_ptr(a, 4, KA_W2); load_ptr(a, 20, KA_WS)
    wave_id(a, 22, 1)
    a(f"s_sub_u32 s23, s2, {B_W2}")
    a("s_lshl_b32 s23, s23, 2")
    a("s_add_u32 s23, s23, s22")
    shuffle_lane_setup(a, 4)
    perm_consts(a)
    a("s_waitcnt lgkmcnt(0)")
    srd(a, 8, 4, 4608*1152); srd(a, 16, 20, SZ_W2, WS_W2)
    w2_task(a, 23, 4)
    a("s_endpgm")

def gen_ones(a, fused=False):
    load_ptr(a, 20, KA_WS)
    if not fused: a(f"s_sub_u32 s23, s2, {B_ONES}")
    a("s_cmp_eq_u32 s23, 0\ns_cselect_b32 s25, 1, 0")
    a(f"s_mul_i32 s23, s23, {KVH}")
    a(f"s_add_u32 s23, s23, {KV_V+18*16}")
    a("v_and_b32 v2, 255, v0")
    a("v_mul_u32_u24 v1, 304, v2")
    for i in range(4): a(f"v_mov_b32 v{4+i}, 0x3f803f80")
    a("s_waitcnt lgkmcnt(0)")
    srd(a, 8, 20, SZ_KV, WS_KV)
    a("buffer_store_dwordx4 v[4:7], v1, s[8:11], s23 offen")
    a(f"s_cmp_eq_u32 s25, 0\ns_cbranch_scc1 k1_ones_end")
    srd(a, 12, 20, SZ_CNT, WS_CNT)
    a("v_lshlrev_b32 v1, 9, v2")
    a("v_mov_b32 v8, 0")
    a("buffer_store_dword v8, v1, s[12:15], 0 offen sc0 sc1")
    a.label("k1_ones_end")
    endtask(a)

def gen_xn(a, fused=False):
    load_ptr(a, 4, KA_X); load_ptr(a, 20, KA_WS)
    if not fused: wave_id(a, 22, 1)
    a("v_and_b32 v1, 63, v0")
    a("v_and_b32 v2, 15, v1           ; tok")
    a("v_lshrrev_b32 v3, 4, v1        ; g")
    a("v_lshlrev_b32 v4, 4, v1        ; lane*16")
    if not fused: a(f"s_sub_u32 s23, s2, {B_XN}")
    a("s_lshr_b32 s26, s22, 1")
    a("s_and_b32 s26, s26, 1          ; tbl")
    a("s_and_b32 s27, s22, 1          ; half")
    a("v_mul_u32_u24 v5, 1152, v2")
    a("v_lshl_add_u32 v5, v3, 4, v5")
    a(f"s_mul_i32 s28, s23, {32*1152}")
    a(f"s_mul_i32 s29, s26, {16*1152}")
    a("s_add_u32 s28, s28, s29")
    a("s_mul_i32 s29, s27, 576")
    a("s_add_u32 s28, s28, s29")
    a("s_waitcnt lgkmcnt(0)")
    srd(a, 8, 4, SZ_X); srd(a, 12, 20, SZ_XN, WS_XN)
    VX=16; VS=56; VQ=57; VT=58; RS=60; TT=64; VO=72
    for i in range(9):
        a(f"buffer_load_dwordx4 {vr(VX+4*i)}, v5, s[8:11], s28 offen offset:{i*64}")
    a("s_mov_b32 s30, 0x3f803f80")
    a("s_waitcnt vmcnt(0)")
    ln_stats(a, VX, 36, VS, VQ, 30)
    xsum16_32(a, VS, VT); xsum16_32(a, VQ, VT)
    a("s_lshl_b32 s28, s22, 7")
    a("v_lshlrev_b32 v6, 3, v2")
    a("v_add_u32 v7, s28, v6")
    a(f"ds_write_b64 v7, {vr(VS,2)}")
    a("s_waitcnt lgkmcnt(0)")
    a("s_barrier")
    a("s_xor_b32 s28, s22, 1")
    a("s_lshl_b32 s28, s28, 7")
    a("v_add_u32 v7, s28, v6")
    a(f"ds_read_b64 {vr(VT,2)}, v7")
    a("s_waitcnt lgkmcnt(0)")
    a(f"v_add_f32 v{VS}, v{VS}, v{VT}")
    a(f"v_add_f32 v{VQ}, v{VQ}, v{VT+1}")
    ln_finish(a, VS, VQ, RS, RS+2)
    a(f"v_mov_b32 v{RS+1}, v{RS}")
    a(f"v_mov_b32 v{RS+3}, v{RS+2}")
    a("s_lshr_b32 s28, s23, 1")
    a("s_mul_i32 s28, s28, 73728")
    a("s_and_b32 s29, s23, 1")
    a("s_lshl_b32 s29, s29, 1")
    a("s_add_u32 s29, s29, s26")
    a("s_lshl_b32 s29, s29, 10")
    a("s_add_u32 s28, s28, s29")
    a(f"s_mul_i32 s29, s27, {9*4096}")
    a("s_add_u32 s28, s28, s29")
    for i in range(9):
        o = VO + 4*(i & 1)
        chunk_unpack(a, VX+4*i, TT); chunk_norm(a, TT, RS); chunk_pack(a, TT, o)
        a(f"buffer_store_dwordx4 {vr(o)}, v4, s[12:15], s28 offen " + SC("K1SC", "1"))
        if i < 8: a("s_add_u32 s28, s28, 4096")
    endtask(a)

def gen_poison(a, fused=False):
    load_ptr(a, 20, KA_WS)
    if not fused: a(f"s_sub_u32 s23, s2, {B_POIS}")
    a("v_and_b32 v1, 255, v0")
    a("v_lshlrev_b32 v1, 4, v1")
    for i in range(4): a(f"v_mov_b32 v{4+i}, -1")
    a("s_waitcnt lgkmcnt(0)")
    srd(a, 8, 20, SZ_OM + SZ_OE, WS_OM)
    assert WS_OE == WS_OM + SZ_OM and SZ_OM + SZ_OE == 36*65536
    a("s_lshl_b32 s24, s23, 16")
    for i in range(16):
        a(f"buffer_store_dwordx4 v[4:7], v1, s[8:11], s24 offen sc0 sc1")
        if i < 15: a("s_add_u32 s24, s24, 4096")
    endtask(a)

def gen_k1():
    a = Asm()
    a(f"s_cmp_lt_u32 s2, {B_LS}\ns_cbranch_scc1 k1_mod")
    a(f"s_cmp_lt_u32 s2, {B_W13}\ns_cbranch_scc1 k1_ls")
    a(f"s_cmp_lt_u32 s2, {B_XN}\ns_cbranch_scc1 k1_ones")
    a(f"s_cmp_lt_u32 s2, {B_POIS}\ns_cbranch_scc1 k1_xn")
    a(f"s_cmp_lt_u32 s2, {K1_NWG}\ns_cbranch_scc1 k1_pois")
    a("s_endpgm")
    a.label("k1_mod")
    a("s_mov_b32 s44, s2\ns_mov_b32 s45, 0")
    gen_mod(a, "k1", MODNC if SIDE == 'k2' else 64)
    a.label("k1_ls")
    wave_id(a, 22, 1)
    a(f"s_sub_u32 s23, s2, {B_LS}")
    a("s_lshl_b32 s23, s23, 2")
    a("s_add_u32 s23, s23, s22        ; task")
    if SIDE == 'k2':
        gen_ldsshuf(a, "k1", True, False)
    else:
        a("s_cmp_ge_u32 s23, 216\ns_cbranch_scc1 k1_lswo")
        gen_ldsshuf(a, "k1", True, False)
        a.label("k1_lswo")
        a("s_sub_u32 s23, s23, 216")
        gen_ldsshuf(a, "k1b", False, True)
    a.label("k1_ones"); gen_ones(a)
    a.label("k1_xn"); gen_xn(a)
    a.label("k1_pois"); gen_poison(a)
    return kernel("k1_prep_kernel", a, vgpr=112, sgpr=64), (K1_NWG, 256, K1_LDS)


def w13_load(a, tag, s_id, vb, vin, sdst):
    sdiv(a, 25, s_id, 648, 26, 27)
    sdiv(a, 27, 26, 18, 28, 29)
    a(f"s_mul_i32 s29, s28, {32*9216}")
    a("s_lshl_b32 s30, s27, 8")
    a("s_add_u32 s29, s29, s30        ; soffset")
    a(f"s_cmp_eq_u32 s25, 1\ns_cbranch_scc1 {tag}_w3")
    for j in range(8):
        a(f"buffer_load_dwordx4 {vr(vin+4*j)}, v{vb+1}, s[8:11], s29 offen")
        if j < 7: a("s_add_u32 s29, s29, 9216")
    a(f"s_branch {tag}_j")
    a.label(f"{tag}_w3")
    for j in range(8):
        a(f"buffer_load_dwordx4 {vr(vin+4*j)}, v{vb+1}, s[12:15], s29 offen")
        if j < 7: a("s_add_u32 s29, s29, 9216")
    a.label(f"{tag}_j")
    sdiv(a, 30, 27, 3, 31, 33)
    a("s_mul_i32 s30, s30, 110592")
    a("s_mul_i32 s33, s28, 6144")
    a("s_add_u32 s30, s30, s33")
    a("s_lshl_b32 s31, s31, 1")
    a("s_add_u32 s31, s31, s25")
    a("s_lshl_b32 s31, s31, 10")
    a(f"s_add_u32 s{sdst}, s30, s31")
def w13_finish(a, vb, vin, vout, sdst):
    for i in range(8):
        for jp in range(4):
            sel = "s41" if i & 1 else "s40"
            a(f"v_perm_b32 v{vout+4*i+jp}, v{vin+4*(2*jp+1)+(i>>1)}, v{vin+4*(2*jp)+(i>>1)}, {sel}")
        a(f"buffer_store_dwordx4 {vr(vout+4*i)}, v{vb}, s[16:19], s{sdst} offen sc0 sc1")
        if i < 7: a(f"s_add_u32 s{sdst}, s{sdst}, {SZ_W13S}")
def w2_load(a, s_id, vb, vin, sdst):
    sdiv(a, 25, s_id, 108, 26, 27)
    sdiv(a, 27, 26, 6, 28, 29)
    a("s_lshl_b32 s29, s27, 8")
    a("s_add_u32 s29, s29, s25")
    a("s_mul_i32 s29, s29, 1152")
    a("s_mul_i32 s30, s28, 192")
    a("s_add_u32 s29, s29, s30")
    for v in range(2):
        for j in range(4):
            a(f"s_add_u32 s30, s29, {(128*v+8*j)*1152}")
            a(f"buffer_load_dwordx3 {vr(vin+4*(4*v+j),3)}, v{vb+2}, s[44:47], s30 offen")
    a(f"s_mul_i32 s30, s25, {SZ_W2S}")
    a("s_mul_i32 s31, s28, 110592")
    a("s_add_u32 s30, s30, s31")
    a("s_mul_i32 s31, s27, 3072")
    a(f"s_add_u32 s{sdst}, s30, s31")
def w2_finish(a, vb, vin, vout, sdst):
    for i in range(6):
        for v in range(2):
            for jj in range(2):
                sel = "s41" if i & 1 else "s40"
                a(f"v_perm_b32 v{vout+4*i+2*v+jj}, v{vin+4*(4*v+2*jj+1)+(i>>1)}, v{vin+4*(4*v+2*jj)+(i>>1)}, {sel}")
        a(f"s_add_u32 s31, s{sdst}, {(i//3)*55296 + (i%3)*1024}")
        a(f"buffer_store_dwordx4 {vr(vout+4*i)}, v{vb}, s[48:51], s31 offen sc0 sc1")
```

```python
from common import *
K6_LDS = 3*32*208
PERT = ENV('PERT', '')
def reduce_loads(a, merged, staged=False):
    if staged:
        a("v_mov_b32 v5, s30")
        a("s_lshl_b32 s27, s30, 8")
        a("v_subrev_u32 v6, s27, v0                   ; r")
        a("s_lshl_b32 s27, s30, 3")
        a("s_add_u32 s27, s27, s23")
        a("v_mov_b32 v7, s27                          ; idx = 8c + x")
    else:
        a("v_mul_u32_u24 v5, 5462, v0")
        a("v_lshrrev_b32 v5, 20, v5                   ; hg = t/192")
        a("v_mul_u32_u24 v6, 192, v5")
        a("v_sub_u32 v6, v0, v6                       ; r")
        a("s_mul_i32 s27, s23, 3")
        a("v_add_u32 v7, s27, v5")
    a("v_and_b32 v8, 1, v7                        ; half")
    a("v_lshrrev_b32 v7, 1, v7                    ; gi")
    a("v_and_b32 v9, 1, v7                        ; a")
    a("v_lshrrev_b32 v7, 1, v7                    ; sp")
    a("v_mul_u32_u24 v10, 10923, v6")
    a("v_lshrrev_b32 v10, 16, v10                 ; token 0..31")
    a("v_mul_u32_u24 v11, 6, v10")
    a("v_sub_u32 v11, v6, v11                     ; c")
    a("v_mul_u32_u24 v12, 12, v7")
    a("v_mul_u32_u24 v13, 6, v8")
    a("v_add3_u32 v12, v12, v13, v11")
    a("v_lshl_add_u32 v13, v9, 5, v10")
    a("v_lshrrev_b32 v14, 2, v12")
    a("v_lshlrev_b32 v14, 12, v14")
    a("v_and_b32 v15, 3, v12")
    a("v_lshl_add_u32 v14, v15, 8, v14")
    a("v_lshrrev_b32 v15, 4, v13")
    a("v_lshl_add_u32 v14, v15, 10, v14")
    a("v_and_b32 v15, 15, v13")
    a("v_lshl_add_u32 v14, v15, 4, v14")
    a("s_mul_i32 s27, s24, 73728")
    a(f"buffer_load_dwordx4 {vr(48)}, v14, s[12:15], s27 offen" + (" sc1" if merged else ""))
    a("v_lshlrev_b32 v15, 5, v12")
    a(f"buffer_load_dwordx4 {vr(52)}, v15, s[16:19], 0 offen")
    a(f"buffer_load_dwordx4 {vr(56)}, v15, s[16:19], 0 offen offset:16")
    a("v_mul_u32_u24 v13, 1152, v13")
    a("v_lshl_add_u32 v13, v12, 4, v13")
    a("v_lshrrev_b32 v15, 5, v6                   ; cw")
    a("v_cmp_le_u32 vcc, 3, v15")
    a("v_cndmask_b32 v16, 0, 1, vcc               ; wl")
    a("v_mul_u32_u24 v17, 3, v16")
    a("v_sub_u32 v17, v15, v17                    ; uu")
    a("v_and_b32 v18, 31, v6                      ; lane32")
    a("v_lshl_add_u32 v19, v7, 1, v16")
    a("v_mul_u32_u24 v19, 6144, v19")
    a("v_lshl_add_u32 v20, v17, 1, v9")
    a("v_lshl_add_u32 v19, v20, 10, v19")
    a("v_lshl_add_u32 v20, v8, 5, v18")
    a("v_lshl_add_u32 v19, v20, 4, v19")
    a("v_mul_u32_u24 v20, 6656, v5")
    a("v_and_b32 v21, 15, v18")
    a("v_mul_u32_u24 v21, 208, v21")
    a("v_add_u32 v20, v20, v21")
    a("v_lshrrev_b32 v21, 4, v18")
    a("v_mul_u32_u24 v21, 96, v21")
    a("v_add_u32 v20, v20, v21")
    a("v_lshl_add_u32 v20, v15, 2, v20")
    a("v_mul_u32_u24 v21, 6656, v5")
    a("v_mul_u32_u24 v22, 208, v10")
    a("v_add_u32 v21, v21, v22")
    a("v_lshl_add_u32 v21, v11, 5, v21")

def reduce_main(a, merged, ldsb=0, sync=None, own=None):
    SCL = (" " + ENV("PLD", "sc1")) if merged else ""
    VP=64; VA=96; VR=48; VGB=52
    a("s_mov_b32 s40, 0x00003f80\ns_mov_b32 s41, 0x3f800000")
    if own is None:
        a("s_mul_i32 s27, s24, 73728")
        for x in range(8):
            a(f"buffer_load_dwordx4 {vr(VP+4*x)}, v19, s[8:11], s27 offen{SCL}")
            if x < 7: a(f"s_add_u32 s27, s27, {SZ_PARTS}")
    else:
        for i in range(7):
            a(f"s_add_u32 s28, s23, {i+1}\ns_and_b32 s28, s28, 7")
            a(f"s_mul_i32 s28, s28, {SZ_PARTS}")
            a("s_mul_i32 s27, s24, 73728\ns_add_u32 s27, s27, s28")
            a(f"buffer_load_dwordx4 {vr(VP+4*i)}, v19, s[8:11], s27 offen{SCL}")
        a("s_mul_i32 s27, s30, 3072")
        a(f"s_add_u32 s27, s27, {own}")
        a("v_lshlrev_b32 v9, 4, v6")
        a("v_add_u32 v9, s27, v9")
        a(f"ds_read_b128 {vr(VP+28)}, v9")
    for x in range(8):
        if own is None: a(f"s_waitcnt vmcnt({7-x})")
        elif x < 7: a(f"s_waitcnt vmcnt({6-x})")
        else: a("s_waitcnt lgkmcnt(0)")
        for q in range(4):
            r = VP+4*x+q
            if ENV("DOTSUM", "1") == "1":
                a(f"v_dot2_f32_bf16 v{VA+2*q}, v{r}, s40, {'0' if x == 0 else 'v%d' % (VA+2*q)}")
                a(f"v_dot2_f32_bf16 v{VA+2*q+1}, v{r}, s41, {'0' if x == 0 else 'v%d' % (VA+2*q+1)}")
            elif x == 0:
                a(f"v_lshlrev_b32 v{VA+2*q}, 16, v{r}")
                a(f"v_and_b32 v{VA+2*q+1}, 0xffff0000, v{r}")
            else:
                a(f"v_lshlrev_b32 v9, 16, v{r}")
                a(f"v_and_b32 v10, 0xffff0000, v{r}")
                a(f"v_add_f32 v{VA+2*q}, v{VA+2*q}, v9")
                a(f"v_add_f32 v{VA+2*q+1}, v{VA+2*q+1}, v10")
    for k in range(2):
        for j in range(4):
            a(f"ds_write_b32 v20, v{VA+4*k+j} offset:{ldsb + k*16*208 + j*24}")
    a("s_waitcnt lgkmcnt(0)")
    if sync: sync()
    else: a("s_barrier")
    a(f"ds_read_b128 {vr(VA)}, v21 offset:{ldsb}")
    a(f"ds_read_b128 {vr(VA+4)}, v21 offset:{ldsb+16}")
    a("s_waitcnt lgkmcnt(0)")
    for q in range(4):
        a(f"v_lshlrev_b32 v9, 16, v{VR+q}")
        a(f"v_and_b32 v10, 0xffff0000, v{VR+q}")
        a(f"v_fmac_f32 v9, v{VGB+2*q}, v{VA+2*q}")
        a(f"v_fmac_f32 v10, v{VGB+2*q+1}, v{VA+2*q+1}")
        if PERT:
            kind, val = PERT.split(":")
            if kind == "scale":
                a(f"v_mul_f32 v9, {f32(float(val)):#x}, v9"); a(f"v_mul_f32 v10, {f32(float(val)):#x}, v10")
        a(f"v_cvt_pk_bf16_f32 v{VR+q}, v9, v10")
    a(f"s_mul_i32 s27, s24, {64*1152}")
    a(f"buffer_store_dwordx4 {vr(VR)}, v13, s[48:51], s27 offen")

def gen_k6():
    a = Asm()
    a(f"s_cmp_ge_u32 s2, 256\ns_cbranch_scc1 k6_exit")
    load_ptr(a, 4, KA_OUT); load_ptr(a, 20, KA_WS)
    a("s_and_b32 s23, s2, 7           ; x")
    a("s_lshr_b32 s24, s2, 3          ; rb")
    a("s_waitcnt lgkmcnt(0)")
    srd(a, 8, 20, SZ_PART, WS_PART); srd(a, 12, 20, SZ_X1F, WS_X1F); srd(a, 16, 20, 2304, WS_MOD+5*2304); srd(a, 48, 4, SZ_X)
    reduce_loads(a, False)
    reduce_main(a, False)
    a.label("k6_exit")
    return kernel("k6_reduce_kernel", a, vgpr=112, sgpr=64), (256, 576, K6_LDS)
```

```python
from common import *
import os
SIDE = os.environ.get('SIDE', 'k2')
MODNC = int(os.environ.get('MODNC', '32'))
NWG_MOD=(1152//MODNC) if SIDE == 'k2' else 54; NWG_LS=54 if SIDE == 'k2' else 72; NWG_W13=0; NWG_W2=0; NWG_ONES=32; NWG_XN=64; NWG_POIS=36
B_LS=NWG_MOD; B_W13=B_LS+NWG_LS; B_W2=B_W13+NWG_W13; B_ONES=B_W2+NWG_W2; B_XN=B_ONES+NWG_ONES; B_POIS=B_XN+NWG_XN; K1_NWG=B_POIS+NWG_POIS
K1_LDS=4*9216

LOG2E=0x3fb8aa3b
END = [None]
def endtask(a):
    if END[0] is None: a("s_endpgm")
    else: a("s_mov_b64 exec, -1\ns_branch " + END[0])
XTRA = [None]
def extra_loads(a):
    if XTRA[0] is None: return 0
    XTRA[0][0](a); return XTRA[0][1]
def MSC(): return "sc0 sc1" if END[0] else ""

def gen_mod(a, tag, NC=64):
    LG = {64: 3, 32: 2}[NC]
    NRG = 256 >> LG
    NR = 576 // NRG
    load_ptr(a, 4, KA_WMOD); load_ptr(a, 6, KA_C); load_ptr(a, 20, KA_WS)
    a("v_and_b32 v30, 255, v0")
    a(f"v_and_b32 v1, {(1 << LG) - 1}, v30           ; cg")
    a(f"v_lshrrev_b32 v2, {LG}, v30       ; rg")
    a("s_waitcnt lgkmcnt(0)")
    srd(a, 8, 4, 576*6912); srd(a, 12, 6, 1152); srd(a, 16, 20, SZ_MOD, WS_MOD)
    a("v_lshlrev_b32 v3, 1, v30")
    a("buffer_load_ushort v4, v3, s[12:15], 0 offen")
    a("buffer_load_ushort v5, v3, s[12:15], 0 offen offset:512")
    a("buffer_load_ushort v6, v3, s[12:15], 0 offen offset:1024")
    a("v_mul_u32_u24 v7, 6912, v2")
    a("v_lshl_add_u32 v7, v1, 4, v7")
    a(f"s_mul_i32 s22, s44, {NC*2}         ; n0*2")
    for i in range(NR):
        r = 32 + 4*i
        a(f"buffer_load_dwordx4 {vr(r)}, v7, s[8:11], s22 offen")
        if i < NR-1: a(f"s_add_u32 s22, s22, {NRG*6912}")
    NX = extra_loads(a)
    a("v_lshlrev_b32 v9, 2, v30")
    a("v_add_u32 v9, s45, v9")
    a(f"s_waitcnt vmcnt({NR+NX})")
    for j, v in enumerate([4, 5, 6]):
        a(f"v_lshlrev_b32 v{v}, 16, v{v}")
        a(f"v_mul_f32 v8, {LOG2E:#x}, v{v}")
        a(f"v_exp_f32 v8, -v8")
        a(f"v_add_f32 v8, 1.0, v8")
        a(f"v_rcp_f32 v8, v8")
        a(f"v_mul_f32 v8, v8, v{v}")
        bf16_round_f32(a, 8, 8)
        a(f"ds_write_b32 v9, v8 offset:{j*1024}")
    a("s_waitcnt lgkmcnt(0)")
    a("s_barrier")
    a("v_lshlrev_b32 v9, 2, v2")
    a("v_add_u32 v9, s45, v9")
    for i in range(NR):
        a(f"ds_read_b32 v{10+i}, v9 offset:{i*NRG*4}")
    for j in range(8): a(f"v_mov_b32 v{104+j}, 0")
    a("s_waitcnt lgkmcnt(0)")
    for i in range(NR):
        a(f"s_waitcnt vmcnt({NR-1-i+NX})")
        r = 32 + 4*i
        if ENV("MODDOT", "1") == "1":
            a(f"v_lshrrev_b32 v28, 16, v{10+i}")
            for q in range(4):
                a(f"v_dot2_f32_bf16 v{104+2*q}, v{r+q}, v28, v{104+2*q}")
                a(f"v_dot2_f32_bf16 v{105+2*q}, v{r+q}, v{10+i}, v{105+2*q}")
            continue
        for q in range(4):
            a(f"v_lshlrev_b32 v28, 16, v{r+q}")
            a(f"v_and_b32 v29, 0xffff0000, v{r+q}")
            a(f"v_fmac_f32 v{104+2*q}, v{10+i}, v28")
            a(f"v_fmac_f32 v{105+2*q}, v{10+i}, v29")
    a(f"v_mul_u32_u24 v9, {NC*4}, v2")
    a("v_lshl_add_u32 v9, v1, 5, v9")
    a("v_add_u32 v9, s45, v9")
    a("ds_write_b128 v9, v[104:107] offset:4096")
    a("ds_write_b128 v9, v[108:111] offset:4112")
    a("s_waitcnt lgkmcnt(0)")
    a("s_barrier")
    a("v_cmp_gt_u32 vcc, 64, v30")
    a("s_and_saveexec_b64 s[24:25], vcc")
    lend = f"{tag}_mod_end"
    a(f"s_cbranch_execz {lend}")
    a(f"v_and_b32 v10, {NC-1}, v30                 ; column")
    a("v_lshlrev_b32 v9, 2, v10")
    a("v_add_u32 v3, s45, v9")
    if NC == 32:
        a(f"v_lshrrev_b32 v11, 5, v30")
        a(f"v_mul_u32_u24 v11, {32*NC*4}, v11")
        a("v_add_u32 v3, v3, v11")
    for i in range(32):
        a(f"ds_read_b32 v{32+i}, v3 offset:{4096+i*NC*4}")
    a("s_waitcnt lgkmcnt(0)")
    for st in [16, 8, 4, 2, 1]:
        for i in range(st):
            a(f"v_add_f32 v{32+i}, v{32+i}, v{32+i+st}")
    if NC == 32:
        a("v_mov_b32 v33, v32")
        a("v_permlane32_swap_b32 v32, v33")
        a("v_add_f32 v32, v32, v33")
    bf16_round_f32(a, 32, 32)
    sdiv(a, 22, 44, 576 // NC)
    a("s_cmp_eq_u32 s22, 1")
    a("s_cselect_b32 s23, 1, 0")
    a("s_cmp_eq_u32 s22, 4")
    a("s_cselect_b32 s23, 1, s23")
    lskip = f"{tag}_noone"
    a("s_cmp_eq_u32 s23, 0")
    a(f"s_cbranch_scc1 {lskip}")
    a("v_add_f32 v32, 1.0, v32")
    bf16_round_f32(a, 32, 32)
    if CDOT:
        a(f"s_cmp_lg_u32 s22, 1\ns_cbranch_scc1 {lskip}")
        a("v_lshrrev_b32 v33, 16, v32")
        a("v_and_b32 v34, 4, v9")
        a("v_cmp_eq_u32 vcc, 0, v34")
        a("v_cndmask_b32 v32, v32, v33, vcc")
    a.label(lskip)
    a(f"s_mul_i32 s22, s44, {NC*4}")
    a("buffer_store_dword v32, v9, s[16:19], s22 offen " + MSC())
    a.label(lend)
    endtask(a)

def gather(a, addr):
    for u in range(9):
        for j in range(8):
            a(f"ds_read_u16 v{72+j}, {addr(u, j)}")
        a("s_waitcnt lgkmcnt(0)")
        for jp in range(4):
            a(f"v_lshl_or_b32 v{32+4*u+jp}, v{72+2*jp+1}, 16, v{72+2*jp}")

def gen_ldsshuf(a, tag, do_qkv, do_wo):
    load_ptr(a, 4, KA_WQKV); load_ptr(a, 6, KA_WO); load_ptr(a, 20, KA_WS)
    a("v_and_b32 v1, 63, v0           ; lane")
    a("s_mul_i32 s24, s22, 9216")
    for i in range(9):
        a(f"v_add_u32 v2, {i*64}, v1")
        a(f"v_mul_u32_u24 v{10+i}, 3641, v2")
        a(f"v_lshrrev_b32 v{10+i}, 16, v{10+i}      ; row")
        a(f"v_mul_u32_u24 v3, 18, v{10+i}")
        a(f"v_sub_u32 v{20+i}, v2, v3              ; cc")
    a("v_and_b32 v4, 15, v1           ; m")
    a("v_lshrrev_b32 v5, 4, v1        ; g")
    a("v_lshlrev_b32 v6, 4, v1        ; lane*16")
    a("v_add_u32 v7, s24, v6")
    a("v_mul_u32_u24 v8, 2304, v5     ; g*8*288")
    a("v_add_u32 v8, s24, v8")
    a("s_waitcnt lgkmcnt(0)")
    if do_qkv: shuf_qkv(a)
    if do_wo: shuf_wo(a, tag)

def shuf_qkv(a):
    srd(a, 8, 4, 576*3456); srd(a, 12, 20, SZ_WQKV, WS_WQKV)
    sdiv(a, 25, 23, 12, 26, 27)
    a("s_lshr_b32 s27, s26, 2         ; sec")
    a("s_and_b32 s28, s26, 3          ; oct")
    a(f"s_mul_i32 s29, s25, {32*3456}")
    a("s_mul_i32 s30, s27, 1152")
    a("s_add_u32 s29, s29, s30")
    a("s_mul_i32 s30, s28, 288")
    a("s_add_u32 s29, s29, s30        ; soffset")
    for i in range(9):
        a(f"v_mul_u32_u24 v2, 3456, v{10+i}")
        a(f"v_lshl_add_u32 v2, v{20+i}, 4, v2")
        a(f"buffer_load_dwordx4 {vr(32+4*i)}, v2, s[8:11], s29 offen")
    NX = extra_loads(a)
    for i in range(9):
        a(f"s_waitcnt vmcnt({8-i+NX})")
        a(f"ds_write_b128 v7, {vr(32+4*i)} offset:{i*1024}")
    a("v_lshl_add_u32 v2, v4, 1, v8   ; main: + m*2")
    a("v_lshrrev_b32 v3, 1, v4")
    a("v_mul_u32_u24 v3, 36, v3")
    a("v_and_b32 v9, 1, v4")
    a("v_lshl_add_u32 v3, v9, 1, v3")
    a("v_add_u32 v3, 32, v3")
    a("v_add_u32 v3, v3, v8           ; ext")
    a("s_waitcnt lgkmcnt(0)")
    gather(a, lambda u, j: (f"v2 offset:{j*288 + 36*u}" if u < 8 else f"v3 offset:{j*288}"))
    a("s_lshl_b32 s30, s27, 4")
    a("s_lshl_b32 s31, s28, 2")
    a("s_add_u32 s30, s30, s31")
    a("s_mul_i32 s30, s30, 18")
    a("s_add_u32 s30, s30, s25")
    a("s_lshl_b32 s30, s30, 11        ; (tau*18+t)*2048")
    a("s_lshl_b32 s31, s27, 1")
    a("s_lshr_b32 s33, s28, 1")
    a("s_add_u32 s31, s31, s33")
    a("s_add_u32 s31, s31, 48")
    a("s_mul_i32 s31, s31, 18")
    a("s_add_u32 s31, s31, s25")
    a("s_lshl_b32 s31, s31, 11")
    a("s_and_b32 s33, s28, 1")
    a("s_lshl_b32 s33, s33, 10")
    a("s_add_u32 s31, s31, s33")
    a("s_waitcnt lgkmcnt(0)")
    for u in range(8):
        a(f"s_add_u32 s33, s30, {(u>>1)*18*2048 + (u&1)*1024}")
        a(f"buffer_store_dwordx4 {vr(32+4*u)}, v6, s[12:15], s33 offen " + SC("K1SC", "1"))
    a(f"buffer_store_dwordx4 {vr(64)}, v6, s[12:15], s31 offen " + SC("K1SC", "1"))
    endtask(a)

def shuf_wo(a, tag):
    srd(a, 8, 6, 576*1152); srd(a, 12, 20, SZ_WO, WS_WO)
    a("s_lshr_b32 s25, s23, 2         ; t")
    a("s_and_b32 s28, s23, 3          ; ng")
    a("s_mul_i32 s29, s28, 288")
    lext = f"{tag}_wo_ext"; lj = f"{tag}_wo_j"
    a("s_cmp_ge_u32 s25, 16")
    a(f"s_cbranch_scc1 {lext}")
    for i in range(9):
        a(f"v_lshrrev_b32 v2, 4, v{10+i}")
        a(f"v_mul_u32_u24 v2, 18, v2")
        a(f"v_and_b32 v3, 15, v{10+i}")
        a(f"v_add_u32 v{10+i}, v2, v3")
    a("s_mul_i32 s30, s25, 36         ; 18*2t")
    a(f"s_branch {lj}")
    a.label(lext)
    for i in range(9):
        a(f"v_lshrrev_b32 v2, 1, v{10+i}")
        a(f"v_mul_u32_u24 v2, 18, v2")
        a(f"v_and_b32 v3, 1, v{10+i}")
        a(f"v_add_u32 v{10+i}, v2, v3")
    a("s_sub_u32 s30, s25, 16")
    a("s_mul_i32 s30, s30, 288        ; 18*16e")
    a("s_add_u32 s30, s30, 16")
    a.label(lj)
    a("s_mul_i32 s30, s30, 1152")
    a("s_add_u32 s29, s29, s30")
    for i in range(9):
        a(f"v_mul_u32_u24 v2, 1152, v{10+i}")
        a(f"v_lshl_add_u32 v2, v{20+i}, 4, v2")
        a(f"buffer_load_dwordx4 {vr(32+4*i)}, v2, s[8:11], s29 offen")
    for i in range(9):
        a(f"s_waitcnt vmcnt({8-i})")
        a(f"ds_write_b128 v7, {vr(32+4*i)} offset:{i*1024}")
    a("v_lshl_add_u32 v2, v4, 1, v8")
    a("s_waitcnt lgkmcnt(0)")
    gather(a, lambda u, j: f"v2 offset:{j*288 + 32*u}")
    a("s_mul_i32 s30, s28, 162        ; ng*9*18")
    a("s_add_u32 s30, s30, s25")
    a("s_lshl_b32 s30, s30, 10")
    a("s_waitcnt lgkmcnt(0)")
    for u in range(9):
        a(f"s_add_u32 s33, s30, {u*18*1024}")
        a(f"buffer_store_dwordx4 {vr(32+4*u)}, v6, s[12:15], s33 offen " + SC("K1SC", "1"))
    endtask(a)

def perm_consts(a):
    a("s_mov_b32 s40, 0x05040100")
    a("s_mov_b32 s41, 0x07060302")

def w13_task(a, s_id, vb, wt=''):
    sdiv(a, 25, s_id, 648, 26, 27)
    sdiv(a, 27, 26, 18, 28, 29)
    a(f"s_mul_i32 s29, s28, {32*9216}")
    a("s_lshl_b32 s30, s27, 8")
    a("s_add_u32 s29, s29, s30        ; soffset")
    l3 = a.newlabel("w3"); lj = a.newlabel("w13j")
    vin = vb+4; vout = vb+36
    a("s_cmp_eq_u32 s25, 1")
    a(f"s_cbranch_scc1 {l3}")
    for j in range(8):
        a(f"buffer_load_dwordx4 {vr(vin+4*j)}, v{vb+1}, s[8:11], s29 offen")
        if j < 7: a("s_add_u32 s29, s29, 9216")
    a(f"s_branch {lj}")
    a.label(l3)
    for j in range(8):
        a(f"buffer_load_dwordx4 {vr(vin+4*j)}, v{vb+1}, s[12:15], s29 offen")
        if j < 7: a("s_add_u32 s29, s29, 9216")
    a.label(lj)
    sdiv(a, 30, 27, 3, 31, 33)
    a("s_mul_i32 s30, s30, 110592")
    a("s_mul_i32 s33, s28, 6144")
    a("s_add_u32 s30, s30, s33")
    a("s_lshl_b32 s31, s31, 1")
    a("s_add_u32 s31, s31, s25")
    a("s_lshl_b32 s31, s31, 10")
    a("s_add_u32 s30, s30, s31")
    a("s_waitcnt vmcnt(0)")
    for i in range(8):
        for jp in range(4):
            sel = "s41" if i & 1 else "s40"
            a(f"v_perm_b32 v{vout+4*i+jp}, v{vin+4*(2*jp+1)+(i>>1)}, v{vin+4*(2*jp)+(i>>1)}, {sel}")
        a(f"buffer_store_dwordx4 {vr(vout+4*i)}, v{vb}, s[16:19], s30 offen {wt}")
        if i < 7: a(f"s_add_u32 s30, s30, {SZ_W13S}")

def w2_task(a, s_id, vb, wt='', srd_in=8, srd_out=16):
    sdiv(a, 25, s_id, 108, 26, 27)
    sdiv(a, 27, 26, 6, 28, 29)
    a("s_lshl_b32 s29, s27, 8")
    a("s_add_u32 s29, s29, s25")
    a("s_mul_i32 s29, s29, 1152")
    a("s_mul_i32 s30, s28, 192")
    a("s_add_u32 s29, s29, s30")
    vin = vb+4; vout = vb+36
    for v in range(2):
        for j in range(4):
            a(f"s_add_u32 s30, s29, {(128*v+8*j)*1152}")
            a(f"buffer_load_dwordx3 {vr(vin+4*(4*v+j),3)}, v{vb+2}, s[{srd_in}:{srd_in+3}], s30 offen")
    a(f"s_mul_i32 s30, s25, {SZ_W2S}")
    a("s_mul_i32 s31, s28, 110592")
    a("s_add_u32 s30, s30, s31")
    a("s_mul_i32 s31, s27, 3072")
    a("s_add_u32 s30, s30, s31")
    a("s_waitcnt vmcnt(0)")
    for i in range(6):
        for v in range(2):
            for jj in range(2):
                sel = "s41" if i & 1 else "s40"
                a(f"v_perm_b32 v{vout+4*i+2*v+jj}, v{vin+4*(4*v+2*jj+1)+(i>>1)}, v{vin+4*(4*v+2*jj)+(i>>1)}, {sel}")
        a(f"s_add_u32 s31, s30, {(i//3)*55296 + (i%3)*1024}")
        a(f"buffer_store_dwordx4 {vr(vout+4*i)}, v{vb}, s[{srd_out}:{srd_out+3}], s31 offen {wt}")

def shuffle_lane_setup(a, vb):
    a(f"v_and_b32 v{vb+3}, 63, v0")
    a(f"v_lshlrev_b32 v{vb}, 4, v{vb+3}          ; lane*16")
    a(f"v_lshrrev_b32 v{vb+1}, 4, v{vb+3}        ; g")
    a(f"v_and_b32 v{vb+3}, 15, v{vb+3}           ; m")
    a(f"v_mul_u32_u24 v{vb+2}, {32*1152}, v{vb+1}")
    a(f"v_mad_u32_u24 v{vb+2}, v{vb+3}, 12, v{vb+2}   ; w2 voffset")
    a(f"v_mul_u32_u24 v{vb+1}, {8*9216}, v{vb+1}")
    a(f"v_lshl_add_u32 v{vb+1}, v{vb+3}, 4, v{vb+1}   ; w13 voffset")

def gen_w13(a):
    load_ptr(a, 4, KA_W1); load_ptr(a, 6, KA_W3); load_ptr(a, 20, KA_WS)
    wave_id(a, 22, 1)
    a(f"s_sub_u32 s23, s2, {B_W13}")
    a("s_lshl_b32 s23, s23, 2")
    a("s_add_u32 s23, s23, s22")
    shuffle_lane_setup(a, 4)
    perm_consts(a)
    a("s_waitcnt lgkmcnt(0)")
    srd(a, 8, 4, 576*9216); srd(a, 12, 6, 576*9216); srd(a, 16, 20, SZ_W13, WS_W13)
    w13_task(a, 23, 4)
    a("s_endpgm")

def gen_w2(a):
    load_ptr(a, 4, KA_W2); load_ptr(a, 20, KA_WS)
    wave_id(a, 22, 1)
    a(f"s_sub_u32 s23, s2, {B_W2}")
    a("s_lshl_b32 s23, s23, 2")
    a("s_add_u32 s23, s23, s22")
    shuffle_lane_setup(a, 4)
    perm_consts(a)
    a("s_waitcnt lgkmcnt(0)")
    srd(a, 8, 4, 4608*1152); srd(a, 16, 20, SZ_W2, WS_W2)
    w2_task(a, 23, 4)
    a("s_endpgm")

def gen_ones(a, fused=False):
    load_ptr(a, 20, KA_WS)
    if not fused: a(f"s_sub_u32 s23, s2, {B_ONES}")
    a("s_cmp_eq_u32 s23, 0\ns_cselect_b32 s25, 1, 0")
    a(f"s_mul_i32 s23, s23, {KVH}")
    a(f"s_add_u32 s23, s23, {KV_V+18*16}")
    a("v_and_b32 v2, 255, v0")
    a("v_mul_u32_u24 v1, 304, v2")
    for i in range(4): a(f"v_mov_b32 v{4+i}, 0x3f803f80")
    a("s_waitcnt lgkmcnt(0)")
    srd(a, 8, 20, SZ_KV, WS_KV)
    a("buffer_store_dwordx4 v[4:7], v1, s[8:11], s23 offen")
    a(f"s_cmp_eq_u32 s25, 0\ns_cbranch_scc1 k1_ones_end")
    srd(a, 12, 20, SZ_CNT, WS_CNT)
    a("v_lshlrev_b32 v1, 9, v2")
    a("v_mov_b32 v8, 0")
    a("buffer_store_dword v8, v1, s[12:15], 0 offen sc0 sc1")
    a.label("k1_ones_end")
    endtask(a)

def gen_xn(a, fused=False):
    load_ptr(a, 4, KA_X); load_ptr(a, 20, KA_WS)
    if not fused: wave_id(a, 22, 1)
    a("v_and_b32 v1, 63, v0")
    a("v_and_b32 v2, 15, v1           ; tok")
    a("v_lshrrev_b32 v3, 4, v1        ; g")
    a("v_lshlrev_b32 v4, 4, v1        ; lane*16")
    if not fused: a(f"s_sub_u32 s23, s2, {B_XN}")
    a("s_lshr_b32 s26, s22, 1")
    a("s_and_b32 s26, s26, 1          ; tbl")
    a("s_and_b32 s27, s22, 1          ; half")
    a("v_mul_u32_u24 v5, 1152, v2")
    a("v_lshl_add_u32 v5, v3, 4, v5")
    a(f"s_mul_i32 s28, s23, {32*1152}")
    a(f"s_mul_i32 s29, s26, {16*1152}")
    a("s_add_u32 s28, s28, s29")
    a("s_mul_i32 s29, s27, 576")
    a("s_add_u32 s28, s28, s29")
    a("s_waitcnt lgkmcnt(0)")
    srd(a, 8, 4, SZ_X); srd(a, 12, 20, SZ_XN, WS_XN)
    VX=16; VS=56; VQ=57; VT=58; RS=60; TT=64; VO=72
    for i in range(9):
        a(f"buffer_load_dwordx4 {vr(VX+4*i)}, v5, s[8:11], s28 offen offset:{i*64}")
    a("s_mov_b32 s30, 0x3f803f80")
    a("s_waitcnt vmcnt(0)")
    ln_stats(a, VX, 36, VS, VQ, 30)
    xsum16_32(a, VS, VT); xsum16_32(a, VQ, VT)
    a("s_lshl_b32 s28, s22, 7")
    a("v_lshlrev_b32 v6, 3, v2")
    a("v_add_u32 v7, s28, v6")
    a(f"ds_write_b64 v7, {vr(VS,2)}")
    a("s_waitcnt lgkmcnt(0)")
    a("s_barrier")
    a("s_xor_b32 s28, s22, 1")
    a("s_lshl_b32 s28, s28, 7")
    a("v_add_u32 v7, s28, v6")
    a(f"ds_read_b64 {vr(VT,2)}, v7")
    a("s_waitcnt lgkmcnt(0)")
    a(f"v_add_f32 v{VS}, v{VS}, v{VT}")
    a(f"v_add_f32 v{VQ}, v{VQ}, v{VT+1}")
    ln_finish(a, VS, VQ, RS, RS+2)
    a(f"v_mov_b32 v{RS+1}, v{RS}")
    a(f"v_mov_b32 v{RS+3}, v{RS+2}")
    a("s_lshr_b32 s28, s23, 1")
    a("s_mul_i32 s28, s28, 73728")
    a("s_and_b32 s29, s23, 1")
    a("s_lshl_b32 s29, s29, 1")
    a("s_add_u32 s29, s29, s26")
    a("s_lshl_b32 s29, s29, 10")
    a("s_add_u32 s28, s28, s29")
    a(f"s_mul_i32 s29, s27, {9*4096}")
    a("s_add_u32 s28, s28, s29")
    for i in range(9):
        o = VO + 4*(i & 1)
        chunk_unpack(a, VX+4*i, TT); chunk_norm(a, TT, RS); chunk_pack(a, TT, o)
        a(f"buffer_store_dwordx4 {vr(o)}, v4, s[12:15], s28 offen " + SC("K1SC", "1"))
        if i < 8: a("s_add_u32 s28, s28, 4096")
    endtask(a)

def gen_poison(a, fused=False):
    load_ptr(a, 20, KA_WS)
    if not fused: a(f"s_sub_u32 s23, s2, {B_POIS}")
    a("v_and_b32 v1, 255, v0")
    a("v_lshlrev_b32 v1, 4, v1")
    for i in range(4): a(f"v_mov_b32 v{4+i}, -1")
    a("s_waitcnt lgkmcnt(0)")
    srd(a, 8, 20, SZ_OM + SZ_OE, WS_OM)
    assert WS_OE == WS_OM + SZ_OM and SZ_OM + SZ_OE == 36*65536
    a("s_lshl_b32 s24, s23, 16")
    for i in range(16):
        a(f"buffer_store_dwordx4 v[4:7], v1, s[8:11], s24 offen sc0 sc1")
        if i < 15: a("s_add_u32 s24, s24, 4096")
    endtask(a)

def gen_k1():
    a = Asm()
    a(f"s_cmp_lt_u32 s2, {B_LS}\ns_cbranch_scc1 k1_mod")
    a(f"s_cmp_lt_u32 s2, {B_W13}\ns_cbranch_scc1 k1_ls")
    a(f"s_cmp_lt_u32 s2, {B_XN}\ns_cbranch_scc1 k1_ones")
    a(f"s_cmp_lt_u32 s2, {B_POIS}\ns_cbranch_scc1 k1_xn")
    a(f"s_cmp_lt_u32 s2, {K1_NWG}\ns_cbranch_scc1 k1_pois")
    a("s_endpgm")
    a.label("k1_mod")
    a("s_mov_b32 s44, s2\ns_mov_b32 s45, 0")
    gen_mod(a, "k1", MODNC if SIDE == 'k2' else 64)
    a.label("k1_ls")
    wave_id(a, 22, 1)
    a(f"s_sub_u32 s23, s2, {B_LS}")
    a("s_lshl_b32 s23, s23, 2")
    a("s_add_u32 s23, s23, s22        ; task")
    if SIDE == 'k2':
        gen_ldsshuf(a, "k1", True, False)
    else:
        a("s_cmp_ge_u32 s23, 216\ns_cbranch_scc1 k1_lswo")
        gen_ldsshuf(a, "k1", True, False)
        a.label("k1_lswo")
        a("s_sub_u32 s23, s23, 216")
        gen_ldsshuf(a, "k1b", False, True)
    a.label("k1_ones"); gen_ones(a)
    a.label("k1_xn"); gen_xn(a)
    a.label("k1_pois"); gen_poison(a)
    return kernel("k1_prep_kernel", a, vgpr=112, sgpr=64), (K1_NWG, 256, K1_LDS)


def w13_load(a, tag, s_id, vb, vin, sdst):
    sdiv(a, 25, s_id, 648, 26, 27)
    sdiv(a, 27, 26, 18, 28, 29)
    a(f"s_mul_i32 s29, s28, {32*9216}")
    a("s_lshl_b32 s30, s27, 8")
    a("s_add_u32 s29, s29, s30        ; soffset")
    a(f"s_cmp_eq_u32 s25, 1\ns_cbranch_scc1 {tag}_w3")
    for j in range(8):
        a(f"buffer_load_dwordx4 {vr(vin+4*j)}, v{vb+1}, s[8:11], s29 offen")
        if j < 7: a("s_add_u32 s29, s29, 9216")
    a(f"s_branch {tag}_j")
    a.label(f"{tag}_w3")
    for j in range(8):
        a(f"buffer_load_dwordx4 {vr(vin+4*j)}, v{vb+1}, s[12:15], s29 offen")
        if j < 7: a("s_add_u32 s29, s29, 9216")
    a.label(f"{tag}_j")
    sdiv(a, 30, 27, 3, 31, 33)
    a("s_mul_i32 s30, s30, 110592")
    a("s_mul_i32 s33, s28, 6144")
    a("s_add_u32 s30, s30, s33")
    a("s_lshl_b32 s31, s31, 1")
    a("s_add_u32 s31, s31, s25")
    a("s_lshl_b32 s31, s31, 10")
    a(f"s_add_u32 s{sdst}, s30, s31")
def w13_finish(a, vb, vin, vout, sdst):
    for i in range(8):
        for jp in range(4):
            sel = "s41" if i & 1 else "s40"
            a(f"v_perm_b32 v{vout+4*i+jp}, v{vin+4*(2*jp+1)+(i>>1)}, v{vin+4*(2*jp)+(i>>1)}, {sel}")
        a(f"buffer_store_dwordx4 {vr(vout+4*i)}, v{vb}, s[16:19], s{sdst} offen sc0 sc1")
        if i < 7: a(f"s_add_u32 s{sdst}, s{sdst}, {SZ_W13S}")
def w2_load(a, s_id, vb, vin, sdst):
    sdiv(a, 25, s_id, 108, 26, 27)
    sdiv(a, 27, 26, 6, 28, 29)
    a("s_lshl_b32 s29, s27, 8")
    a("s_add_u32 s29, s29, s25")
    a("s_mul_i32 s29, s29, 1152")
    a("s_mul_i32 s30, s28, 192")
    a("s_add_u32 s29, s29, s30")
    for v in range(2):
        for j in range(4):
            a(f"s_add_u32 s30, s29, {(128*v+8*j)*1152}")
            a(f"buffer_load_dwordx3 {vr(vin+4*(4*v+j),3)}, v{vb+2}, s[44:47], s30 offen")
    a(f"s_mul_i32 s30, s25, {SZ_W2S}")
    a("s_mul_i32 s31, s28, 110592")
    a("s_add_u32 s30, s30, s31")
    a("s_mul_i32 s31, s27, 3072")
    a(f"s_add_u32 s{sdst}, s30, s31")
def w2_finish(a, vb, vin, vout, sdst):
    for i in range(6):
        for v in range(2):
            for jj in range(2):
                sel = "s41" if i & 1 else "s40"
                a(f"v_perm_b32 v{vout+4*i+2*v+jj}, v{vin+4*(4*v+2*jj+1)+(i>>1)}, v{vin+4*(4*v+2*jj)+(i>>1)}, {sel}")
        a(f"s_add_u32 s31, s{sdst}, {(i//3)*55296 + (i%3)*1024}")
        a(f"buffer_store_dwordx4 {vr(vout+4*i)}, v{vb}, s[48:51], s31 offen sc0 sc1")
```

```python
from common import *
from k1 import gen_mod, gen_ldsshuf, SIDE
K2_LDS = 73728 + 8*4096
WLATE = ENV('K2WLATE', '0')
L_MOD = 73728
QSCALE = 0x3eae1a4e
import struct, math
QSCALE = struct.unpack("<I", struct.pack("<f", math.log2(math.e)/math.sqrt(18.0)))[0]
EPS = struct.unpack("<I", struct.pack("<f", 1e-5))[0]
INV576 = struct.unpack("<I", struct.pack("<f", 1.0/576))[0]

def gen_k2():
    a = Asm()
    a("s_cmp_ge_u32 s2, 256\ns_cbranch_scc1 k2_exit")
    qkv_body(a, False)
    return kernel("k2_qkv_kernel", a, vgpr=152, sgpr=64), (256, 512, K2_LDS)

def tile_map(a):
    a("s_and_b32 s25, s2, 7")
    a("s_lshr_b32 s26, s2, 3")
    a("s_lshr_b32 s24, s25, 1")
    a("s_lshl_b32 s24, s24, 3")
    a("s_and_b32 s27, s26, 7")
    a("s_add_u32 s24, s24, s27        ; rb")
    a("s_and_b32 s23, s25, 1")
    a("s_lshl_b32 s23, s23, 2")
    a("s_lshr_b32 s27, s26, 3")
    a("s_add_u32 s23, s23, s27        ; slice")

_sid = [0]
def out_store(a, text):
    m = ENV("K2SC", "0")
    if m == "2":
        _sid[0] += 1; n = _sid[0]
        a(f"s_cmp_lt_u32 s22, 4\ns_cbranch_scc1 k2_st{n}a")
        a(text); a(f"s_branch k2_st{n}b"); a.label(f"k2_st{n}a"); a(text + " sc0 sc1"); a.label(f"k2_st{n}b")
    else:
        a(text + (" sc0 sc1" if m == "1" else ""))

def qkv_body(a, fused):
    LF = " sc1" if fused else ""
    if not fused:
        tile_map(a)
        a("s_cmp_eq_u32 s23, 7\ns_cbranch_scc1 " + ("k2_side" if SIDE == 'k2' else "k2_exit"))
        load_ptr(a, 20, KA_WS)
        wave_id(a, 22, 1)
    VL=1; VTOK=2; VG=3; VL16=4
    a(f"v_and_b32 v{VL}, 63, v0")
    a(f"v_and_b32 v{VTOK}, 15, v{VL}")
    a(f"v_lshrrev_b32 v{VG}, 4, v{VL}")
    a(f"v_lshlrev_b32 v{VL16}, 4, v{VL}")
    a("s_lshl_b32 s25, s23, 3")
    a("s_add_u32 s25, s25, s22        ; tau")
    a("s_lshr_b32 s26, s22, 1         ; tb")
    a("s_and_b32 s27, s22, 1          ; half")
    a("s_waitcnt lgkmcnt(0)")
    srd(a, 8, 20, SZ_XN, WS_XN); srd(a, 12, 20, 4608, WS_MOD); srd(a, 16, 20, SZ_WQKV, WS_WQKV)
    RING=6
    VX=16; VW=52; VACC=100; VT=132
    a(f"s_mul_i32 s28, s27, 1152")
    a(f"buffer_load_dwordx4 {vr(VT)}, v{VL16}, s[12:15], s28 offen" + LF)
    a(f"buffer_load_dwordx4 {vr(VT+4)}, v{VL16}, s[12:15], s28 offen offset:1024" + LF)
    a(f"s_add_u32 s28, s28, 2304")
    a(f"buffer_load_dwordx4 {vr(VT+8)}, v{VL16}, s[12:15], s28 offen" + LF)
    a(f"buffer_load_dwordx4 {vr(VT+12)}, v{VL16}, s[12:15], s28 offen offset:1024" + LF)
    OWNLN = fused and LNIN
    if not OWNLN:
        a("s_mul_i32 s28, s24, 73728")
        a(f"s_mul_i32 s29, s27, {9*4096}")
        a("s_add_u32 s28, s28, s29")
        a("s_lshl_b32 s29, s26, 10")
        a("s_add_u32 s28, s28, s29")
        for i in range(9):
            a(f"buffer_load_dwordx4 {vr(VX+4*i)}, v{VL16}, s[8:11], s28 offen" + LF)
            if i < 8: a("s_add_u32 s28, s28, 4096")
    a(f"s_mul_i32 s40, s25, {18*2048}   ; W stream")
    nw = [0]
    def wload():
        k = nw[0]; nw[0] += 1
        t, uu = k >> 1, k & 1
        a(f"buffer_load_dwordx4 {vr(VW+8*(t % RING)+4*uu)}, v{VL16}, s[16:19], s40 offen offset:{uu*1024}" + LF)
        if uu: a("s_add_u32 s40, s40, 2048")
    a("s_lshl_b32 s28, s22, 12")
    a(f"s_add_u32 s33, s28, {L_MOD}")
    a(f"v_add_u32 v6, s33, v{VL16}")
    a.stamp(1)
    a("s_waitcnt vmcnt(%d)" % (0 if OWNLN else 9))
    for i in range(4): a(f"ds_write_b128 v6, {vr(VT+4*i)} offset:{i*1024}")
    a("s_waitcnt lgkmcnt(0)")
    a.stamp(2)
    VC=[VACC, VACC+16]; VSF=[VACC+8, VACC+24]; VTT=VT; VO=VT+8
    a(f"v_lshlrev_b32 v8, 5, v{VG}")
    a(f"v_add_u32 v8, s33, v8")
    a(f"s_mul_i32 s28, s27, {9*4096}")
    a(f"s_lshl_b32 s29, s26, 10")
    a(f"s_add_u32 s28, s28, s29")
    a(f"v_add_u32 v9, s28, v{VL16}")
    def modread(i):
        b = i & 1
        a(f"ds_read_b128 {vr(VSF[b])}, v8 offset:{i*128}")
        a(f"ds_read_b128 {vr(VSF[b]+4)}, v8 offset:{i*128 + 16}")
        a(f"ds_read_b128 {vr(VC[b])}, v8 offset:{2048 + i*128}")
        a(f"ds_read_b128 {vr(VC[b]+4)}, v8 offset:{2048 + i*128 + 16}")
    modread(0)
    for i in range(9):
        if i < 8: modread(i+1)
        if OWNLN: a(f"s_waitcnt lgkmcnt({4 if i < 8 else 0})")
        else: a(f"s_waitcnt vmcnt({8-i+nw[0]}) lgkmcnt({4 if i < 8 else 0})")
        if i == 0: a.stamp(3)
        if CDOT:
            for e in range(8): a(f"v_dot2_f32_bf16 v{VTT+e}, v{VX+4*i+(e>>1)}, v{VC[i&1]+e}, v{VSF[i&1]+e}")
            chunk_pack(a, VTT, VO+4*(i&1))
        else:
            chunk_unpack(a, VX+4*i, VTT); chunk_mod(a, VTT, VC[i&1], VSF[i&1]); chunk_pack(a, VTT, VO+4*(i&1))
        a(f"ds_write_b128 v9, {vr(VO+4*(i&1))} offset:{i*4096}")
        if WLATE == "0": wload()
    a.stamp(5)
    while nw[0] < 2*RING: wload()
    a("s_waitcnt lgkmcnt(0)")
    a("s_barrier")
    a.stamp(4)
    a("s_cmp_ge_u32 s25, 54\ns_cbranch_scc1 k2_exit")
    XB=[VX, VX+16]
    def xreads(t):
        b = XB[t & 1]
        for tb in range(4):
            off = t*4096 + tb*1024
            if off < 65536: a(f"ds_read_b128 {vr(b+4*tb)}, v{VL16} offset:{off}")
            else:           a(f"ds_read_b128 {vr(b+4*tb)}, v10 offset:{off-65536}")
    def gemm(vtype):
        nw[0] = 2*RING
        a("s_mov_b32 s41, s40")
        a(f"v_add_u32 v10, 0x10000, v{VL16}")
        xreads(0)
        for t in range(18):
            if t < 17: xreads(t+1)
            issued = min(18, t + RING)
            a(f"s_waitcnt vmcnt({2*(issued-t-1)}) lgkmcnt({4 if t < 17 else 0})")
            b = XB[t & 1]
            for uu in range(2):
                for tb in range(4):
                    acc = VACC + 16*uu + 4*tb
                    c = vr(acc) if t else "0"
                    w = vr(VW+8*(t % RING)+4*uu); x = vr(b+4*tb)
                    if vtype: a(f"v_mfma_f32_16x16x32_bf16 {vr(acc)}, {x}, {w}, {c}")
                    else:     a(f"v_mfma_f32_16x16x32_bf16 {vr(acc)}, {w}, {x}, {c}")
                if t + RING < 18:
                    a(f"buffer_load_dwordx4 {vr(VW+8*(t % RING)+4*uu)}, v{VL16}, s[16:19], s41 offen offset:{uu*1024}" + LF)
            if t + RING < 18: a("s_add_u32 s41, s41, 2048")
    a("s_cmp_ge_u32 s25, 52\ns_cbranch_scc1 k2_gv")
    a("s_cmp_ge_u32 s25, 48\ns_cbranch_scc1 k2_gq")
    a("s_cmp_ge_u32 s25, 32\ns_cbranch_scc1 k2_gv")
    a.label("k2_gq")
    gemm(False)
    a.stamp(6)
    srd(a, 8, 20, SZ_QA, WS_QA); srd(a, 12, 20, SZ_QB, WS_QB); srd(a, 16, 20, SZ_KV, WS_KV)
    a("s_cmp_ge_u32 s25, 48\ns_cbranch_scc1 k2_ext")
    def pack_pair16(acc0, acc1, o):
        a(f"v_cvt_pk_bf16_f32 v{o}, v{acc0}, v{acc0+1}")
        a(f"v_cvt_pk_bf16_f32 v{o+1}, v{acc0+2}, v{acc0+3}")
        a(f"v_cvt_pk_bf16_f32 v{o+2}, v{acc1}, v{acc1+1}")
        a(f"v_cvt_pk_bf16_f32 v{o+3}, v{acc1+2}, v{acc1+3}")
    a("s_lshl_b32 s28, s24, 11")
    a("s_cmp_ge_u32 s25, 16\ns_cbranch_scc1 k2_kmain")
    a(f"s_mov_b32 s33, {QSCALE:#x}")
    a("s_lshl_b32 s29, s25, 17")
    a("s_add_u32 s28, s28, s29")
    for uu in range(2):
        for tl in range(2):
            acc = VACC+16*uu+8*tl; o = VT+4*((2*uu+tl)&3)
            for j in range(8): a(f"v_mul_f32 v{acc+j}, s33, v{acc+j}")
            pack_pair16(acc, acc+4, o)
            a(f"v_permlane16_swap_b32 v{o}, v{o+2}")
            a(f"v_permlane16_swap_b32 v{o+1}, v{o+3}")
            a(f"s_add_u32 s29, s28, {uu*65536 + tl*1024}")
            out_store(a, f"buffer_store_dwordx4 {vr(o)}, v{VL16}, s[8:11], s29 offen")
    a("s_endpgm")
    a.label("k2_kmain")
    a("s_sub_u32 s29, s25, 16")
    a(f"s_mul_i32 s29, s29, {2*KVH}")
    a("s_add_u32 s28, s28, s29")
    for uu in range(2):
        for tl in range(2):
            acc = VACC+16*uu+8*tl; o = VT+4*((2*uu+tl)&3)
            pack_pair16(acc, acc+4, o)
            a(f"v_permlane16_swap_b32 v{o}, v{o+2}")
            a(f"v_permlane16_swap_b32 v{o+1}, v{o+3}")
            a(f"s_add_u32 s29, s28, {uu*KVH + KV_KA + tl*1024}")
            out_store(a, f"buffer_store_dwordx4 {vr(o)}, v{VL16}, s[16:19], s29 offen")
    a("s_endpgm")
    a.label("k2_ext")
    a("s_cmp_ge_u32 s25, 50\ns_cbranch_scc1 k2_kext")
    a(f"s_mov_b32 s33, {QSCALE:#x}")
    a(f"v_lshlrev_b32 v5, 15, v{VG}               ; 2g heads * 16384")
    a(f"v_lshl_add_u32 v5, v{VTOK}, 3, v5")
    a("s_sub_u32 s29, s25, 48")
    a("s_lshl_b32 s29, s29, 18")
    a("s_lshl_b32 s28, s24, 9         ; rb*64*8")
    a("s_add_u32 s28, s28, s29")
    a(f"v_mov_b32 v{VT+1}, 0")
    a(f"v_mov_b32 v{VT+3}, 0")
    for uu in range(2):
        for tb in range(4):
            acc = VACC+16*uu+4*tb
            for j in range(4): a(f"v_mul_f32 v{acc+j}, s33, v{acc+j}")
            a(f"v_cvt_pk_bf16_f32 v{VT}, v{acc}, v{acc+1}")
            a(f"v_cvt_pk_bf16_f32 v{VT+2}, v{acc+2}, v{acc+3}")
            a(f"s_add_u32 s29, s28, {uu*8*16384 + tb*128}")
            a(f"buffer_store_dwordx2 {vr(VT,2)}, v5, s[12:15], s29 offen")
            a(f"s_add_u32 s29, s29, 16384")
            a(f"buffer_store_dwordx2 {vr(VT+2,2)}, v5, s[12:15], s29 offen")
    a("s_endpgm")
    a.label("k2_kext")
    a(f"v_mul_u32_u24 v5, {2*KVH}, v{VG}")
    a(f"v_lshl_add_u32 v5, v{VTOK}, 3, v5")
    a("s_sub_u32 s29, s25, 50")
    a(f"s_mul_i32 s29, s29, {16*KVH}")
    a("s_lshl_b32 s28, s24, 9")
    a("s_add_u32 s28, s28, s29")
    a(f"v_mov_b32 v{VT+1}, 0x3f80")
    a(f"v_mov_b32 v{VT+3}, 0x3f80")
    for uu in range(2):
        for tb in range(4):
            acc = VACC+16*uu+4*tb
            a(f"v_cvt_pk_bf16_f32 v{VT}, v{acc}, v{acc+1}")
            a(f"v_cvt_pk_bf16_f32 v{VT+2}, v{acc+2}, v{acc+3}")
            a(f"s_add_u32 s29, s28, {uu*8*KVH + KV_KB + tb*128}")
            a(f"buffer_store_dwordx2 {vr(VT,2)}, v5, s[16:19], s29 offen")
            a(f"s_add_u32 s29, s29, {KVH}")
            a(f"buffer_store_dwordx2 {vr(VT+2,2)}, v5, s[16:19], s29 offen")
    a("s_endpgm")
    a.label("k2_gv")
    gemm(True)
    srd(a, 16, 20, SZ_KV, WS_KV)
    a(f"v_and_b32 v6, 1, v{VG}")
    a(f"v_mul_u32_u24 v5, 304, v6")
    a(f"v_lshrrev_b32 v6, 1, v{VG}")
    a(f"v_mul_u32_u24 v6, 608, v6")
    a(f"v_add_u32 v5, v5, v6")
    a(f"s_mul_i32 s28, s24, {2*1216}")
    a("s_cmp_ge_u32 s25, 52\ns_cbranch_scc1 k2_vext")
    a(f"v_lshl_add_u32 v5, v{VTOK}, 4, v5          ; d = m")
    a("s_sub_u32 s29, s25, 32")
    a(f"s_mul_i32 s29, s29, {2*KVH}")
    a("s_add_u32 s28, s28, s29")
    a(f"s_mov_b32 s31, {KVH}")
    a("s_branch k2_vstore")
    a.label("k2_vext")
    a(f"v_lshrrev_b32 v6, 1, v{VTOK}")
    a(f"v_mul_u32_u24 v6, {KVH}, v6")
    a(f"v_add_u32 v5, v5, v6")
    a(f"v_and_b32 v6, 1, v{VTOK}")
    a(f"v_lshl_add_u32 v5, v6, 4, v5")
    a(f"v_add_u32 v5, 256, v5                      ; d = 16 + (m&1)")
    a("s_sub_u32 s29, s25, 52")
    a(f"s_mul_i32 s29, s29, {16*KVH}")
    a("s_add_u32 s28, s28, s29")
    a(f"s_mov_b32 s31, {8*KVH}")
    a.label("k2_vstore")
    for uu in range(2):
        for tl in range(2):
            acc = VACC+16*uu+8*tl; o = VT+4*((2*uu+tl)&3)
            pack_pair16(acc, acc+4, o)
            a(f"v_permlane32_swap_b32 v{o}, v{o+2}")
            a(f"v_permlane32_swap_b32 v{o+1}, v{o+3}")
            a(f"s_add_u32 s29, s28, {KV_V + tl*1216}")
            out_store(a, f"buffer_store_dwordx4 {vr(o)}, v5, s[16:19], s29 offen")
        if uu == 0: a("s_add_u32 s28, s28, s31")
    a("s_endpgm")
    if not fused:
        a.label("k2_side")
        wave_id(a, 22, 1)
        a("s_cmp_ge_u32 s24, 18\ns_cbranch_scc1 k2_side_wo")
        a("s_lshr_b32 s45, s22, 2")
        a("s_lshl_b32 s44, s24, 1")
        a("s_add_u32 s44, s44, s45")
        a("s_add_u32 s44, s44, 18")
        a("s_mul_i32 s45, s45, 12288")
        gen_mod(a, "k2")
        a.label("k2_side_wo")
        a("s_sub_u32 s23, s24, 18")
        a("s_lshl_b32 s23, s23, 3")
        a("s_add_u32 s23, s23, s22")
        a("s_cmp_ge_u32 s23, 72\ns_cbranch_scc1 k2_exit")
        gen_ldsshuf(a, "k2", False, True)
    a.label("k2_exit")

def own_ln_loads(a, base, q=52):
    load_ptr(a, 54 if False else 56, KA_X)
    a("v_and_b32 v116, 63, v0")
    a("v_and_b32 v117, 15, v116")
    a("v_mul_u32_u24 v117, 1152, v117")
    a("v_lshrrev_b32 v116, 4, v116")
    a("v_lshl_add_u32 v116, v116, 4, v117")
    a("s_and_b32 s58, s2, 7\ns_lshr_b32 s58, s58, 1\ns_lshl_b32 s58, s58, 3")
    a("s_lshr_b32 s59, s2, 3\ns_and_b32 s59, s59, 7\ns_add_u32 s58, s58, s59")
    a(f"s_mul_i32 s58, s58, {64*1152}")
    a(f"s_lshr_b32 s59, s47, 1\ns_mul_i32 s59, s59, {16*1152}\ns_add_u32 s58, s58, s59")
    a("s_and_b32 s59, s47, 1\ns_mul_i32 s59, s59, 576\ns_add_u32 s58, s58, s59")
    a("s_waitcnt lgkmcnt(0)")
    srd(a, q, 56, SZ_X)
    for i in range(9):
        a(f"buffer_load_dwordx4 {vr(base+4*i)}, v116, s[{q}:{q+3}], s58 offen offset:{i*64}")

def own_ln_post(a):
    VL=1; VTOK=2; VX=16; VS=56; VQ=57; VT=58; RS=60; TT=64
    a(f"v_and_b32 v{VL}, 63, v0")
    a(f"v_and_b32 v{VTOK}, 15, v{VL}")
    a("s_mov_b32 s30, 0x3f803f80")
    a("s_waitcnt vmcnt(0)")
    ln_stats(a, VX, 36, VS, VQ, 30)
    xsum16_32(a, VS, VT); xsum16_32(a, VQ, VT)
    a("s_lshl_b32 s28, s22, 7")
    a(f"v_lshlrev_b32 v6, 3, v{VTOK}")
    a("v_add_u32 v7, s28, v6")
    a(f"ds_write_b64 v7, {vr(VS,2)}")
    a("s_waitcnt lgkmcnt(0)")
    a("s_barrier")
    a("s_xor_b32 s28, s22, 1")
    a("s_lshl_b32 s28, s28, 7")
    a("v_add_u32 v7, s28, v6")
    a(f"ds_read_b64 {vr(VT,2)}, v7")
    a("s_waitcnt lgkmcnt(0)")
    a(f"v_add_f32 v{VS}, v{VS}, v{VT}")
    a(f"v_add_f32 v{VQ}, v{VQ}, v{VT+1}")
    ln_finish(a, VS, VQ, RS, RS+2)
    a(f"v_mov_b32 v{RS+1}, v{RS}")
    a(f"v_mov_b32 v{RS+3}, v{RS+2}")
    for i in range(9):
        chunk_unpack(a, VX+4*i, TT); chunk_norm(a, TT, RS); chunk_pack(a, TT, VX+4*i)
```
